```python
import torch

def _softmax(x, axis=-1):
    return torch.softmax(x, dim=axis)
def _gelu(x):
    return torch.nn.functional.gelu(x, approximate="tanh")
def _silu(x):
    return torch.nn.functional.silu(x)
def _sigmoid(x):
    return torch.sigmoid(x)
def _layernorm(x, axis=-1, eps=1e-5):
    m = x.mean(dim=axis, keepdim=True)
    v = x.var(dim=axis, keepdim=True, unbiased=False)
    return (x - m) / torch.sqrt(v + eps)
def _scatter_add(tgt, idx, src, axis=0):
    return tgt.clone().index_add_(axis, idx, src)
def _segment_sum(src, seg, n):
    out = torch.zeros((n,) + src.shape[1:], dtype=src.dtype)
    return out.index_add_(0, seg, src)
def _pad(x, pw):
    flat = tuple(v for pair in reversed(pw) for v in pair)
    return torch.nn.functional.pad(x, flat)

kernel_name = 'interleave_layers__sliding_block_cached__mixer_token_mlp__decode'

def setup_inputs():

    _w = (lambda a: (lambda t: t.to(torch.bfloat16) if t.is_floating_point() else t)(torch.as_tensor(a)))
    def _A_setup():
        B, Sq, D = 2, 1, 576
        Hq, Hkv, Sk, Dh = 32, 16, 8192, 128
        assert Hq % Hkv == 0, (Hq, Hkv)
        return {
            "x": _w((lambda *s: torch.randn(*s, dtype=torch.bfloat16) * 0.1)(B, Sq, D)),
            "k_cache": _w((lambda *s: torch.randn(*s, dtype=torch.bfloat16) * 0.8)(B, Hkv, Sk, Dh)),
            "v_cache": _w((lambda *s: torch.randn(*s, dtype=torch.bfloat16) * 3.2)(B, Hkv, Sk, Dh)),
            "wq": _w((lambda *s: torch.randn(*s, dtype=torch.bfloat16) * 0.8)(D, Hq * Dh) * (D ** -0.5)),
            "wo": _w((lambda *s: torch.randn(*s, dtype=torch.bfloat16) * 3.2)(Hq * Dh, D) * ((Hq * Dh) ** -0.5)),
        }
    _A_in = _A_setup()

    def _B_setup():
        B, S, D, F = 2, 1, 576, 4608
        return {
            "x": _w((lambda *s: torch.randn(*s, dtype=torch.bfloat16) * 0.1)(B, S, D)),
            "w1": _w((lambda *s: torch.randn(*s, dtype=torch.bfloat16) * 3.2)(S, F) * (S ** -0.5)),
            "b1": _w((lambda *s: torch.randn(*s, dtype=torch.bfloat16) * 3.2)(F) * 0.02),
            "w2": _w((lambda *s: torch.randn(*s, dtype=torch.bfloat16) * 0.8)(F, S) * (F ** -0.5)),
            "b2": _w((lambda *s: torch.randn(*s, dtype=torch.bfloat16) * 0.8)(S) * 0.02),
        }
    _B_in = _B_setup()

    return {
        "A_x": _A_in["x"],
        "A_k_cache": _A_in["k_cache"],
        "A_v_cache": _A_in["v_cache"],
        "A_wq": _A_in["wq"],
        "A_wo": _A_in["wo"],
        "B_x": _B_in["x"],
        "B_w1": _B_in["w1"],
        "B_b1": _B_in["b1"],
        "B_w2": _B_in["w2"],
        "B_b2": _B_in["b2"],
    }

def reference(A_x, A_k_cache, A_v_cache, A_wq, A_wo, B_x, B_w1, B_b1, B_w2, B_b2):
    def _A_ref(x, k_cache, v_cache, wq, wo):
        B, Sq, D = x.shape
        Hq, Dh = 32, 128
        Hkv, Sk = k_cache.shape[1], k_cache.shape[2]
        W = min(4096, max(256, Sk // 4))
        rep = Hq // Hkv
        q = (lambda x, *d: x.permute(*d))((x @ wq).reshape(B, Sq, Hq, Dh), 0, 2, 1, 3)
        k = (lambda x, n, axis: torch.repeat_interleave(x, n, dim=axis))(k_cache[:, :, Sk - W:, :], rep, axis=1)
        v = (lambda x, n, axis: torch.repeat_interleave(x, n, dim=axis))(v_cache[:, :, Sk - W:, :], rep, axis=1)
        scores = torch.einsum("bhqd,bhkd->bhqk", q, k) * (Dh ** -0.5)
        p = _softmax(scores, axis=-1)
        o = torch.einsum("bhqk,bhkd->bhqd", p, v)
        return (lambda x, *d: x.permute(*d))(o, 0, 2, 1, 3).reshape(B, Sq, Hq * Dh) @ wo

    def _B_ref(x, w1, b1, w2, b2):
        B, S, D = x.shape
        h = _layernorm(x, axis=-1)
        u = torch.einsum("bsd,sf->bdf", h, w1) + b1
        u = _gelu(u)
        y = torch.einsum("bdf,fs->bds", u, w2) + b2
        return (lambda x, *d: x.permute(*d))(y, 0, 2, 1)

    x = A_x
    x = x + _A_ref(_layernorm(x, axis=-1), A_k_cache, A_v_cache, A_wq, A_wo)
    x = x + _B_ref(_layernorm(x, axis=-1), B_w1, B_b1, B_w2, B_b2)
    x = x + _A_ref(_layernorm(x, axis=-1), A_k_cache, A_v_cache, A_wq, A_wo)
    x = x + _B_ref(_layernorm(x, axis=-1), B_w1, B_b1, B_w2, B_b2)
    return x
```

```python
import re

TRANS = ("v_exp_f32", "v_log_f32", "v_rcp_f32", "v_rsq_f32", "v_sqrt_f32", "v_sin_f32", "v_cos_f32")


def split_ops(s):
    out, depth, cur = [], 0, ""
    for ch in s:
        if ch in "[(":
            depth += 1
        elif ch in "])":
            depth -= 1
        if ch == "," and depth == 0:
            out.append(cur.strip())
            cur = ""
        else:
            cur += ch
    if cur.strip():
        out.append(cur.strip())
    return out


def regs_of(tok):
    tok = tok.strip().split(" ")[0]
    tok = tok.lstrip("-").replace("abs(", "").replace(")", "").replace("|", "")
    m = re.fullmatch(r"([vsa])(\d+)", tok)
    if m:
        return {(m.group(1), int(m.group(2)))}
    m = re.fullmatch(r"([vsa])\[(\d+):(\d+)\]", tok)
    if m:
        return {(m.group(1), i) for i in range(int(m.group(2)), int(m.group(3)) + 1)}
    if tok == "vcc":
        return {("s", "vcc")}
    if tok == "m0":
        return {("s", "m0")}
    if tok == "exec":
        return {("s", "exec")}
    return set()


class Ins:
    def __init__(self, text):
        self.text = text
        t = text.split(";")[0].strip()
        self.label = None
        self.is_ins = False
        if t.endswith(":"):
            self.label = t[:-1]
            return
        if not t or t.startswith("."):
            return
        self.is_ins = True
        parts = t.split(None, 1)
        self.mn = mn = parts[0]
        ops = split_ops(parts[1]) if len(parts) > 1 else []
        self.ops = ops
        R = [regs_of(o) for o in ops]
        self.mfma = mn.startswith("v_mfma")
        self.valu = mn.startswith("v_") and not self.mfma
        self.trans = mn.replace("_e64", "").replace("_e32", "") in TRANS
        self.dpp = mn.endswith("_dpp")
        self.perml = mn.startswith("v_permlane")
        self.rdlane = mn.startswith("v_readlane") or mn.startswith("v_readfirstlane")
        self.wrlane = mn.startswith("v_writelane")
        self.ds = mn.startswith("ds_")
        self.vmem = mn.startswith("global_") or mn.startswith("buffer_")
        self.salu = mn.startswith("s_")
        self.ldsdma = mn.startswith("global_load_lds")
        self.ws = 1
        if mn == "s_nop":
            self.ws = int(ops[0]) + 1
        self.dst, self.src = set(), set()
        self.srcC = set()
        self.srcAB = set()
        self.stdata = set()
        self.lanesel = set()
        if self.mfma:
            self.dst = R[0]
            self.srcAB = R[1] | R[2]
            self.srcC = R[3]
            self.src = self.srcAB | self.srcC
        elif self.valu:
            self.dst = set(R[0])
            for r in R[1:]:
                self.src |= r
            if self.perml:
                self.dst |= R[1]
                self.src |= R[0]
            if mn.startswith("v_fmac") or self.wrlane or (self.dpp and mn.startswith("v_mov")):
                self.src |= R[0]
            if (mn.startswith("v_readlane") or self.wrlane) and len(R) > 2:
                self.lanesel = R[2]
        elif self.ds:
            if mn.startswith("ds_read") or mn.startswith("ds_bpermute"):
                self.dst = R[0]
                for r in R[1:]:
                    self.src |= r
            else:
                for r in R:
                    self.src |= r
        elif self.vmem:
            if self.ldsdma:
                for r in R:
                    self.src |= r
                self.src |= {("s", "m0")}
            elif "_load" in mn:
                self.dst = R[0]
                for r in R[1:]:
                    self.src |= r
            else:
                for r in R:
                    self.src |= r
                if mn.endswith("x4") or mn.endswith("x3"):
                    self.stdata = R[1]
        elif self.salu:
            if mn.startswith("s_cmp") or mn.startswith("s_cbranch") or mn.startswith("s_bitcmp") or mn in (
                "s_branch", "s_nop", "s_waitcnt", "s_barrier", "s_endpgm", "s_setprio", "s_sleep", "s_setpc_b64"):
                for r in R:
                    self.src |= r
            else:
                self.dst = R[0] if R else set()
                for r in R[1:]:
                    self.src |= r
        self.target = None
        if mn.startswith("s_cbranch") or mn == "s_branch":
            self.target = ops[0]
        if mn == "s_call_b64":
            self.target = ops[1]


def need(p, c):
    n = 0
    vd = {r for r in p.dst if r[0] in "va"}
    sd = {r for r in p.dst if r[0] == "s"}
    if p.valu:
        if vd & c.src:
            if c.dpp or c.perml:
                n = max(n, 2)
            if c.rdlane:
                n = max(n, 1)
            if c.mfma:
                n = max(n, 2)
            if p.trans and (c.valu or c.mfma):
                n = max(n, 1)
        if sd:
            if c.valu and (sd & c.src):
                n = max(n, 2)
            if sd & c.lanesel:
                n = max(n, 4)
            if c.vmem and (sd & c.src):
                n = max(n, 5)
    if p.mfma:
        if c.mfma:
            if p.dst & c.srcAB:
                n = max(n, 8)
            if (p.dst & c.srcC) and p.dst != c.srcC:
                n = max(n, 6)
            if (p.dst & c.dst) and p.dst != c.srcC:
                n = max(n, 8)
        elif (c.valu or c.ds or c.vmem) and (p.dst & (c.src | c.dst)):
            n = max(n, 8)
        if c.valu and (p.srcC & c.dst):
            n = max(n, 3)
    if p.stdata and (p.stdata & c.dst):
        n = max(n, 2)
    if p.salu and ("s", "m0") in p.dst and c.ldsdma:
        n = max(n, 1)
    return n


def pad(lines):
    ins = [Ins(l) for l in lines]
    WIN = 10
    for _ in range(4):
        at_label = getattr(pad, "_lab", {})
        new_lab = {}
        out = []
        hists = [[]]
        changed = False
        for x in ins:
            if x.label is not None:
                hists = hists + at_label.get(x.label, []) + new_lab.get(x.label, [])
                out.append(x)
                continue
            if not x.is_ins:
                out.append(x)
                continue
            req = 0
            for h in hists:
                d = 0
                for p in reversed(h):
                    k = need(p, x)
                    if k > d:
                        req = max(req, k - d)
                    d += p.ws
                    if d >= WIN:
                        break
            if req > 0:
                nop = Ins("s_nop %d" % (req - 1))
                out.append(nop)
                hists = [h + [nop] for h in hists]
                changed = True
            out.append(x)
            hists = [(h + [x])[-WIN:] for h in hists]
            uniq = []
            for h in hists:
                if not any(len(h) == len(u) and all(a is b for a, b in zip(h, u)) for u in uniq):
                    uniq.append(h)
            hists = uniq
            if x.target is not None:
                new_lab.setdefault(x.target, []).extend([list(h) for h in hists])
            if x.mn in ("s_branch", "s_endpgm", "s_setpc_b64"):
                hists = [[]]
        ins = out
        pad._lab = new_lab
        if not changed and _ > 0:
            break
    pad._lab = {}
    return [x.text for x in ins]


class Asm:
    def __init__(self):
        self.lines = []

    def __call__(self, text):
        for l in text.strip("\n").split("\n"):
            l = l.strip()
            if l:
                self.lines.append(l)

    def label(self, name):
        self.lines.append(name + ":")

    def finish(self):
        out = []
        for l in pad(self.lines):
            if l.endswith(":") or l.startswith("."):
                out.append(l)
            else:
                out.append("    " + l)
        return "\n".join(out) + "\n"
```

```python
import math, struct, sys
from asmlib import Asm

NAME = "interleave_layers__sliding_block_cached__mixer_token_mlp__decode_kernel"


def f2u(x):
    return struct.unpack("<I", struct.pack("<f", x))[0]


def hx(x):
    return "0x%08x" % (x & 0xFFFFFFFF)


def fl(x):
    return hx(f2u(x))


def gen(DIAG=False, NTKV=" nt", NTW=" nt", E_LO=114, FORCE_SLOW=False, POLL_LIMIT=1 << 20):
    A = Asm()
    LOG2E = math.log2(math.e)
    K0 = 2 * math.sqrt(2 / math.pi) * LOG2E
    K1 = K0 * 0.044715
    SC = K1 ** (1.0 / 3.0)
    KAP = K0 / SC
    SMC = 128 ** -0.5 * LOG2E
    E0 = E_LO << 7
    TABP, WQS, PART, PSTR = 0, 4096, 40960, 1040
    ML, OV, XSA, XSB, XN, TRED = 49280, 49408, 49920, 52224, 54528, 59136
    TABN, WOS = 65536, 69632
    LDS = 106560
    W_HQ, W_HO, W_HM, W_HX, W_HT, W_DIAG = 0, 65536, 589824, 598016, 745472, 1 << 20
    L_HQ, L_HO, L_HM, L_HX = 32768, 262144, 4096, 73728
    sX, sK, sV, sWQ, sWO, sW1, sB1, sW2, sB2, sOUT, sDBG, sWS = 4, 6, 8, 10, 12, 16, 18, 20, 22, 24, 26, 28
    sWV, sHKV, sB, sS, sGID, sL, sFAST, sXCC, sCNT, sP = 30, 31, 32, 33, 34, 35, 36, 37, 38, 39
    sH, sRET, sHQ, sHO, sHM, sHX = 40, 56, 58, 60, 62, 64
    sT0, sT1, sT2, sSMC, sT3 = 66, 67, 68, 69, 3
    sMSK = 14
    sSTAMP = 70

    def sp(r):
        return "s[%d:%d]" % (r, r + 1)

    def V(a, n=1):
        return "v%d" % a if n == 1 else "v[%d:%d]" % (a, a + n - 1)

    vT, vL = 0, 1
    aHQL, aHQS, aHOL, aHOS, aHML, aHXL, aHXS = 2, 3, 4, 5, 6, 7, 11
    lPW, lPR, lMR, lMW, lOW, lOR, lXC, lXP, lXS, lNW, lNH, lNR = 12, 13, 14, 15, 16, 17, 18, 19, 20, 21, 22, 23
    vS = 24
    vK = 32
    vA = 64
    vVT = 100
    vWQ = 132
    vWO = 168
    vMA, vKAP, vMC, vONE, vMW, vB2 = 200, 209, 210, 219, 220, 229
    vONES = 230
    vQ = 234
    vXA = 234
    vP = 250
    vINV, vM = 254, 255
    vACC, vTT = 100, 116
    stamp_n = [0]

    def stamp():
        if DIAG:
            i = stamp_n[0]
            stamp_n[0] += 1
            A("s_memrealtime %s" % sp(sSTAMP + 2 * i))
            A("s_waitcnt lgkmcnt(0)")

    def bc(r):
        return V(r & ~1, 2), r & 1

    def add64(base, off_reg):
        A("s_add_u32 s%d, s%d, %s" % (base, base, off_reg))
        A("s_addc_u32 s%d, s%d, 0" % (base + 1, base + 1))

    def store2(text):
        n = len(A.lines)
        A("s_cmp_eq_u32 s%d, 0" % sFAST)
        A("s_cbranch_scc1 Lsl%d" % n)
        for t in text:
            A(t)
        A("s_branch Lsd%d" % n)
        A.label("Lsl%d" % n)
        for t in text:
            A(t + " sc1")
        A.label("Lsd%d" % n)

    def maxtree(dst, regs):
        regs = list(regs)
        A("v_max3_u32 %s, %s, %s, %s" % (V(dst), V(regs[0]), V(regs[1]), V(regs[2])))
        regs = regs[3:]
        while len(regs) >= 2:
            A("v_max3_u32 %s, %s, %s, %s" % (V(dst), V(dst), V(regs[0]), V(regs[1])))
            regs = regs[2:]
        if regs:
            A("v_max_u32 %s, %s, %s" % (V(dst), V(dst), V(regs[0])))

    def poll_tail(label, tmp):
        A("v_cmp_eq_u32 vcc, -1, %s" % V(tmp))
        A("s_cbranch_vccz %s_ok" % label)
        A("s_sub_u32 s%d, s%d, 1" % (sCNT, sCNT))
        A("s_cbranch_scc0 %s" % label)
        A("s_mov_b32 s%d, 0" % sCNT)
        A.label("%s_ok" % label)

    DPP = " row_mask:0xf bank_mask:0xf"

    def stats(t):
        x = lambda i: V(vXA + 2 * i, 2)
        a, b, q = V(t, 2), V(t + 2, 2), V(t + 4, 2)
        S, Q = t + 6, t + 7
        A("v_pk_add_f32 %s, %s, %s" % (a, x(0), x(1)))
        A("v_pk_mul_f32 %s, %s, %s" % (q, x(0), x(0)))
        A("v_pk_add_f32 %s, %s, %s" % (b, x(2), x(3)))
        A("v_pk_fma_f32 %s, %s, %s, %s" % (q, x(1), x(1), q))
        A("v_pk_add_f32 %s, %s, %s" % (a, a, b))
        A("v_pk_fma_f32 %s, %s, %s, %s" % (q, x(2), x(2), q))
        A("v_add_f32 %s, %s, %s" % (V(S), V(t), V(vXA + 8)))
        A("v_pk_fma_f32 %s, %s, %s, %s" % (q, x(3), x(3), q))
        A("v_add_f32 %s, %s, %s" % (V(S), V(S), V(t + 1)))
        A("v_fma_f32 %s, %s, %s, %s" % (V(Q), V(vXA + 8), V(vXA + 8), V(t + 4)))
        A("v_add_f32 %s, %s, %s" % (V(Q), V(Q), V(t + 5)))
        for ctl in ("quad_perm:[1,0,3,2]" + DPP, "quad_perm:[2,3,0,1]" + DPP, "row_half_mirror" + DPP,
                    "row_mirror" + DPP, "row_bcast:15 row_mask:0xa bank_mask:0xf",
                    "row_bcast:31 row_mask:0xc bank_mask:0xf"):
            A("v_add_f32_dpp %s, %s, %s %s" % (V(S), V(S), V(S), ctl))
            A("v_add_f32_dpp %s, %s, %s %s" % (V(Q), V(Q), V(Q), ctl))
        A("v_readlane_b32 s%d, %s, 63" % (sT0, V(S)))
        A("v_readlane_b32 s%d, %s, 63" % (sT1, V(Q)))
        A("v_mul_f32 %s, s%d, %s" % (V(t), sT0, V(vINV)))
        A("v_mul_f32 %s, s%d, %s" % (V(t + 1), sT1, V(vINV)))
        A("v_fma_f32 %s, -%s, %s, %s" % (V(t + 1), V(t), V(t), V(t + 1)))
        A("v_max_f32 %s, 0, %s" % (V(t + 1), V(t + 1)))

    def normalize(dst, t, r):
        A("v_mul_f32 %s, %s, %s" % (V(t + 2), V(t), V(r)))
        rp, rs = bc(r)
        mp, ms = bc(t + 2)
        for i in range(4):
            A("v_pk_fma_f32 %s, %s, %s, %s op_sel:[0,%d,%d] op_sel_hi:[1,%d,%d] neg_lo:[0,0,1] neg_hi:[0,0,1]" % (
                V(dst + 2 * i, 2), V(vXA + 2 * i, 2), rp, mp, rs, ms, rs, ms))
        A("v_fma_f32 %s, %s, %s, -%s" % (V(dst + 8), V(vXA + 8), V(r), V(t + 2)))

    def reduce8(o, ml, M, e, norm):
        A("v_max_f32_dpp %s, %s, %s quad_perm:[1,0,3,2]%s" % (V(M), V(ml), V(ml), DPP))
        A("v_max_f32_dpp %s, %s, %s quad_perm:[2,3,0,1]%s" % (V(M), V(M), V(M), DPP))
        A("v_max_f32_dpp %s, %s, %s row_half_mirror%s" % (V(M), V(M), V(M), DPP))
        A("v_sub_f32 %s, %s, %s" % (V(e), V(ml), V(M)))
        A("v_exp_f32 %s, %s" % (V(e), V(e)))
        A("v_mov_b32 %s, %s" % (V(ml), V(M)))
        ep, es = bc(e)
        A("v_mul_f32 %s, %s, %s" % (V(ml + 1), V(ml + 1), V(e)))
        for i in range(2):
            A("v_pk_mul_f32 %s, %s, %s op_sel:[0,%d] op_sel_hi:[1,%d]" % (V(o + 2 * i, 2), V(o + 2 * i, 2), ep, es, es))
        for ctl in ("quad_perm:[1,0,3,2]", "quad_perm:[2,3,0,1]", "row_half_mirror"):
            for r in (ml + 1, o, o + 1, o + 2, o + 3):
                A("v_add_f32_dpp %s, %s, %s %s%s" % (V(r), V(r), V(r), ctl, DPP))
        if norm:
            A("v_rcp_f32 %s, %s" % (V(e), V(ml + 1)))
            for i in range(2):
                A("v_pk_mul_f32 %s, %s, %s op_sel:[0,%d] op_sel_hi:[1,%d]" % (V(o + 2 * i, 2), V(o + 2 * i, 2), ep, es, es))

    A.label(NAME)
    A("s_cmp_ge_u32 s2, 0x100")
    A("s_cbranch_scc1 Lend")
    A("s_load_dwordx16 s[4:19], s[0:1], 0")
    A("s_load_dwordx8 s[20:27], s[0:1], 64")
    A("s_load_dwordx2 s[28:29], s[0:1], 96")
    A("v_lshrrev_b32 v24, 6, v0")
    A("v_and_b32 v1, 63, v0")
    A("v_readfirstlane_b32 s%d, v24" % sWV)
    A("s_and_b32 s%d, s2, 7" % sT0)
    A("s_lshr_b32 s%d, s2, 3" % sT1)
    A("s_lshr_b32 s%d, s%d, 4" % (sT2, sT1))
    A("s_lshl_b32 s%d, s%d, 1" % (sHKV, sT0))
    A("s_add_u32 s%d, s%d, s%d" % (sHKV, sHKV, sT2))
    A("s_bfe_u32 s%d, s%d, 0x10003" % (sB, sT1))
    A("s_and_b32 s%d, s%d, 7" % (sS, sT1))
    A("s_lshl_b32 s%d, s%d, 4" % (sGID, sB))
    A("s_add_u32 s%d, s%d, s%d" % (sGID, sGID, sHKV))
    A("s_lshr_b32 s%d, s%d, 2" % (sP, sS))
    A("s_getreg_b32 s%d, hwreg(HW_REG_XCC_ID, 0, 4)" % sXCC)
    A("s_mov_b32 s%d, 0" % sL)
    A("s_mov_b32 s%d, 0" % sFAST)
    A("s_mov_b32 s%d, %d" % (sCNT, POLL_LIMIT))
    A("s_mov_b32 s%d, %s" % (sSMC, fl(SMC)))
    A("v_and_b32 v24, 15, v1")
    A("v_lshrrev_b32 v25, 4, v1")
    A("v_and_b32 v26, 7, v1")
    A("v_lshrrev_b32 v27, 3, v1")
    A("v_lshlrev_b32 v28, 2, v1")
    A("v_lshlrev_b32 v29, 1, v1")
    A("v_lshlrev_b32 v30, 4, v0")
    A("v_lshlrev_b32 v31, 1, v0")
    A("v_add_u32 v31, 0x2000, v31")
    for r in (vXA + 8, vMA + 8, vMC + 8, vMW + 8, vB2):
        A("v_mov_b32 %s, 0" % V(r))
    for i in range(4):
        A("v_mov_b32 %s, -1" % V(244 + i))
    A("v_mov_b32 v248, 0")
    A("s_waitcnt lgkmcnt(0)")
    stamp()
    for (r, base, mul, src) in ((sHQ, W_HQ, 1024, sGID), (sHO, W_HO, 8192, sGID), (sHM, W_HM, 128, sGID), (sHX, W_HX, 36864, sB)):
        A("s_mul_i32 s%d, s%d, %d" % (sT0, src, mul))
        A("s_add_u32 s%d, s%d, %d" % (sT0, sT0, base))
        A("s_add_u32 s%d, s%d, s%d" % (r, sWS, sT0))
        A("s_addc_u32 s%d, s%d, 0" % (r + 1, sWS + 1))
    A("s_cmp_gt_u32 s%d, 2" % sWV)
    A("s_cbranch_scc1 Linit_done")
    A("s_cmp_eq_u32 s%d, 2" % sWV)
    A("s_cbranch_scc1 Linit_misc")
    A("s_mul_i32 s%d, s%d, %d" % (sT0, sWV, L_HO))
    A("s_lshl_b32 s%d, s%d, 10" % (sT1, sS))
    A("s_add_u32 s%d, s%d, s%d" % (sT0, sT0, sT1))
    A("v_lshl_add_u32 v249, v1, 4, s%d" % sT0)
    A("global_store_dwordx4 v249, v[244:247], %s sc1" % sp(sHO))
    A("s_branch Linit_done")
    A.label("Linit_misc")
    A("s_and_b32 s%d, s%d, 3" % (sT1, sS))
    A("s_lshl_b32 s%d, s%d, 7" % (sT1, sT1))
    A("s_lshl_b32 s%d, s%d, 9" % (sT2, sP))
    A("s_add_u32 s%d, s%d, s%d" % (sT1, sT1, sT2))
    A("s_lshl_b32 s%d, s%d, 10" % (sT2, sGID))
    A("s_add_u32 s%d, s%d, s%d" % (sT1, sT1, sT2))
    A("v_lshl_add_u32 v249, v1, 4, s%d" % sT1)

    def seg(first, sreg, const):
        A("s_add_u32 s%d, s%d, %d" % (sT0, sreg, const - 16 * first))
        A("v_lshl_add_u32 v250, v1, 4, s%d" % sT0)
        A("v_cmp_le_u32 vcc, %d, v1" % first)
        A("v_cndmask_b32 v249, v249, v250, vcc")

    seg(8, sT1, W_HQ + L_HQ)
    A("s_lshl_b32 s%d, s%d, 7" % (sT1, sGID))
    A("s_lshl_b32 s%d, s%d, 4" % (sT2, sS))
    A("s_add_u32 s%d, s%d, s%d" % (sT1, sT1, sT2))
    seg(16, sT1, W_HM)
    seg(17, sT1, W_HM + L_HM)
    A("s_mul_i32 s%d, s%d, 36864" % (sT1, sB))
    A("s_mul_i32 s%d, s%d, 2304" % (sT2, sHKV))
    A("s_add_u32 s%d, s%d, s%d" % (sT1, sT1, sT2))
    A("s_mul_i32 s%d, s%d, 288" % (sT2, sS))
    A("s_add_u32 s%d, s%d, s%d" % (sT1, sT1, sT2))
    seg(18, sT1, W_HX)
    seg(36, sT1, W_HX + L_HX)
    A("s_lshl_b32 s%d, s2, 5" % sT1)
    seg(54, sT1, W_HT)
    A("s_mov_b32 exec_hi, 0x00ffffff")
    A("global_store_dwordx4 v249, v[244:247], %s sc1" % sp(sWS))
    A("s_mov_b32 exec_hi, -1")
    A.label("Linit_done")
    A("s_mul_i32 s%d, s%d, 1152" % (sT0, sB))
    add64(sX, "s%d" % sT0)
    add64(sOUT, "s%d" % sT0)
    for i in range(3):
        A("global_load_dwordx4 %s, v30, %s" % (V(vA + 4 * i, 4), sp((sW1, sB1, sW2)[i])))
        A("global_load_short_d16_hi %s, v31, %s" % (V((vMA, vMC, vMW)[i] + 8), sp((sW1, sB1, sW2)[i])))
    A("global_load_short_d16_hi %s, v248, %s" % (V(vB2), sp(sB2)))
    for i in range(4):
        A("global_load_dword %s, v28, %s offset:%d" % (V(vA + 12 + i), sp(sX), 256 * i))
    A("global_load_short_d16_hi %s, v29, %s offset:1024" % (V(vXA + 8), sp(sX)))
    A("s_mul_i32 s%d, s%d, %d" % (sT0, sP, 288 * 8192))
    A("s_lshl_b32 s%d, s%d, 9" % (sT1, sHKV))
    A("s_add_u32 s%d, s%d, s%d" % (sT0, sT0, sT1))
    A("s_and_b32 s%d, s%d, 3" % (sT1, sS))
    A("s_lshl_b32 s%d, s%d, 7" % (sT1, sT1))
    A("s_add_u32 s%d, s%d, s%d" % (sT0, sT0, sT1))
    add64(sWQ, "s%d" % sT0)
    A("v_lshlrev_b32 v249, 13, v27")
    A("v_lshl_add_u32 v249, v26, 4, v249")
    A("s_lshl_b32 s%d, s%d, 16" % (sT0, sWV))
    A("v_add_u32 v250, s%d, v249" % sT0)
    A("s_lshl_b32 s%d, s%d, 10" % (sT1, sWV))
    for i in range(4):
        A("s_add_u32 m0, s%d, %d" % (sT1, WQS + 8192 * i))
        if i:
            A("v_add_u32 v250, 0x80000, v250")
        A("global_load_lds_dwordx4 v250, %s%s" % (sp(sWQ), NTW))
    A("s_lshl_b32 s%d, s%d, 15" % (sT0, sWV))
    A("s_add_u32 s%d, s%d, %d" % (sT0, sT0, 256 * 8192))
    A("v_add_u32 v250, s%d, v249" % sT0)
    A("s_lshl_b32 s%d, s%d, 9" % (sT1, sWV))
    A("s_add_u32 m0, s%d, %d" % (sT1, WQS + 32768))
    A("s_mov_b32 exec_hi, 0")
    A("global_load_lds_dwordx4 v250, %s%s" % (sp(sWQ), NTW))
    A("s_mov_b32 exec_hi, -1")
    A("s_lshl_b32 s%d, s%d, 21" % (sT0, sGID))
    A("s_lshl_b32 s%d, s%d, 16" % (sT1, sS))
    A("s_add_u32 s%d, s%d, s%d" % (sT0, sT0, sT1))
    A("s_lshl_b32 s%d, s%d, 13" % (sT1, sWV))
    A("s_add_u32 s%d, s%d, s%d" % (sT0, sT0, sT1))
    A("s_add_u32 s%d, s%d, %d" % (sT0, sT0, 6144 * 256 + 4096))
    add64(sK, "s%d" % sT0)
    add64(sV, "s%d" % sT0)
    aK, aV = 251, 252
    A("v_and_b32 v249, 1, v27")
    A("v_lshl_add_u32 v249, v249, 2, v25")
    A("v_lshlrev_b32 v249, 4, v249")
    A("v_lshl_add_u32 %s, v26, 8, v249" % V(aK))
    A("v_lshlrev_b32 v249, 4, v24")
    A("v_lshl_add_u32 %s, v25, 10, v249" % V(aV))

    def kload(T, hf, sub):
        A("global_load_dwordx4 %s, %s, %s offset:%d%s" % (
            V(vK + 16 * T + 4 * (2 * hf + sub), 4), V(aK), sp(sK), (16 * T + 8 * sub) * 256 + hf * 128 - 4096, NTKV))

    def vload(i):
        A("global_load_dwordx4 %s, %s, %s offset:%d%s" % (
            V(vA + 4 * i, 4), V(aV), sp(sV), (16 * (i >> 2) + (i & 3)) * 256 - 4096, NTKV))

    for hf in range(2):
        for sub in range(2):
            kload(0, hf, sub)
    A("v_and_b32 v249, 1, v24")
    A("v_lshlrev_b32 v249, 9, v249")
    A("v_bfe_u32 v250, v24, 2, 1")
    A("v_lshl_add_u32 v249, v250, 8, v249")
    A("v_lshl_add_u32 %s, v25, 4, v249" % V(aHQL))
    A("s_and_b32 s%d, s%d, 3" % (sT0, sS))
    A("s_lshl_b32 s%d, s%d, 7" % (sT0, sT0))
    A("s_lshl_b32 s%d, s%d, 9" % (sT1, sP))
    A("s_add_u32 s%d, s%d, s%d" % (sT0, sT0, sT1))
    A("s_lshl_b32 s%d, s%d, 5" % (sT1, sWV))
    A("s_add_u32 s%d, s%d, s%d" % (sT0, sT0, sT1))
    A("v_lshl_add_u32 %s, v25, 3, s%d" % (V(aHQS), sT0))
    A("s_lshl_b32 s%d, s%d, 7" % (sT0, sWV))
    A("v_lshl_add_u32 v249, v27, 4, s%d" % sT0)
    A("v_lshl_add_u32 %s, v26, 10, v249" % V(aHOL))
    A("s_lshl_b32 s%d, s%d, 10" % (sT1, sS))
    A("v_add_u32 %s, s%d, v249" % (V(aHOS), sT1))
    A("v_mul_u32_u24 v250, %d, v26" % PSTR)
    A("v_add_u32 v250, %d, v250" % PART)
    A("v_add_u32 %s, v249, v250" % V(lPR))
    A("v_lshrrev_b32 v249, 1, v249")
    A("v_add_u32 %s, %d, v249" % (V(lOW), OV))
    A("s_lshr_b32 s%d, s%d, 2" % (sT0, sWV))
    A("s_lshl_b32 s%d, s%d, 3" % (sT0, sT0))
    A("v_lshl_add_u32 %s, v26, 4, s%d" % (V(aHML), sT0))
    A("v_add_u32 %s, %d, %s" % (V(lMR), ML, V(aHML)))
    A("s_lshl_b32 s%d, s%d, 8" % (sT0, sWV))
    A("v_lshl_add_u32 v249, v24, 4, s%d" % sT0)
    A("v_mul_u32_u24 v250, 2304, v25")
    A("v_add_u32 %s, v249, v250" % V(aHXL))
    for i in range(1, 4):
        A("v_add_u32 %s, %d, %s" % (V(aHXL + i), 9216 * i, V(aHXL)))
    A("v_lshrrev_b32 v250, 1, v25")
    A("v_and_b32 v253, 1, v25")
    A("v_lshl_add_u32 v250, v253, 1, v250")
    A("v_lshl_add_u32 v249, v250, 2, v249")
    A("v_add_u32 %s, %d, v249" % (V(lXC), XSA))
    A("s_mul_i32 s%d, s%d, 2304" % (sT0, sHKV))
    A("s_mul_i32 s%d, s%d, 288" % (sT1, sS))
    A("s_add_u32 s%d, s%d, s%d" % (sT0, sT0, sT1))
    A("s_lshl_b32 s%d, s%d, 6" % (sT1, sWV))
    A("s_add_u32 s%d, s%d, s%d" % (sT0, sT0, sT1))
    A("v_lshl_add_u32 %s, v25, 4, s%d" % (V(aHXS), sT0))
    A("s_mul_i32 s%d, s%d, %d" % (sT0, sWV, PSTR))
    A("s_add_u32 s%d, s%d, %d" % (sT0, sT0, PART))
    A("v_lshlrev_b32 v249, 9, v253")
    A("v_lshl_add_u32 v249, v24, 2, v249")
    A("v_add_u32 %s, s%d, v249" % (V(lPW), sT0))
    A("s_lshl_b32 s%d, s%d, 4" % (sT0, sWV))
    A("s_add_u32 s%d, s%d, %d" % (sT0, sT0, ML))
    A("v_lshl_add_u32 %s, v253, 3, s%d" % (V(lMW), sT0))
    A("v_lshlrev_b32 v249, 4, v25")
    A("v_add_u32 %s, %d, v249" % (V(lOR), OV))
    A("v_lshlrev_b32 v250, 3, v1")
    A("v_add_u32 %s, %d, v250" % (V(lXP), XSA))
    A("v_add_u32 %s, %d, v28" % (V(lXS), XSA + 2048))
    A("s_and_b32 s%d, s%d, 3" % (sT0, sWV))
    A("s_mul_i32 s%d, s%d, 1152" % (sT0, sT0))
    A("s_add_u32 s%d, s%d, %d" % (sT0, sT0, XN))
    A("v_add_u32 %s, s%d, v28" % (V(lNW), sT0))
    A("s_add_u32 s%d, s%d, 1024" % (sT1, sT0))
    A("v_add_u32 %s, s%d, v29" % (V(lNH), sT1))
    A("s_mul_i32 s%d, s%d, 576" % (sT1, sP))
    A("s_add_u32 s%d, s%d, s%d" % (sT0, sT0, sT1))
    A("v_add_u32 %s, s%d, v249" % (V(lNR), sT0))
    A("v_mov_b32 %s, %s" % (V(vKAP), fl(KAP)))
    A("v_mov_b32 %s, 1.0" % V(vONE))
    A("v_mov_b32 %s, %s" % (V(vINV), fl(1.0 / 576)))
    for i in range(4):
        A("v_mov_b32 %s, 0x3f803f80" % V(vONES + i))
    for i in range(16):
        A("v_mov_b32 %s, 0" % V(vACC + i))
    A("s_and_b32 s%d, s2, 127" % sT0)
    A("s_lshl_b32 s%d, s%d, 4" % (sT0, sT0))
    A("s_add_u32 s%d, s%d, %d" % (sT0, sT0, E0))
    A("s_lshr_b32 s%d, s2, 7" % sT1)
    A("s_lshl_b32 s%d, s%d, 15" % (sT1, sT1))
    A("s_add_u32 s%d, s%d, s%d" % (sT0, sT0, sT1))
    A("s_lshl_b32 s%d, s%d, 16" % (sH, sT0))
    for i in range(1, 16):
        A("s_add_u32 s%d, s%d, %d" % (sH + i, sH, i << 16))
    A("s_waitcnt vmcnt(9)")
    stamp()
    for (dst, src, mul) in ((vMA, vA, SC), (vMC, vA + 4, SC), (vMW, vA + 8, 1.0 / SC)):
        for i in range(4):
            A("v_lshlrev_b32 %s, 16, %s" % (V(dst + 2 * i), V(src + i)))
            A("v_and_b32 %s, 0xffff0000, %s" % (V(dst + 2 * i + 1), V(src + i)))
        A("s_mov_b32 s%d, %s" % (sT0, fl(mul)))
        for i in range(9):
            A("v_mul_f32 %s, s%d, %s" % (V(dst + i), sT0, V(dst + i)))
    for i in range(4):
        A("v_lshlrev_b32 %s, 16, %s" % (V(vXA + 2 * i), V(vA + 12 + i)))
        A("v_and_b32 %s, 0xffff0000, %s" % (V(vXA + 2 * i + 1), V(vA + 12 + i)))
    A("s_cmp_lg_u32 s%d, 7" % sWV)
    A("s_cbranch_scc1 Lnox0")
    for i in range(4):
        A("ds_write_b64 %s, %s offset:%d" % (V(lXP), V(vXA + 2 * i, 2), 512 * i))
    A("ds_write_b32 %s, %s" % (V(lXS), V(vXA + 8)))
    A.label("Lnox0")

    def table_f(f, between=()):
        ap, asel = bc(vMA + f)
        cp, csel = bc(vMC + f)
        wp, wsel = bc(vMW + f)
        kp, ksel = bc(vKAP)
        op, osel = bc(vONE)
        between = list(between)
        for k2 in range(4):
            seq = []
            for h in range(2):
                k = 2 * k2 + h
                u, t, e, uw = (V(vTT + 8 * h + 2 * i, 2) for i in range(4))
                e0, e1 = vTT + 8 * h + 4, vTT + 8 * h + 5
                t0, t1 = vTT + 8 * h + 2, vTT + 8 * h + 3
                seq.append([
                    "v_pk_fma_f32 %s, %s, %s, %s op_sel:[%d,0,%d] op_sel_hi:[%d,1,%d]" % (u, ap, sp(sH + 2 * k), cp, asel, csel, asel, csel),
                    "v_pk_fma_f32 %s, %s, %s, %s op_sel:[0,0,%d] op_sel_hi:[1,1,%d]" % (t, u, u, kp, ksel, ksel),
                    "v_pk_mul_f32 %s, %s, %s neg_lo:[1,0] neg_hi:[1,0]" % (t, t, u),
                    "v_exp_f32 %s, %s" % (V(e0), V(t0)),
                    "v_exp_f32 %s, %s" % (V(e1), V(t1)),
                    "v_pk_mul_f32 %s, %s, %s op_sel:[0,%d] op_sel_hi:[1,%d]" % (uw, u, wp, wsel, wsel),
                    "v_pk_add_f32 %s, %s, %s op_sel:[0,%d] op_sel_hi:[1,%d]" % (e, e, op, osel, osel),
                    "v_rcp_f32 %s, %s" % (V(e0), V(e0)),
                    "v_rcp_f32 %s, %s" % (V(e1), V(e1)),
                    "v_pk_fma_f32 %s, %s, %s, %s" % (V(vACC + 2 * k, 2), uw, e, V(vACC + 2 * k, 2)),
                ])
            s0, s1 = seq
            for l in (s0[0], s1[0], s0[1], s1[1], s0[2], s1[2], s0[3], s0[4], s1[3], s1[4], s0[5], s0[6], s1[5], s1[6],
                      s0[7], s0[8], s1[7], s1[8], s0[9], s1[9]):
                A(l)
            if k2 in (0, 2) and between:
                between.pop(0)()

    table_f(0, [lambda: kload(1, 0, 0), lambda: kload(1, 0, 1)])
    table_f(1, [lambda: kload(1, 1, 0), lambda: kload(1, 1, 1)])
    table_f(2)
    A("s_waitcnt vmcnt(8) lgkmcnt(0)")
    A("s_barrier")
    stamp()
    A("s_cmp_lg_u32 s%d, 4" % sWV)
    A("s_cbranch_scc1 Lnoflag")
    A("s_or_b32 s%d, s%d, 0x80" % (sT0, sXCC))
    A("v_mov_b32 v249, s2")
    A("v_mov_b32 v250, s%d" % sT0)
    A("s_mov_b64 exec, 1")
    A("global_store_byte v249, v250, %s sc1" % sp(sDBG))
    A("s_mov_b64 exec, -1")
    A.label("Lnoflag")
    A("s_cmp_gt_u32 s%d, 3" % sWV)
    A("s_cbranch_scc1 Lnowq")
    A("v_bfe_u32 v249, v1, 2, 2")
    A("v_lshrrev_b32 v250, 4, v1")
    A("v_lshl_add_u32 v249, v250, 3, v249")
    A("v_lshlrev_b32 v249, 7, v249")
    A("v_and_b32 v250, 3, v1")
    A("v_lshl_add_u32 v249, v250, 3, v249")
    A("s_lshl_b32 s%d, s%d, 5" % (sT0, sWV))
    A("s_add_u32 s%d, s%d, %d" % (sT0, sT0, WQS))
    A("v_add_u32 v249, s%d, v249" % sT0)
    for ks in range(9):
        for hh in range(2):
            A("ds_read_b64_tr_b16 %s, v249 offset:%d" % (V(vWQ + 4 * ks + 2 * hh, 2), (32 * ks + 4 * hh) * 128))
    A("s_call_b64 %s, Lqstage" % sp(sRET))
    A.label("Lnowq")
    stamp()
    A("v_lshlrev_b32 v249, 2, v1")
    A("global_load_dword v253, v249, %s sc1" % sp(sDBG))
    for f in range(3, 7):
        table_f(f, [lambda i=2 * (f - 3): vload(i), lambda i=2 * (f - 3) + 1: vload(i)])
    A("s_waitcnt vmcnt(8)")
    A("s_branch Lflagchk")
    A.label("Lflagpoll")
    A("global_load_dword v253, v249, %s sc1" % sp(sDBG))
    A("s_waitcnt vmcnt(0)")
    A.label("Lflagchk")
    A("v_and_b32 v250, 0x80808080, v253")
    A("v_cmp_ne_u32 vcc, 0x80808080, v250")
    A("s_cbranch_vccz Lflagok")
    A("s_sub_u32 s%d, s%d, 1" % (sCNT, sCNT))
    A("s_cbranch_scc0 Lflagpoll")
    A("s_mov_b32 s%d, 0" % sCNT)
    A.label("Lflagok")
    stamp()
    for ks in range(4):
        A("global_load_dwordx4 %s, %s, %s offset:%d sc1" % (V(vQ + 4 * ks, 4), V(aHQL), sp(sHQ), 64 * ks))
    A("s_and_b32 s%d, s2, 3" % sT0)
    A("s_lshl_b32 s%d, s%d, 3" % (sT0, sT0))
    A("v_lshrrev_b32 v251, s%d, v253" % sT0)
    A("v_and_b32 v251, 15, v251")
    A("v_cmp_ne_u32 vcc, s%d, v251" % sXCC)
    A("s_lshr_b32 s%d, s2, 6" % sT0)
    A("s_lshl_b32 s%d, s%d, 4" % (sT0, sT0))
    A("s_bfe_u32 s%d, s2, 0x10002" % sT1)
    A("s_add_u32 s%d, s%d, s%d" % (sT0, sT0, sT1))
    A("s_mov_b64 %s, 0x5555" % sp(sMSK))
    A("s_lshl_b64 %s, %s, s%d" % (sp(sMSK), sp(sMSK), sT0))
    A("s_and_b64 %s, %s, vcc" % (sp(sMSK), sp(sMSK)))
    A("s_cselect_b32 s%d, 0, %d" % (sFAST, 0 if FORCE_SLOW else 1))
    table_f(7)
    table_f(8)
    for k in range(8):
        A("v_permlane32_swap_b32 %s, %s" % (V(vACC + 2 * k), V(vACC + 2 * k + 1)))
    for k in range(8):
        A("v_add_f32 %s, %s, %s" % (V(vACC + 2 * k), V(vACC + 2 * k), V(vACC + 2 * k + 1)))
    for k in range(4):
        A("v_permlane16_swap_b32 %s, %s" % (V(vACC + 4 * k), V(vACC + 4 * k + 2)))
    for k in range(4):
        A("v_add_f32 %s, %s, %s" % (V(vACC + 4 * k), V(vACC + 4 * k), V(vACC + 4 * k + 2)))
    for ctl in ("quad_perm:[1,0,3,2]", "quad_perm:[2,3,0,1]", "row_half_mirror", "row_mirror"):
        for k in range(4):
            A("v_add_f32_dpp %s, %s, %s %s%s" % (V(vACC + 4 * k), V(vACC + 4 * k), V(vACC + 4 * k), ctl, DPP))
    A("v_lshrrev_b32 v251, 5, v1")
    A("v_bfe_u32 v250, v1, 4, 1")
    A("v_lshl_add_u32 v251, v250, 1, v251")
    A("s_lshl_b32 s%d, s%d, 6" % (sT0, sWV))
    A("s_add_u32 s%d, s%d, %d" % (sT0, sT0, TRED))
    A("v_lshl_add_u32 v251, v251, 2, s%d" % sT0)
    A("s_mov_b32 exec_lo, 0x00010001")
    A("s_mov_b32 exec_hi, 0x00010001")
    A("ds_write2_b32 v251, %s, %s offset0:0 offset1:4" % (V(vACC), V(vACC + 4)))
    A("ds_write2_b32 v251, %s, %s offset0:8 offset1:12" % (V(vACC + 8), V(vACC + 12)))
    A("s_mov_b64 exec, -1")
    A("s_mul_i32 s%d, s%d, %d" % (sT0, sHKV, 256 * 1152))
    A("s_mul_i32 s%d, s%d, 144" % (sT1, sS))
    A("s_add_u32 s%d, s%d, s%d" % (sT0, sT0, sT1))
    add64(sWO, "s%d" % sT0)
    for i in range(5):
        if i < 4:
            A("v_add_u32 v250, %d, v0" % (512 * i))
        else:
            A("s_lshl_b32 s%d, s%d, 5" % (sT0, sWV))
            A("s_add_u32 s%d, s%d, 2048" % (sT0, sT0))
            A("v_and_b32 v250, 31, v1")
            A("v_add_u32 v250, s%d, v250" % sT0)
        A("v_mul_u32_u24 v251, 7282, v250")
        A("v_lshrrev_b32 v251, 16, v251")
        A("v_mul_u32_u24 v251, 1008, v251")
        A("v_lshl_add_u32 %s, v250, 4, v251" % V(vTT + i))
    A("s_waitcnt lgkmcnt(0)")
    A("s_barrier")
    stamp()
    A("s_lshl_b32 s%d, s%d, 10" % (sT1, sWV))
    for i in range(4):
        A("s_add_u32 m0, s%d, %d" % (sT1, WOS + 8192 * i))
        A("global_load_lds_dwordx4 %s, %s%s" % (V(vTT + i), sp(sWO), NTW))
    A("s_lshl_b32 s%d, s%d, 9" % (sT1, sWV))
    A("s_add_u32 m0, s%d, %d" % (sT1, WOS + 32768))
    A("s_mov_b32 exec_hi, 0")
    A("global_load_lds_dwordx4 %s, %s%s" % (V(vTT + 4), sp(sWO), NTW))
    A("s_mov_b32 exec_hi, -1")
    for pr in range(4):
        a, b = vK + 8 * pr, vK + 8 * pr + 4
        for d in range(4):
            A("v_mov_b32 %s, %s" % (V(vS + d), V(a + d)))
        for d in range(4):
            A("v_mov_b32_dpp %s, %s row_ror:8 row_mask:0xf bank_mask:0xc" % (V(a + d), V(b + d)))
        for d in range(4):
            A("v_mov_b32_dpp %s, %s row_ror:8 row_mask:0xf bank_mask:0x3" % (V(b + d), V(vS + d)))
    A("s_cmp_lg_u32 s%d, 7" % sWV)
    A("s_cbranch_scc1 Lnotab")
    A("v_and_b32 v250, 15, v1")
    A("v_lshlrev_b32 v250, 2, v250")
    A("v_add_u32 v251, %d, v250" % TRED)
    for i in range(4):
        A("ds_read2_b32 %s, v251 offset0:%d offset1:%d" % (V(vS + 2 * i, 2), 32 * i, 32 * i + 16))
    A("s_waitcnt lgkmcnt(0)")
    A("v_pk_add_f32 %s, %s, %s" % (V(vS, 2), V(vS, 2), V(vS + 2, 2)))
    A("v_pk_add_f32 %s, %s, %s" % (V(vS + 4, 2), V(vS + 4, 2), V(vS + 6, 2)))
    A("v_pk_add_f32 %s, %s, %s" % (V(vS, 2), V(vS, 2), V(vS + 4, 2)))
    A("v_add_f32 %s, %s, %s" % (V(vS), V(vS), V(vS + 1)))
    A("v_cvt_pk_bf16_f32 %s, %s, %s" % (V(vS), V(vS), V(vS)))
    A("v_lshlrev_b32 %s, 16, %s" % (V(vS), V(vS)))
    A("v_add_f32 %s, %s, %s" % (V(vS), V(vS), V(vB2)))
    A("v_mov_b32_dpp %s, %s quad_perm:[1,1,3,3]%s" % (V(vS + 1), V(vS), DPP))
    A("v_cvt_pk_bf16_f32 %s, %s, %s" % (V(vS), V(vS), V(vS + 1)))
    A("v_min_u32 %s, -2, %s" % (V(vS), V(vS)))
    A("v_lshrrev_b32 v250, 1, v250")
    A("s_lshl_b32 s%d, s2, 5" % sT0)
    A("s_add_u32 s%d, s%d, %d" % (sT0, sT0, W_HT))
    A("v_add_u32 v250, s%d, v250" % sT0)
    A("s_mov_b64 exec, 0x5555")
    A("global_store_dword v250, %s, %s sc1" % (V(vS), sp(sWS)))
    A("s_mov_b64 exec, -1")
    A("s_waitcnt vmcnt(6)")
    A("s_branch Lqchk")
    A.label("Lnotab")
    A("s_waitcnt vmcnt(5)")
    A("s_branch Lqchk")
    A.label("Lqpoll")
    for ks in range(4):
        A("global_load_dwordx4 %s, %s, %s offset:%d sc1" % (V(vQ + 4 * ks, 4), V(aHQL), sp(sHQ), 64 * ks))
    A("s_waitcnt vmcnt(0)")
    A.label("Lqchk")
    maxtree(vM, range(vQ, vQ + 16))
    poll_tail("Lqpoll", vM)
    if DIAG:
        A("s_cmp_eq_u32 s%d, 0" % sL)
        A("s_cbranch_scc0 Lst6")
        stamp()
        A.label("Lst6")
    for ks in range(4):
        for T in range(2):
            A("v_mfma_f32_16x16x32_bf16 %s, %s, %s, %s" % (
                V(vS + 4 * T, 4), V(vK + 16 * T + 4 * ks, 4), V(vQ + 4 * ks, 4), V(vS + 4 * T, 4) if ks else "0"))
    A("s_cmp_lg_u32 s%d, 0" % sL)
    A("s_cbranch_scc1 Lvt_done")
    A("s_mov_b32 s%d, 0x05040100" % sT0)
    A("s_mov_b32 s%d, 0x07060302" % sT1)
    for j in range(8):
        for e in range(4):
            A("v_perm_b32 %s, %s, %s, s%d" % (
                V(vVT + 4 * j + e), V(vA + 4 * (2 * e + 1) + (j >> 1)), V(vA + 4 * (2 * e) + (j >> 1)), sT1 if j & 1 else sT0))
    A.label("Lvt_done")
    for r in range(8):
        A("v_add_f32_dpp %s, %s, %s quad_perm:[1,0,3,2]%s" % (V(vS + r), V(vS + r), V(vS + r), DPP))
    A("v_max3_f32 %s, %s, %s, %s" % (V(vM), V(vS), V(vS + 1), V(vS + 2)))
    A("v_max3_f32 %s, %s, %s, %s" % (V(vP), V(vS + 3), V(vS + 4), V(vS + 5)))
    A("v_max3_f32 %s, %s, %s, %s" % (V(vM), V(vM), V(vS + 6), V(vS + 7)))
    A("v_max_f32 %s, %s, %s" % (V(vM), V(vM), V(vP)))
    for sw in ("v_permlane16_swap_b32", "v_permlane32_swap_b32"):
        A("v_mov_b32 %s, %s" % (V(vP), V(vM)))
        A("%s %s, %s" % (sw, V(vM), V(vP)))
        A("v_max_f32 %s, %s, %s" % (V(vM), V(vM), V(vP)))
    A("v_mul_f32 %s, s%d, %s" % (V(vM), sSMC, V(vM)))
    for r in range(8):
        A("v_fma_f32 %s, %s, s%d, -%s" % (V(vS + r), V(vS + r), sSMC, V(vM)))
    for r in range(8):
        A("v_exp_f32 %s, %s" % (V(vS + r), V(vS + r)))
    for r in range(4):
        A("v_cvt_pk_bf16_f32 %s, %s, %s" % (V(vP + r), V(vS + 2 * r), V(vS + 2 * r + 1)))
    A("v_mfma_f32_16x16x32_bf16 %s, %s, %s, 0" % (V(vA + 32, 4), V(vP, 4), V(vONES, 4)))
    for j in range(8):
        A("v_mfma_f32_16x16x32_bf16 %s, %s, %s, 0" % (V(vA + 4 * j, 4), V(vP, 4), V(vVT + 4 * j, 4)))
    A("s_mov_b64 exec, 0x100001")
    A("ds_write2_b32 %s, %s, %s offset0:0 offset1:1" % (V(lMW), V(vM), V(vA + 32)))
    A("s_mov_b32 exec_lo, -1")
    for j in range(0, 8, 2):
        A("ds_write2_b32 %s, %s, %s offset0:%d offset1:%d" % (V(lPW), V(vA + 4 * j), V(vA + 4 * j + 4), 16 * j, 16 * j + 16))
    A("s_mov_b32 exec_hi, -1")
    A("s_waitcnt lgkmcnt(0)")
    A("s_barrier")
    A("ds_read_b64 %s, %s" % (V(vA + 4, 2), V(lMR)))
    A("ds_read_b128 %s, %s" % (V(vA, 4), V(lPR)))
    A("s_waitcnt lgkmcnt(0)")
    reduce8(vA, vA + 4, vA + 6, vA + 7, False)
    for i in range(6):
        A("v_min_u32 %s, -2, %s" % (V(vA + i), V(vA + i)))
    A("s_mov_b32 exec_lo, 0x01010101")
    A("s_mov_b32 exec_hi, 0x01010101")
    store2(["global_store_dwordx4 %s, %s, %s" % (V(aHOS), V(vA, 4), sp(sHO))])
    A("s_and_b32 s%d, s%d, 3" % (sT0, sWV))
    A("s_cbranch_scc1 Lnohm")
    A("s_lshl_b64 exec, 1, s%d" % sS)
    store2(["global_store_dwordx2 %s, %s, %s" % (V(aHML), V(vA + 4, 2), sp(sHM))])
    A.label("Lnohm")
    A("s_mov_b64 exec, -1")
    if DIAG:
        A("s_cmp_eq_u32 s%d, 0" % sL)
        A("s_cbranch_scc0 Lst7")
        stamp()
        A("s_branch Lst7e")
        A.label("Lst7")
        stamp()
        A.label("Lst7e")
    A.label("Lopoll")
    A("global_load_dwordx2 %s, %s, %s sc1" % (V(vA + 12, 2), V(aHML), sp(sHM)))
    A("global_load_dwordx4 %s, %s, %s sc1" % (V(vA + 8, 4), V(aHOL), sp(sHO)))
    A("s_waitcnt vmcnt(0)")
    maxtree(vM, range(vA + 8, vA + 14))
    poll_tail("Lopoll", vM)
    reduce8(vA + 8, vA + 12, vA + 14, vA + 15, True)
    A("v_cvt_pk_bf16_f32 %s, %s, %s" % (V(vA + 8), V(vA + 8), V(vA + 9)))
    A("v_cvt_pk_bf16_f32 %s, %s, %s" % (V(vA + 9), V(vA + 10), V(vA + 11)))
    A("s_mov_b32 exec_lo, 0x01010101")
    A("s_mov_b32 exec_hi, 0x01010101")
    A("ds_write_b64 %s, %s" % (V(lOW), V(vA + 8, 2)))
    A("s_mov_b64 exec, -1")
    A("s_waitcnt lgkmcnt(0)")
    A("s_barrier")
    A("s_cmp_gt_u32 s%d, 4" % sWV)
    A("s_cbranch_scc1 Lwo_done")
    A("s_cmp_lg_u32 s%d, 0" % sL)
    A("s_cbranch_scc1 Lwo_regs")
    A("v_bfe_u32 v249, v1, 4, 1")
    A("v_lshlrev_b32 v249, 6, v249")
    A("v_bfe_u32 v250, v1, 2, 2")
    A("v_lshl_add_u32 v249, v250, 3, v249")
    A("v_lshrrev_b32 v250, 5, v1")
    A("v_add_u32 v249, v249, v250")
    A("v_mul_u32_u24 v249, 144, v249")
    A("v_and_b32 v250, 3, v1")
    A("v_lshl_add_u32 v249, v250, 3, v249")
    A("s_lshl_b32 s%d, s%d, 5" % (sT0, sWV))
    A("s_add_u32 s%d, s%d, %d" % (sT0, sT0, WOS))
    A("v_add_u32 v249, s%d, v249" % sT0)
    for ks in range(8):
        for hh in range(2):
            A("ds_read_b64_tr_b16 %s, v249 offset:%d" % (
                V(vWO + 4 * ks + 2 * hh, 2), (128 * (ks >> 2) + 2 * (ks & 3) + 32 * hh) * 144))
    A("s_waitcnt lgkmcnt(0)")
    A.label("Lwo_regs")
    for ks in range(8):
        A("ds_read_b128 %s, %s offset:%d" % (V(vA + 4 * ks, 4), V(lOR), 64 * ks))
    for ks in range(8):
        A("s_waitcnt lgkmcnt(%d)" % (7 - ks))
        A("v_mfma_f32_16x16x32_bf16 %s, %s, %s, %s" % (
            V(vS, 4), V(vWO + 4 * ks, 4), V(vA + 4 * ks, 4), V(vS, 4) if ks else "0"))
    A("s_cmp_eq_u32 s%d, 4" % sWV)
    A("s_cselect_b32 s%d, 0, 0x00010001" % sT0)
    for i in range(4):
        A("v_min_u32 %s, -2, %s" % (V(vS + i), V(vS + i)))
    A("s_mov_b32 exec_lo, 0x00010001")
    A("s_mov_b32 exec_hi, s%d" % sT0)
    A("global_store_dwordx4 %s, %s, %s sc1" % (V(aHXS), V(vS, 4), sp(sHX)))
    A("s_mov_b64 exec, -1")
    A.label("Lwo_done")
    if DIAG:
        A("s_cmp_eq_u32 s%d, 0" % sL)
        A("s_cbranch_scc0 Lst9")
        stamp()
        A("s_branch Lst9e")
        A.label("Lst9")
        stamp()
        A.label("Lst9e")
    A("s_cmp_eq_u32 s%d, 0" % sL)
    A("s_cbranch_scc1 Ltabg")
    A("s_or_b32 s%d, s%d, s%d" % (sT0, sHKV, sS))
    A("s_cbranch_scc1 Lexit")
    A("s_branch Lxwait")
    A.label("Ltabg")
    A("v_lshlrev_b32 v249, 4, v0")
    A("v_add_u32 v250, %d, v249" % W_HT)
    A("s_cmp_gt_u32 s%d, 3" % sWV)
    A("s_cselect_b32 s%d, %d, %d" % (sT0, TABN - 4096, TABP))
    A("v_add_u32 v249, s%d, v249" % sT0)
    A.label("Ltpoll")
    A("global_load_dwordx4 %s, v250, %s sc1" % (V(vA, 4), sp(sWS)))
    A("s_waitcnt vmcnt(0)")
    maxtree(vM, range(vA, vA + 4))
    poll_tail("Ltpoll", vM)
    A("ds_write_b128 v249, %s" % V(vA, 4))
    A.label("Lxwait")
    A("ds_read_b32 %s, %s" % (V(vS + 4), V(lXC)))
    A("ds_read_b32 %s, %s offset:2048" % (V(vS + 5), V(lXC)))
    A("s_waitcnt vmcnt(0)")
    A("s_barrier")
    A.label("Lxpoll")
    for i in range(4):
        A("global_load_dwordx4 %s, %s, %s sc1" % (V(vA + 4 * i, 4), V(aHXL + i), sp(sHX)))
    A("s_cmp_lg_u32 s%d, 0" % sWV)
    A("s_cbranch_scc1 Lx8a")
    for i in range(4):
        A("global_load_dwordx4 %s, %s, %s offset:2048 sc1" % (V(vA + 16 + 4 * i, 4), V(aHXL + i), sp(sHX)))
    A("s_waitcnt vmcnt(0)")
    maxtree(vP, range(vA + 16, vA + 32))
    A("s_branch Lx8b")
    A.label("Lx8a")
    A("v_mov_b32 %s, 0" % V(vP))
    A("s_waitcnt vmcnt(0)")
    A.label("Lx8b")
    maxtree(vM, [vP] + list(range(vA, vA + 16)))
    poll_tail("Lxpoll", vM)

    def xsum(b, prev, off):
        for i in range(2):
            A("v_pk_add_f32 %s, %s, %s" % (V(b + 2 * i, 2), V(b + 2 * i, 2), V(b + 4 + 2 * i, 2)))
            A("v_pk_add_f32 %s, %s, %s" % (V(b + 8 + 2 * i, 2), V(b + 8 + 2 * i, 2), V(b + 12 + 2 * i, 2)))
        for i in range(2):
            A("v_pk_add_f32 %s, %s, %s" % (V(b + 2 * i, 2), V(b + 2 * i, 2), V(b + 8 + 2 * i, 2)))
        A("v_permlane32_swap_b32 %s, %s" % (V(b), V(b + 1)))
        A("v_permlane32_swap_b32 %s, %s" % (V(b + 2), V(b + 3)))
        A("v_add_f32 %s, %s, %s" % (V(b), V(b), V(b + 1)))
        A("v_add_f32 %s, %s, %s" % (V(b + 2), V(b + 2), V(b + 3)))
        A("v_permlane16_swap_b32 %s, %s" % (V(b), V(b + 2)))
        A("v_add_f32 %s, %s, %s" % (V(b), V(b), V(b + 2)))
        A("v_cvt_pk_bf16_f32 %s, %s, %s" % (V(b), V(b), V(b)))
        A("v_lshlrev_b32 %s, 16, %s" % (V(b), V(b)))
        A("v_add_f32 %s, %s, %s" % (V(b), V(b), V(prev)))
        A("v_cvt_pk_bf16_f32 %s, %s, %s" % (V(b), V(b), V(b)))
        A("v_lshlrev_b32 %s, 16, %s" % (V(b), V(b)))
        A("ds_write_b32 %s, %s offset:%d" % (V(lXC), V(b), off))

    A("s_waitcnt lgkmcnt(0)")
    xsum(vA, vS + 4, 0)
    A("s_cmp_lg_u32 s%d, 0" % sWV)
    A("s_cbranch_scc1 Lx8c")
    xsum(vA + 16, vS + 5, 2048)
    A.label("Lx8c")
    A("s_waitcnt lgkmcnt(0)")
    A("s_barrier")
    if DIAG:
        A("s_cmp_eq_u32 s%d, 0" % sL)
        A("s_cbranch_scc0 Lst11")
        stamp()
        A("s_branch Lst11e")
        A.label("Lst11")
        stamp()
        A.label("Lst11e")
    A("s_cmp_eq_u32 s%d, 0" % sL)
    A("s_cselect_b32 s%d, 3, 0" % sT0)
    A("s_cmp_gt_u32 s%d, s%d" % (sWV, sT0))
    A("s_cbranch_scc1 Lmlp_skip")
    for i in range(4):
        A("ds_read_b64 %s, %s offset:%d" % (V(vXA + 2 * i, 2), V(lXP), 512 * i))
    A("ds_read_b32 %s, %s" % (V(vXA + 8), V(lXS)))
    vH, vY, vHP, vHS, vAD, vST = vA, vA + 10, vA + 20, vA + 26, vA, vS
    for i in range(9):
        A("v_mov_b32 %s, 0" % V(vY + i))
    A("s_waitcnt lgkmcnt(0)")
    stats(vST)
    A("v_add_f32 %s, %s, %s" % (V(vST + 3), fl(1e-5), V(vST + 1)))
    A("v_rsq_f32 %s, %s" % (V(vST + 3), V(vST + 3)))
    A("v_mul_f32 %s, %s, %s" % (V(vST + 1), V(vST + 1), V(vST + 3)))
    A("v_mul_f32 %s, %s, %s" % (V(vST + 1), V(vST + 1), V(vST + 3)))
    A("v_add_f32 %s, %s, %s" % (V(vST + 1), fl(1e-5), V(vST + 1)))
    A("v_rsq_f32 %s, %s" % (V(vST + 1), V(vST + 1)))
    A("v_mul_f32 %s, %s, %s" % (V(vST + 3), V(vST + 3), V(vST + 1)))
    normalize(vH, vST, vST + 3)
    A("s_mov_b32 s%d, %s" % (sT0, hx(E0 * 0x10001)))
    for i in range(5):
        A("v_cvt_pk_bf16_f32 %s, %s, %s" % (V(vHP + i), V(vH + 2 * i), V(vH + min(2 * i + 1, 8))))
    for i in range(5):
        A("v_pk_sub_u16 %s, %s, s%d" % (V(vHS + i), V(vHP + i), sT0))
    for i in range(9):
        A("v_lshlrev_b32_sdwa %s, 1, %s dst_sel:DWORD dst_unused:UNUSED_PAD src0_sel:DWORD src1_sel:WORD_%d" % (
            V(vAD + i), V(vHS + (i >> 1)), i & 1))
        A("ds_read_u16_d16_hi %s, %s offset:%d" % (V(vY + i), V(vAD + i), TABP))
    A("v_or3_b32 %s, %s, %s, %s" % (V(vM), V(vHS), V(vHS + 1), V(vHS + 2)))
    A("v_or3_b32 %s, %s, %s, %s" % (V(vM), V(vM), V(vHS + 3), V(vHS + 4)))
    A("v_and_b32 %s, 0x78007800, %s" % (V(vM), V(vM)))
    A("v_cmp_ne_u32 vcc, 0, %s" % V(vM))
    A("s_waitcnt lgkmcnt(0)")
    A("s_cbranch_vccnz Lfallback")
    A.label("Lfb_done")
    for i in range(4):
        A("v_pk_add_f32 %s, %s, %s" % (V(vXA + 2 * i, 2), V(vXA + 2 * i, 2), V(vY + 2 * i, 2)))
    A("v_add_f32 %s, %s, %s" % (V(vXA + 8), V(vXA + 8), V(vY + 8)))
    for i in range(5):
        A("v_cvt_pk_bf16_f32 %s, %s, %s" % (V(vHP + i), V(vXA + 2 * i), V(vXA + min(2 * i + 1, 8))))
    A("s_cmp_lg_u32 s%d, 0" % sL)
    A("s_cbranch_scc1 Lfinal")
    for i in range(4):
        A("v_lshlrev_b32 %s, 16, %s" % (V(vXA + 2 * i), V(vHP + i)))
        A("v_and_b32 %s, 0xffff0000, %s" % (V(vXA + 2 * i + 1), V(vHP + i)))
    A("v_lshlrev_b32 %s, 16, %s" % (V(vXA + 8), V(vHP + 4)))
    add64(sHQ, "%d" % L_HQ)
    A("s_call_b64 %s, Lqstage" % sp(sRET))
    A("s_cmp_lg_u32 s%d, 0" % sWV)
    A("s_cbranch_scc1 Lnext")
    for i in range(4):
        A("ds_write_b64 %s, %s offset:%d" % (V(lXP), V(vXA + 2 * i, 2), 512 * i + XSB - XSA))
    A("ds_write_b32 %s, %s offset:%d" % (V(lXS), V(vXA + 8), XSB - XSA))
    A("s_branch Lnext")
    A.label("Lmlp_skip")
    A("s_cmp_lg_u32 s%d, 0" % sL)
    A("s_cbranch_scc1 Lexit")
    add64(sHQ, "%d" % L_HQ)
    A.label("Lnext")
    add64(sHO, "%d" % L_HO)
    add64(sHM, "%d" % L_HM)
    add64(sHX, "%d" % L_HX)
    for r in (lXC, lXP, lXS):
        A("v_add_u32 %s, %d, %s" % (V(r), XSB - XSA, V(r)))
    A("s_mov_b32 s%d, 1" % sL)
    A("s_barrier")
    stamp()
    A("s_branch Lqpoll")
    A.label("Lfinal")
    A("v_lshlrev_b32 v249, 2, v1")
    A("v_lshlrev_b32 v250, 1, v1")
    for i in range(4):
        A("global_store_dword v249, %s, %s offset:%d" % (V(vHP + i), sp(sOUT), 256 * i))
    A("global_store_short v250, %s, %s offset:1024" % (V(vHP + 4), sp(sOUT)))
    A.label("Lexit")
    if DIAG:
        stamp()
        A("s_lshl_b32 s%d, s2, 3" % sT0)
        A("s_add_u32 s%d, s%d, s%d" % (sT0, sT0, sWV))
        A("s_lshl_b32 s%d, s%d, 7" % (sT0, sT0))
        A("s_add_u32 s%d, s%d, %d" % (sT0, sT0, W_DIAG))
        A("v_mov_b32 v249, s%d" % sT0)
        A("s_mov_b64 exec, 1")
        for i in range(stamp_n[0]):
            A("v_mov_b32 v250, s%d" % (sSTAMP + 2 * i))
            A("global_store_dword v249, v250, %s offset:%d" % (sp(sWS), 4 * i))
        A("v_mov_b32 v250, s%d" % sCNT)
        A("global_store_dword v249, v250, %s offset:120" % sp(sWS))
        A("v_mov_b32 v250, s%d" % sFAST)
        A("global_store_dword v249, v250, %s offset:124" % sp(sWS))
    A.label("Lend")
    A("s_endpgm")

    A.label("Lqstage")
    stats(vS)
    A("v_add_f32 %s, %s, %s" % (V(vS + 3), fl(1e-5), V(vS + 1)))
    A("v_rsq_f32 %s, %s" % (V(vS + 3), V(vS + 3)))
    normalize(vA, vS, vS + 3)
    for i in range(5):
        A("v_cvt_pk_bf16_f32 %s, %s, %s" % (V(vA + 10 + i), V(vA + 2 * i), V(vA + min(2 * i + 1, 8))))
    for i in range(4):
        A("ds_write_b32 %s, %s offset:%d" % (V(lNW), V(vA + 10 + i), 256 * i))
    A("ds_write_b16 %s, %s" % (V(lNH), V(vA + 14)))
    A("s_waitcnt lgkmcnt(0)")
    for ks in range(9):
        A("ds_read_b128 %s, %s offset:%d" % (V(vA + 4 * ks, 4), V(lNR), 64 * ks))
    for ks in range(9):
        A("s_waitcnt lgkmcnt(%d)" % (8 - ks))
        A("v_mfma_f32_16x16x32_bf16 %s, %s, %s, %s" % (
            V(vS, 4), V(vWQ + 4 * ks, 4), V(vA + 4 * ks, 4), V(vS, 4) if ks else "0"))
    A("v_cvt_pk_bf16_f32 %s, %s, %s" % (V(vS), V(vS), V(vS + 1)))
    A("v_cvt_pk_bf16_f32 %s, %s, %s" % (V(vS + 1), V(vS + 2), V(vS + 3)))
    A("v_min_u32 %s, -2, %s" % (V(vS), V(vS)))
    A("v_min_u32 %s, -2, %s" % (V(vS + 1), V(vS + 1)))
    A("s_mov_b32 exec_lo, 0x00010001")
    A("s_mov_b32 exec_hi, 0x00010001")
    store2(["global_store_dwordx2 %s, %s, %s" % (V(aHQS), V(vS, 2), sp(sHQ))])
    A("s_mov_b64 exec, -1")
    A("s_setpc_b64 %s" % sp(sRET))

    A.label("Lfallback")
    for i in range(9):
        A("v_bfe_u32 %s, %s, %d, 4" % (V(vM), V(vHS + (i >> 1)), 11 + 16 * (i & 1)))
        A("v_cmp_ne_u32 %s, 0, %s" % (sp(sMSK), V(vM)))
        A("v_%s %s, %s, %s" % (("and_b32" if i & 1 else "lshlrev_b32"), V(vP), ("0xffff0000" if i & 1 else "16"), V(vHP + (i >> 1))))
        A.label("Lfb_l%d" % i)
        A("s_cmp_eq_u64 %s, 0" % sp(sMSK))
        A("s_cbranch_scc1 Lfb_n%d" % i)
        A("s_ff1_i32_b64 s%d, %s" % (sT3, sp(sMSK)))
        A("s_bitset0_b64 %s, s%d" % (sp(sMSK), sT3))
        A("v_readlane_b32 s%d, %s, s%d" % (sT2, V(vP), sT3))
        A("s_call_b64 %s, Lfb_eval" % sp(sRET))
        A("s_mov_b32 m0, s%d" % sT3)
        A("v_writelane_b32 %s, s%d, m0" % (V(vY + i), sT0))
        A("s_branch Lfb_l%d" % i)
        A.label("Lfb_n%d" % i)
    A("s_branch Lfb_done")
    A.label("Lfb_eval")
    fw, fu, fa, fo = vMA, vMA + 12, 244, 245
    A("s_nop 3")
    A("v_lshlrev_b32 %s, 4, v1" % V(fo))
    A("v_mov_b32 %s, 0" % V(fa))
    A("s_mov_b32 s%d, 9" % sT1)
    A.label("Lfb_loop")
    for i in range(3):
        A("global_load_dwordx4 %s, %s, %s" % (V(fw + 4 * i, 4), V(fo), sp((sW1, sB1, sW2)[i])))
    A("v_add_u32 %s, 1024, %s" % (V(fo), V(fo)))
    A("s_waitcnt vmcnt(0)")
    for j in range(8):
        for i in range(3):
            if j & 1:
                A("v_and_b32 %s, 0xffff0000, %s" % (V(fu + i), V(fw + 4 * i + (j >> 1))))
            else:
                A("v_lshlrev_b32 %s, 16, %s" % (V(fu + i), V(fw + 4 * i + (j >> 1))))
        A("v_fma_f32 %s, %s, s%d, %s" % (V(fu), V(fu), sT2, V(fu + 1)))
        A("v_mul_f32 %s, %s, %s" % (V(fu + 2), V(fu + 2), V(fu)))
        A("v_mul_f32 %s, %s, %s" % (V(fu + 1), V(fu), V(fu)))
        A("v_mul_f32 %s, %s, %s" % (V(fu + 1), fl(-K1), V(fu + 1)))
        A("v_add_f32 %s, %s, %s" % (V(fu + 1), fl(-K0), V(fu + 1)))
        A("v_mul_f32 %s, %s, %s" % (V(fu + 1), V(fu + 1), V(fu)))
        A("v_exp_f32 %s, %s" % (V(fu + 1), V(fu + 1)))
        A("v_add_f32 %s, 1.0, %s" % (V(fu + 1), V(fu + 1)))
        A("v_rcp_f32 %s, %s" % (V(fu + 1), V(fu + 1)))
        A("v_fmac_f32 %s, %s, %s" % (V(fa), V(fu + 2), V(fu + 1)))
    A("s_sub_u32 s%d, s%d, 1" % (sT1, sT1))
    A("s_cmp_lg_u32 s%d, 0" % sT1)
    A("s_cbranch_scc1 Lfb_loop")
    for ctl in ("quad_perm:[1,0,3,2]" + DPP, "quad_perm:[2,3,0,1]" + DPP, "row_half_mirror" + DPP,
                "row_mirror" + DPP, "row_bcast:15 row_mask:0xa bank_mask:0xf",
                "row_bcast:31 row_mask:0xc bank_mask:0xf"):
        A("v_add_f32_dpp %s, %s, %s %s" % (V(fa), V(fa), V(fa), ctl))
    A("v_cvt_pk_bf16_f32 %s, %s, %s" % (V(fa), V(fa), V(fa)))
    A("v_lshlrev_b32 %s, 16, %s" % (V(fa), V(fa)))
    A("v_add_f32 %s, %s, %s" % (V(fa), V(fa), V(vB2)))
    A("v_cvt_pk_bf16_f32 %s, %s, %s" % (V(fa), V(fa), V(fa)))
    A("v_lshlrev_b32 %s, 16, %s" % (V(fa), V(fa)))
    A("v_readlane_b32 s%d, %s, 63" % (sT0, V(fa)))
    A("s_nop 3")
    A("s_setpc_b64 %s" % sp(sRET))

    body = A.finish()
    head = open("interleave_layers__sliding_block_cached__mixer_token_mlp__decode.s.ref").read().split(
        "; Override launch geometry")[0]
    head += "; @launch grid=(256,1,1) block=(512,1,1) lds=%d\n" % LDS
    head += '.amdgcn_target "amdgcn-amd-amdhsa--gfx950"\n.text\n.globl %s\n.p2align 8\n.type %s,@function\n' % (NAME, NAME)
    tail = """.section .rodata,"a"
.p2align 6
.amdhsa_kernel %s
  .amdhsa_next_free_vgpr 256
  .amdhsa_next_free_sgpr 102
  .amdhsa_accum_offset 256
  .amdhsa_group_segment_fixed_size 0
  .amdhsa_kernarg_size 104
  .amdhsa_user_sgpr_count 2
  .amdhsa_user_sgpr_kernarg_segment_ptr 1
  .amdhsa_system_sgpr_workgroup_id_x 1
.end_amdhsa_kernel
""" % NAME
    return head + body + tail


if __name__ == "__main__":
    out = sys.argv[1]
    kw = {}
    for a in sys.argv[2:]:
        k, v = a.split("=")
        kw[k] = eval(v)
    open(out, "w").write(gen(**kw))
```

```python
import math, struct, sys
from asmlib import Asm

NAME = "interleave_layers__sliding_block_cached__mixer_token_mlp__decode_kernel"


def f2u(x):
    return struct.unpack("<I", struct.pack("<f", x))[0]


def hx(x):
    return "0x%08x" % (x & 0xFFFFFFFF)


def fl(x):
    return hx(f2u(x))


def gen(DIAG=False, NTKV=" nt", NTW=" nt", E_LO=114, FORCE_SLOW=False, POLL_LIMIT=1 << 20):
    A = Asm()
    LOG2E = math.log2(math.e)
    K0 = 2 * math.sqrt(2 / math.pi) * LOG2E
    K1 = K0 * 0.044715
    SC = K1 ** (1.0 / 3.0)
    KAP = K0 / SC
    SMC = 128 ** -0.5 * LOG2E
    E0 = E_LO << 7
    TABP, WQS, PART, PSTR = 0, 4096, 40960, 1040
    ML, OV, XSA, XSB, XN, TRED = 49280, 49408, 49920, 52224, 54528, 59136
    TABN, WOS, FLG = 65536, 69632, 59648
    LDS = 106560
    W_HQ, W_HO, W_HM, W_HX, W_HT, W_DIAG = 0, 65536, 589824, 598016, 745472, 1 << 20
    L_HQ, L_HO, L_HM, L_HX = 32768, 262144, 4096, 73728
    sX, sK, sV, sWQ, sWO, sW1, sB1, sW2, sB2, sOUT, sDBG, sWS = 4, 6, 8, 10, 12, 16, 18, 20, 22, 24, 26, 28
    sWV, sHKV, sB, sS, sGID, sL, sFAST, sXCC, sCNT, sP = 30, 31, 32, 33, 34, 35, 36, 37, 38, 39
    sH, sRET, sHQ, sHO, sHM, sHX = 40, 56, 58, 60, 62, 64
    sT0, sT1, sT2, sSMC, sT3 = 66, 67, 68, 69, 3
    sMSK = 14
    sSTAMP = 70

    def sp(r):
        return "s[%d:%d]" % (r, r + 1)

    def V(a, n=1):
        return "v%d" % a if n == 1 else "v[%d:%d]" % (a, a + n - 1)

    vT, vL = 0, 1
    aHQL, aHQS, aHOL, aHOS, aHML, aHXL, aHXS = 2, 3, 4, 5, 6, 7, 11
    lPW, lPR, lMR, lMW, lOW, lOR, lXC, lXP, lXS, lNW, lNH, lNR = 12, 13, 14, 15, 16, 17, 18, 19, 20, 21, 22, 23
    vS = 24
    vK = 32
    vA = 64
    vVT = 100
    vWQ = 132
    vWO = 168
    vMA, vKAP, vMC, vONE, vMW, vB2 = 200, 209, 210, 219, 220, 229
    vONES = 230
    vQ = 234
    vXA = 234
    vP = 250
    vINV, vM = 254, 255
    vACC, vTT = 100, 116
    stamp_n = [0]

    def stamp():
        if DIAG:
            i = stamp_n[0]
            stamp_n[0] += 1
            A("s_memrealtime %s" % sp(sSTAMP + 2 * i))
            A("s_waitcnt lgkmcnt(0)")

    def bc(r):
        return V(r & ~1, 2), r & 1

    def add64(base, off_reg):
        A("s_add_u32 s%d, s%d, %s" % (base, base, off_reg))
        A("s_addc_u32 s%d, s%d, 0" % (base + 1, base + 1))

    def store2(text):
        n = len(A.lines)
        A("s_cmp_eq_u32 s%d, 0" % sFAST)
        A("s_cbranch_scc1 Lsl%d" % n)
        for t in text:
            A(t)
        A("s_branch Lsd%d" % n)
        A.label("Lsl%d" % n)
        for t in text:
            A(t + " sc1")
        A.label("Lsd%d" % n)

    def maxtree(dst, regs):
        regs = list(regs)
        A("v_max3_u32 %s, %s, %s, %s" % (V(dst), V(regs[0]), V(regs[1]), V(regs[2])))
        regs = regs[3:]
        while len(regs) >= 2:
            A("v_max3_u32 %s, %s, %s, %s" % (V(dst), V(dst), V(regs[0]), V(regs[1])))
            regs = regs[2:]
        if regs:
            A("v_max_u32 %s, %s, %s" % (V(dst), V(dst), V(regs[0])))

    def poll_tail(label, tmp):
        A("v_cmp_eq_u32 vcc, -1, %s" % V(tmp))
        A("s_cbranch_vccz %s_ok" % label)
        A("s_sub_u32 s%d, s%d, 1" % (sCNT, sCNT))
        A("s_cbranch_scc0 %s" % label)
        A("s_mov_b32 s%d, 0" % sCNT)
        A.label("%s_ok" % label)

    DPP = " row_mask:0xf bank_mask:0xf"

    def stats(t):
        x = lambda i: V(vXA + 2 * i, 2)
        a, b, q = V(t, 2), V(t + 2, 2), V(t + 4, 2)
        S, Q = t + 6, t + 7
        A("v_pk_add_f32 %s, %s, %s" % (a, x(0), x(1)))
        A("v_pk_mul_f32 %s, %s, %s" % (q, x(0), x(0)))
        A("v_pk_add_f32 %s, %s, %s" % (b, x(2), x(3)))
        A("v_pk_fma_f32 %s, %s, %s, %s" % (q, x(1), x(1), q))
        A("v_pk_add_f32 %s, %s, %s" % (a, a, b))
        A("v_pk_fma_f32 %s, %s, %s, %s" % (q, x(2), x(2), q))
        A("v_add_f32 %s, %s, %s" % (V(S), V(t), V(vXA + 8)))
        A("v_pk_fma_f32 %s, %s, %s, %s" % (q, x(3), x(3), q))
        A("v_add_f32 %s, %s, %s" % (V(S), V(S), V(t + 1)))
        A("v_fma_f32 %s, %s, %s, %s" % (V(Q), V(vXA + 8), V(vXA + 8), V(t + 4)))
        A("v_add_f32 %s, %s, %s" % (V(Q), V(Q), V(t + 5)))
        for ctl in ("quad_perm:[1,0,3,2]" + DPP, "quad_perm:[2,3,0,1]" + DPP, "row_half_mirror" + DPP,
                    "row_mirror" + DPP, "row_bcast:15 row_mask:0xa bank_mask:0xf",
                    "row_bcast:31 row_mask:0xc bank_mask:0xf"):
            A("v_add_f32_dpp %s, %s, %s %s" % (V(S), V(S), V(S), ctl))
            A("v_add_f32_dpp %s, %s, %s %s" % (V(Q), V(Q), V(Q), ctl))
        A("v_readlane_b32 s%d, %s, 63" % (sT0, V(S)))
        A("v_readlane_b32 s%d, %s, 63" % (sT1, V(Q)))
        A("v_mul_f32 %s, s%d, %s" % (V(t), sT0, V(vINV)))
        A("v_mul_f32 %s, s%d, %s" % (V(t + 1), sT1, V(vINV)))
        A("v_fma_f32 %s, -%s, %s, %s" % (V(t + 1), V(t), V(t), V(t + 1)))
        A("v_max_f32 %s, 0, %s" % (V(t + 1), V(t + 1)))

    def normalize(dst, t, r):
        A("v_mul_f32 %s, %s, %s" % (V(t + 2), V(t), V(r)))
        rp, rs = bc(r)
        mp, ms = bc(t + 2)
        for i in range(4):
            A("v_pk_fma_f32 %s, %s, %s, %s op_sel:[0,%d,%d] op_sel_hi:[1,%d,%d] neg_lo:[0,0,1] neg_hi:[0,0,1]" % (
                V(dst + 2 * i, 2), V(vXA + 2 * i, 2), rp, mp, rs, ms, rs, ms))
        A("v_fma_f32 %s, %s, %s, -%s" % (V(dst + 8), V(vXA + 8), V(r), V(t + 2)))

    def reduce8(o, ml, M, e, norm):
        A("v_max_f32_dpp %s, %s, %s quad_perm:[1,0,3,2]%s" % (V(M), V(ml), V(ml), DPP))
        A("v_max_f32_dpp %s, %s, %s quad_perm:[2,3,0,1]%s" % (V(M), V(M), V(M), DPP))
        A("v_max_f32_dpp %s, %s, %s row_half_mirror%s" % (V(M), V(M), V(M), DPP))
        A("v_sub_f32 %s, %s, %s" % (V(e), V(ml), V(M)))
        A("v_exp_f32 %s, %s" % (V(e), V(e)))
        A("v_mov_b32 %s, %s" % (V(ml), V(M)))
        ep, es = bc(e)
        A("v_mul_f32 %s, %s, %s" % (V(ml + 1), V(ml + 1), V(e)))
        for i in range(2):
            A("v_pk_mul_f32 %s, %s, %s op_sel:[0,%d] op_sel_hi:[1,%d]" % (V(o + 2 * i, 2), V(o + 2 * i, 2), ep, es, es))
        for ctl in ("quad_perm:[1,0,3,2]", "quad_perm:[2,3,0,1]", "row_half_mirror"):
            for r in (ml + 1, o, o + 1, o + 2, o + 3):
                A("v_add_f32_dpp %s, %s, %s %s%s" % (V(r), V(r), V(r), ctl, DPP))
        if norm:
            A("v_rcp_f32 %s, %s" % (V(e), V(ml + 1)))
            for i in range(2):
                A("v_pk_mul_f32 %s, %s, %s op_sel:[0,%d] op_sel_hi:[1,%d]" % (V(o + 2 * i, 2), V(o + 2 * i, 2), ep, es, es))

    A.label(NAME)
    A("s_cmp_ge_u32 s2, 0x100")
    A("s_cbranch_scc1 Lend")
    A("s_load_dwordx16 s[4:19], s[0:1], 0")
    A("s_load_dwordx8 s[20:27], s[0:1], 64")
    A("s_load_dwordx2 s[28:29], s[0:1], 96")
    A("v_lshrrev_b32 v24, 6, v0")
    A("v_and_b32 v1, 63, v0")
    A("v_readfirstlane_b32 s%d, v24" % sWV)
    A("s_and_b32 s%d, s2, 7" % sT0)
    A("s_lshr_b32 s%d, s2, 3" % sT1)
    A("s_lshr_b32 s%d, s%d, 4" % (sT2, sT1))
    A("s_lshl_b32 s%d, s%d, 1" % (sHKV, sT0))
    A("s_add_u32 s%d, s%d, s%d" % (sHKV, sHKV, sT2))
    A("s_bfe_u32 s%d, s%d, 0x10003" % (sB, sT1))
    A("s_and_b32 s%d, s%d, 7" % (sS, sT1))
    A("s_lshl_b32 s%d, s%d, 4" % (sGID, sB))
    A("s_add_u32 s%d, s%d, s%d" % (sGID, sGID, sHKV))
    A("s_lshr_b32 s%d, s%d, 2" % (sP, sS))
    A("s_getreg_b32 s%d, hwreg(HW_REG_XCC_ID, 0, 4)" % sXCC)
    A("s_mov_b32 s%d, 0" % sL)
    A("s_mov_b32 s%d, 0" % sFAST)
    A("s_mov_b32 s%d, %d" % (sCNT, POLL_LIMIT))
    A("s_mov_b32 s%d, %s" % (sSMC, fl(SMC)))
    A("v_and_b32 v24, 15, v1")
    A("v_lshrrev_b32 v25, 4, v1")
    A("v_and_b32 v26, 7, v1")
    A("v_lshrrev_b32 v27, 3, v1")
    A("v_lshlrev_b32 v28, 2, v1")
    A("v_lshlrev_b32 v29, 1, v1")
    A("v_lshlrev_b32 v30, 4, v0")
    A("v_lshlrev_b32 v31, 1, v0")
    A("v_add_u32 v31, 0x2000, v31")
    for r in (vXA + 8, vMA + 8, vMC + 8, vMW + 8, vB2):
        A("v_mov_b32 %s, 0" % V(r))
    for i in range(4):
        A("v_mov_b32 %s, -1" % V(244 + i))
    A("v_mov_b32 v248, 0")
    A("s_waitcnt lgkmcnt(0)")
    stamp()
    if DIAG:
        A("s_memtime s[100:101]")
        A("s_waitcnt lgkmcnt(0)")
    for (r, base, mul, src) in ((sHQ, W_HQ, 1024, sGID), (sHO, W_HO, 8192, sGID), (sHM, W_HM, 128, sGID), (sHX, W_HX, 36864, sB)):
        A("s_mul_i32 s%d, s%d, %d" % (sT0, src, mul))
        A("s_add_u32 s%d, s%d, %d" % (sT0, sT0, base))
        A("s_add_u32 s%d, s%d, s%d" % (r, sWS, sT0))
        A("s_addc_u32 s%d, s%d, 0" % (r + 1, sWS + 1))
    A("s_cmp_lg_u32 s%d, 2" % sWV)
    A("s_cbranch_scc1 Linit_done")
    A("s_lshl_b32 s%d, s%d, 10" % (sT1, sS))
    A("v_lshl_add_u32 v249, v1, 4, s%d" % sT1)
    A("v_add_u32 v250, %d, v249" % L_HO)
    A("global_store_dwordx4 v249, v[244:247], %s sc1" % sp(sHO))
    A("global_store_dwordx4 v250, v[244:247], %s sc1" % sp(sHO))
    A("s_and_b32 s%d, s%d, 3" % (sT1, sS))
    A("s_lshl_b32 s%d, s%d, 7" % (sT1, sT1))
    A("s_lshl_b32 s%d, s%d, 9" % (sT2, sP))
    A("s_add_u32 s%d, s%d, s%d" % (sT1, sT1, sT2))
    A("s_lshl_b32 s%d, s%d, 10" % (sT2, sGID))
    A("s_add_u32 s%d, s%d, s%d" % (sT1, sT1, sT2))
    A("v_lshl_add_u32 v249, v1, 4, s%d" % sT1)

    def seg(first, sreg, const):
        A("s_add_u32 s%d, s%d, %d" % (sT0, sreg, const - 16 * first))
        A("v_lshl_add_u32 v250, v1, 4, s%d" % sT0)
        A("v_cmp_le_u32 vcc, %d, v1" % first)
        A("v_cndmask_b32 v249, v249, v250, vcc")

    seg(8, sT1, W_HQ + L_HQ)
    A("s_lshl_b32 s%d, s%d, 7" % (sT1, sGID))
    A("s_lshl_b32 s%d, s%d, 4" % (sT2, sS))
    A("s_add_u32 s%d, s%d, s%d" % (sT1, sT1, sT2))
    seg(16, sT1, W_HM)
    seg(17, sT1, W_HM + L_HM)
    A("s_mul_i32 s%d, s%d, 36864" % (sT1, sB))
    A("s_mul_i32 s%d, s%d, 2304" % (sT2, sHKV))
    A("s_add_u32 s%d, s%d, s%d" % (sT1, sT1, sT2))
    A("s_mul_i32 s%d, s%d, 288" % (sT2, sS))
    A("s_add_u32 s%d, s%d, s%d" % (sT1, sT1, sT2))
    seg(18, sT1, W_HX)
    seg(36, sT1, W_HX + L_HX)
    A("s_lshl_b32 s%d, s2, 5" % sT1)
    seg(54, sT1, W_HT)
    A("s_mov_b32 exec_hi, 0x00ffffff")
    A("global_store_dwordx4 v249, v[244:247], %s sc1" % sp(sWS))
    A("s_mov_b32 exec_hi, -1")
    A.label("Linit_done")
    A("s_mul_i32 s%d, s%d, 1152" % (sT0, sB))
    add64(sX, "s%d" % sT0)
    add64(sOUT, "s%d" % sT0)
    for i in range(3):
        A("global_load_dwordx4 %s, v30, %s" % (V(vA + 4 * i, 4), sp((sW1, sB1, sW2)[i])))
        A("global_load_short_d16_hi %s, v31, %s" % (V((vMA, vMC, vMW)[i] + 8), sp((sW1, sB1, sW2)[i])))
    A("global_load_short_d16_hi %s, v248, %s" % (V(vB2), sp(sB2)))
    for i in range(4):
        A("global_load_dword %s, v28, %s offset:%d" % (V(vA + 12 + i), sp(sX), 256 * i))
    A("global_load_short_d16_hi %s, v29, %s offset:1024" % (V(vXA + 8), sp(sX)))
    A("s_barrier")
    A("s_mul_i32 s%d, s%d, %d" % (sT0, sP, 288 * 8192))
    A("s_lshl_b32 s%d, s%d, 9" % (sT1, sHKV))
    A("s_add_u32 s%d, s%d, s%d" % (sT0, sT0, sT1))
    A("s_and_b32 s%d, s%d, 3" % (sT1, sS))
    A("s_lshl_b32 s%d, s%d, 7" % (sT1, sT1))
    A("s_add_u32 s%d, s%d, s%d" % (sT0, sT0, sT1))
    add64(sWQ, "s%d" % sT0)
    A("v_lshlrev_b32 v249, 13, v27")
    A("v_lshl_add_u32 v249, v26, 4, v249")
    A("s_lshl_b32 s%d, s%d, 16" % (sT0, sWV))
    A("v_add_u32 v250, s%d, v249" % sT0)
    A("s_lshl_b32 s%d, s%d, 10" % (sT1, sWV))
    for i in range(4):
        A("s_add_u32 m0, s%d, %d" % (sT1, WQS + 8192 * i))
        if i:
            A("v_add_u32 v250, 0x80000, v250")
        A("global_load_lds_dwordx4 v250, %s%s" % (sp(sWQ), NTW))
    A("s_lshl_b32 s%d, s%d, 15" % (sT0, sWV))
    A("s_add_u32 s%d, s%d, %d" % (sT0, sT0, 256 * 8192))
    A("v_add_u32 v250, s%d, v249" % sT0)
    A("s_lshl_b32 s%d, s%d, 9" % (sT1, sWV))
    A("s_add_u32 m0, s%d, %d" % (sT1, WQS + 32768))
    A("s_mov_b32 exec_hi, 0")
    A("global_load_lds_dwordx4 v250, %s%s" % (sp(sWQ), NTW))
    A("s_mov_b32 exec_hi, -1")
    A("s_lshl_b32 s%d, s%d, 21" % (sT0, sGID))
    A("s_lshl_b32 s%d, s%d, 16" % (sT1, sS))
    A("s_add_u32 s%d, s%d, s%d" % (sT0, sT0, sT1))
    A("s_lshl_b32 s%d, s%d, 13" % (sT1, sWV))
    A("s_add_u32 s%d, s%d, s%d" % (sT0, sT0, sT1))
    A("s_add_u32 s%d, s%d, %d" % (sT0, sT0, 6144 * 256 + 4096))
    add64(sK, "s%d" % sT0)
    add64(sV, "s%d" % sT0)
    aK, aV = 251, 252
    A("v_and_b32 v249, 1, v27")
    A("v_lshl_add_u32 v249, v249, 2, v25")
    A("v_lshlrev_b32 v249, 4, v249")
    A("v_lshl_add_u32 %s, v26, 8, v249" % V(aK))
    A("v_lshlrev_b32 v249, 4, v24")
    A("v_lshl_add_u32 %s, v25, 10, v249" % V(aV))

    def kload(T, hf, sub):
        A("global_load_dwordx4 %s, %s, %s offset:%d%s" % (
            V(vK + 16 * T + 4 * (2 * hf + sub), 4), V(aK), sp(sK), (16 * T + 8 * sub) * 256 + hf * 128 - 4096, NTKV))

    def vload(i):
        A("global_load_dwordx4 %s, %s, %s offset:%d%s" % (
            V(vA + 4 * i, 4), V(aV), sp(sV), (16 * (i >> 2) + (i & 3)) * 256 - 4096, NTKV))

    for hf in range(2):
        for sub in range(2):
            kload(0, hf, sub)
    A("v_and_b32 v249, 1, v24")
    A("v_lshlrev_b32 v249, 9, v249")
    A("v_bfe_u32 v250, v24, 2, 1")
    A("v_lshl_add_u32 v249, v250, 8, v249")
    A("v_lshl_add_u32 %s, v25, 4, v249" % V(aHQL))
    A("s_and_b32 s%d, s%d, 3" % (sT0, sS))
    A("s_lshl_b32 s%d, s%d, 7" % (sT0, sT0))
    A("s_lshl_b32 s%d, s%d, 9" % (sT1, sP))
    A("s_add_u32 s%d, s%d, s%d" % (sT0, sT0, sT1))
    A("s_lshl_b32 s%d, s%d, 5" % (sT1, sWV))
    A("s_add_u32 s%d, s%d, s%d" % (sT0, sT0, sT1))
    A("v_lshl_add_u32 %s, v25, 3, s%d" % (V(aHQS), sT0))
    A("s_lshl_b32 s%d, s%d, 7" % (sT0, sWV))
    A("v_lshl_add_u32 v249, v27, 4, s%d" % sT0)
    A("v_lshl_add_u32 %s, v26, 10, v249" % V(aHOL))
    A("s_lshl_b32 s%d, s%d, 10" % (sT1, sS))
    A("v_add_u32 %s, s%d, v249" % (V(aHOS), sT1))
    A("v_mul_u32_u24 v250, %d, v26" % PSTR)
    A("v_add_u32 v250, %d, v250" % PART)
    A("v_add_u32 %s, v249, v250" % V(lPR))
    A("v_lshrrev_b32 v249, 1, v249")
    A("v_add_u32 %s, %d, v249" % (V(lOW), OV))
    A("s_lshr_b32 s%d, s%d, 2" % (sT0, sWV))
    A("s_lshl_b32 s%d, s%d, 3" % (sT0, sT0))
    A("v_lshl_add_u32 %s, v26, 4, s%d" % (V(aHML), sT0))
    A("v_add_u32 %s, %d, %s" % (V(lMR), ML, V(aHML)))
    A("s_lshl_b32 s%d, s%d, 8" % (sT0, sWV))
    A("v_lshl_add_u32 v249, v24, 4, s%d" % sT0)
    A("v_mul_u32_u24 v250, 2304, v25")
    A("v_add_u32 %s, v249, v250" % V(aHXL))
    for i in range(1, 4):
        A("v_add_u32 %s, %d, %s" % (V(aHXL + i), 9216 * i, V(aHXL)))
    A("v_lshrrev_b32 v250, 1, v25")
    A("v_and_b32 v253, 1, v25")
    A("v_lshl_add_u32 v250, v253, 1, v250")
    A("v_lshl_add_u32 v249, v250, 2, v249")
    A("v_add_u32 %s, %d, v249" % (V(lXC), XSA))
    A("s_mul_i32 s%d, s%d, 2304" % (sT0, sHKV))
    A("s_mul_i32 s%d, s%d, 288" % (sT1, sS))
    A("s_add_u32 s%d, s%d, s%d" % (sT0, sT0, sT1))
    A("s_lshl_b32 s%d, s%d, 6" % (sT1, sWV))
    A("s_add_u32 s%d, s%d, s%d" % (sT0, sT0, sT1))
    A("v_lshl_add_u32 %s, v25, 4, s%d" % (V(aHXS), sT0))
    A("s_mul_i32 s%d, s%d, %d" % (sT0, sWV, PSTR))
    A("s_add_u32 s%d, s%d, %d" % (sT0, sT0, PART))
    A("v_lshlrev_b32 v249, 9, v253")
    A("v_lshl_add_u32 v249, v24, 2, v249")
    A("v_add_u32 %s, s%d, v249" % (V(lPW), sT0))
    A("s_lshl_b32 s%d, s%d, 4" % (sT0, sWV))
    A("s_add_u32 s%d, s%d, %d" % (sT0, sT0, ML))
    A("v_lshl_add_u32 %s, v253, 3, s%d" % (V(lMW), sT0))
    A("v_lshlrev_b32 v249, 4, v25")
    A("v_add_u32 %s, %d, v249" % (V(lOR), OV))
    A("v_lshlrev_b32 v250, 3, v1")
    A("v_add_u32 %s, %d, v250" % (V(lXP), XSA))
    A("v_add_u32 %s, %d, v28" % (V(lXS), XSA + 2048))
    A("s_and_b32 s%d, s%d, 3" % (sT0, sWV))
    A("s_mul_i32 s%d, s%d, 1152" % (sT0, sT0))
    A("s_add_u32 s%d, s%d, %d" % (sT0, sT0, XN))
    A("v_add_u32 %s, s%d, v28" % (V(lNW), sT0))
    A("s_add_u32 s%d, s%d, 1024" % (sT1, sT0))
    A("v_add_u32 %s, s%d, v29" % (V(lNH), sT1))
    A("s_mul_i32 s%d, s%d, 576" % (sT1, sP))
    A("s_add_u32 s%d, s%d, s%d" % (sT0, sT0, sT1))
    A("v_add_u32 %s, s%d, v249" % (V(lNR), sT0))
    A("v_mov_b32 %s, %s" % (V(vKAP), fl(KAP)))
    A("v_mov_b32 %s, 1.0" % V(vONE))
    A("v_mov_b32 %s, %s" % (V(vINV), fl(1.0 / 576)))
    for i in range(4):
        A("v_mov_b32 %s, 0x3f803f80" % V(vONES + i))
    for i in range(16):
        A("v_mov_b32 %s, 0" % V(vACC + i))
    A("s_and_b32 s%d, s2, 127" % sT0)
    A("s_lshl_b32 s%d, s%d, 4" % (sT0, sT0))
    A("s_add_u32 s%d, s%d, %d" % (sT0, sT0, E0))
    A("s_lshr_b32 s%d, s2, 7" % sT1)
    A("s_lshl_b32 s%d, s%d, 15" % (sT1, sT1))
    A("s_add_u32 s%d, s%d, s%d" % (sT0, sT0, sT1))
    A("s_lshl_b32 s%d, s%d, 16" % (sH, sT0))
    for i in range(1, 16):
        A("s_add_u32 s%d, s%d, %d" % (sH + i, sH, i << 16))
    A("s_waitcnt vmcnt(9)")
    stamp()
    A("s_cmp_lg_u32 s%d, 2" % sWV)
    A("s_cbranch_scc1 Lnoflag")
    A("s_or_b32 s%d, s%d, 0x80" % (sT0, sXCC))
    A("s_and_b32 s%d, s2, 3" % sT1)
    A("s_lshl_b32 s%d, s%d, 3" % (sT1, sT1))
    A("s_lshl_b32 s%d, s%d, s%d" % (sT0, sT0, sT1))
    A("s_and_b32 s%d, s2, 0xfc" % sT1)
    A("v_mov_b32 v249, s%d" % sT1)
    A("v_mov_b32 v250, s%d" % sT0)
    A("s_mov_b64 exec, 1")
    A("global_atomic_or v249, v250, %s sc1" % sp(sDBG))
    A("s_mov_b64 exec, -1")
    A.label("Lnoflag")
    for (dst, src, mul) in ((vMA, vA, SC), (vMC, vA + 4, SC), (vMW, vA + 8, 1.0 / SC)):
        for i in range(4):
            A("v_lshlrev_b32 %s, 16, %s" % (V(dst + 2 * i), V(src + i)))
            A("v_and_b32 %s, 0xffff0000, %s" % (V(dst + 2 * i + 1), V(src + i)))
        A("s_mov_b32 s%d, %s" % (sT0, fl(mul)))
        for i in range(9):
            A("v_mul_f32 %s, s%d, %s" % (V(dst + i), sT0, V(dst + i)))
    for i in range(4):
        A("v_lshlrev_b32 %s, 16, %s" % (V(vXA + 2 * i), V(vA + 12 + i)))
        A("v_and_b32 %s, 0xffff0000, %s" % (V(vXA + 2 * i + 1), V(vA + 12 + i)))
    A("s_cmp_lg_u32 s%d, 7" % sWV)
    A("s_cbranch_scc1 Lnox0")
    for i in range(4):
        A("ds_write_b64 %s, %s offset:%d" % (V(lXP), V(vXA + 2 * i, 2), 512 * i))
    A("ds_write_b32 %s, %s" % (V(lXS), V(vXA + 8)))
    A.label("Lnox0")

    def table_f(f, between=()):
        ap, asel = bc(vMA + f)
        cp, csel = bc(vMC + f)
        wp, wsel = bc(vMW + f)
        kp, ksel = bc(vKAP)
        op, osel = bc(vONE)
        between = list(between)
        for k2 in range(4):
            seq = []
            for h in range(2):
                k = 2 * k2 + h
                u, t, e, uw = (V(vTT + 8 * h + 2 * i, 2) for i in range(4))
                e0, e1 = vTT + 8 * h + 4, vTT + 8 * h + 5
                t0, t1 = vTT + 8 * h + 2, vTT + 8 * h + 3
                seq.append([
                    "v_pk_fma_f32 %s, %s, %s, %s op_sel:[%d,0,%d] op_sel_hi:[%d,1,%d]" % (u, ap, sp(sH + 2 * k), cp, asel, csel, asel, csel),
                    "v_pk_fma_f32 %s, %s, %s, %s op_sel:[0,0,%d] op_sel_hi:[1,1,%d]" % (t, u, u, kp, ksel, ksel),
                    "v_pk_mul_f32 %s, %s, %s neg_lo:[1,0] neg_hi:[1,0]" % (t, t, u),
                    "v_exp_f32 %s, %s" % (V(e0), V(t0)),
                    "v_exp_f32 %s, %s" % (V(e1), V(t1)),
                    "v_pk_mul_f32 %s, %s, %s op_sel:[0,%d] op_sel_hi:[1,%d]" % (uw, u, wp, wsel, wsel),
                    "v_pk_add_f32 %s, %s, %s op_sel:[0,%d] op_sel_hi:[1,%d]" % (e, e, op, osel, osel),
                    "v_rcp_f32 %s, %s" % (V(e0), V(e0)),
                    "v_rcp_f32 %s, %s" % (V(e1), V(e1)),
                    "v_pk_fma_f32 %s, %s, %s, %s" % (V(vACC + 2 * k, 2), uw, e, V(vACC + 2 * k, 2)),
                ])
            s0, s1 = seq
            for l in (s0[0], s1[0], s0[1], s1[1], s0[2], s1[2], s0[3], s0[4], s1[3], s1[4], s0[5], s0[6], s1[5], s1[6],
                      s0[7], s0[8], s1[7], s1[8], s0[9], s1[9]):
                A(l)
            if k2 in (0, 2) and between:
                between.pop(0)()

    table_f(0, [lambda: kload(1, 0, 0), lambda: kload(1, 0, 1)])
    table_f(1, [lambda: kload(1, 1, 0), lambda: kload(1, 1, 1)])
    table_f(2)
    A("s_waitcnt vmcnt(8) lgkmcnt(0)")
    A("s_barrier")
    stamp()
    A("s_cmp_gt_u32 s%d, 3" % sWV)
    A("s_cbranch_scc1 Lnowq")
    A("v_bfe_u32 v249, v1, 2, 2")
    A("v_lshrrev_b32 v250, 4, v1")
    A("v_lshl_add_u32 v249, v250, 3, v249")
    A("v_lshlrev_b32 v249, 7, v249")
    A("v_and_b32 v250, 3, v1")
    A("v_lshl_add_u32 v249, v250, 3, v249")
    A("s_lshl_b32 s%d, s%d, 5" % (sT0, sWV))
    A("s_add_u32 s%d, s%d, %d" % (sT0, sT0, WQS))
    A("v_add_u32 v249, s%d, v249" % sT0)
    for ks in range(9):
        for hh in range(2):
            A("ds_read_b64_tr_b16 %s, v249 offset:%d" % (V(vWQ + 4 * ks + 2 * hh, 2), (32 * ks + 4 * hh) * 128))
    A("s_call_b64 %s, Lqstage" % sp(sRET))
    A.label("Lnowq")
    stamp()
    A("s_cmp_lg_u32 s%d, 4" % sWV)
    A("s_cbranch_scc1 Lnofl")
    A("v_lshlrev_b32 v249, 2, v1")
    A("global_load_dword v253, v249, %s sc1" % sp(sDBG))
    A.label("Lnofl")
    for f in range(3, 7):
        table_f(f, [lambda i=2 * (f - 3): vload(i), lambda i=2 * (f - 3) + 1: vload(i)])
    stamp()
    A("s_cmp_lg_u32 s%d, 4" % sWV)
    A("s_cbranch_scc1 Lflagskip")
    A("s_waitcnt vmcnt(8)")
    A("s_branch Lflagchk")
    A.label("Lflagpoll")
    A("s_sleep 8")
    A("global_load_dword v253, v249, %s sc1" % sp(sDBG))
    A("s_waitcnt vmcnt(0)")
    A.label("Lflagchk")
    A("v_and_b32 v250, 0x80808080, v253")
    A("v_cmp_ne_u32 vcc, 0x80808080, v250")
    A("s_cbranch_vccz Lflagok")
    A("s_sub_u32 s%d, s%d, 1" % (sCNT, sCNT))
    A("s_cbranch_scc0 Lflagpoll")
    A("s_mov_b32 s%d, 0" % sCNT)
    A.label("Lflagok")
    A("s_and_b32 s%d, s2, 3" % sT0)
    A("s_lshl_b32 s%d, s%d, 3" % (sT0, sT0))
    A("v_lshrrev_b32 v251, s%d, v253" % sT0)
    A("v_and_b32 v251, 15, v251")
    A("v_cmp_ne_u32 vcc, s%d, v251" % sXCC)
    A("s_lshr_b32 s%d, s2, 6" % sT0)
    A("s_lshl_b32 s%d, s%d, 4" % (sT0, sT0))
    A("s_bfe_u32 s%d, s2, 0x10002" % sT1)
    A("s_add_u32 s%d, s%d, s%d" % (sT0, sT0, sT1))
    A("s_mov_b64 %s, 0x5555" % sp(sMSK))
    A("s_lshl_b64 %s, %s, s%d" % (sp(sMSK), sp(sMSK), sT0))
    A("s_and_b64 %s, %s, vcc" % (sp(sMSK), sp(sMSK)))
    A("s_cselect_b32 s%d, 0, %d" % (sT0, 0 if FORCE_SLOW else 1))
    A("v_mov_b32 v250, %d" % FLG)
    A("v_mov_b32 v251, s%d" % sT0)
    A("ds_write_b32 v250, v251")
    A.label("Lflagskip")
    table_f(7)
    table_f(8)
    for k in range(8):
        A("v_permlane32_swap_b32 %s, %s" % (V(vACC + 2 * k), V(vACC + 2 * k + 1)))
    for k in range(8):
        A("v_add_f32 %s, %s, %s" % (V(vACC + 2 * k), V(vACC + 2 * k), V(vACC + 2 * k + 1)))
    for k in range(4):
        A("v_permlane16_swap_b32 %s, %s" % (V(vACC + 4 * k), V(vACC + 4 * k + 2)))
    for k in range(4):
        A("v_add_f32 %s, %s, %s" % (V(vACC + 4 * k), V(vACC + 4 * k), V(vACC + 4 * k + 2)))
    for ctl in ("quad_perm:[1,0,3,2]", "quad_perm:[2,3,0,1]", "row_half_mirror", "row_mirror"):
        for k in range(4):
            A("v_add_f32_dpp %s, %s, %s %s%s" % (V(vACC + 4 * k), V(vACC + 4 * k), V(vACC + 4 * k), ctl, DPP))
    A("v_lshrrev_b32 v251, 5, v1")
    A("v_bfe_u32 v250, v1, 4, 1")
    A("v_lshl_add_u32 v251, v250, 1, v251")
    A("s_lshl_b32 s%d, s%d, 6" % (sT0, sWV))
    A("s_add_u32 s%d, s%d, %d" % (sT0, sT0, TRED))
    A("v_lshl_add_u32 v251, v251, 2, s%d" % sT0)
    A("s_mov_b32 exec_lo, 0x00010001")
    A("s_mov_b32 exec_hi, 0x00010001")
    A("ds_write2_b32 v251, %s, %s offset0:0 offset1:4" % (V(vACC), V(vACC + 4)))
    A("ds_write2_b32 v251, %s, %s offset0:8 offset1:12" % (V(vACC + 8), V(vACC + 12)))
    A("s_mov_b64 exec, -1")
    A("s_mul_i32 s%d, s%d, %d" % (sT0, sHKV, 256 * 1152))
    A("s_mul_i32 s%d, s%d, 144" % (sT1, sS))
    A("s_add_u32 s%d, s%d, s%d" % (sT0, sT0, sT1))
    add64(sWO, "s%d" % sT0)
    for i in range(5):
        if i < 4:
            A("v_add_u32 v250, %d, v0" % (512 * i))
        else:
            A("s_lshl_b32 s%d, s%d, 5" % (sT0, sWV))
            A("s_add_u32 s%d, s%d, 2048" % (sT0, sT0))
            A("v_and_b32 v250, 31, v1")
            A("v_add_u32 v250, s%d, v250" % sT0)
        A("v_mul_u32_u24 v251, 7282, v250")
        A("v_lshrrev_b32 v251, 16, v251")
        A("v_mul_u32_u24 v251, 1008, v251")
        A("v_lshl_add_u32 %s, v250, 4, v251" % V(vTT + i))
    A("s_waitcnt lgkmcnt(0)")
    A("s_barrier")
    stamp()
    A("v_mov_b32 v250, %d" % FLG)
    A("ds_read_b32 v251, v250")
    for ks in range(4):
        A("global_load_dwordx4 %s, %s, %s offset:%d sc1" % (V(vQ + 4 * ks, 4), V(aHQL), sp(sHQ), 64 * ks))
    A("s_lshl_b32 s%d, s%d, 10" % (sT1, sWV))
    for i in range(4):
        A("s_add_u32 m0, s%d, %d" % (sT1, WOS + 8192 * i))
        A("global_load_lds_dwordx4 %s, %s%s" % (V(vTT + i), sp(sWO), NTW))
    A("s_lshl_b32 s%d, s%d, 9" % (sT1, sWV))
    A("s_add_u32 m0, s%d, %d" % (sT1, WOS + 32768))
    A("s_mov_b32 exec_hi, 0")
    A("global_load_lds_dwordx4 %s, %s%s" % (V(vTT + 4), sp(sWO), NTW))
    A("s_mov_b32 exec_hi, -1")
    A("s_waitcnt lgkmcnt(0)")
    A("v_readfirstlane_b32 s%d, v251" % sFAST)
    A("s_waitcnt vmcnt(17)")
    for pr in range(4):
        a, b = vK + 8 * pr, vK + 8 * pr + 4
        for d in range(4):
            A("v_mov_b32 %s, %s" % (V(vS + d), V(a + d)))
        for d in range(4):
            A("v_mov_b32_dpp %s, %s row_ror:8 row_mask:0xf bank_mask:0xc" % (V(a + d), V(b + d)))
        for d in range(4):
            A("v_mov_b32_dpp %s, %s row_ror:8 row_mask:0xf bank_mask:0x3" % (V(b + d), V(vS + d)))
    A("s_cmp_lg_u32 s%d, 7" % sWV)
    A("s_cbranch_scc1 Lnotab")
    A("v_and_b32 v250, 15, v1")
    A("v_lshlrev_b32 v250, 2, v250")
    A("v_add_u32 v251, %d, v250" % TRED)
    for i in range(4):
        A("ds_read2_b32 %s, v251 offset0:%d offset1:%d" % (V(vS + 2 * i, 2), 32 * i, 32 * i + 16))
    A("s_waitcnt lgkmcnt(0)")
    A("v_pk_add_f32 %s, %s, %s" % (V(vS, 2), V(vS, 2), V(vS + 2, 2)))
    A("v_pk_add_f32 %s, %s, %s" % (V(vS + 4, 2), V(vS + 4, 2), V(vS + 6, 2)))
    A("v_pk_add_f32 %s, %s, %s" % (V(vS, 2), V(vS, 2), V(vS + 4, 2)))
    A("v_add_f32 %s, %s, %s" % (V(vS), V(vS), V(vS + 1)))
    A("v_cvt_pk_bf16_f32 %s, %s, %s" % (V(vS), V(vS), V(vS)))
    A("v_lshlrev_b32 %s, 16, %s" % (V(vS), V(vS)))
    A("v_add_f32 %s, %s, %s" % (V(vS), V(vS), V(vB2)))
    A("v_mov_b32_dpp %s, %s quad_perm:[1,1,3,3]%s" % (V(vS + 1), V(vS), DPP))
    A("v_cvt_pk_bf16_f32 %s, %s, %s" % (V(vS), V(vS), V(vS + 1)))
    A("v_min_u32 %s, -2, %s" % (V(vS), V(vS)))
    A("v_lshrrev_b32 v250, 1, v250")
    A("s_lshl_b32 s%d, s2, 5" % sT0)
    A("s_add_u32 s%d, s%d, %d" % (sT0, sT0, W_HT))
    A("v_add_u32 v250, s%d, v250" % sT0)
    A("s_mov_b64 exec, 0x5555")
    A("global_store_dword v250, %s, %s sc1" % (V(vS), sp(sWS)))
    A("s_mov_b64 exec, -1")
    A("s_waitcnt vmcnt(6)")
    A("s_branch Lqchk")
    A.label("Lnotab")
    A("s_waitcnt vmcnt(5)")
    A("s_branch Lqchk")
    A.label("Lqpoll")
    for ks in range(4):
        A("global_load_dwordx4 %s, %s, %s offset:%d sc1" % (V(vQ + 4 * ks, 4), V(aHQL), sp(sHQ), 64 * ks))
    A("s_waitcnt vmcnt(0)")
    A.label("Lqchk")
    maxtree(vM, range(vQ, vQ + 16))
    poll_tail("Lqpoll", vM)
    if DIAG:
        A("s_cmp_eq_u32 s%d, 0" % sL)
        A("s_cbranch_scc0 Lst6")
        stamp()
        A.label("Lst6")
    for ks in range(4):
        for T in range(2):
            A("v_mfma_f32_16x16x32_bf16 %s, %s, %s, %s" % (
                V(vS + 4 * T, 4), V(vK + 16 * T + 4 * ks, 4), V(vQ + 4 * ks, 4), V(vS + 4 * T, 4) if ks else "0"))
    A("s_cmp_lg_u32 s%d, 0" % sL)
    A("s_cbranch_scc1 Lvt_done")
    A("s_mov_b32 s%d, 0x05040100" % sT0)
    A("s_mov_b32 s%d, 0x07060302" % sT1)
    for j in range(8):
        for e in range(4):
            A("v_perm_b32 %s, %s, %s, s%d" % (
                V(vVT + 4 * j + e), V(vA + 4 * (2 * e + 1) + (j >> 1)), V(vA + 4 * (2 * e) + (j >> 1)), sT1 if j & 1 else sT0))
    A.label("Lvt_done")
    for r in range(8):
        A("v_add_f32_dpp %s, %s, %s quad_perm:[1,0,3,2]%s" % (V(vS + r), V(vS + r), V(vS + r), DPP))
    A("v_max3_f32 %s, %s, %s, %s" % (V(vM), V(vS), V(vS + 1), V(vS + 2)))
    A("v_max3_f32 %s, %s, %s, %s" % (V(vP), V(vS + 3), V(vS + 4), V(vS + 5)))
    A("v_max3_f32 %s, %s, %s, %s" % (V(vM), V(vM), V(vS + 6), V(vS + 7)))
    A("v_max_f32 %s, %s, %s" % (V(vM), V(vM), V(vP)))
    for sw in ("v_permlane16_swap_b32", "v_permlane32_swap_b32"):
        A("v_mov_b32 %s, %s" % (V(vP), V(vM)))
        A("%s %s, %s" % (sw, V(vM), V(vP)))
        A("v_max_f32 %s, %s, %s" % (V(vM), V(vM), V(vP)))
    A("v_mul_f32 %s, s%d, %s" % (V(vM), sSMC, V(vM)))
    for r in range(8):
        A("v_fma_f32 %s, %s, s%d, -%s" % (V(vS + r), V(vS + r), sSMC, V(vM)))
    for r in range(8):
        A("v_exp_f32 %s, %s" % (V(vS + r), V(vS + r)))
    for r in range(4):
        A("v_cvt_pk_bf16_f32 %s, %s, %s" % (V(vP + r), V(vS + 2 * r), V(vS + 2 * r + 1)))
    A("v_mfma_f32_16x16x32_bf16 %s, %s, %s, 0" % (V(vA + 32, 4), V(vP, 4), V(vONES, 4)))
    for j in range(8):
        A("v_mfma_f32_16x16x32_bf16 %s, %s, %s, 0" % (V(vA + 4 * j, 4), V(vP, 4), V(vVT + 4 * j, 4)))
    A("s_mov_b64 exec, 0x100001")
    A("ds_write2_b32 %s, %s, %s offset0:0 offset1:1" % (V(lMW), V(vM), V(vA + 32)))
    A("s_mov_b32 exec_lo, -1")
    for j in range(0, 8, 2):
        A("ds_write2_b32 %s, %s, %s offset0:%d offset1:%d" % (V(lPW), V(vA + 4 * j), V(vA + 4 * j + 4), 16 * j, 16 * j + 16))
    A("s_mov_b32 exec_hi, -1")
    A("s_waitcnt lgkmcnt(0)")
    A("s_barrier")
    A("ds_read_b64 %s, %s" % (V(vA + 4, 2), V(lMR)))
    A("ds_read_b128 %s, %s" % (V(vA, 4), V(lPR)))
    A("s_waitcnt lgkmcnt(0)")
    reduce8(vA, vA + 4, vA + 6, vA + 7, False)
    for i in range(6):
        A("v_min_u32 %s, -2, %s" % (V(vA + i), V(vA + i)))
    A("s_mov_b32 exec_lo, 0x01010101")
    A("s_mov_b32 exec_hi, 0x01010101")
    store2(["global_store_dwordx4 %s, %s, %s" % (V(aHOS), V(vA, 4), sp(sHO))])
    A("s_and_b32 s%d, s%d, 3" % (sT0, sWV))
    A("s_cbranch_scc1 Lnohm")
    A("s_lshl_b64 exec, 1, s%d" % sS)
    store2(["global_store_dwordx2 %s, %s, %s" % (V(aHML), V(vA + 4, 2), sp(sHM))])
    A.label("Lnohm")
    A("s_mov_b64 exec, -1")
    if DIAG:
        A("s_cmp_eq_u32 s%d, 0" % sL)
        A("s_cbranch_scc0 Lst7")
        stamp()
        A("s_branch Lst7e")
        A.label("Lst7")
        stamp()
        A.label("Lst7e")
    A.label("Lopoll")
    A("global_load_dwordx2 %s, %s, %s sc1" % (V(vA + 12, 2), V(aHML), sp(sHM)))
    A("global_load_dwordx4 %s, %s, %s sc1" % (V(vA + 8, 4), V(aHOL), sp(sHO)))
    A("s_waitcnt vmcnt(0)")
    maxtree(vM, range(vA + 8, vA + 14))
    poll_tail("Lopoll", vM)
    reduce8(vA + 8, vA + 12, vA + 14, vA + 15, True)
    A("v_cvt_pk_bf16_f32 %s, %s, %s" % (V(vA + 8), V(vA + 8), V(vA + 9)))
    A("v_cvt_pk_bf16_f32 %s, %s, %s" % (V(vA + 9), V(vA + 10), V(vA + 11)))
    A("s_mov_b32 exec_lo, 0x01010101")
    A("s_mov_b32 exec_hi, 0x01010101")
    A("ds_write_b64 %s, %s" % (V(lOW), V(vA + 8, 2)))
    A("s_mov_b64 exec, -1")
    A("s_waitcnt lgkmcnt(0)")
    A("s_barrier")
    A("s_cmp_gt_u32 s%d, 4" % sWV)
    A("s_cbranch_scc1 Lwo_done")
    A("s_cmp_lg_u32 s%d, 0" % sL)
    A("s_cbranch_scc1 Lwo_regs")
    A("v_bfe_u32 v249, v1, 4, 1")
    A("v_lshlrev_b32 v249, 6, v249")
    A("v_bfe_u32 v250, v1, 2, 2")
    A("v_lshl_add_u32 v249, v250, 3, v249")
    A("v_lshrrev_b32 v250, 5, v1")
    A("v_add_u32 v249, v249, v250")
    A("v_mul_u32_u24 v249, 144, v249")
    A("v_and_b32 v250, 3, v1")
    A("v_lshl_add_u32 v249, v250, 3, v249")
    A("s_lshl_b32 s%d, s%d, 5" % (sT0, sWV))
    A("s_add_u32 s%d, s%d, %d" % (sT0, sT0, WOS))
    A("v_add_u32 v249, s%d, v249" % sT0)
    for ks in range(8):
        for hh in range(2):
            A("ds_read_b64_tr_b16 %s, v249 offset:%d" % (
                V(vWO + 4 * ks + 2 * hh, 2), (128 * (ks >> 2) + 2 * (ks & 3) + 32 * hh) * 144))
    A("s_waitcnt lgkmcnt(0)")
    A.label("Lwo_regs")
    for ks in range(8):
        A("ds_read_b128 %s, %s offset:%d" % (V(vA + 4 * ks, 4), V(lOR), 64 * ks))
    for ks in range(8):
        A("s_waitcnt lgkmcnt(%d)" % (7 - ks))
        A("v_mfma_f32_16x16x32_bf16 %s, %s, %s, %s" % (
            V(vS, 4), V(vWO + 4 * ks, 4), V(vA + 4 * ks, 4), V(vS, 4) if ks else "0"))
    A("s_cmp_eq_u32 s%d, 4" % sWV)
    A("s_cselect_b32 s%d, 0, 0x00010001" % sT0)
    for i in range(4):
        A("v_min_u32 %s, -2, %s" % (V(vS + i), V(vS + i)))
    A("s_mov_b32 exec_lo, 0x00010001")
    A("s_mov_b32 exec_hi, s%d" % sT0)
    A("global_store_dwordx4 %s, %s, %s sc1" % (V(aHXS), V(vS, 4), sp(sHX)))
    A("s_mov_b64 exec, -1")
    A.label("Lwo_done")
    if DIAG:
        A("s_cmp_eq_u32 s%d, 0" % sL)
        A("s_cbranch_scc0 Lst9")
        stamp()
        A("s_branch Lst9e")
        A.label("Lst9")
        stamp()
        A.label("Lst9e")
    A("s_cmp_eq_u32 s%d, 0" % sL)
    A("s_cbranch_scc1 Ltabg")
    A("s_or_b32 s%d, s%d, s%d" % (sT0, sHKV, sS))
    A("s_cbranch_scc1 Lexit")
    A("s_branch Lxwait")
    A.label("Ltabg")
    A("v_lshlrev_b32 v249, 4, v0")
    A("v_add_u32 v250, %d, v249" % W_HT)
    A("s_cmp_gt_u32 s%d, 3" % sWV)
    A("s_cselect_b32 s%d, %d, %d" % (sT0, TABN - 4096, TABP))
    A("v_add_u32 v249, s%d, v249" % sT0)
    A.label("Ltpoll")
    A("global_load_dwordx4 %s, v250, %s sc1" % (V(vA, 4), sp(sWS)))
    A("s_waitcnt vmcnt(0)")
    maxtree(vM, range(vA, vA + 4))
    poll_tail("Ltpoll", vM)
    A("ds_write_b128 v249, %s" % V(vA, 4))
    A.label("Lxwait")
    A("ds_read_b32 %s, %s" % (V(vS + 4), V(lXC)))
    A("ds_read_b32 %s, %s offset:2048" % (V(vS + 5), V(lXC)))
    A("s_waitcnt vmcnt(0)")
    A("s_barrier")
    A.label("Lxpoll")
    for i in range(4):
        A("global_load_dwordx4 %s, %s, %s sc1" % (V(vA + 4 * i, 4), V(aHXL + i), sp(sHX)))
    A("s_cmp_lg_u32 s%d, 0" % sWV)
    A("s_cbranch_scc1 Lx8a")
    for i in range(4):
        A("global_load_dwordx4 %s, %s, %s offset:2048 sc1" % (V(vA + 16 + 4 * i, 4), V(aHXL + i), sp(sHX)))
    A("s_waitcnt vmcnt(0)")
    maxtree(vP, range(vA + 16, vA + 32))
    A("s_branch Lx8b")
    A.label("Lx8a")
    A("v_mov_b32 %s, 0" % V(vP))
    A("s_waitcnt vmcnt(0)")
    A.label("Lx8b")
    maxtree(vM, [vP] + list(range(vA, vA + 16)))
    poll_tail("Lxpoll", vM)

    def xsum(b, prev, off):
        for i in range(2):
            A("v_pk_add_f32 %s, %s, %s" % (V(b + 2 * i, 2), V(b + 2 * i, 2), V(b + 4 + 2 * i, 2)))
            A("v_pk_add_f32 %s, %s, %s" % (V(b + 8 + 2 * i, 2), V(b + 8 + 2 * i, 2), V(b + 12 + 2 * i, 2)))
        for i in range(2):
            A("v_pk_add_f32 %s, %s, %s" % (V(b + 2 * i, 2), V(b + 2 * i, 2), V(b + 8 + 2 * i, 2)))
        A("v_permlane32_swap_b32 %s, %s" % (V(b), V(b + 1)))
        A("v_permlane32_swap_b32 %s, %s" % (V(b + 2), V(b + 3)))
        A("v_add_f32 %s, %s, %s" % (V(b), V(b), V(b + 1)))
        A("v_add_f32 %s, %s, %s" % (V(b + 2), V(b + 2), V(b + 3)))
        A("v_permlane16_swap_b32 %s, %s" % (V(b), V(b + 2)))
        A("v_add_f32 %s, %s, %s" % (V(b), V(b), V(b + 2)))
        A("v_cvt_pk_bf16_f32 %s, %s, %s" % (V(b), V(b), V(b)))
        A("v_lshlrev_b32 %s, 16, %s" % (V(b), V(b)))
        A("v_add_f32 %s, %s, %s" % (V(b), V(b), V(prev)))
        A("v_cvt_pk_bf16_f32 %s, %s, %s" % (V(b), V(b), V(b)))
        A("v_lshlrev_b32 %s, 16, %s" % (V(b), V(b)))
        A("ds_write_b32 %s, %s offset:%d" % (V(lXC), V(b), off))

    A("s_waitcnt lgkmcnt(0)")
    xsum(vA, vS + 4, 0)
    A("s_cmp_lg_u32 s%d, 0" % sWV)
    A("s_cbranch_scc1 Lx8c")
    xsum(vA + 16, vS + 5, 2048)
    A.label("Lx8c")
    A("s_waitcnt lgkmcnt(0)")
    A("s_barrier")
    if DIAG:
        A("s_cmp_eq_u32 s%d, 0" % sL)
        A("s_cbranch_scc0 Lst11")
        stamp()
        A("s_branch Lst11e")
        A.label("Lst11")
        stamp()
        A.label("Lst11e")
    A("s_cmp_eq_u32 s%d, 0" % sL)
    A("s_cselect_b32 s%d, 3, 0" % sT0)
    A("s_cmp_gt_u32 s%d, s%d" % (sWV, sT0))
    A("s_cbranch_scc1 Lmlp_skip")
    for i in range(4):
        A("ds_read_b64 %s, %s offset:%d" % (V(vXA + 2 * i, 2), V(lXP), 512 * i))
    A("ds_read_b32 %s, %s" % (V(vXA + 8), V(lXS)))
    vH, vY, vHP, vHS, vAD, vST = vA, vA + 10, vA + 20, vA + 26, vA, vS
    for i in range(9):
        A("v_mov_b32 %s, 0" % V(vY + i))
    A("s_waitcnt lgkmcnt(0)")
    stats(vST)
    A("v_add_f32 %s, %s, %s" % (V(vST + 3), fl(1e-5), V(vST + 1)))
    A("v_rsq_f32 %s, %s" % (V(vST + 3), V(vST + 3)))
    A("v_mul_f32 %s, %s, %s" % (V(vST + 1), V(vST + 1), V(vST + 3)))
    A("v_mul_f32 %s, %s, %s" % (V(vST + 1), V(vST + 1), V(vST + 3)))
    A("v_add_f32 %s, %s, %s" % (V(vST + 1), fl(1e-5), V(vST + 1)))
    A("v_rsq_f32 %s, %s" % (V(vST + 1), V(vST + 1)))
    A("v_mul_f32 %s, %s, %s" % (V(vST + 3), V(vST + 3), V(vST + 1)))
    normalize(vH, vST, vST + 3)
    A("s_mov_b32 s%d, %s" % (sT0, hx(E0 * 0x10001)))
    for i in range(5):
        A("v_cvt_pk_bf16_f32 %s, %s, %s" % (V(vHP + i), V(vH + 2 * i), V(vH + min(2 * i + 1, 8))))
    for i in range(5):
        A("v_pk_sub_u16 %s, %s, s%d" % (V(vHS + i), V(vHP + i), sT0))
    for i in range(9):
        A("v_lshlrev_b32_sdwa %s, 1, %s dst_sel:DWORD dst_unused:UNUSED_PAD src0_sel:DWORD src1_sel:WORD_%d" % (
            V(vAD + i), V(vHS + (i >> 1)), i & 1))
        A("ds_read_u16_d16_hi %s, %s offset:%d" % (V(vY + i), V(vAD + i), TABP))
    A("v_or3_b32 %s, %s, %s, %s" % (V(vM), V(vHS), V(vHS + 1), V(vHS + 2)))
    A("v_or3_b32 %s, %s, %s, %s" % (V(vM), V(vM), V(vHS + 3), V(vHS + 4)))
    A("v_and_b32 %s, 0x78007800, %s" % (V(vM), V(vM)))
    A("v_cmp_ne_u32 vcc, 0, %s" % V(vM))
    A("s_waitcnt lgkmcnt(0)")
    A("s_cbranch_vccnz Lfallback")
    A.label("Lfb_done")
    for i in range(4):
        A("v_pk_add_f32 %s, %s, %s" % (V(vXA + 2 * i, 2), V(vXA + 2 * i, 2), V(vY + 2 * i, 2)))
    A("v_add_f32 %s, %s, %s" % (V(vXA + 8), V(vXA + 8), V(vY + 8)))
    for i in range(5):
        A("v_cvt_pk_bf16_f32 %s, %s, %s" % (V(vHP + i), V(vXA + 2 * i), V(vXA + min(2 * i + 1, 8))))
    A("s_cmp_lg_u32 s%d, 0" % sL)
    A("s_cbranch_scc1 Lfinal")
    for i in range(4):
        A("v_lshlrev_b32 %s, 16, %s" % (V(vXA + 2 * i), V(vHP + i)))
        A("v_and_b32 %s, 0xffff0000, %s" % (V(vXA + 2 * i + 1), V(vHP + i)))
    A("v_lshlrev_b32 %s, 16, %s" % (V(vXA + 8), V(vHP + 4)))
    add64(sHQ, "%d" % L_HQ)
    A("s_call_b64 %s, Lqstage" % sp(sRET))
    A("s_cmp_lg_u32 s%d, 0" % sWV)
    A("s_cbranch_scc1 Lnext")
    for i in range(4):
        A("ds_write_b64 %s, %s offset:%d" % (V(lXP), V(vXA + 2 * i, 2), 512 * i + XSB - XSA))
    A("ds_write_b32 %s, %s offset:%d" % (V(lXS), V(vXA + 8), XSB - XSA))
    A("s_branch Lnext")
    A.label("Lmlp_skip")
    A("s_cmp_lg_u32 s%d, 0" % sL)
    A("s_cbranch_scc1 Lexit")
    add64(sHQ, "%d" % L_HQ)
    A.label("Lnext")
    add64(sHO, "%d" % L_HO)
    add64(sHM, "%d" % L_HM)
    add64(sHX, "%d" % L_HX)
    for r in (lXC, lXP, lXS):
        A("v_add_u32 %s, %d, %s" % (V(r), XSB - XSA, V(r)))
    A("s_mov_b32 s%d, 1" % sL)
    A("s_barrier")
    stamp()
    A("s_branch Lqpoll")
    A.label("Lfinal")
    A("v_lshlrev_b32 v249, 2, v1")
    A("v_lshlrev_b32 v250, 1, v1")
    for i in range(4):
        A("global_store_dword v249, %s, %s offset:%d" % (V(vHP + i), sp(sOUT), 256 * i))
    A("global_store_short v250, %s, %s offset:1024" % (V(vHP + 4), sp(sOUT)))
    A.label("Lexit")
    if DIAG:
        stamp()
        A("s_memtime %s" % sp(sMSK))
        A("s_waitcnt lgkmcnt(0)")
        A("s_sub_u32 s100, s%d, s100" % sMSK)
        A("s_lshl_b32 s%d, s2, 3" % sT0)
        A("s_add_u32 s%d, s%d, s%d" % (sT0, sT0, sWV))
        A("s_lshl_b32 s%d, s%d, 7" % (sT0, sT0))
        A("s_add_u32 s%d, s%d, %d" % (sT0, sT0, W_DIAG))
        A("v_mov_b32 v249, s%d" % sT0)
        A("s_mov_b64 exec, 1")
        for i in range(stamp_n[0]):
            A("v_mov_b32 v250, s%d" % (sSTAMP + 2 * i))
            A("global_store_dword v249, v250, %s offset:%d" % (sp(sWS), 4 * i))
        A("v_mov_b32 v250, s100")
        A("global_store_dword v249, v250, %s offset:116" % sp(sWS))
        A("v_mov_b32 v250, s%d" % sCNT)
        A("global_store_dword v249, v250, %s offset:120" % sp(sWS))
        A("v_mov_b32 v250, s%d" % sFAST)
        A("global_store_dword v249, v250, %s offset:124" % sp(sWS))
    A.label("Lend")
    A("s_endpgm")

    A.label("Lqstage")
    stats(vS)
    A("v_add_f32 %s, %s, %s" % (V(vS + 3), fl(1e-5), V(vS + 1)))
    A("v_rsq_f32 %s, %s" % (V(vS + 3), V(vS + 3)))
    normalize(vA, vS, vS + 3)
    for i in range(5):
        A("v_cvt_pk_bf16_f32 %s, %s, %s" % (V(vA + 10 + i), V(vA + 2 * i), V(vA + min(2 * i + 1, 8))))
    for i in range(4):
        A("ds_write_b32 %s, %s offset:%d" % (V(lNW), V(vA + 10 + i), 256 * i))
    A("ds_write_b16 %s, %s" % (V(lNH), V(vA + 14)))
    A("s_waitcnt lgkmcnt(0)")
    for ks in range(9):
        A("ds_read_b128 %s, %s offset:%d" % (V(vA + 4 * ks, 4), V(lNR), 64 * ks))
    for ks in range(9):
        A("s_waitcnt lgkmcnt(%d)" % (8 - ks))
        A("v_mfma_f32_16x16x32_bf16 %s, %s, %s, %s" % (
            V(vS, 4), V(vWQ + 4 * ks, 4), V(vA + 4 * ks, 4), V(vS, 4) if ks else "0"))
    A("v_cvt_pk_bf16_f32 %s, %s, %s" % (V(vS), V(vS), V(vS + 1)))
    A("v_cvt_pk_bf16_f32 %s, %s, %s" % (V(vS + 1), V(vS + 2), V(vS + 3)))
    A("v_min_u32 %s, -2, %s" % (V(vS), V(vS)))
    A("v_min_u32 %s, -2, %s" % (V(vS + 1), V(vS + 1)))
    A("s_mov_b32 exec_lo, 0x00010001")
    A("s_mov_b32 exec_hi, 0x00010001")
    store2(["global_store_dwordx2 %s, %s, %s" % (V(aHQS), V(vS, 2), sp(sHQ))])
    A("s_mov_b64 exec, -1")
    A("s_setpc_b64 %s" % sp(sRET))

    A.label("Lfallback")
    for i in range(9):
        A("v_bfe_u32 %s, %s, %d, 4" % (V(vM), V(vHS + (i >> 1)), 11 + 16 * (i & 1)))
        A("v_cmp_ne_u32 %s, 0, %s" % (sp(sMSK), V(vM)))
        A("v_%s %s, %s, %s" % (("and_b32" if i & 1 else "lshlrev_b32"), V(vP), ("0xffff0000" if i & 1 else "16"), V(vHP + (i >> 1))))
        A.label("Lfb_l%d" % i)
        A("s_cmp_eq_u64 %s, 0" % sp(sMSK))
        A("s_cbranch_scc1 Lfb_n%d" % i)
        A("s_ff1_i32_b64 s%d, %s" % (sT3, sp(sMSK)))
        A("s_bitset0_b64 %s, s%d" % (sp(sMSK), sT3))
        A("v_readlane_b32 s%d, %s, s%d" % (sT2, V(vP), sT3))
        A("s_call_b64 %s, Lfb_eval" % sp(sRET))
        A("s_mov_b32 m0, s%d" % sT3)
        A("v_writelane_b32 %s, s%d, m0" % (V(vY + i), sT0))
        A("s_branch Lfb_l%d" % i)
        A.label("Lfb_n%d" % i)
    A("s_branch Lfb_done")
    A.label("Lfb_eval")
    fw, fu, fa, fo = vMA, vMA + 12, 244, 245
    A("s_nop 3")
    A("v_lshlrev_b32 %s, 4, v1" % V(fo))
    A("v_mov_b32 %s, 0" % V(fa))
    A("s_mov_b32 s%d, 9" % sT1)
    A.label("Lfb_loop")
    for i in range(3):
        A("global_load_dwordx4 %s, %s, %s" % (V(fw + 4 * i, 4), V(fo), sp((sW1, sB1, sW2)[i])))
    A("v_add_u32 %s, 1024, %s" % (V(fo), V(fo)))
    A("s_waitcnt vmcnt(0)")
    for j in range(8):
        for i in range(3):
            if j & 1:
                A("v_and_b32 %s, 0xffff0000, %s" % (V(fu + i), V(fw + 4 * i + (j >> 1))))
            else:
                A("v_lshlrev_b32 %s, 16, %s" % (V(fu + i), V(fw + 4 * i + (j >> 1))))
        A("v_fma_f32 %s, %s, s%d, %s" % (V(fu), V(fu), sT2, V(fu + 1)))
        A("v_mul_f32 %s, %s, %s" % (V(fu + 2), V(fu + 2), V(fu)))
        A("v_mul_f32 %s, %s, %s" % (V(fu + 1), V(fu), V(fu)))
        A("v_mul_f32 %s, %s, %s" % (V(fu + 1), fl(-K1), V(fu + 1)))
        A("v_add_f32 %s, %s, %s" % (V(fu + 1), fl(-K0), V(fu + 1)))
        A("v_mul_f32 %s, %s, %s" % (V(fu + 1), V(fu + 1), V(fu)))
        A("v_exp_f32 %s, %s" % (V(fu + 1), V(fu + 1)))
        A("v_add_f32 %s, 1.0, %s" % (V(fu + 1), V(fu + 1)))
        A("v_rcp_f32 %s, %s" % (V(fu + 1), V(fu + 1)))
        A("v_fmac_f32 %s, %s, %s" % (V(fa), V(fu + 2), V(fu + 1)))
    A("s_sub_u32 s%d, s%d, 1" % (sT1, sT1))
    A("s_cmp_lg_u32 s%d, 0" % sT1)
    A("s_cbranch_scc1 Lfb_loop")
    for ctl in ("quad_perm:[1,0,3,2]" + DPP, "quad_perm:[2,3,0,1]" + DPP, "row_half_mirror" + DPP,
                "row_mirror" + DPP, "row_bcast:15 row_mask:0xa bank_mask:0xf",
                "row_bcast:31 row_mask:0xc bank_mask:0xf"):
        A("v_add_f32_dpp %s, %s, %s %s" % (V(fa), V(fa), V(fa), ctl))
    A("v_cvt_pk_bf16_f32 %s, %s, %s" % (V(fa), V(fa), V(fa)))
    A("v_lshlrev_b32 %s, 16, %s" % (V(fa), V(fa)))
    A("v_add_f32 %s, %s, %s" % (V(fa), V(fa), V(vB2)))
    A("v_cvt_pk_bf16_f32 %s, %s, %s" % (V(fa), V(fa), V(fa)))
    A("v_lshlrev_b32 %s, 16, %s" % (V(fa), V(fa)))
    A("v_readlane_b32 s%d, %s, 63" % (sT0, V(fa)))
    A("s_nop 3")
    A("s_setpc_b64 %s" % sp(sRET))

    body = A.finish()
    head = open("interleave_layers__sliding_block_cached__mixer_token_mlp__decode.s.ref").read().split(
        "; Override launch geometry")[0]
    head += "; @launch grid=(256,1,1) block=(512,1,1) lds=%d\n" % LDS
    if DIAG:
        head += "; STAMPS: start wts wq q0 Viss tab qV ho0 ho1 hx0 hx1 xs0 xs1 q1 end\n"
    head += '.amdgcn_target "amdgcn-amd-amdhsa--gfx950"\n.text\n.globl %s\n.p2align 8\n.type %s,@function\n' % (NAME, NAME)
    tail = """.section .rodata,"a"
.p2align 6
.amdhsa_kernel %s
  .amdhsa_next_free_vgpr 256
  .amdhsa_next_free_sgpr 102
  .amdhsa_accum_offset 256
  .amdhsa_group_segment_fixed_size 0
  .amdhsa_kernarg_size 104
  .amdhsa_user_sgpr_count 2
  .amdhsa_user_sgpr_kernarg_segment_ptr 1
  .amdhsa_system_sgpr_workgroup_id_x 1
.end_amdhsa_kernel
""" % NAME
    return head + body + tail


if __name__ == "__main__":
    out = sys.argv[1]
    kw = {}
    for a in sys.argv[2:]:
        k, v = a.split("=")
        kw[k] = eval(v)
    open(out, "w").write(gen(**kw))
```

```python
import math, struct, sys
from asmlib import Asm

NAME = "interleave_layers__sliding_block_cached__mixer_token_mlp__decode_kernel"


def f2u(x):
    return struct.unpack("<I", struct.pack("<f", x))[0]


def hx(x):
    return "0x%08x" % (x & 0xFFFFFFFF)


def fl(x):
    return hx(f2u(x))


def gen(DIAG=False, NTKV=" nt", NTW=" nt", E_LO=114, FORCE_SLOW=False, POLL_LIMIT=1 << 20):
    A = Asm()
    LOG2E = math.log2(math.e)
    K0 = 2 * math.sqrt(2 / math.pi) * LOG2E
    K1 = K0 * 0.044715
    SC = K1 ** (1.0 / 3.0)
    KAP = K0 / SC
    SMC = 128 ** -0.5 * LOG2E
    E0 = E_LO << 7
    TABP, WQS, PART, PSTR = 0, 4096, 40960, 1040
    ML, OV, XSA, XSB, XN, TRED = 49280, 49408, 49920, 52224, 54528, 59136
    TABN, WOS, FLG = 65536, 69632, 59648
    LDS = 106560
    W_HQ, W_HO, W_HM, W_HX, W_HT, W_DIAG = 0, 65536, 589824, 598016, 745472, 1 << 20
    L_HQ, L_HO, L_HM, L_HX = 32768, 262144, 4096, 73728
    sX, sK, sV, sWQ, sWO, sW1, sB1, sW2, sB2, sOUT, sDBG, sWS = 4, 6, 8, 10, 12, 16, 18, 20, 22, 24, 26, 28
    sWV, sHKV, sB, sS, sGID, sL, sFAST, sXCC, sCNT, sP = 30, 31, 32, 33, 34, 35, 36, 37, 38, 39
    sH, sRET, sHQ, sHO, sHM, sHX = 40, 56, 58, 60, 62, 64
    sT0, sT1, sT2, sSMC, sT3 = 66, 67, 68, 69, 3
    sMSK = 14
    sSTAMP = 70

    def sp(r):
        return "s[%d:%d]" % (r, r + 1)

    def V(a, n=1):
        return "v%d" % a if n == 1 else "v[%d:%d]" % (a, a + n - 1)

    vT, vL = 0, 1
    aHQL, aHQS, aHOL, aHOS, aHML, aHXL, aHXS = 2, 3, 4, 5, 6, 7, 11
    lPW, lPR, lMR, lMW, lOW, lOR, lXC, lXP, lXS, lNW, lNH, lNR = 12, 13, 14, 15, 16, 17, 18, 19, 20, 21, 22, 23
    vS = 24
    vK = 32
    vA = 64
    vVT = 100
    vWQ = 132
    vWO = 168
    vMA, vKAP, vMC, vONE, vMW, vB2 = 200, 209, 210, 219, 220, 229
    vONES = 230
    vQ = 234
    vXA = 234
    vP = 250
    vINV, vM = 254, 255
    vACC, vTT = 100, 116
    stamp_n = [0]

    def stamp():
        if DIAG:
            i = stamp_n[0]
            stamp_n[0] += 1
            A("s_memrealtime %s" % sp(sSTAMP + 2 * i))
            A("s_waitcnt lgkmcnt(0)")

    def bc(r):
        return V(r & ~1, 2), r & 1

    def add64(base, off_reg):
        A("s_add_u32 s%d, s%d, %s" % (base, base, off_reg))
        A("s_addc_u32 s%d, s%d, 0" % (base + 1, base + 1))

    def store2(text):
        n = len(A.lines)
        A("s_cmp_eq_u32 s%d, 0" % sFAST)
        A("s_cbranch_scc1 Lsl%d" % n)
        for t in text:
            A(t)
        A("s_branch Lsd%d" % n)
        A.label("Lsl%d" % n)
        for t in text:
            A(t + " sc1")
        A.label("Lsd%d" % n)

    def maxtree(dst, regs):
        regs = list(regs)
        A("v_max3_u32 %s, %s, %s, %s" % (V(dst), V(regs[0]), V(regs[1]), V(regs[2])))
        regs = regs[3:]
        while len(regs) >= 2:
            A("v_max3_u32 %s, %s, %s, %s" % (V(dst), V(dst), V(regs[0]), V(regs[1])))
            regs = regs[2:]
        if regs:
            A("v_max_u32 %s, %s, %s" % (V(dst), V(dst), V(regs[0])))

    def poll_tail(label, tmp):
        A("v_cmp_eq_u32 vcc, -1, %s" % V(tmp))
        A("s_cbranch_vccz %s_ok" % label)
        A("s_sub_u32 s%d, s%d, 1" % (sCNT, sCNT))
        A("s_cbranch_scc0 %s" % label)
        A("s_mov_b32 s%d, 0" % sCNT)
        A.label("%s_ok" % label)

    DPP = " row_mask:0xf bank_mask:0xf"

    def stats(t):
        x = lambda i: V(vXA + 2 * i, 2)
        a, b, q = V(t, 2), V(t + 2, 2), V(t + 4, 2)
        S, Q = t + 6, t + 7
        A("v_pk_add_f32 %s, %s, %s" % (a, x(0), x(1)))
        A("v_pk_mul_f32 %s, %s, %s" % (q, x(0), x(0)))
        A("v_pk_add_f32 %s, %s, %s" % (b, x(2), x(3)))
        A("v_pk_fma_f32 %s, %s, %s, %s" % (q, x(1), x(1), q))
        A("v_pk_add_f32 %s, %s, %s" % (a, a, b))
        A("v_pk_fma_f32 %s, %s, %s, %s" % (q, x(2), x(2), q))
        A("v_add_f32 %s, %s, %s" % (V(S), V(t), V(vXA + 8)))
        A("v_pk_fma_f32 %s, %s, %s, %s" % (q, x(3), x(3), q))
        A("v_add_f32 %s, %s, %s" % (V(S), V(S), V(t + 1)))
        A("v_fma_f32 %s, %s, %s, %s" % (V(Q), V(vXA + 8), V(vXA + 8), V(t + 4)))
        A("v_add_f32 %s, %s, %s" % (V(Q), V(Q), V(t + 5)))
        for ctl in ("quad_perm:[1,0,3,2]" + DPP, "quad_perm:[2,3,0,1]" + DPP, "row_half_mirror" + DPP,
                    "row_mirror" + DPP, "row_bcast:15 row_mask:0xa bank_mask:0xf",
                    "row_bcast:31 row_mask:0xc bank_mask:0xf"):
            A("v_add_f32_dpp %s, %s, %s %s" % (V(S), V(S), V(S), ctl))
            A("v_add_f32_dpp %s, %s, %s %s" % (V(Q), V(Q), V(Q), ctl))
        A("v_readlane_b32 s%d, %s, 63" % (sT0, V(S)))
        A("v_readlane_b32 s%d, %s, 63" % (sT1, V(Q)))
        A("v_mul_f32 %s, s%d, %s" % (V(t), sT0, V(vINV)))
        A("v_mul_f32 %s, s%d, %s" % (V(t + 1), sT1, V(vINV)))
        A("v_fma_f32 %s, -%s, %s, %s" % (V(t + 1), V(t), V(t), V(t + 1)))
        A("v_max_f32 %s, 0, %s" % (V(t + 1), V(t + 1)))

    def normalize(dst, t, r):
        A("v_mul_f32 %s, %s, %s" % (V(t + 2), V(t), V(r)))
        rp, rs = bc(r)
        mp, ms = bc(t + 2)
        for i in range(4):
            A("v_pk_fma_f32 %s, %s, %s, %s op_sel:[0,%d,%d] op_sel_hi:[1,%d,%d] neg_lo:[0,0,1] neg_hi:[0,0,1]" % (
                V(dst + 2 * i, 2), V(vXA + 2 * i, 2), rp, mp, rs, ms, rs, ms))
        A("v_fma_f32 %s, %s, %s, -%s" % (V(dst + 8), V(vXA + 8), V(r), V(t + 2)))

    def reduce8(o, ml, M, e, norm):
        A("v_max_f32_dpp %s, %s, %s quad_perm:[1,0,3,2]%s" % (V(M), V(ml), V(ml), DPP))
        A("v_max_f32_dpp %s, %s, %s quad_perm:[2,3,0,1]%s" % (V(M), V(M), V(M), DPP))
        A("v_max_f32_dpp %s, %s, %s row_half_mirror%s" % (V(M), V(M), V(M), DPP))
        A("v_sub_f32 %s, %s, %s" % (V(e), V(ml), V(M)))
        A("v_exp_f32 %s, %s" % (V(e), V(e)))
        A("v_mov_b32 %s, %s" % (V(ml), V(M)))
        ep, es = bc(e)
        A("v_mul_f32 %s, %s, %s" % (V(ml + 1), V(ml + 1), V(e)))
        for i in range(2):
            A("v_pk_mul_f32 %s, %s, %s op_sel:[0,%d] op_sel_hi:[1,%d]" % (V(o + 2 * i, 2), V(o + 2 * i, 2), ep, es, es))
        for ctl in ("quad_perm:[1,0,3,2]", "quad_perm:[2,3,0,1]", "row_half_mirror"):
            for r in (ml + 1, o, o + 1, o + 2, o + 3):
                A("v_add_f32_dpp %s, %s, %s %s%s" % (V(r), V(r), V(r), ctl, DPP))
        if norm:
            A("v_rcp_f32 %s, %s" % (V(e), V(ml + 1)))
            for i in range(2):
                A("v_pk_mul_f32 %s, %s, %s op_sel:[0,%d] op_sel_hi:[1,%d]" % (V(o + 2 * i, 2), V(o + 2 * i, 2), ep, es, es))

    A.label(NAME)
    A("s_cmp_ge_u32 s2, 0x100")
    A("s_cbranch_scc1 Lend")
    A("s_load_dwordx16 s[4:19], s[0:1], 0")
    A("s_load_dwordx8 s[20:27], s[0:1], 64")
    A("s_load_dwordx2 s[28:29], s[0:1], 96")
    A("v_lshrrev_b32 v24, 6, v0")
    A("v_and_b32 v1, 63, v0")
    A("v_readfirstlane_b32 s%d, v24" % sWV)
    A("s_and_b32 s%d, s2, 7" % sT0)
    A("s_lshr_b32 s%d, s2, 3" % sT1)
    A("s_lshr_b32 s%d, s%d, 4" % (sT2, sT1))
    A("s_lshl_b32 s%d, s%d, 1" % (sHKV, sT0))
    A("s_add_u32 s%d, s%d, s%d" % (sHKV, sHKV, sT2))
    A("s_bfe_u32 s%d, s%d, 0x10003" % (sB, sT1))
    A("s_and_b32 s%d, s%d, 7" % (sS, sT1))
    A("s_lshl_b32 s%d, s%d, 4" % (sGID, sB))
    A("s_add_u32 s%d, s%d, s%d" % (sGID, sGID, sHKV))
    A("s_lshr_b32 s%d, s%d, 2" % (sP, sS))
    A("s_getreg_b32 s%d, hwreg(HW_REG_XCC_ID, 0, 4)" % sXCC)
    A("s_mov_b32 s%d, 0" % sL)
    A("s_mov_b32 s%d, 0" % sFAST)
    A("s_mov_b32 s%d, %d" % (sCNT, POLL_LIMIT))
    A("s_mov_b32 s%d, %s" % (sSMC, fl(SMC)))
    A("v_and_b32 v24, 15, v1")
    A("v_lshrrev_b32 v25, 4, v1")
    A("v_and_b32 v26, 7, v1")
    A("v_lshrrev_b32 v27, 3, v1")
    A("v_lshlrev_b32 v28, 2, v1")
    A("v_lshlrev_b32 v29, 1, v1")
    A("v_lshlrev_b32 v30, 4, v0")
    A("v_lshlrev_b32 v31, 1, v0")
    A("v_add_u32 v31, 0x2000, v31")
    for r in (vXA + 8, vMA + 8, vMC + 8, vMW + 8, vB2):
        A("v_mov_b32 %s, 0" % V(r))
    for i in range(4):
        A("v_mov_b32 %s, -1" % V(244 + i))
    A("v_mov_b32 v248, 0")
    A("s_waitcnt lgkmcnt(0)")
    stamp()
    if DIAG:
        A("s_memtime s[100:101]")
        A("s_waitcnt lgkmcnt(0)")
    for (r, base, mul, src) in ((sHQ, W_HQ, 1024, sGID), (sHO, W_HO, 8192, sGID), (sHM, W_HM, 128, sGID), (sHX, W_HX, 36864, sB)):
        A("s_mul_i32 s%d, s%d, %d" % (sT0, src, mul))
        A("s_add_u32 s%d, s%d, %d" % (sT0, sT0, base))
        A("s_add_u32 s%d, s%d, s%d" % (r, sWS, sT0))
        A("s_addc_u32 s%d, s%d, 0" % (r + 1, sWS + 1))
    A("s_cmp_lg_u32 s%d, 2" % sWV)
    A("s_cbranch_scc1 Linit_done")
    A("s_lshl_b32 s%d, s%d, 10" % (sT1, sS))
    A("v_lshl_add_u32 v249, v1, 4, s%d" % sT1)
    A("v_add_u32 v250, %d, v249" % L_HO)
    A("global_store_dwordx4 v249, v[244:247], %s sc1" % sp(sHO))
    A("global_store_dwordx4 v250, v[244:247], %s sc1" % sp(sHO))
    A("s_and_b32 s%d, s%d, 3" % (sT1, sS))
    A("s_lshl_b32 s%d, s%d, 7" % (sT1, sT1))
    A("s_lshl_b32 s%d, s%d, 9" % (sT2, sP))
    A("s_add_u32 s%d, s%d, s%d" % (sT1, sT1, sT2))
    A("s_lshl_b32 s%d, s%d, 10" % (sT2, sGID))
    A("s_add_u32 s%d, s%d, s%d" % (sT1, sT1, sT2))
    A("v_lshl_add_u32 v249, v1, 4, s%d" % sT1)

    def seg(first, sreg, const):
        A("s_add_u32 s%d, s%d, %d" % (sT0, sreg, const - 16 * first))
        A("v_lshl_add_u32 v250, v1, 4, s%d" % sT0)
        A("v_cmp_le_u32 vcc, %d, v1" % first)
        A("v_cndmask_b32 v249, v249, v250, vcc")

    seg(8, sT1, W_HQ + L_HQ)
    A("s_lshl_b32 s%d, s%d, 7" % (sT1, sGID))
    A("s_lshl_b32 s%d, s%d, 4" % (sT2, sS))
    A("s_add_u32 s%d, s%d, s%d" % (sT1, sT1, sT2))
    seg(16, sT1, W_HM)
    seg(17, sT1, W_HM + L_HM)
    A("s_mul_i32 s%d, s%d, 36864" % (sT1, sB))
    A("s_mul_i32 s%d, s%d, 2304" % (sT2, sHKV))
    A("s_add_u32 s%d, s%d, s%d" % (sT1, sT1, sT2))
    A("s_mul_i32 s%d, s%d, 288" % (sT2, sS))
    A("s_add_u32 s%d, s%d, s%d" % (sT1, sT1, sT2))
    seg(18, sT1, W_HX)
    seg(36, sT1, W_HX + L_HX)
    A("s_lshl_b32 s%d, s2, 5" % sT1)
    seg(54, sT1, W_HT)
    A("s_mov_b32 exec_hi, 0x00ffffff")
    A("global_store_dwordx4 v249, v[244:247], %s sc1" % sp(sWS))
    A("s_mov_b32 exec_hi, -1")
    A.label("Linit_done")
    A("s_mul_i32 s%d, s%d, 1152" % (sT0, sB))
    add64(sX, "s%d" % sT0)
    add64(sOUT, "s%d" % sT0)
    for i in range(3):
        A("global_load_dwordx4 %s, v30, %s" % (V(vA + 4 * i, 4), sp((sW1, sB1, sW2)[i])))
        A("global_load_short_d16_hi %s, v31, %s" % (V((vMA, vMC, vMW)[i] + 8), sp((sW1, sB1, sW2)[i])))
    A("global_load_short_d16_hi %s, v248, %s" % (V(vB2), sp(sB2)))
    for i in range(4):
        A("global_load_dword %s, v28, %s offset:%d" % (V(vA + 12 + i), sp(sX), 256 * i))
    A("global_load_short_d16_hi %s, v29, %s offset:1024" % (V(vXA + 8), sp(sX)))
    A("s_barrier")
    A("s_mul_i32 s%d, s%d, %d" % (sT0, sP, 288 * 8192))
    A("s_lshl_b32 s%d, s%d, 9" % (sT1, sHKV))
    A("s_add_u32 s%d, s%d, s%d" % (sT0, sT0, sT1))
    A("s_and_b32 s%d, s%d, 3" % (sT1, sS))
    A("s_lshl_b32 s%d, s%d, 7" % (sT1, sT1))
    A("s_add_u32 s%d, s%d, s%d" % (sT0, sT0, sT1))
    add64(sWQ, "s%d" % sT0)
    A("v_lshlrev_b32 v249, 13, v27")
    A("v_lshl_add_u32 v249, v26, 4, v249")
    A("s_lshl_b32 s%d, s%d, 16" % (sT0, sWV))
    A("v_add_u32 v250, s%d, v249" % sT0)
    A("s_lshl_b32 s%d, s%d, 10" % (sT1, sWV))
    for i in range(4):
        A("s_add_u32 m0, s%d, %d" % (sT1, WQS + 8192 * i))
        if i:
            A("v_add_u32 v250, 0x80000, v250")
        A("global_load_lds_dwordx4 v250, %s%s" % (sp(sWQ), NTW))
    A("s_lshl_b32 s%d, s%d, 15" % (sT0, sWV))
    A("s_add_u32 s%d, s%d, %d" % (sT0, sT0, 256 * 8192))
    A("v_add_u32 v250, s%d, v249" % sT0)
    A("s_lshl_b32 s%d, s%d, 9" % (sT1, sWV))
    A("s_add_u32 m0, s%d, %d" % (sT1, WQS + 32768))
    A("s_mov_b32 exec_hi, 0")
    A("global_load_lds_dwordx4 v250, %s%s" % (sp(sWQ), NTW))
    A("s_mov_b32 exec_hi, -1")
    A("s_lshl_b32 s%d, s%d, 21" % (sT0, sGID))
    A("s_lshl_b32 s%d, s%d, 16" % (sT1, sS))
    A("s_add_u32 s%d, s%d, s%d" % (sT0, sT0, sT1))
    A("s_lshl_b32 s%d, s%d, 13" % (sT1, sWV))
    A("s_add_u32 s%d, s%d, s%d" % (sT0, sT0, sT1))
    A("s_add_u32 s%d, s%d, %d" % (sT0, sT0, 6144 * 256 + 4096))
    add64(sK, "s%d" % sT0)
    add64(sV, "s%d" % sT0)
    aK, aV = 251, 252
    A("v_and_b32 v249, 1, v27")
    A("v_lshl_add_u32 v249, v249, 2, v25")
    A("v_lshlrev_b32 v249, 4, v249")
    A("v_lshl_add_u32 %s, v26, 8, v249" % V(aK))
    A("v_lshlrev_b32 v249, 4, v24")
    A("v_lshl_add_u32 %s, v25, 10, v249" % V(aV))

    def kload(T, hf, sub):
        A("global_load_dwordx4 %s, %s, %s offset:%d%s" % (
            V(vK + 16 * T + 4 * (2 * hf + sub), 4), V(aK), sp(sK), (16 * T + 8 * sub) * 256 + hf * 128 - 4096, NTKV))

    def vload(i):
        A("global_load_dwordx4 %s, %s, %s offset:%d%s" % (
            V(vA + 4 * i, 4), V(aV), sp(sV), (16 * (i >> 2) + (i & 3)) * 256 - 4096, NTKV))

    for hf in range(2):
        for sub in range(2):
            kload(0, hf, sub)
    A("v_and_b32 v249, 1, v24")
    A("v_lshlrev_b32 v249, 9, v249")
    A("v_bfe_u32 v250, v24, 2, 1")
    A("v_lshl_add_u32 v249, v250, 8, v249")
    A("v_lshl_add_u32 %s, v25, 4, v249" % V(aHQL))
    A("s_and_b32 s%d, s%d, 3" % (sT0, sS))
    A("s_lshl_b32 s%d, s%d, 7" % (sT0, sT0))
    A("s_lshl_b32 s%d, s%d, 9" % (sT1, sP))
    A("s_add_u32 s%d, s%d, s%d" % (sT0, sT0, sT1))
    A("s_lshl_b32 s%d, s%d, 5" % (sT1, sWV))
    A("s_add_u32 s%d, s%d, s%d" % (sT0, sT0, sT1))
    A("v_lshl_add_u32 %s, v25, 3, s%d" % (V(aHQS), sT0))
    A("s_lshl_b32 s%d, s%d, 7" % (sT0, sWV))
    A("v_lshl_add_u32 v249, v27, 4, s%d" % sT0)
    A("v_lshl_add_u32 %s, v26, 10, v249" % V(aHOL))
    A("s_lshl_b32 s%d, s%d, 10" % (sT1, sS))
    A("v_add_u32 %s, s%d, v249" % (V(aHOS), sT1))
    A("v_mul_u32_u24 v250, %d, v26" % PSTR)
    A("v_add_u32 v250, %d, v250" % PART)
    A("v_add_u32 %s, v249, v250" % V(lPR))
    A("v_lshrrev_b32 v249, 1, v249")
    A("v_add_u32 %s, %d, v249" % (V(lOW), OV))
    A("s_lshr_b32 s%d, s%d, 2" % (sT0, sWV))
    A("s_lshl_b32 s%d, s%d, 3" % (sT0, sT0))
    A("v_lshl_add_u32 %s, v26, 4, s%d" % (V(aHML), sT0))
    A("v_add_u32 %s, %d, %s" % (V(lMR), ML, V(aHML)))
    A("s_lshl_b32 s%d, s%d, 8" % (sT0, sWV))
    A("v_lshl_add_u32 v249, v24, 4, s%d" % sT0)
    A("v_mul_u32_u24 v250, 2304, v25")
    A("v_add_u32 %s, v249, v250" % V(aHXL))
    for i in range(1, 4):
        A("v_add_u32 %s, %d, %s" % (V(aHXL + i), 9216 * i, V(aHXL)))
    A("v_lshrrev_b32 v250, 1, v25")
    A("v_and_b32 v253, 1, v25")
    A("v_lshl_add_u32 v250, v253, 1, v250")
    A("v_lshl_add_u32 v249, v250, 2, v249")
    A("v_add_u32 %s, %d, v249" % (V(lXC), XSA))
    A("s_mul_i32 s%d, s%d, 2304" % (sT0, sHKV))
    A("s_mul_i32 s%d, s%d, 288" % (sT1, sS))
    A("s_add_u32 s%d, s%d, s%d" % (sT0, sT0, sT1))
    A("s_lshl_b32 s%d, s%d, 6" % (sT1, sWV))
    A("s_add_u32 s%d, s%d, s%d" % (sT0, sT0, sT1))
    A("v_lshl_add_u32 %s, v25, 4, s%d" % (V(aHXS), sT0))
    A("s_mul_i32 s%d, s%d, %d" % (sT0, sWV, PSTR))
    A("s_add_u32 s%d, s%d, %d" % (sT0, sT0, PART))
    A("v_lshlrev_b32 v249, 9, v253")
    A("v_lshl_add_u32 v249, v24, 2, v249")
    A("v_add_u32 %s, s%d, v249" % (V(lPW), sT0))
    A("s_lshl_b32 s%d, s%d, 4" % (sT0, sWV))
    A("s_add_u32 s%d, s%d, %d" % (sT0, sT0, ML))
    A("v_lshl_add_u32 %s, v253, 3, s%d" % (V(lMW), sT0))
    A("v_lshlrev_b32 v249, 4, v25")
    A("v_add_u32 %s, %d, v249" % (V(lOR), OV))
    A("v_lshlrev_b32 v250, 3, v1")
    A("v_add_u32 %s, %d, v250" % (V(lXP), XSA))
    A("v_add_u32 %s, %d, v28" % (V(lXS), XSA + 2048))
    A("s_and_b32 s%d, s%d, 3" % (sT0, sWV))
    A("s_mul_i32 s%d, s%d, 1152" % (sT0, sT0))
    A("s_add_u32 s%d, s%d, %d" % (sT0, sT0, XN))
    A("v_add_u32 %s, s%d, v28" % (V(lNW), sT0))
    A("s_add_u32 s%d, s%d, 1024" % (sT1, sT0))
    A("v_add_u32 %s, s%d, v29" % (V(lNH), sT1))
    A("s_mul_i32 s%d, s%d, 576" % (sT1, sP))
    A("s_add_u32 s%d, s%d, s%d" % (sT0, sT0, sT1))
    A("v_add_u32 %s, s%d, v249" % (V(lNR), sT0))
    A("v_mov_b32 %s, %s" % (V(vKAP), fl(KAP)))
    A("v_mov_b32 %s, 1.0" % V(vONE))
    A("v_mov_b32 %s, %s" % (V(vINV), fl(1.0 / 576)))
    for i in range(4):
        A("v_mov_b32 %s, 0x3f803f80" % V(vONES + i))
    for i in range(16):
        A("v_mov_b32 %s, 0" % V(vACC + i))
    A("s_and_b32 s%d, s2, 127" % sT0)
    A("s_lshl_b32 s%d, s%d, 4" % (sT0, sT0))
    A("s_add_u32 s%d, s%d, %d" % (sT0, sT0, E0))
    A("s_lshr_b32 s%d, s2, 7" % sT1)
    A("s_lshl_b32 s%d, s%d, 15" % (sT1, sT1))
    A("s_add_u32 s%d, s%d, s%d" % (sT0, sT0, sT1))
    A("s_lshl_b32 s%d, s%d, 16" % (sH, sT0))
    for i in range(1, 16):
        A("s_add_u32 s%d, s%d, %d" % (sH + i, sH, i << 16))
    A("s_waitcnt vmcnt(9)")
    stamp()
    A("s_cmp_lg_u32 s%d, 2" % sWV)
    A("s_cbranch_scc1 Lnoflag")
    A("s_or_b32 s%d, s%d, 0x80" % (sT0, sXCC))
    A("s_and_b32 s%d, s2, 3" % sT1)
    A("s_lshl_b32 s%d, s%d, 3" % (sT1, sT1))
    A("s_lshl_b32 s%d, s%d, s%d" % (sT0, sT0, sT1))
    A("s_and_b32 s%d, s2, 0xfc" % sT1)
    A("v_mov_b32 v249, s%d" % sT1)
    A("v_mov_b32 v250, s%d" % sT0)
    A("s_mov_b64 exec, 1")
    A("global_atomic_or v249, v250, %s sc1" % sp(sDBG))
    A("s_mov_b64 exec, -1")
    A.label("Lnoflag")
    for (dst, src, mul) in ((vMA, vA, SC), (vMC, vA + 4, SC), (vMW, vA + 8, 1.0 / SC)):
        for i in range(4):
            A("v_lshlrev_b32 %s, 16, %s" % (V(dst + 2 * i), V(src + i)))
            A("v_and_b32 %s, 0xffff0000, %s" % (V(dst + 2 * i + 1), V(src + i)))
        A("s_mov_b32 s%d, %s" % (sT0, fl(mul)))
        for i in range(9):
            A("v_mul_f32 %s, s%d, %s" % (V(dst + i), sT0, V(dst + i)))
    for i in range(4):
        A("v_lshlrev_b32 %s, 16, %s" % (V(vXA + 2 * i), V(vA + 12 + i)))
        A("v_and_b32 %s, 0xffff0000, %s" % (V(vXA + 2 * i + 1), V(vA + 12 + i)))
    A("s_cmp_lg_u32 s%d, 7" % sWV)
    A("s_cbranch_scc1 Lnox0")
    for i in range(4):
        A("ds_write_b64 %s, %s offset:%d" % (V(lXP), V(vXA + 2 * i, 2), 512 * i))
    A("ds_write_b32 %s, %s" % (V(lXS), V(vXA + 8)))
    A.label("Lnox0")

    def table_f(f, between=()):
        ap, asel = bc(vMA + f)
        cp, csel = bc(vMC + f)
        wp, wsel = bc(vMW + f)
        kp, ksel = bc(vKAP)
        op, osel = bc(vONE)
        between = list(between)
        for k2 in range(4):
            seq = []
            for h in range(2):
                k = 2 * k2 + h
                u, t, e, uw = (V(vTT + 8 * h + 2 * i, 2) for i in range(4))
                e0, e1 = vTT + 8 * h + 4, vTT + 8 * h + 5
                t0, t1 = vTT + 8 * h + 2, vTT + 8 * h + 3
                seq.append([
                    "v_pk_fma_f32 %s, %s, %s, %s op_sel:[%d,0,%d] op_sel_hi:[%d,1,%d]" % (u, ap, sp(sH + 2 * k), cp, asel, csel, asel, csel),
                    "v_pk_fma_f32 %s, %s, %s, %s op_sel:[0,0,%d] op_sel_hi:[1,1,%d]" % (t, u, u, kp, ksel, ksel),
                    "v_pk_mul_f32 %s, %s, %s neg_lo:[1,0] neg_hi:[1,0]" % (t, t, u),
                    "v_exp_f32 %s, %s" % (V(e0), V(t0)),
                    "v_exp_f32 %s, %s" % (V(e1), V(t1)),
                    "v_pk_mul_f32 %s, %s, %s op_sel:[0,%d] op_sel_hi:[1,%d]" % (uw, u, wp, wsel, wsel),
                    "v_pk_add_f32 %s, %s, %s op_sel:[0,%d] op_sel_hi:[1,%d]" % (e, e, op, osel, osel),
                    "v_rcp_f32 %s, %s" % (V(e0), V(e0)),
                    "v_rcp_f32 %s, %s" % (V(e1), V(e1)),
                    "v_pk_fma_f32 %s, %s, %s, %s" % (V(vACC + 2 * k, 2), uw, e, V(vACC + 2 * k, 2)),
                ])
            s0, s1 = seq
            for l in (s0[0], s1[0], s0[1], s1[1], s0[2], s1[2], s0[3], s0[4], s1[3], s1[4], s0[5], s0[6], s1[5], s1[6],
                      s0[7], s0[8], s1[7], s1[8], s0[9], s1[9]):
                A(l)
            if k2 in (0, 2) and between:
                between.pop(0)()

    table_f(0, [lambda: kload(1, 0, 0), lambda: kload(1, 0, 1)])
    table_f(1, [lambda: kload(1, 1, 0), lambda: kload(1, 1, 1)])
    table_f(2)
    A("s_waitcnt vmcnt(8) lgkmcnt(0)")
    A("s_barrier")
    stamp()
    A("s_cmp_gt_u32 s%d, 3" % sWV)
    A("s_cbranch_scc1 Lnowq")
    A("v_bfe_u32 v249, v1, 2, 2")
    A("v_lshrrev_b32 v250, 4, v1")
    A("v_lshl_add_u32 v249, v250, 3, v249")
    A("v_lshlrev_b32 v249, 7, v249")
    A("v_and_b32 v250, 3, v1")
    A("v_lshl_add_u32 v249, v250, 3, v249")
    A("s_lshl_b32 s%d, s%d, 5" % (sT0, sWV))
    A("s_add_u32 s%d, s%d, %d" % (sT0, sT0, WQS))
    A("v_add_u32 v249, s%d, v249" % sT0)
    for ks in range(9):
        for hh in range(2):
            A("ds_read_b64_tr_b16 %s, v249 offset:%d" % (V(vWQ + 4 * ks + 2 * hh, 2), (32 * ks + 4 * hh) * 128))
    A("s_call_b64 %s, Lqstage" % sp(sRET))
    A.label("Lnowq")
    stamp()
    A("s_cmp_lg_u32 s%d, 4" % sWV)
    A("s_cbranch_scc1 Lnofl")
    A("v_lshlrev_b32 v249, 2, v1")
    A("global_load_dword v253, v249, %s sc1" % sp(sDBG))
    A.label("Lnofl")
    for f in range(3, 7):
        table_f(f, [lambda i=2 * (f - 3): vload(i), lambda i=2 * (f - 3) + 1: vload(i)])
    stamp()
    A("s_cmp_lg_u32 s%d, 4" % sWV)
    A("s_cbranch_scc1 Lflagskip")
    A("s_waitcnt vmcnt(8)")
    A("s_branch Lflagchk")
    A.label("Lflagpoll")
    A("s_sleep 8")
    A("global_load_dword v253, v249, %s sc1" % sp(sDBG))
    A("s_waitcnt vmcnt(0)")
    A.label("Lflagchk")
    A("v_and_b32 v250, 0x80808080, v253")
    A("v_cmp_ne_u32 vcc, 0x80808080, v250")
    A("s_cbranch_vccz Lflagok")
    A("s_sub_u32 s%d, s%d, 1" % (sCNT, sCNT))
    A("s_cbranch_scc0 Lflagpoll")
    A("s_mov_b32 s%d, 0" % sCNT)
    A.label("Lflagok")
    A("s_and_b32 s%d, s2, 3" % sT0)
    A("s_lshl_b32 s%d, s%d, 3" % (sT0, sT0))
    A("v_lshrrev_b32 v251, s%d, v253" % sT0)
    A("v_and_b32 v251, 15, v251")
    A("v_cmp_ne_u32 vcc, s%d, v251" % sXCC)
    A("s_lshr_b32 s%d, s2, 6" % sT0)
    A("s_lshl_b32 s%d, s%d, 4" % (sT0, sT0))
    A("s_bfe_u32 s%d, s2, 0x10002" % sT1)
    A("s_add_u32 s%d, s%d, s%d" % (sT0, sT0, sT1))
    A("s_mov_b64 %s, 0x5555" % sp(sMSK))
    A("s_lshl_b64 %s, %s, s%d" % (sp(sMSK), sp(sMSK), sT0))
    A("s_and_b64 %s, %s, vcc" % (sp(sMSK), sp(sMSK)))
    A("s_cselect_b32 s%d, 0, %d" % (sT0, 0 if FORCE_SLOW else 1))
    A("v_mov_b32 v250, %d" % FLG)
    A("v_mov_b32 v251, s%d" % sT0)
    A("ds_write_b32 v250, v251")
    A.label("Lflagskip")
    table_f(7)
    table_f(8)
    for k in range(8):
        A("v_permlane32_swap_b32 %s, %s" % (V(vACC + 2 * k), V(vACC + 2 * k + 1)))
    for k in range(8):
        A("v_add_f32 %s, %s, %s" % (V(vACC + 2 * k), V(vACC + 2 * k), V(vACC + 2 * k + 1)))
    for k in range(4):
        A("v_permlane16_swap_b32 %s, %s" % (V(vACC + 4 * k), V(vACC + 4 * k + 2)))
    for k in range(4):
        A("v_add_f32 %s, %s, %s" % (V(vACC + 4 * k), V(vACC + 4 * k), V(vACC + 4 * k + 2)))
    for ctl in ("quad_perm:[1,0,3,2]", "quad_perm:[2,3,0,1]", "row_half_mirror", "row_mirror"):
        for k in range(4):
            A("v_add_f32_dpp %s, %s, %s %s%s" % (V(vACC + 4 * k), V(vACC + 4 * k), V(vACC + 4 * k), ctl, DPP))
    A("v_lshrrev_b32 v251, 5, v1")
    A("v_bfe_u32 v250, v1, 4, 1")
    A("v_lshl_add_u32 v251, v250, 1, v251")
    A("s_lshl_b32 s%d, s%d, 6" % (sT0, sWV))
    A("s_add_u32 s%d, s%d, %d" % (sT0, sT0, TRED))
    A("v_lshl_add_u32 v251, v251, 2, s%d" % sT0)
    A("s_mov_b32 exec_lo, 0x00010001")
    A("s_mov_b32 exec_hi, 0x00010001")
    A("ds_write2_b32 v251, %s, %s offset0:0 offset1:4" % (V(vACC), V(vACC + 4)))
    A("ds_write2_b32 v251, %s, %s offset0:8 offset1:12" % (V(vACC + 8), V(vACC + 12)))
    A("s_mov_b64 exec, -1")
    A("s_mul_i32 s%d, s%d, %d" % (sT0, sHKV, 256 * 1152))
    A("s_mul_i32 s%d, s%d, 144" % (sT1, sS))
    A("s_add_u32 s%d, s%d, s%d" % (sT0, sT0, sT1))
    add64(sWO, "s%d" % sT0)
    for i in range(5):
        if i < 4:
            A("v_add_u32 v250, %d, v0" % (512 * i))
        else:
            A("s_lshl_b32 s%d, s%d, 5" % (sT0, sWV))
            A("s_add_u32 s%d, s%d, 2048" % (sT0, sT0))
            A("v_and_b32 v250, 31, v1")
            A("v_add_u32 v250, s%d, v250" % sT0)
        A("v_mul_u32_u24 v251, 7282, v250")
        A("v_lshrrev_b32 v251, 16, v251")
        A("v_mul_u32_u24 v251, 1008, v251")
        A("v_lshl_add_u32 %s, v250, 4, v251" % V(vTT + i))
    A("s_waitcnt lgkmcnt(0)")
    A("s_barrier")
    stamp()
    A("v_mov_b32 v250, %d" % FLG)
    A("ds_read_b32 v251, v250")
    for ks in range(4):
        A("global_load_dwordx4 %s, %s, %s offset:%d sc1" % (V(vQ + 4 * ks, 4), V(aHQL), sp(sHQ), 64 * ks))
    A("s_lshl_b32 s%d, s%d, 10" % (sT1, sWV))
    for i in range(4):
        A("s_add_u32 m0, s%d, %d" % (sT1, WOS + 8192 * i))
        A("global_load_lds_dwordx4 %s, %s%s" % (V(vTT + i), sp(sWO), NTW))
    A("s_lshl_b32 s%d, s%d, 9" % (sT1, sWV))
    A("s_add_u32 m0, s%d, %d" % (sT1, WOS + 32768))
    A("s_mov_b32 exec_hi, 0")
    A("global_load_lds_dwordx4 %s, %s%s" % (V(vTT + 4), sp(sWO), NTW))
    A("s_mov_b32 exec_hi, -1")
    A("s_waitcnt lgkmcnt(0)")
    A("v_readfirstlane_b32 s%d, v251" % sFAST)
    A("s_waitcnt vmcnt(17)")
    for pr in range(4):
        a, b = vK + 8 * pr, vK + 8 * pr + 4
        for d in range(4):
            A("v_mov_b32 %s, %s" % (V(vS + d), V(a + d)))
        for d in range(4):
            A("v_mov_b32_dpp %s, %s row_ror:8 row_mask:0xf bank_mask:0xc" % (V(a + d), V(b + d)))
        for d in range(4):
            A("v_mov_b32_dpp %s, %s row_ror:8 row_mask:0xf bank_mask:0x3" % (V(b + d), V(vS + d)))
    A("s_cmp_lg_u32 s%d, 7" % sWV)
    A("s_cbranch_scc1 Lnotab")
    A("v_and_b32 v250, 15, v1")
    A("v_lshlrev_b32 v250, 2, v250")
    A("v_add_u32 v251, %d, v250" % TRED)
    for i in range(4):
        A("ds_read2_b32 %s, v251 offset0:%d offset1:%d" % (V(vS + 2 * i, 2), 32 * i, 32 * i + 16))
    A("s_waitcnt lgkmcnt(0)")
    A("v_pk_add_f32 %s, %s, %s" % (V(vS, 2), V(vS, 2), V(vS + 2, 2)))
    A("v_pk_add_f32 %s, %s, %s" % (V(vS + 4, 2), V(vS + 4, 2), V(vS + 6, 2)))
    A("v_pk_add_f32 %s, %s, %s" % (V(vS, 2), V(vS, 2), V(vS + 4, 2)))
    A("v_add_f32 %s, %s, %s" % (V(vS), V(vS), V(vS + 1)))
    A("v_cvt_pk_bf16_f32 %s, %s, %s" % (V(vS), V(vS), V(vS)))
    A("v_lshlrev_b32 %s, 16, %s" % (V(vS), V(vS)))
    A("v_add_f32 %s, %s, %s" % (V(vS), V(vS), V(vB2)))
    A("v_mov_b32_dpp %s, %s quad_perm:[1,1,3,3]%s" % (V(vS + 1), V(vS), DPP))
    A("v_cvt_pk_bf16_f32 %s, %s, %s" % (V(vS), V(vS), V(vS + 1)))
    A("v_min_u32 %s, -2, %s" % (V(vS), V(vS)))
    A("v_lshrrev_b32 v250, 1, v250")
    A("s_lshl_b32 s%d, s2, 5" % sT0)
    A("s_add_u32 s%d, s%d, %d" % (sT0, sT0, W_HT))
    A("v_add_u32 v250, s%d, v250" % sT0)
    A("s_mov_b64 exec, 0x5555")
    A("global_store_dword v250, %s, %s sc1" % (V(vS), sp(sWS)))
    A("s_mov_b64 exec, -1")
    A("s_waitcnt vmcnt(6)")
    A("s_branch Lqchk")
    A.label("Lnotab")
    A("s_waitcnt vmcnt(5)")
    A("s_branch Lqchk")
    A.label("Lqpoll")
    for ks in range(4):
        A("global_load_dwordx4 %s, %s, %s offset:%d sc1" % (V(vQ + 4 * ks, 4), V(aHQL), sp(sHQ), 64 * ks))
    A("s_waitcnt vmcnt(0)")
    A.label("Lqchk")
    maxtree(vM, range(vQ, vQ + 16))
    poll_tail("Lqpoll", vM)
    if DIAG:
        A("s_cmp_eq_u32 s%d, 0" % sL)
        A("s_cbranch_scc0 Lst6")
        stamp()
        A.label("Lst6")
    for ks in range(4):
        for T in range(2):
            A("v_mfma_f32_16x16x32_bf16 %s, %s, %s, %s" % (
                V(vS + 4 * T, 4), V(vK + 16 * T + 4 * ks, 4), V(vQ + 4 * ks, 4), V(vS + 4 * T, 4) if ks else "0"))
    A("s_cmp_lg_u32 s%d, 0" % sL)
    A("s_cbranch_scc1 Lvt_done")
    A("s_mov_b32 s%d, 0x05040100" % sT0)
    A("s_mov_b32 s%d, 0x07060302" % sT1)
    for j in range(8):
        for e in range(4):
            A("v_perm_b32 %s, %s, %s, s%d" % (
                V(vVT + 4 * j + e), V(vA + 4 * (2 * e + 1) + (j >> 1)), V(vA + 4 * (2 * e) + (j >> 1)), sT1 if j & 1 else sT0))
    A.label("Lvt_done")
    for r in range(8):
        A("v_add_f32_dpp %s, %s, %s quad_perm:[1,0,3,2]%s" % (V(vS + r), V(vS + r), V(vS + r), DPP))
    A("v_max3_f32 %s, %s, %s, %s" % (V(vM), V(vS), V(vS + 1), V(vS + 2)))
    A("v_max3_f32 %s, %s, %s, %s" % (V(vP), V(vS + 3), V(vS + 4), V(vS + 5)))
    A("v_max3_f32 %s, %s, %s, %s" % (V(vM), V(vM), V(vS + 6), V(vS + 7)))
    A("v_max_f32 %s, %s, %s" % (V(vM), V(vM), V(vP)))
    for sw in ("v_permlane16_swap_b32", "v_permlane32_swap_b32"):
        A("v_mov_b32 %s, %s" % (V(vP), V(vM)))
        A("%s %s, %s" % (sw, V(vM), V(vP)))
        A("v_max_f32 %s, %s, %s" % (V(vM), V(vM), V(vP)))
    A("v_mul_f32 %s, s%d, %s" % (V(vM), sSMC, V(vM)))
    for r in range(8):
        A("v_fma_f32 %s, %s, s%d, -%s" % (V(vS + r), V(vS + r), sSMC, V(vM)))
    for r in range(8):
        A("v_exp_f32 %s, %s" % (V(vS + r), V(vS + r)))
    for r in range(4):
        A("v_cvt_pk_bf16_f32 %s, %s, %s" % (V(vP + r), V(vS + 2 * r), V(vS + 2 * r + 1)))
    A("v_mfma_f32_16x16x32_bf16 %s, %s, %s, 0" % (V(vA + 32, 4), V(vP, 4), V(vONES, 4)))
    for j in range(8):
        A("v_mfma_f32_16x16x32_bf16 %s, %s, %s, 0" % (V(vA + 4 * j, 4), V(vP, 4), V(vVT + 4 * j, 4)))
    A("s_mov_b64 exec, 0x100001")
    A("ds_write2_b32 %s, %s, %s offset0:0 offset1:1" % (V(lMW), V(vM), V(vA + 32)))
    A("s_mov_b32 exec_lo, -1")
    for j in range(0, 8, 2):
        A("ds_write2_b32 %s, %s, %s offset0:%d offset1:%d" % (V(lPW), V(vA + 4 * j), V(vA + 4 * j + 4), 16 * j, 16 * j + 16))
    A("s_mov_b32 exec_hi, -1")
    A("s_waitcnt lgkmcnt(0)")
    A("s_barrier")
    A("ds_read_b64 %s, %s" % (V(vA + 4, 2), V(lMR)))
    A("ds_read_b128 %s, %s" % (V(vA, 4), V(lPR)))
    A("s_waitcnt lgkmcnt(0)")
    reduce8(vA, vA + 4, vA + 6, vA + 7, False)
    for i in range(6):
        A("v_min_u32 %s, -2, %s" % (V(vA + i), V(vA + i)))
    A("s_mov_b32 exec_lo, 0x01010101")
    A("s_mov_b32 exec_hi, 0x01010101")
    store2(["global_store_dwordx4 %s, %s, %s" % (V(aHOS), V(vA, 4), sp(sHO))])
    A("s_and_b32 s%d, s%d, 3" % (sT0, sWV))
    A("s_cbranch_scc1 Lnohm")
    A("s_lshl_b64 exec, 1, s%d" % sS)
    store2(["global_store_dwordx2 %s, %s, %s" % (V(aHML), V(vA + 4, 2), sp(sHM))])
    A.label("Lnohm")
    A("s_mov_b64 exec, -1")
    if DIAG:
        A("s_cmp_eq_u32 s%d, 0" % sL)
        A("s_cbranch_scc0 Lst7")
        stamp()
        A("s_branch Lst7e")
        A.label("Lst7")
        stamp()
        A.label("Lst7e")
    A.label("Lopoll")
    A("global_load_dwordx2 %s, %s, %s sc1" % (V(vA + 12, 2), V(aHML), sp(sHM)))
    A("global_load_dwordx4 %s, %s, %s sc1" % (V(vA + 8, 4), V(aHOL), sp(sHO)))
    A("s_waitcnt vmcnt(0)")
    maxtree(vM, range(vA + 8, vA + 14))
    poll_tail("Lopoll", vM)
    reduce8(vA + 8, vA + 12, vA + 14, vA + 15, True)
    A("v_cvt_pk_bf16_f32 %s, %s, %s" % (V(vA + 8), V(vA + 8), V(vA + 9)))
    A("v_cvt_pk_bf16_f32 %s, %s, %s" % (V(vA + 9), V(vA + 10), V(vA + 11)))
    A("s_mov_b32 exec_lo, 0x01010101")
    A("s_mov_b32 exec_hi, 0x01010101")
    A("ds_write_b64 %s, %s" % (V(lOW), V(vA + 8, 2)))
    A("s_mov_b64 exec, -1")
    A("s_waitcnt lgkmcnt(0)")
    A("s_barrier")
    A("s_cmp_gt_u32 s%d, 4" % sWV)
    A("s_cbranch_scc1 Lwo_done")
    A("s_cmp_lg_u32 s%d, 0" % sL)
    A("s_cbranch_scc1 Lwo_regs")
    A("v_bfe_u32 v249, v1, 4, 1")
    A("v_lshlrev_b32 v249, 6, v249")
    A("v_bfe_u32 v250, v1, 2, 2")
    A("v_lshl_add_u32 v249, v250, 3, v249")
    A("v_lshrrev_b32 v250, 5, v1")
    A("v_add_u32 v249, v249, v250")
    A("v_mul_u32_u24 v249, 144, v249")
    A("v_and_b32 v250, 3, v1")
    A("v_lshl_add_u32 v249, v250, 3, v249")
    A("s_lshl_b32 s%d, s%d, 5" % (sT0, sWV))
    A("s_add_u32 s%d, s%d, %d" % (sT0, sT0, WOS))
    A("v_add_u32 v249, s%d, v249" % sT0)
    for ks in range(8):
        for hh in range(2):
            A("ds_read_b64_tr_b16 %s, v249 offset:%d" % (
                V(vWO + 4 * ks + 2 * hh, 2), (128 * (ks >> 2) + 2 * (ks & 3) + 32 * hh) * 144))
    A("s_waitcnt lgkmcnt(0)")
    A.label("Lwo_regs")
    for ks in range(8):
        A("ds_read_b128 %s, %s offset:%d" % (V(vA + 4 * ks, 4), V(lOR), 64 * ks))
    for ks in range(8):
        A("s_waitcnt lgkmcnt(%d)" % (7 - ks))
        A("v_mfma_f32_16x16x32_bf16 %s, %s, %s, %s" % (
            V(vS, 4), V(vWO + 4 * ks, 4), V(vA + 4 * ks, 4), V(vS, 4) if ks else "0"))
    A("s_cmp_eq_u32 s%d, 4" % sWV)
    A("s_cselect_b32 s%d, 0, 0x00010001" % sT0)
    for i in range(4):
        A("v_min_u32 %s, -2, %s" % (V(vS + i), V(vS + i)))
    A("s_mov_b32 exec_lo, 0x00010001")
    A("s_mov_b32 exec_hi, s%d" % sT0)
    A("global_store_dwordx4 %s, %s, %s sc1" % (V(aHXS), V(vS, 4), sp(sHX)))
    A("s_mov_b64 exec, -1")
    A.label("Lwo_done")
    if DIAG:
        A("s_cmp_eq_u32 s%d, 0" % sL)
        A("s_cbranch_scc0 Lst9")
        stamp()
        A("s_branch Lst9e")
        A.label("Lst9")
        stamp()
        A.label("Lst9e")
    A("s_cmp_eq_u32 s%d, 0" % sL)
    A("s_cbranch_scc1 Ltabg")
    A("s_or_b32 s%d, s%d, s%d" % (sT0, sHKV, sS))
    A("s_cbranch_scc1 Lexit")
    A("s_branch Lxwait")
    A.label("Ltabg")
    A("v_lshlrev_b32 v249, 4, v0")
    A("v_add_u32 v250, %d, v249" % W_HT)
    A("s_cmp_gt_u32 s%d, 3" % sWV)
    A("s_cselect_b32 s%d, %d, %d" % (sT0, TABN - 4096, TABP))
    A("v_add_u32 v249, s%d, v249" % sT0)
    A.label("Ltpoll")
    A("global_load_dwordx4 %s, v250, %s sc1" % (V(vA, 4), sp(sWS)))
    A("s_waitcnt vmcnt(0)")
    maxtree(vM, range(vA, vA + 4))
    poll_tail("Ltpoll", vM)
    A("ds_write_b128 v249, %s" % V(vA, 4))
    A.label("Lxwait")
    A("ds_read_b32 %s, %s" % (V(vS + 4), V(lXC)))
    A("ds_read_b32 %s, %s offset:2048" % (V(vS + 5), V(lXC)))
    A("s_waitcnt vmcnt(0)")
    A("s_barrier")
    A.label("Lxpoll")
    for i in range(4):
        A("global_load_dwordx4 %s, %s, %s sc1" % (V(vA + 4 * i, 4), V(aHXL + i), sp(sHX)))
    A("s_cmp_lg_u32 s%d, 0" % sWV)
    A("s_cbranch_scc1 Lx8a")
    for i in range(4):
        A("global_load_dwordx4 %s, %s, %s offset:2048 sc1" % (V(vA + 16 + 4 * i, 4), V(aHXL + i), sp(sHX)))
    A("s_waitcnt vmcnt(0)")
    maxtree(vP, range(vA + 16, vA + 32))
    A("s_branch Lx8b")
    A.label("Lx8a")
    A("v_mov_b32 %s, 0" % V(vP))
    A("s_waitcnt vmcnt(0)")
    A.label("Lx8b")
    maxtree(vM, [vP] + list(range(vA, vA + 16)))
    poll_tail("Lxpoll", vM)

    def xsum(b, prev, off):
        for i in range(2):
            A("v_pk_add_f32 %s, %s, %s" % (V(b + 2 * i, 2), V(b + 2 * i, 2), V(b + 4 + 2 * i, 2)))
            A("v_pk_add_f32 %s, %s, %s" % (V(b + 8 + 2 * i, 2), V(b + 8 + 2 * i, 2), V(b + 12 + 2 * i, 2)))
        for i in range(2):
            A("v_pk_add_f32 %s, %s, %s" % (V(b + 2 * i, 2), V(b + 2 * i, 2), V(b + 8 + 2 * i, 2)))
        A("v_permlane32_swap_b32 %s, %s" % (V(b), V(b + 1)))
        A("v_permlane32_swap_b32 %s, %s" % (V(b + 2), V(b + 3)))
        A("v_add_f32 %s, %s, %s" % (V(b), V(b), V(b + 1)))
        A("v_add_f32 %s, %s, %s" % (V(b + 2), V(b + 2), V(b + 3)))
        A("v_permlane16_swap_b32 %s, %s" % (V(b), V(b + 2)))
        A("v_add_f32 %s, %s, %s" % (V(b), V(b), V(b + 2)))
        A("v_cvt_pk_bf16_f32 %s, %s, %s" % (V(b), V(b), V(b)))
        A("v_lshlrev_b32 %s, 16, %s" % (V(b), V(b)))
        A("v_add_f32 %s, %s, %s" % (V(b), V(b), V(prev)))
        A("v_cvt_pk_bf16_f32 %s, %s, %s" % (V(b), V(b), V(b)))
        A("v_lshlrev_b32 %s, 16, %s" % (V(b), V(b)))
        A("ds_write_b32 %s, %s offset:%d" % (V(lXC), V(b), off))

    A("s_waitcnt lgkmcnt(0)")
    xsum(vA, vS + 4, 0)
    A("s_cmp_lg_u32 s%d, 0" % sWV)
    A("s_cbranch_scc1 Lx8c")
    xsum(vA + 16, vS + 5, 2048)
    A.label("Lx8c")
    A("s_waitcnt lgkmcnt(0)")
    A("s_barrier")
    if DIAG:
        A("s_cmp_eq_u32 s%d, 0" % sL)
        A("s_cbranch_scc0 Lst11")
        stamp()
        A("s_branch Lst11e")
        A.label("Lst11")
        stamp()
        A.label("Lst11e")
    A("s_cmp_eq_u32 s%d, 0" % sL)
    A("s_cselect_b32 s%d, 3, 0" % sT0)
    A("s_cmp_gt_u32 s%d, s%d" % (sWV, sT0))
    A("s_cbranch_scc1 Lmlp_skip")
    for i in range(4):
        A("ds_read_b64 %s, %s offset:%d" % (V(vXA + 2 * i, 2), V(lXP), 512 * i))
    A("ds_read_b32 %s, %s" % (V(vXA + 8), V(lXS)))
    vH, vY, vHP, vHS, vAD, vST = vA, vA + 10, vA + 20, vA + 26, vA, vS
    for i in range(9):
        A("v_mov_b32 %s, 0" % V(vY + i))
    A("s_waitcnt lgkmcnt(0)")
    stats(vST)
    A("v_add_f32 %s, %s, %s" % (V(vST + 3), fl(1e-5), V(vST + 1)))
    A("v_rsq_f32 %s, %s" % (V(vST + 3), V(vST + 3)))
    A("v_mul_f32 %s, %s, %s" % (V(vST + 1), V(vST + 1), V(vST + 3)))
    A("v_mul_f32 %s, %s, %s" % (V(vST + 1), V(vST + 1), V(vST + 3)))
    A("v_add_f32 %s, %s, %s" % (V(vST + 1), fl(1e-5), V(vST + 1)))
    A("v_rsq_f32 %s, %s" % (V(vST + 1), V(vST + 1)))
    A("v_mul_f32 %s, %s, %s" % (V(vST + 3), V(vST + 3), V(vST + 1)))
    normalize(vH, vST, vST + 3)
    A("s_mov_b32 s%d, %s" % (sT0, hx(E0 * 0x10001)))
    for i in range(5):
        A("v_cvt_pk_bf16_f32 %s, %s, %s" % (V(vHP + i), V(vH + 2 * i), V(vH + min(2 * i + 1, 8))))
    for i in range(5):
        A("v_pk_sub_u16 %s, %s, s%d" % (V(vHS + i), V(vHP + i), sT0))
    for i in range(9):
        A("v_lshlrev_b32_sdwa %s, 1, %s dst_sel:DWORD dst_unused:UNUSED_PAD src0_sel:DWORD src1_sel:WORD_%d" % (
            V(vAD + i), V(vHS + (i >> 1)), i & 1))
        A("ds_read_u16_d16_hi %s, %s offset:%d" % (V(vY + i), V(vAD + i), TABP))
    A("v_or3_b32 %s, %s, %s, %s" % (V(vM), V(vHS), V(vHS + 1), V(vHS + 2)))
    A("v_or3_b32 %s, %s, %s, %s" % (V(vM), V(vM), V(vHS + 3), V(vHS + 4)))
    A("v_and_b32 %s, 0x78007800, %s" % (V(vM), V(vM)))
    A("v_cmp_ne_u32 vcc, 0, %s" % V(vM))
    A("s_waitcnt lgkmcnt(0)")
    A("s_cbranch_vccnz Lfallback")
    A.label("Lfb_done")
    for i in range(4):
        A("v_pk_add_f32 %s, %s, %s" % (V(vXA + 2 * i, 2), V(vXA + 2 * i, 2), V(vY + 2 * i, 2)))
    A("v_add_f32 %s, %s, %s" % (V(vXA + 8), V(vXA + 8), V(vY + 8)))
    for i in range(5):
        A("v_cvt_pk_bf16_f32 %s, %s, %s" % (V(vHP + i), V(vXA + 2 * i), V(vXA + min(2 * i + 1, 8))))
    A("s_cmp_lg_u32 s%d, 0" % sL)
    A("s_cbranch_scc1 Lfinal")
    for i in range(4):
        A("v_lshlrev_b32 %s, 16, %s" % (V(vXA + 2 * i), V(vHP + i)))
        A("v_and_b32 %s, 0xffff0000, %s" % (V(vXA + 2 * i + 1), V(vHP + i)))
    A("v_lshlrev_b32 %s, 16, %s" % (V(vXA + 8), V(vHP + 4)))
    add64(sHQ, "%d" % L_HQ)
    A("s_call_b64 %s, Lqstage" % sp(sRET))
    A("s_cmp_lg_u32 s%d, 0" % sWV)
    A("s_cbranch_scc1 Lnext")
    for i in range(4):
        A("ds_write_b64 %s, %s offset:%d" % (V(lXP), V(vXA + 2 * i, 2), 512 * i + XSB - XSA))
    A("ds_write_b32 %s, %s offset:%d" % (V(lXS), V(vXA + 8), XSB - XSA))
    A("s_branch Lnext")
    A.label("Lmlp_skip")
    A("s_cmp_lg_u32 s%d, 0" % sL)
    A("s_cbranch_scc1 Lexit")
    add64(sHQ, "%d" % L_HQ)
    A.label("Lnext")
    add64(sHO, "%d" % L_HO)
    add64(sHM, "%d" % L_HM)
    add64(sHX, "%d" % L_HX)
    for r in (lXC, lXP, lXS):
        A("v_add_u32 %s, %d, %s" % (V(r), XSB - XSA, V(r)))
    A("s_mov_b32 s%d, 1" % sL)
    A("s_barrier")
    stamp()
    A("s_branch Lqpoll")
    A.label("Lfinal")
    A("v_lshlrev_b32 v249, 2, v1")
    A("v_lshlrev_b32 v250, 1, v1")
    for i in range(4):
        A("global_store_dword v249, %s, %s offset:%d" % (V(vHP + i), sp(sOUT), 256 * i))
    A("global_store_short v250, %s, %s offset:1024" % (V(vHP + 4), sp(sOUT)))
    A.label("Lexit")
    if DIAG:
        stamp()
        A("s_memtime %s" % sp(sMSK))
        A("s_waitcnt lgkmcnt(0)")
        A("s_sub_u32 s100, s%d, s100" % sMSK)
        A("s_lshl_b32 s%d, s2, 3" % sT0)
        A("s_add_u32 s%d, s%d, s%d" % (sT0, sT0, sWV))
        A("s_lshl_b32 s%d, s%d, 7" % (sT0, sT0))
        A("s_add_u32 s%d, s%d, %d" % (sT0, sT0, W_DIAG))
        A("v_mov_b32 v249, s%d" % sT0)
        A("s_mov_b64 exec, 1")
        for i in range(stamp_n[0]):
            A("v_mov_b32 v250, s%d" % (sSTAMP + 2 * i))
            A("global_store_dword v249, v250, %s offset:%d" % (sp(sWS), 4 * i))
        A("v_mov_b32 v250, s100")
        A("global_store_dword v249, v250, %s offset:116" % sp(sWS))
        A("v_mov_b32 v250, s%d" % sCNT)
        A("global_store_dword v249, v250, %s offset:120" % sp(sWS))
        A("v_mov_b32 v250, s%d" % sFAST)
        A("global_store_dword v249, v250, %s offset:124" % sp(sWS))
        A("s_or_b32 s%d, s2, s%d" % (sT0, sWV))
        A("s_cbranch_scc1 Lend")
        A("v_mov_b32 v249, 0")
        for i in range(1, stamp_n[0]):
            A("s_sub_u32 s%d, s%d, s%d" % (sT0, sSTAMP + 2 * i, sSTAMP))
            A("v_mov_b32 v250, s%d" % sT0)
            A("global_store_dword v249, v250, %s offset:%d" % (sp(sDBG), 4 * i))
        A("v_mov_b32 v250, s100")
        A("global_store_dword v249, v250, %s offset:0" % sp(sDBG))
        A("v_mov_b32 v250, s%d" % sCNT)
        A("global_store_dword v249, v250, %s offset:60" % sp(sDBG))
    A.label("Lend")
    A("s_endpgm")

    A.label("Lqstage")
    stats(vS)
    A("v_add_f32 %s, %s, %s" % (V(vS + 3), fl(1e-5), V(vS + 1)))
    A("v_rsq_f32 %s, %s" % (V(vS + 3), V(vS + 3)))
    normalize(vA, vS, vS + 3)
    for i in range(5):
        A("v_cvt_pk_bf16_f32 %s, %s, %s" % (V(vA + 10 + i), V(vA + 2 * i), V(vA + min(2 * i + 1, 8))))
    for i in range(4):
        A("ds_write_b32 %s, %s offset:%d" % (V(lNW), V(vA + 10 + i), 256 * i))
    A("ds_write_b16 %s, %s" % (V(lNH), V(vA + 14)))
    A("s_waitcnt lgkmcnt(0)")
    for ks in range(9):
        A("ds_read_b128 %s, %s offset:%d" % (V(vA + 4 * ks, 4), V(lNR), 64 * ks))
    for ks in range(9):
        A("s_waitcnt lgkmcnt(%d)" % (8 - ks))
        A("v_mfma_f32_16x16x32_bf16 %s, %s, %s, %s" % (
            V(vS, 4), V(vWQ + 4 * ks, 4), V(vA + 4 * ks, 4), V(vS, 4) if ks else "0"))
    A("v_cvt_pk_bf16_f32 %s, %s, %s" % (V(vS), V(vS), V(vS + 1)))
    A("v_cvt_pk_bf16_f32 %s, %s, %s" % (V(vS + 1), V(vS + 2), V(vS + 3)))
    A("v_min_u32 %s, -2, %s" % (V(vS), V(vS)))
    A("v_min_u32 %s, -2, %s" % (V(vS + 1), V(vS + 1)))
    A("s_mov_b32 exec_lo, 0x00010001")
    A("s_mov_b32 exec_hi, 0x00010001")
    store2(["global_store_dwordx2 %s, %s, %s" % (V(aHQS), V(vS, 2), sp(sHQ))])
    A("s_mov_b64 exec, -1")
    A("s_setpc_b64 %s" % sp(sRET))

    A.label("Lfallback")
    for i in range(9):
        A("v_bfe_u32 %s, %s, %d, 4" % (V(vM), V(vHS + (i >> 1)), 11 + 16 * (i & 1)))
        A("v_cmp_ne_u32 %s, 0, %s" % (sp(sMSK), V(vM)))
        A("v_%s %s, %s, %s" % (("and_b32" if i & 1 else "lshlrev_b32"), V(vP), ("0xffff0000" if i & 1 else "16"), V(vHP + (i >> 1))))
        A.label("Lfb_l%d" % i)
        A("s_cmp_eq_u64 %s, 0" % sp(sMSK))
        A("s_cbranch_scc1 Lfb_n%d" % i)
        A("s_ff1_i32_b64 s%d, %s" % (sT3, sp(sMSK)))
        A("s_bitset0_b64 %s, s%d" % (sp(sMSK), sT3))
        A("v_readlane_b32 s%d, %s, s%d" % (sT2, V(vP), sT3))
        A("s_call_b64 %s, Lfb_eval" % sp(sRET))
        A("s_mov_b32 m0, s%d" % sT3)
        A("v_writelane_b32 %s, s%d, m0" % (V(vY + i), sT0))
        A("s_branch Lfb_l%d" % i)
        A.label("Lfb_n%d" % i)
    A("s_branch Lfb_done")
    A.label("Lfb_eval")
    fw, fu, fa, fo = vMA, vMA + 12, 244, 245
    A("s_nop 3")
    A("v_lshlrev_b32 %s, 4, v1" % V(fo))
    A("v_mov_b32 %s, 0" % V(fa))
    A("s_mov_b32 s%d, 9" % sT1)
    A.label("Lfb_loop")
    for i in range(3):
        A("global_load_dwordx4 %s, %s, %s" % (V(fw + 4 * i, 4), V(fo), sp((sW1, sB1, sW2)[i])))
    A("v_add_u32 %s, 1024, %s" % (V(fo), V(fo)))
    A("s_waitcnt vmcnt(0)")
    for j in range(8):
        for i in range(3):
            if j & 1:
                A("v_and_b32 %s, 0xffff0000, %s" % (V(fu + i), V(fw + 4 * i + (j >> 1))))
            else:
                A("v_lshlrev_b32 %s, 16, %s" % (V(fu + i), V(fw + 4 * i + (j >> 1))))
        A("v_fma_f32 %s, %s, s%d, %s" % (V(fu), V(fu), sT2, V(fu + 1)))
        A("v_mul_f32 %s, %s, %s" % (V(fu + 2), V(fu + 2), V(fu)))
        A("v_mul_f32 %s, %s, %s" % (V(fu + 1), V(fu), V(fu)))
        A("v_mul_f32 %s, %s, %s" % (V(fu + 1), fl(-K1), V(fu + 1)))
        A("v_add_f32 %s, %s, %s" % (V(fu + 1), fl(-K0), V(fu + 1)))
        A("v_mul_f32 %s, %s, %s" % (V(fu + 1), V(fu + 1), V(fu)))
        A("v_exp_f32 %s, %s" % (V(fu + 1), V(fu + 1)))
        A("v_add_f32 %s, 1.0, %s" % (V(fu + 1), V(fu + 1)))
        A("v_rcp_f32 %s, %s" % (V(fu + 1), V(fu + 1)))
        A("v_fmac_f32 %s, %s, %s" % (V(fa), V(fu + 2), V(fu + 1)))
    A("s_sub_u32 s%d, s%d, 1" % (sT1, sT1))
    A("s_cmp_lg_u32 s%d, 0" % sT1)
    A("s_cbranch_scc1 Lfb_loop")
    for ctl in ("quad_perm:[1,0,3,2]" + DPP, "quad_perm:[2,3,0,1]" + DPP, "row_half_mirror" + DPP,
                "row_mirror" + DPP, "row_bcast:15 row_mask:0xa bank_mask:0xf",
                "row_bcast:31 row_mask:0xc bank_mask:0xf"):
        A("v_add_f32_dpp %s, %s, %s %s" % (V(fa), V(fa), V(fa), ctl))
    A("v_cvt_pk_bf16_f32 %s, %s, %s" % (V(fa), V(fa), V(fa)))
    A("v_lshlrev_b32 %s, 16, %s" % (V(fa), V(fa)))
    A("v_add_f32 %s, %s, %s" % (V(fa), V(fa), V(vB2)))
    A("v_cvt_pk_bf16_f32 %s, %s, %s" % (V(fa), V(fa), V(fa)))
    A("v_lshlrev_b32 %s, 16, %s" % (V(fa), V(fa)))
    A("v_readlane_b32 s%d, %s, 63" % (sT0, V(fa)))
    A("s_nop 3")
    A("s_setpc_b64 %s" % sp(sRET))

    body = A.finish()
    head = open("interleave_layers__sliding_block_cached__mixer_token_mlp__decode.s.ref").read().split(
        "; Override launch geometry")[0]
    head += "; @launch grid=(256,1,1) block=(512,1,1) lds=%d\n" % LDS
    if DIAG:
        head += "; STAMPS: start wts wq q0 Viss tab qV ho0 ho1 hx0 hx1 xs0 xs1 q1 end\n"
    head += '.amdgcn_target "amdgcn-amd-amdhsa--gfx950"\n.text\n.globl %s\n.p2align 8\n.type %s,@function\n' % (NAME, NAME)
    tail = """.section .rodata,"a"
.p2align 6
.amdhsa_kernel %s
  .amdhsa_next_free_vgpr 256
  .amdhsa_next_free_sgpr 102
  .amdhsa_accum_offset 256
  .amdhsa_group_segment_fixed_size 0
  .amdhsa_kernarg_size 104
  .amdhsa_user_sgpr_count 2
  .amdhsa_user_sgpr_kernarg_segment_ptr 1
  .amdhsa_system_sgpr_workgroup_id_x 1
.end_amdhsa_kernel
""" % NAME
    return head + body + tail


if __name__ == "__main__":
    out = sys.argv[1]
    kw = {}
    for a in sys.argv[2:]:
        k, v = a.split("=")
        kw[k] = eval(v)
    open(out, "w").write(gen(**kw))
```

```python
import math, struct, sys
from asmlib import Asm

NAME = "interleave_layers__sliding_block_cached__mixer_token_mlp__decode_kernel"


def f2u(x):
    return struct.unpack("<I", struct.pack("<f", x))[0]


def hx(x):
    return "0x%08x" % (x & 0xFFFFFFFF)


def fl(x):
    return hx(f2u(x))


def gen(DIAG=False, NTKV=" nt", NTW=" nt", E_LO=114, FORCE_SLOW=False, POLL_LIMIT=1 << 20,
        STAMPS="start wq q0 wo fl kv tab ho0 og0 hx0 xs0 q1 ho1 hx1 end",
        VSCHED={1: 1, 2: 1, 3: 1, 4: 1}, VBEARLY=False, WOGATE=8, QMASK=True, XPACE="ack", NOTAB=False, PREF=True, BPRIO=0):
    A = Asm()
    LOG2E = math.log2(math.e)
    K0 = 2 * math.sqrt(2 / math.pi) * LOG2E
    K1 = K0 * 0.044715
    SC = K1 ** (1.0 / 3.0)
    KAP = K0 / SC
    SMC = 128 ** -0.5 * LOG2E
    E0 = E_LO << 7
    TABP, WQS, PART, PSTR = 0, 4096, 40960, 1040
    ML, OV, XSA, XSB, XN, TRED = 49280, 49408, 49920, 52224, 54528, 59136
    TABN, WOS, FLG = 65536, WQS, 59648
    QL, KB, VB = 60416, 69632, 104448
    LDS = 139264
    W_HQ, W_HO, W_HM, W_HX, W_HT, W_DIAG = 0, 65536, 589824, 598016, 745472, 1 << 20
    L_HQ, L_HO, L_HM, L_HX = 32768, 262144, 4096, 73728
    sX, sK, sV, sWQ, sWO, sW1, sB1, sW2, sB2, sOUT, sDBG, sWS = 4, 6, 8, 10, 12, 16, 18, 20, 22, 24, 26, 28
    sWV, sHKV, sB, sS, sGID, sL, sFAST, sXCC, sCNT, sP = 30, 31, 32, 33, 34, 35, 36, 37, 38, 39
    sH, sRET, sHQ, sHO, sHM, sHX = 40, 56, 58, 60, 62, 64
    sT0, sT1, sT2, sSMC, sT3 = 66, 67, 68, 69, 3
    sMSK = 14
    sSTAMP = 70

    def sp(r):
        return "s[%d:%d]" % (r, r + 1)

    def V(a, n=1):
        return "v%d" % a if n == 1 else "v[%d:%d]" % (a, a + n - 1)

    vT, vL = 0, 1
    aHQL, aHQS, aHOL, aHOS, aHML, aHXL, aHXS = 2, 3, 4, 5, 6, 7, 11
    vC1, vEPS2, vEPS = 8, 9, 10
    vSQ = 96
    sHX1, sHX2, sHX3 = 4, 6, 8
    lPW, lPR, lMR, lMW, lOW, lOR, lXC, lXP, lXS, lNW, lNH, lNR = 12, 13, 14, 15, 16, 17, 18, 19, 20, 21, 22, 23
    vS = 24
    vK = 32
    vA = 64
    vVT = 100
    vWQ = 132
    vWO = 168
    vVR = 200
    vONES, vMA, vB2 = 200, 204, 232
    vRW, vCA, vCC, vCW, vKAP, vONE, vSCL = 132, 162, 164, 166, 250, 251, 252
    vQ = 234
    vXA = 234
    vP = 250
    vINV, vM = 254, 255
    vACC, vTT = 168, 184
    STAMPS = STAMPS.split()
    stamp_n = [len(STAMPS)]

    def stamp(name):
        if DIAG and name in STAMPS:
            A("s_memrealtime %s" % sp(sSTAMP + 2 * STAMPS.index(name)))
            A("s_waitcnt lgkmcnt(0)")

    def stampL(name):
        if DIAG and (name + "0" in STAMPS or name + "1" in STAMPS):
            A("s_cmp_eq_u32 s%d, 0" % sL)
            A("s_cbranch_scc0 Lst_%s" % name)
            stamp(name + "0")
            A("s_branch Lste_%s" % name)
            A.label("Lst_%s" % name)
            stamp(name + "1")
            A.label("Lste_%s" % name)

    def bc(r):
        return V(r & ~1, 2), r & 1

    def add64(base, off_reg):
        A("s_add_u32 s%d, s%d, %s" % (base, base, off_reg))
        A("s_addc_u32 s%d, s%d, 0" % (base + 1, base + 1))

    def store2(text):
        n = len(A.lines)
        A("s_cmp_eq_u32 s%d, 0" % sFAST)
        A("s_cbranch_scc1 Lsl%d" % n)
        for t in text:
            A(t)
        A("s_branch Lsd%d" % n)
        A.label("Lsl%d" % n)
        for t in text:
            A(t + " sc1")
        A.label("Lsd%d" % n)

    def maxtree(dst, regs):
        regs = list(regs)
        A("v_max3_u32 %s, %s, %s, %s" % (V(dst), V(regs[0]), V(regs[1]), V(regs[2])))
        regs = regs[3:]
        while len(regs) >= 2:
            A("v_max3_u32 %s, %s, %s, %s" % (V(dst), V(dst), V(regs[0]), V(regs[1])))
            regs = regs[2:]
        if regs:
            A("v_max_u32 %s, %s, %s" % (V(dst), V(dst), V(regs[0])))

    def poll_tail(label, tmp, mask=None):
        A("v_cmp_eq_u32 vcc, -1, %s" % V(tmp))
        if mask:
            A("s_or_b32 vcc_lo, vcc_lo, vcc_hi")
            A("s_and_b32 vcc_lo, vcc_lo, %s" % mask)
            A("s_cbranch_scc0 %s_ok" % label)
        else:
            A("s_cbranch_vccz %s_ok" % label)
        A("s_sub_u32 s%d, s%d, 1" % (sCNT, sCNT))
        A("s_cbranch_scc0 %s" % label)
        A("s_mov_b32 s%d, 0" % sCNT)
        A.label("%s_ok" % label)

    DPP = " row_mask:0xf bank_mask:0xf"

    def stats_lane(t):
        x = lambda i: V(vXA + 2 * i, 2)
        a, b, q = V(t, 2), V(t + 2, 2), V(t + 4, 2)
        S, Q = t + 6, t + 7
        A("v_pk_add_f32 %s, %s, %s" % (a, x(0), x(1)))
        A("v_pk_mul_f32 %s, %s, %s" % (q, x(0), x(0)))
        A("v_pk_add_f32 %s, %s, %s" % (b, x(2), x(3)))
        A("v_pk_fma_f32 %s, %s, %s, %s" % (q, x(1), x(1), q))
        A("v_pk_add_f32 %s, %s, %s" % (a, a, b))
        A("v_pk_fma_f32 %s, %s, %s, %s" % (q, x(2), x(2), q))
        A("v_add_f32 %s, %s, %s" % (V(S), V(t), V(vXA + 8)))
        A("v_pk_fma_f32 %s, %s, %s, %s" % (q, x(3), x(3), q))
        A("v_add_f32 %s, %s, %s" % (V(S), V(S), V(t + 1)))
        A("v_fma_f32 %s, %s, %s, %s" % (V(Q), V(vXA + 8), V(vXA + 8), V(t + 4)))
        A("v_add_f32 %s, %s, %s" % (V(Q), V(Q), V(t + 5)))

    WAVE6 = ("quad_perm:[1,0,3,2]" + DPP, "quad_perm:[2,3,0,1]" + DPP, "row_half_mirror" + DPP,
             "row_mirror" + DPP, "row_bcast:15 row_mask:0xa bank_mask:0xf", "row_bcast:31 row_mask:0xc bank_mask:0xf")

    def stats_wave(t, twice):
        S, Q = t + 6, t + 7
        o = []
        for ctl in WAVE6:
            o.append("v_add_f32_dpp %s, %s, %s %s" % (V(S), V(S), V(S), ctl))
            o.append("v_add_f32_dpp %s, %s, %s %s" % (V(Q), V(Q), V(Q), ctl))
        o.append("v_readlane_b32 s%d, %s, 63" % (sT0, V(S)))
        o.append("v_readlane_b32 s%d, %s, 63" % (sT1, V(Q)))
        c, e = (vC1, vEPS2) if twice else (vINV, vEPS)
        o.append("v_mul_f32 %s, s%d, %s" % (V(t), sT0, V(vINV)))
        if twice:
            o.append("v_mul_f32 %s, s%d, %s" % (V(t + 2), sT0, V(vC1)))
        o.append("v_fma_f32 %s, s%d, %s, %s" % (V(t + 1), sT1, V(c), V(e)))
        o.append("v_fma_f32 %s, -%s, %s, %s" % (V(t + 1), V(t + 2 if twice else t), V(t), V(t + 1)))
        o.append("v_max_f32 %s, %s, %s" % (V(t + 1), V(e), V(t + 1)))
        o.append("v_rsq_f32 %s, %s" % (V(t + 3), V(t + 1)))
        return o

    def normalize(dst, t, r):
        A("v_mul_f32 %s, %s, %s" % (V(t + 2), V(t), V(r)))
        rp, rs = bc(r)
        mp, ms = bc(t + 2)
        for i in range(4):
            A("v_pk_fma_f32 %s, %s, %s, %s op_sel:[0,%d,%d] op_sel_hi:[1,%d,%d] neg_lo:[0,0,1] neg_hi:[0,0,1]" % (
                V(dst + 2 * i, 2), V(vXA + 2 * i, 2), rp, mp, rs, ms, rs, ms))
        A("v_fma_f32 %s, %s, %s, -%s" % (V(dst + 8), V(vXA + 8), V(r), V(t + 2)))

    def reduce8(o, ml, M, e, norm, mid=None):
        A("v_max_f32_dpp %s, %s, %s quad_perm:[1,0,3,2]%s" % (V(M), V(ml), V(ml), DPP))
        A("v_max_f32_dpp %s, %s, %s quad_perm:[2,3,0,1]%s" % (V(M), V(M), V(M), DPP))
        A("v_max_f32_dpp %s, %s, %s row_half_mirror%s" % (V(M), V(M), V(M), DPP))
        A("v_sub_f32 %s, %s, %s" % (V(e), V(ml), V(M)))
        A("v_exp_f32 %s, %s" % (V(e), V(e)))
        A("v_mov_b32 %s, %s" % (V(ml), V(M)))
        if mid:
            A(mid)
        ep, es = bc(e)
        A("v_mul_f32 %s, %s, %s" % (V(ml + 1), V(ml + 1), V(e)))
        for i in range(2):
            A("v_pk_mul_f32 %s, %s, %s op_sel:[0,%d] op_sel_hi:[1,%d]" % (V(o + 2 * i, 2), V(o + 2 * i, 2), ep, es, es))
        for ctl in ("quad_perm:[1,0,3,2]", "quad_perm:[2,3,0,1]", "row_half_mirror"):
            for r in (ml + 1, o, o + 1, o + 2, o + 3):
                A("v_add_f32_dpp %s, %s, %s %s%s" % (V(r), V(r), V(r), ctl, DPP))
        if norm:
            A("v_rcp_f32 %s, %s" % (V(e), V(ml + 1)))
            for i in range(2):
                A("v_pk_mul_f32 %s, %s, %s op_sel:[0,%d] op_sel_hi:[1,%d]" % (V(o + 2 * i, 2), V(o + 2 * i, 2), ep, es, es))

    vXR = vA + 20
    aK, aV, aW = vA, vA + 1, vA + 2

    aK2, aV2, aD = vWO, vWO + 1, vWO + 2

    def dma8(base, lds):
        A("s_mul_i32 s%d, s%d, 8704" % (sT1, sWV))
        for i in range(8):
            A("s_add_u32 m0, s%d, %d" % (sT1, lds + 1088 * i - 1024 * (i & 3)))
            A("global_load_lds_dwordx4 %s, %s offset:%d%s" % (V(aD + (i >> 2)), sp(base), 1024 * (i & 3), NTKV))

    def kloads(aK):
        for T in range(2):
            for hf in range(2):
                for sub in range(2):
                    A("global_load_dwordx4 %s, %s, %s offset:%d%s" % (
                        V(vK + 16 * T + 4 * (2 * hf + sub), 4), V(aK), sp(sK), (16 * T + 8 * sub) * 256 + hf * 128 - 4096, NTKV))

    def vload(i, aV):
        A("global_load_dwordx4 %s, %s, %s offset:%d%s" % (
            V(vVR + 4 * i, 4), V(aV), sp(sV), (16 * (i >> 2) + (i & 3)) * 256 - 4096, NTKV))

    def arrive_wait(off, count, name):
        A("v_mov_b32 v252, %d" % (FLG + off))
        A("v_mov_b32 v253, 1")
        A("s_mov_b64 exec, 1")
        A("ds_add_u32 v252, v253")
        A("s_mov_b64 exec, -1")
        if name is None:
            return
        A.label(name)
        A("ds_read_b32 v253, v252")
        A("s_waitcnt lgkmcnt(0)")
        A("v_readfirstlane_b32 s%d, v253" % sT0)
        A("s_cmp_lt_u32 s%d, %d" % (sT0, count))
        A("s_cbranch_scc1 %s" % name)

    def spin(off, count, name):
        A("v_mov_b32 v252, %d" % (FLG + off))
        A.label(name)
        A("ds_read_b32 v253, v252")
        A("s_waitcnt lgkmcnt(0)")
        A("v_readfirstlane_b32 s%d, v253" % sT0)
        A("s_cmp_lt_u32 s%d, %d" % (sT0, count))
        A("s_cbranch_scc1 %s" % name)

    A.label(NAME)
    A("s_cmp_ge_u32 s2, 0x100")
    A("s_cbranch_scc1 Lend")
    if DIAG:
        A("s_memrealtime s[98:99]")
    A("s_load_dwordx16 s[4:19], s[0:1], 0")
    A("s_load_dwordx8 s[20:27], s[0:1], 64")
    A("s_load_dwordx2 s[28:29], s[0:1], 96")
    A("v_lshrrev_b32 v24, 6, v0")
    A("v_and_b32 v1, 63, v0")
    A("v_readfirstlane_b32 s%d, v24" % sWV)
    if PREF:
        A("s_cmp_lg_u32 s%d, 3" % sWV)
        A("s_cbranch_scc1 Lnopref")
        A("s_getpc_b64 %s" % sp(sHQ))
        A.label("Lpc")
        A("v_lshlrev_b32 v24, 7, v1")
        A("v_add_u32 v25, 0x2000, v24")
        A("v_min_u32 v25, Lcode_end-Lpc-4, v25")
        A("global_load_dword v198, v24, %s" % sp(sHQ))
        A("global_load_dword v199, v25, %s" % sp(sHQ))
        A.label("Lnopref")
    A("s_and_b32 s%d, s2, 7" % sT0)
    A("s_lshr_b32 s%d, s2, 3" % sT1)
    A("s_lshr_b32 s%d, s%d, 4" % (sT2, sT1))
    A("s_lshl_b32 s%d, s%d, 1" % (sHKV, sT0))
    A("s_add_u32 s%d, s%d, s%d" % (sHKV, sHKV, sT2))
    A("s_bfe_u32 s%d, s%d, 0x10003" % (sB, sT1))
    A("s_and_b32 s%d, s%d, 7" % (sS, sT1))
    A("s_lshl_b32 s%d, s%d, 4" % (sGID, sB))
    A("s_add_u32 s%d, s%d, s%d" % (sGID, sGID, sHKV))
    A("s_lshr_b32 s%d, s%d, 2" % (sP, sS))
    A("v_lshlrev_b32 v28, 2, v1")
    A("v_lshlrev_b32 v29, 1, v1")
    A("v_mov_b32 %s, 0" % V(vB2))
    A("v_mov_b32 v248, 0")
    A("v_and_b32 v24, 15, v1")
    A("v_lshrrev_b32 v25, 4, v1")
    A("v_and_b32 v26, 7, v1")
    A("v_lshrrev_b32 v27, 3, v1")
    A("v_and_b32 v249, 1, v27")
    A("v_lshl_add_u32 v249, v249, 2, v25")
    A("v_lshlrev_b32 v249, 4, v249")
    A("v_lshl_add_u32 %s, v26, 8, v249" % V(aK))
    A("v_lshlrev_b32 v249, 4, v24")
    A("v_lshl_add_u32 %s, v25, 10, v249" % V(aV))
    oX, oKV, oWQ = sH, sH + 1, sH + 2
    A("s_mul_i32 s%d, s%d, 1152" % (oX, sB))
    A("s_lshl_b32 s%d, s%d, 21" % (oKV, sGID))
    A("s_lshl_b32 s%d, s%d, 16" % (sT1, sS))
    A("s_add_u32 s%d, s%d, s%d" % (oKV, oKV, sT1))
    A("s_lshl_b32 s%d, s%d, 13" % (sT1, sWV))
    A("s_add_u32 s%d, s%d, s%d" % (oKV, oKV, sT1))
    A("s_add_u32 s%d, s%d, %d" % (oKV, oKV, 6144 * 256 + 4096))

    def bases():
        for (r, base, mul, src) in ((sHQ, W_HQ, 1024, sGID), (sHO, W_HO, 8192, sGID), (sHM, W_HM, 128, sGID), (sHX, W_HX, 36864, sB)):
            A("s_mul_i32 s%d, s%d, %d" % (sT0, src, mul))
            if base:
                A("s_add_u32 s%d, s%d, %d" % (sT0, sT0, base))
            A("s_add_u32 s%d, s%d, s%d" % (r, sWS, sT0))
            A("s_addc_u32 s%d, s%d, 0" % (r + 1, sWS + 1))

    A("s_cmp_gt_u32 s%d, 3" % sWV)
    A("s_cbranch_scc1 Lrole_b")
    A("s_mul_i32 s%d, s%d, %d" % (oWQ, sP, 288 * 8192))
    A("s_lshl_b32 s%d, s%d, 9" % (sT1, sHKV))
    A("s_add_u32 s%d, s%d, s%d" % (oWQ, oWQ, sT1))
    A("s_and_b32 s%d, s%d, 3" % (sT1, sS))
    A("s_lshl_b32 s%d, s%d, 7" % (sT1, sT1))
    A("s_add_u32 s%d, s%d, s%d" % (oWQ, oWQ, sT1))
    A("s_lshl_b32 s%d, s%d, 16" % (sT1, sWV))
    A("s_add_u32 s%d, s%d, s%d" % (oWQ, oWQ, sT1))
    A("v_lshlrev_b32 v249, 13, v27")
    A("v_lshl_add_u32 %s, v26, 4, v249" % V(aW))
    A("v_mov_b32 v249, %d" % FLG)
    A("ds_write2_b32 v249, v248, v248 offset0:1 offset1:2")
    A("ds_write_b32 v249, v248 offset:12")
    A("v_lshlrev_b32 %s, 4, v1" % V(aD))
    A("v_add_u32 %s, %d, %s" % (V(aD), 32768 - 4096, V(aD)))
    A("v_add_u32 %s, 4096, %s" % (V(aD + 1), V(aD)))
    A("s_getreg_b32 s%d, hwreg(HW_REG_XCC_ID, 0, 4)" % sXCC)
    A("s_cmp_lg_u32 s%d, 2" % sWV)
    A("s_cbranch_scc1 Linit_a")
    for i in range(4):
        A("v_mov_b32 %s, -1" % V(244 + i))
    A("s_lshl_b32 s%d, s%d, 13" % (sT1, sGID))
    A("s_lshl_b32 s%d, s%d, 10" % (sT2, sS))
    A("s_add_u32 s%d, s%d, s%d" % (sT1, sT1, sT2))
    A("s_add_u32 s%d, s%d, %d" % (sT1, sT1, W_HO))
    A("v_lshl_add_u32 v251, v1, 4, s%d" % sT1)
    A("v_add_u32 v252, %d, v251" % L_HO)
    A("s_and_b32 s%d, s%d, 3" % (sT1, sS))
    A("s_lshl_b32 s%d, s%d, 7" % (sT1, sT1))
    A("s_lshl_b32 s%d, s%d, 9" % (sT2, sP))
    A("s_add_u32 s%d, s%d, s%d" % (sT1, sT1, sT2))
    A("s_lshl_b32 s%d, s%d, 10" % (sT2, sGID))
    A("s_add_u32 s%d, s%d, s%d" % (sT1, sT1, sT2))
    A("v_lshl_add_u32 v249, v1, 4, s%d" % sT1)

    def seg(first, sreg, const):
        A("v_cmp_le_u32 vcc, %d, v1" % first)
        A("s_add_u32 s%d, s%d, %d" % (sT0, sreg, const - 16 * first))
        A("v_lshl_add_u32 v250, v1, 4, s%d" % sT0)
        A("v_cndmask_b32 v249, v249, v250, vcc")

    seg(8, sT1, W_HQ + L_HQ)
    A("s_lshl_b32 s%d, s%d, 7" % (sT1, sGID))
    A("s_lshl_b32 s%d, s%d, 4" % (sT2, sS))
    A("s_add_u32 s%d, s%d, s%d" % (sT1, sT1, sT2))
    seg(16, sT1, W_HM)
    seg(17, sT1, W_HM + L_HM)
    A("s_mul_i32 s%d, s%d, 36864" % (sT1, sB))
    A("s_mul_i32 s%d, s%d, 2304" % (sT2, sHKV))
    A("s_add_u32 s%d, s%d, s%d" % (sT1, sT1, sT2))
    A("s_mul_i32 s%d, s%d, 288" % (sT2, sS))
    A("s_add_u32 s%d, s%d, s%d" % (sT1, sT1, sT2))
    seg(18, sT1, W_HX)
    seg(36, sT1, W_HX + L_HX)
    A("s_lshl_b32 s%d, s2, 5" % sT1)
    seg(54, sT1, W_HT)
    A("s_waitcnt lgkmcnt(0)")
    A("global_store_dwordx4 v251, v[244:247], %s sc1" % sp(sWS))
    A("global_store_dwordx4 v252, v[244:247], %s sc1" % sp(sWS))
    A("s_mov_b32 exec_hi, 0x00ffffff")
    A("global_store_dwordx4 v249, v[244:247], %s sc1" % sp(sWS))
    A("s_mov_b32 exec_hi, -1")
    A.label("Linit_a")
    A("s_waitcnt lgkmcnt(0)")
    stamp("start")
    if DIAG:
        A("s_memtime s[100:101]")
        A("s_waitcnt lgkmcnt(0)")
    add64(sX, "s%d" % oX)
    add64(sWQ, "s%d" % oWQ)
    A("global_load_short_d16_hi %s, v248, %s" % (V(vB2), sp(sB2)))
    for i in range(4):
        A("global_load_dword %s, v28, %s offset:%d" % (V(vXR + i), sp(sX), 256 * i))
    A("global_load_ushort %s, v29, %s offset:1024" % (V(vXR + 4), sp(sX)))
    add64(sK, "s%d" % oKV)
    add64(sV, "s%d" % oKV)
    A("s_lshl_b32 s%d, s%d, 10" % (sT1, sWV))
    A("s_barrier")
    for i in range(9):
        A("s_add_u32 m0, s%d, %d" % (sT1, WQS + 4096 * i))
        if i:
            A("v_add_u32 %s, 0x40000, %s" % (V(aW), V(aW)))
        A("global_load_lds_dwordx4 %s, %s%s" % (V(aW), sp(sWQ), NTW))
    A("s_cmp_lg_u32 s%d, 2" % sWV)
    A("s_cbranch_scc1 Lnoflag")
    A("s_or_b32 s%d, s%d, 0x80" % (sT0, sXCC))
    A("s_and_b32 s%d, s2, 3" % sT1)
    A("s_lshl_b32 s%d, s%d, 3" % (sT1, sT1))
    A("s_lshl_b32 s%d, s%d, s%d" % (sT0, sT0, sT1))
    A("s_and_b32 s%d, s2, 0xfc" % sT1)
    A("v_mov_b32 v249, s%d" % sT1)
    A("v_mov_b32 v250, s%d" % sT0)
    A("s_waitcnt vmcnt(15)")
    A("s_mov_b64 exec, 1")
    A("global_atomic_or v249, v250, %s sc1" % sp(sDBG))
    A("s_mov_b64 exec, -1")
    A.label("Lnoflag")
    dma8(sK, KB)
    kloads(aK)
    if VBEARLY:
        dma8(sV, VB)
    bases()
    A("s_call_b64 %s, Laddr" % sp(sRET))
    A("v_bfe_u32 v249, v1, 2, 2")
    A("v_lshrrev_b32 v250, 4, v1")
    A("v_lshl_add_u32 v249, v250, 3, v249")
    A("v_lshlrev_b32 v249, 7, v249")
    A("v_and_b32 v250, 3, v1")
    A("v_lshl_add_u32 v249, v250, 3, v249")
    A("s_lshl_b32 s%d, s%d, 5" % (sT0, sWV))
    A("s_add_u32 s%d, s%d, %d" % (sT0, sT0, WQS))
    A("v_add_u32 v249, s%d, v249" % sT0)
    for i in range(4):
        A("v_mov_b32 %s, 0x3f803f80" % V(244 + i))
    A("v_mov_b32 %s, %s" % (V(aV2), V(aV)))
    aV = aV2
    A("s_waitcnt vmcnt(%d)" % (24 if VBEARLY else 16))
    arrive_wait(4, 4, "Lsync_a")
    stamp("wq")
    for ks in range(9):
        for hh in range(2):
            A("ds_read_b64_tr_b16 %s, v249 offset:%d" % (V(vWQ + 4 * ks + 2 * hh, 2), (32 * ks + 4 * hh) * 128))
    A("s_waitcnt lgkmcnt(0)")
    for ks in range(9):
        A("v_mfma_f32_16x16x32_bf16 %s, %s, v[244:247], %s" % (V(vSQ, 4), V(vWQ + 4 * ks, 4), V(vSQ, 4) if ks else "0"))
    A("s_call_b64 %s, Lqstage" % sp(sRET))
    arrive_wait(4, 0, None)
    stamp("q0")
    A("s_cmp_lg_u32 s%d, 0" % sWV)
    A("s_cbranch_scc1 Lnolook")
    A("v_lshlrev_b32 v250, 2, v1")
    A("global_load_dword v253, v250, %s sc1" % sp(sDBG))
    A.label("Lnolook")
    if not VBEARLY:
        dma8(sV, VB)
    for i in range(8):
        vload(i, aV)
    stamp("iss")
    A("s_cmp_eq_u32 s%d, 0" % sWV)
    A("s_cbranch_scc1 Lwave0")
    A("s_cmp_lg_u32 s%d, 3" % sWV)
    A("s_cbranch_scc1 Lnox0")
    for i in range(4):
        A("ds_write_b64 %s, %s offset:%d" % (V(lXP), V(vXA + 2 * i, 2), 512 * i))
    A("ds_write_b32 %s, %s" % (V(lXS), V(vXA + 8)))
    A.label("Lnox0")
    A("s_mul_i32 s%d, s%d, %d" % (sT0, sHKV, 256 * 1152))
    A("s_mul_i32 s%d, s%d, 144" % (sT1, sS))
    A("s_add_u32 s%d, s%d, s%d" % (sT0, sT0, sT1))
    add64(sWO, "s%d" % sT0)
    A("v_subrev_u32 v249, 64, v0")
    for i in range(12):
        if i:
            A("v_add_u32 v249, 192, v249")
        A("v_mul_u32_u24 v250, 7282, v249")
        A("v_lshrrev_b32 v250, 16, v250")
        A("v_mul_u32_u24 v250, 1008, v250")
        A("v_lshl_add_u32 %s, v249, 4, v250" % V(vA + i))
    A("s_waitcnt vmcnt(%d)" % (8 if VBEARLY else 16))
    A("s_call_b64 %s, Lkshuf" % sp(sRET))
    A("s_waitcnt vmcnt(8)")
    arrive_wait(12, 0, None)
    A("s_lshl_b32 s%d, s%d, 10" % (sT1, sWV))
    spin(4, 9, "Lsync_wo")
    A("s_waitcnt vmcnt(%d)" % WOGATE)
    for i in range(12):
        A("s_add_u32 m0, s%d, %d" % (sT1, WOS - 1024 + 3072 * i))
        A("global_load_lds_dwordx4 %s, %s%s" % (V(vA + i), sp(sWO), NTW))
    stamp("wo")
    A("s_waitcnt vmcnt(12)")
    stamp("kv")
    A("s_call_b64 %s, Lvperm" % sp(sRET))
    A("s_branch Lmeet")
    A.label("Lwave0")
    A("s_lshr_b32 s%d, s2, 6" % sT0)
    A("s_lshl_b32 s%d, s%d, 4" % (sT0, sT0))
    A("s_bfe_u32 s%d, s2, 0x10002" % sT1)
    A("s_add_u32 s%d, s%d, s%d" % (sT0, sT0, sT1))
    A("s_mov_b64 %s, 0x5555" % sp(sMSK))
    A("s_lshl_b64 %s, %s, s%d" % (sp(sMSK), sp(sMSK), sT0))
    A("s_and_b32 s%d, s2, 3" % sT2)
    A("s_lshl_b32 s%d, s%d, 3" % (sT2, sT2))
    A("s_waitcnt vmcnt(%d)" % (8 if VBEARLY else 16))
    A("s_branch Lflagchk")
    A.label("Lflagpoll")
    A("s_sleep 8")
    A("global_load_dword v253, v250, %s sc1" % sp(sDBG))
    A("s_waitcnt vmcnt(0)")
    A.label("Lflagchk")
    A("v_bfe_u32 v251, v253, s%d, 8" % sT2)
    A("v_cmp_gt_u32 vcc, 0x80, v251")
    A("s_and_b64 vcc, vcc, %s" % sp(sMSK))
    A("s_cbranch_scc0 Lflagok")
    A("s_sub_u32 s%d, s%d, 1" % (sCNT, sCNT))
    A("s_cbranch_scc0 Lflagpoll")
    A("s_mov_b32 s%d, 0" % sCNT)
    A.label("Lflagok")
    stamp("fl")
    for ks in range(4):
        A("global_load_dwordx4 %s, %s, %s offset:%d sc1" % (V(vQ + 4 * ks, 4), V(aHQL), sp(sHQ), 64 * ks))
    A("global_load_dword %s, v250, %s sc1" % (V(vA), sp(sDBG)))
    A("v_and_b32 v251, 15, v251")
    A("v_cmp_ne_u32 vcc, s%d, v251" % sXCC)
    A("v_mov_b32 v251, %d" % FLG)
    A("s_and_b64 vcc, vcc, %s" % sp(sMSK))
    A("s_cselect_b32 s%d, 0, %d" % (sT0, 0 if FORCE_SLOW else 1))
    A("v_mov_b32 v253, s%d" % sT0)
    A("ds_write_b32 v251, v253")
    arrive_wait(4, 0, None)
    A("s_call_b64 %s, Lkshuf" % sp(sRET))
    A("s_waitcnt vmcnt(13)")
    arrive_wait(12, 0, None)
    A("s_waitcnt vmcnt(5)")
    stamp("kv")
    A("s_call_b64 %s, Lvperm" % sp(sRET))
    A("s_branch Lq0chk")
    A.label("Lq0poll")
    A("s_sleep 2")
    for ks in range(4):
        A("global_load_dwordx4 %s, %s, %s offset:%d sc1" % (V(vQ + 4 * ks, 4), V(aHQL), sp(sHQ), 64 * ks))
    A("global_load_dword %s, v250, %s sc1" % (V(vA), sp(sDBG)))
    A.label("Lq0chk")
    A("s_waitcnt vmcnt(0)")
    maxtree(vM, range(vQ, vQ + 16))
    A("v_and_b32 %s, 0x80808080, %s" % (V(vA), V(vA)))
    A("v_cmp_ne_u32 vcc, 0x80808080, %s" % V(vA))
    A("v_cndmask_b32 %s, %s, -1, vcc" % (V(vM), V(vM)))
    poll_tail("Lq0poll", vM)
    A("v_lshlrev_b32 v250, 4, v1")
    for ks in range(4):
        A("ds_write_b128 v250, %s offset:%d" % (V(vQ + 4 * ks, 4), QL + 1024 * ks))
    A("s_branch Lmeet")
    aK, aV = vA, vA + 1
    A.label("Lrole_b")
    if BPRIO:
        A("s_setprio %d" % BPRIO)
    A("v_subrev_u32 v31, 0x100, v0")
    A("v_lshlrev_b32 v30, 4, v31")
    A("v_add_u32 v249, 0x1000, v30")
    A("v_lshlrev_b32 v31, 2, v31")
    A("v_add_u32 v31, 0x2000, v31")
    A("s_waitcnt lgkmcnt(0)")
    stamp("start")
    if DIAG:
        A("s_memtime s[100:101]")
        A("s_waitcnt lgkmcnt(0)")
    for i in range(3):
        r, p = vRW + 10 * i, sp((sW1, sB1, sW2)[i])
        A("global_load_dwordx4 %s, v30, %s" % (V(r, 4), p))
        A("global_load_dwordx4 %s, v249, %s" % (V(r + 4, 4), p))
        A("global_load_dword %s, v31, %s" % (V(r + 8), p))
    A("global_load_short_d16_hi %s, v248, %s" % (V(vB2), sp(sB2)))
    A("s_barrier")
    stamp("iss")
    bases()
    A("s_call_b64 %s, Laddr" % sp(sRET))
    A("s_and_b32 s%d, s2, 127" % sT0)
    A("s_lshl_b32 s%d, s%d, 4" % (sT0, sT0))
    A("s_add_u32 s%d, s%d, %d" % (sT0, sT0, E0))
    A("s_lshr_b32 s%d, s2, 7" % sT1)
    A("s_lshl_b32 s%d, s%d, 15" % (sT1, sT1))
    A("s_add_u32 s%d, s%d, s%d" % (sT0, sT0, sT1))
    A("v_add_u32 v249, s%d, v1" % sT0)
    A("v_lshlrev_b32 v249, 16, v249")
    A("v_mul_f32 v249, %s, v249" % fl(SC))
    A("v_mov_b32 %s, %s" % (V(vKAP), fl(KAP)))
    A("v_mov_b32 %s, 1.0" % V(vONE))
    A("v_mov_b32 %s, %s" % (V(vSCL), fl(SC)))
    for i in range(16):
        A("v_readlane_b32 s%d, v249, %d" % (sH + i, i))
        A("v_mov_b32 %s, 0" % V(vACC + i))
    A("s_mov_b32 s%d, 0" % sT3)
    A("s_waitcnt vmcnt(0)")
    stamp("wq")
    A.label("Ltabloop")
    A("s_set_gpr_idx_on s%d, gpr_idx(SRC1)" % sT3)
    for i, d in enumerate((vCA, vCC, vCW)):
        A("v_lshlrev_b32 %s, 16, %s" % (V(d), V(vRW + 10 * i)))
        A("v_and_b32 %s, 0xffff0000, %s" % (V(d + 1), V(vRW + 10 * i)))
    A("s_set_gpr_idx_off")
    A("v_pk_mul_f32 %s, %s, %s op_sel_hi:[1,0]" % (V(vCC, 2), V(vCC, 2), V(vSCL, 2)))
    for f in range(2):
        kp, ksel = bc(vKAP)
        op, osel = bc(vONE)
        for k2 in range(0 if NOTAB else 4):
            seq = []
            for h in range(2):
                k = 2 * k2 + h
                u, t, e, uw = (V(vTT + 8 * h + 2 * i, 2) for i in range(4))
                e0, e1 = vTT + 8 * h + 4, vTT + 8 * h + 5
                t0, t1 = vTT + 8 * h + 2, vTT + 8 * h + 3
                seq.append([
                    "v_pk_fma_f32 %s, %s, %s, %s op_sel:[%d,0,%d] op_sel_hi:[%d,1,%d]" % (u, V(vCA, 2), sp(sH + 2 * k), V(vCC, 2), f, f, f, f),
                    "v_pk_fma_f32 %s, %s, %s, %s op_sel:[0,0,%d] op_sel_hi:[1,1,%d]" % (t, u, u, kp, ksel, ksel),
                    "v_pk_mul_f32 %s, %s, %s neg_lo:[1,0] neg_hi:[1,0]" % (t, t, u),
                    "v_exp_f32 %s, %s" % (V(e0), V(t0)),
                    "v_exp_f32 %s, %s" % (V(e1), V(t1)),
                    "v_pk_mul_f32 %s, %s, %s op_sel:[0,%d] op_sel_hi:[1,%d]" % (uw, u, V(vCW, 2), f, f),
                    "v_pk_add_f32 %s, %s, %s op_sel:[0,%d] op_sel_hi:[1,%d]" % (e, e, op, osel, osel),
                    "v_rcp_f32 %s, %s" % (V(e0), V(e0)),
                    "v_rcp_f32 %s, %s" % (V(e1), V(e1)),
                    "v_pk_fma_f32 %s, %s, %s, %s" % (V(vACC + 2 * k, 2), uw, e, V(vACC + 2 * k, 2)),
                ])
            s0, s1 = seq
            for l in (s0[0], s1[0], s0[1], s1[1], s0[2], s1[2], s0[3], s0[4], s1[3], s1[4], s0[5], s0[6], s1[5], s1[6],
                      s0[7], s0[8], s1[7], s1[8], s0[9], s1[9]):
                A(l)
    A("s_add_u32 s%d, s%d, 1" % (sT3, sT3))
    A("s_cmp_lt_u32 s%d, 9" % sT3)
    A("s_cbranch_scc1 Ltabloop")
    stamp("q0")
    for k in range(8):
        A("v_permlane32_swap_b32 %s, %s" % (V(vACC + 2 * k), V(vACC + 2 * k + 1)))
    for k in range(8):
        A("v_add_f32 %s, %s, %s" % (V(vACC + 2 * k), V(vACC + 2 * k), V(vACC + 2 * k + 1)))
    for k in range(4):
        A("v_permlane16_swap_b32 %s, %s" % (V(vACC + 4 * k), V(vACC + 4 * k + 2)))
    for k in range(4):
        A("v_add_f32 %s, %s, %s" % (V(vACC + 4 * k), V(vACC + 4 * k), V(vACC + 4 * k + 2)))
    for ctl in ("quad_perm:[1,0,3,2]", "quad_perm:[2,3,0,1]", "row_half_mirror", "row_mirror"):
        for k in range(4):
            A("v_add_f32_dpp %s, %s, %s %s%s" % (V(vACC + 4 * k), V(vACC + 4 * k), V(vACC + 4 * k), ctl, DPP))
    A("v_lshrrev_b32 v251, 5, v1")
    A("v_bfe_u32 v250, v1, 4, 1")
    A("v_lshl_add_u32 v251, v250, 1, v251")
    A("s_lshl_b32 s%d, s%d, 6" % (sT0, sWV))
    A("s_add_u32 s%d, s%d, %d" % (sT0, sT0, TRED - 256))
    A("v_lshl_add_u32 v251, v251, 2, s%d" % sT0)
    A("s_mov_b32 exec_lo, 0x00010001")
    A("s_mov_b32 exec_hi, 0x00010001")
    A("ds_write2_b32 v251, %s, %s offset0:0 offset1:4" % (V(vACC), V(vACC + 4)))
    A("ds_write2_b32 v251, %s, %s offset0:8 offset1:12" % (V(vACC + 8), V(vACC + 12)))
    A("s_mov_b64 exec, -1")
    if BPRIO:
        A("s_setprio 0")
    A("v_bfe_u32 v249, v1, 2, 2")
    A("v_mul_u32_u24 v249, 1088, v249")
    A("v_and_b32 v250, 3, v1")
    A("v_lshl_add_u32 v249, v250, 8, v249")
    A("v_lshrrev_b32 v250, 4, v1")
    A("v_lshl_add_u32 v249, v250, 4, v249")
    A("v_mul_u32_u24 v250, 1088, v250")
    A("v_and_b32 v251, 15, v1")
    A("v_lshl_add_u32 v250, v251, 4, v250")
    A("s_mul_i32 s%d, s%d, 8704" % (sT1, sWV))
    A("s_add_u32 s%d, s%d, %d" % (sT2, sT1, KB - 4 * 8704))
    A("v_add_u32 v249, s%d, v249" % sT2)
    A("s_add_u32 s%d, s%d, %d" % (sT2, sT1, VB - 4 * 8704))
    A("v_add_u32 v250, s%d, v250" % sT2)
    spin(12, 4, "Lsync_kv")
    stamp("fl")
    for i in range(8):
        A("ds_read_b128 %s, v250 offset:%d" % (V(vVR + 4 * i, 4), (i >> 2) * 4352 + (i & 3) * 256))
    for T in range(2):
        for ks in range(4):
            A("ds_read_b128 %s, v249 offset:%d" % (V(vK + 16 * T + 4 * ks, 4), T * 4352 + ks * 64))
    A("s_waitcnt lgkmcnt(8)")
    A("s_call_b64 %s, Lvperm" % sp(sRET))
    stamp("kv")
    A.label("Lmeet")
    for i, r in enumerate((sHX1, sHX2, sHX3)):
        A("s_add_u32 s%d, s%d, %d" % (r, sHX, 9216 * (i + 1)))
        A("s_addc_u32 s%d, s%d, 0" % (r + 1, sHX + 1))
    A("v_lshlrev_b32 v250, 4, v1")
    A("v_mov_b32 v251, %d" % FLG)
    A("s_waitcnt lgkmcnt(0)")
    A("s_barrier")
    stamp("tab")
    A("ds_read_b32 v251, v251")
    for ks in range(4):
        A("ds_read_b128 %s, v250 offset:%d" % (V(vQ + 4 * ks, 4), QL + 1024 * ks))
    A("s_waitcnt lgkmcnt(0)")
    A("v_readfirstlane_b32 s%d, v251" % sFAST)
    A("s_branch Lqchk")
    A.label("Lqpoll")
    if QMASK:
        A("s_mov_b32 exec_lo, 0x00330033")
        A("s_mov_b32 exec_hi, 0x00330033")
    for ks in range(4):
        A("global_load_dwordx4 %s, %s, %s offset:%d sc1" % (V(vQ + 4 * ks, 4), V(aHQL), sp(sHQ), 64 * ks))
    if QMASK:
        A("s_mov_b64 exec, -1")
    A("s_waitcnt vmcnt(0)")
    A.label("Lqchk")
    stampL("qV")
    chk = ["v_max3_u32 %s, %s, %s, %s" % (V(vM), V(vQ), V(vQ + 1), V(vQ + 2))]
    for i in range(6):
        chk.append("v_max3_u32 %s, %s, %s, %s" % (V(vM), V(vM), V(vQ + 3 + 2 * i), V(vQ + 4 + 2 * i)))
    chk.append("v_max_u32 %s, %s, %s" % (V(vM), V(vM), V(vQ + 15)))
    for ks in range(4):
        for T in range(2):
            A("v_mfma_f32_16x16x32_bf16 %s, %s, %s, %s" % (
                V(vS + 4 * T, 4), V(vK + 16 * T + 4 * ks, 4), V(vQ + 4 * ks, 4), V(vS + 4 * T, 4) if ks else "0"))
            A(chk.pop(0))
    poll_tail("Lqpoll", vM, "0x00330033" if QMASK else None)
    for r in range(8):
        A("v_add_f32_dpp %s, %s, %s quad_perm:[1,0,3,2]%s" % (V(vS + r), V(vS + r), V(vS + r), DPP))
    A("v_max3_f32 %s, %s, %s, %s" % (V(vM), V(vS), V(vS + 1), V(vS + 2)))
    A("v_max3_f32 %s, %s, %s, %s" % (V(vP), V(vS + 3), V(vS + 4), V(vS + 5)))
    A("v_max3_f32 %s, %s, %s, %s" % (V(vM), V(vM), V(vS + 6), V(vS + 7)))
    A("v_max_f32 %s, %s, %s" % (V(vP + 1), V(vM), V(vP)))
    A("v_max_f32 %s, %s, %s" % (V(vM), V(vM), V(vP)))
    A("v_permlane16_swap_b32 %s, %s" % (V(vM), V(vP + 1)))
    A("v_max_f32 %s, %s, %s" % (V(vP), V(vM), V(vP + 1)))
    A("v_max_f32 %s, %s, %s" % (V(vM), V(vM), V(vP + 1)))
    A("v_permlane32_swap_b32 %s, %s" % (V(vM), V(vP)))
    A("v_max_f32 %s, %s, %s" % (V(vM), V(vM), V(vP)))
    A("v_mul_f32 %s, s%d, %s" % (V(vM), sSMC, V(vM)))
    for r in range(8):
        A("v_fma_f32 %s, %s, s%d, -%s" % (V(vS + r), V(vS + r), sSMC, V(vM)))
        if r:
            A("v_exp_f32 %s, %s" % (V(vS + r - 1), V(vS + r - 1)))
    A("v_exp_f32 %s, %s" % (V(vS + 7), V(vS + 7)))
    for r in range(4):
        A("v_cvt_pk_bf16_f32 %s, %s, %s" % (V(vP + r), V(vS + 2 * r), V(vS + 2 * r + 1)))
    stampL("sm")
    for j in range(8):
        A("v_mfma_f32_16x16x32_bf16 %s, %s, %s, 0" % (V(vA + 4 * j, 4), V(vP, 4), V(vVT + 4 * j, 4)))
    A("v_mfma_f32_16x16x32_bf16 %s, %s, %s, 0" % (V(vS, 4), V(vP, 4), V(vONES, 4)))
    A("s_mov_b32 exec_hi, 0")
    for j in range(0, 8, 2):
        A("ds_write2_b32 %s, %s, %s offset0:%d offset1:%d" % (V(lPW), V(vA + 4 * j), V(vA + 4 * j + 4), 16 * j, 16 * j + 16))
    A("s_mov_b32 exec_lo, 0x100001")
    A("ds_write2_b32 %s, %s, %s offset0:0 offset1:1" % (V(lMW), V(vM), V(vS)))
    A("s_mov_b64 exec, -1")
    A("s_waitcnt lgkmcnt(0)")
    stampL("pv")
    A("s_barrier")
    A("ds_read_b64 %s, %s" % (V(vA + 4, 2), V(lMR)))
    A("ds_read_b128 %s, %s" % (V(vA, 4), V(lPR)))
    A("s_waitcnt lgkmcnt(1)")
    reduce8(vA, vA + 4, vA + 6, vA + 7, False, "s_waitcnt lgkmcnt(0)")
    A("s_mov_b32 exec_lo, 0x01010101")
    A("s_mov_b32 exec_hi, 0x01010101")
    store2(["global_store_dwordx4 %s, %s, %s" % (V(aHOS), V(vA, 4), sp(sHO))])
    A("s_and_b32 s%d, s%d, 3" % (sT0, sWV))
    A("s_cbranch_scc1 Lnohm")
    A("s_lshl_b64 exec, 1, s%d" % sS)
    store2(["global_store_dwordx2 %s, %s, %s" % (V(aHML), V(vA + 4, 2), sp(sHM))])
    A.label("Lnohm")
    A("s_mov_b64 exec, -1")
    stampL("ho")
    A("s_lshl_b32 s%d, s%d, 3" % (sT0, sL))
    A("s_or_b32 s%d, s%d, s%d" % (sT0, sT0, sWV))
    A("s_cmp_lg_u32 s%d, 7" % sT0)
    A("s_cbranch_scc1 Lnotab")
    A("v_and_b32 v250, 15, v1")
    A("v_lshlrev_b32 v250, 2, v250")
    A("v_add_u32 v251, %d, v250" % TRED)
    for i in range(2):
        A("ds_read2_b32 %s, v251 offset0:%d offset1:%d" % (V(vS + 2 * i, 2), 32 * i, 32 * i + 16))
    A("s_waitcnt lgkmcnt(0)")
    A("v_pk_add_f32 %s, %s, %s" % (V(vS, 2), V(vS, 2), V(vS + 2, 2)))
    A("v_add_f32 %s, %s, %s" % (V(vS), V(vS), V(vS + 1)))
    A("v_mul_f32 %s, %s, %s" % (V(vS), fl(1.0 / SC), V(vS)))
    A("v_cvt_pk_bf16_f32 %s, %s, %s" % (V(vS), V(vS), V(vS)))
    A("v_lshlrev_b32 %s, 16, %s" % (V(vS), V(vS)))
    A("v_add_f32 %s, %s, %s" % (V(vS), V(vS), V(vB2)))
    A("v_mov_b32_dpp %s, %s quad_perm:[1,1,3,3]%s" % (V(vS + 1), V(vS), DPP))
    A("v_cvt_pk_bf16_f32 %s, %s, %s" % (V(vS), V(vS), V(vS + 1)))
    A("v_lshrrev_b32 v250, 1, v250")
    A("s_lshl_b32 s%d, s2, 5" % sT0)
    A("s_add_u32 s%d, s%d, %d" % (sT0, sT0, W_HT))
    A("v_add_u32 v250, s%d, v250" % sT0)
    A("s_mov_b64 exec, 0x5555")
    A("global_store_dword v250, %s, %s sc1" % (V(vS), sp(sWS)))
    A("s_mov_b64 exec, -1")
    A.label("Lnotab")
    A.label("Lopoll")
    A("global_load_dwordx2 %s, %s, %s sc1" % (V(vA + 12, 2), V(aHML), sp(sHM)))
    A("global_load_dwordx4 %s, %s, %s sc1" % (V(vA + 8, 4), V(aHOL), sp(sHO)))
    A("s_waitcnt vmcnt(0)")
    maxtree(vM, range(vA + 8, vA + 14))
    poll_tail("Lopoll", vM)
    stampL("og")
    A("s_cmp_lg_u32 s%d, 0" % sL)
    A("s_cbranch_scc1 Lnotg")
    A("v_lshlrev_b32 v249, 4, v0")
    A("v_add_u32 v248, %d, v249" % W_HT)
    A("global_load_dwordx4 %s, v248, %s sc1" % (V(vQ, 4), sp(sWS)))
    A("s_barrier")
    A("s_cmp_gt_u32 s%d, 4" % sWV)
    A("s_cbranch_scc1 Lnotg")
    for ks in range(8):
        for hh in range(2):
            A("ds_read_b64_tr_b16 %s, v233 offset:%d" % (
                V(vWO + 4 * ks + 2 * hh, 2), (128 * (ks >> 2) + 2 * (ks & 3) + 32 * hh) * 144))
    A.label("Lnotg")
    reduce8(vA + 8, vA + 12, vA + 14, vA + 15, True)
    A("v_cvt_pk_bf16_f32 %s, %s, %s" % (V(vA + 8), V(vA + 8), V(vA + 9)))
    A("v_cvt_pk_bf16_f32 %s, %s, %s" % (V(vA + 9), V(vA + 10), V(vA + 11)))
    A("s_mov_b32 exec_lo, 0x01010101")
    A("s_mov_b32 exec_hi, 0x01010101")
    A("ds_write_b64 %s, %s" % (V(lOW), V(vA + 8, 2)))
    A("s_mov_b64 exec, -1")
    A("s_waitcnt lgkmcnt(0)")
    A("s_barrier")
    stampL("ov")
    A("s_cmp_gt_u32 s%d, 4" % sWV)
    A("s_cbranch_scc1 Lwo_done")
    for ks in range(8):
        A("ds_read_b128 %s, %s offset:%d" % (V(vA + 4 * ks, 4), V(lOR), 64 * ks))
    A("s_cmp_eq_u32 s%d, 4" % sWV)
    A("s_cselect_b32 s%d, 0, 0x00010001" % sT0)
    for ks in range(8):
        A("s_waitcnt lgkmcnt(%d)" % (7 - ks))
        A("v_mfma_f32_16x16x32_bf16 %s, %s, %s, %s" % (
            V(vS, 4), V(vWO + 4 * ks, 4), V(vA + 4 * ks, 4), V(vS, 4) if ks else "0"))
    A("s_mov_b32 exec_lo, 0x00010001")
    A("s_mov_b32 exec_hi, s%d" % sT0)
    A("global_store_dwordx4 %s, %s, %s sc1" % (V(aHXS), V(vS, 4), sp(sHX)))
    A("s_mov_b64 exec, -1")
    A.label("Lwo_done")
    stampL("hx")
    A("s_cmp_eq_u32 s%d, 0" % sL)
    A("s_cbranch_scc1 Ltabg")
    A("s_or_b32 s%d, s%d, s%d" % (sT0, sHKV, sS))
    A("s_cbranch_scc1 Lexit")
    A("s_branch Lxwait")
    A.label("Ltpoll")
    A("s_sleep 4")
    A("global_load_dwordx4 %s, v248, %s sc1" % (V(vQ, 4), sp(sWS)))
    A.label("Ltabg")
    A("s_cmp_gt_u32 s%d, 3" % sWV)
    A("s_cselect_b32 s%d, %d, %d" % (sT0, TABN - 4096, TABP))
    A("v_add_u32 v250, s%d, v249" % sT0)
    A("s_waitcnt vmcnt(0)")
    maxtree(vM, range(vQ, vQ + 4))
    poll_tail("Ltpoll", vM)
    A("ds_write_b128 v250, %s" % V(vQ, 4))
    A.label("Lxwait")
    A("ds_read_b32 %s, %s" % (V(vP), V(lXC)))
    A("ds_read_b32 %s, %s offset:2048" % (V(vP + 1), V(lXC)))
    if XPACE == "ack":
        A("s_waitcnt vmcnt(0)")
    A("s_barrier")
    if XPACE.startswith("sleep"):
        A("s_sleep %s" % XPACE[5:])
    stampL("xp")

    def xsum(b, t):
        o = []
        for i in range(2):
            o.append("v_pk_add_f32 %s, %s, %s" % (V(t + 2 * i, 2), V(b + 2 * i, 2), V(b + 4 + 2 * i, 2)))
            o.append("v_pk_add_f32 %s, %s, %s" % (V(t + 4 + 2 * i, 2), V(b + 8 + 2 * i, 2), V(b + 12 + 2 * i, 2)))
        for i in range(2):
            o.append("v_pk_add_f32 %s, %s, %s" % (V(t + 2 * i, 2), V(t + 2 * i, 2), V(t + 4 + 2 * i, 2)))
        o.append("v_permlane32_swap_b32 %s, %s" % (V(t), V(t + 1)))
        o.append("v_permlane32_swap_b32 %s, %s" % (V(t + 2), V(t + 3)))
        o.append("v_add_f32 %s, %s, %s" % (V(t), V(t), V(t + 1)))
        o.append("v_add_f32 %s, %s, %s" % (V(t + 2), V(t + 2), V(t + 3)))
        o.append("v_permlane16_swap_b32 %s, %s" % (V(t), V(t + 2)))
        o.append("v_add_f32 %s, %s, %s" % (V(t), V(t), V(t + 2)))
        return o

    def xfin(t, prev, off):
        return ["v_cvt_pk_bf16_f32 %s, %s, %s" % (V(t), V(t), V(t)),
                "v_lshlrev_b32 %s, 16, %s" % (V(t), V(t)),
                "v_add_f32 %s, %s, %s" % (V(t), V(t), V(prev)),
                "v_cvt_pk_bf16_f32 %s, %s, %s" % (V(t), V(t), V(t)),
                "v_lshlrev_b32 %s, 16, %s" % (V(t), V(t)),
                "ds_write_b32 %s, %s offset:%d" % (V(lXC), V(t), off)]

    HXB = (sHX, sHX1, sHX2, sHX3)
    A("s_cmp_eq_u32 s%d, 0" % sWV)
    A("s_cbranch_scc1 Lxpoll0")
    A.label("Lxpoll")
    for i in range(4):
        A("global_load_dwordx4 %s, %s, %s sc1" % (V(vA + 4 * i, 4), V(aHXL), sp(HXB[i])))
    A("s_waitcnt vmcnt(0)")
    for l in xsum(vA, vS):
        A(l)
    A("v_cmp_u_f32 vcc, %s, %s" % (V(vS), V(vS)))
    A("s_waitcnt lgkmcnt(0)")
    A("s_cbranch_vccnz Lxchk")
    A.label("Lxok")
    for l in xfin(vS, vP, 0):
        A(l)
    A("s_branch Lxjoin")
    A.label("Lxchk")
    maxtree(vM, range(vA, vA + 16))
    A("v_cmp_eq_u32 vcc, -1, %s" % V(vM))
    A("s_cbranch_vccz Lxok")
    A("s_sub_u32 s%d, s%d, 1" % (sCNT, sCNT))
    A("s_cbranch_scc0 Lxpoll")
    A("s_mov_b32 s%d, 0" % sCNT)
    A("s_branch Lxok")
    A.label("Lxchk0")
    maxtree(vM, range(vA, vA + 32))
    A("v_cmp_eq_u32 vcc, -1, %s" % V(vM))
    A("s_cbranch_vccz Lxok0")
    A("s_sub_u32 s%d, s%d, 1" % (sCNT, sCNT))
    A("s_cbranch_scc0 Lxpoll0")
    A("s_mov_b32 s%d, 0" % sCNT)
    A("s_branch Lxok0")
    A.label("Lxpoll0")
    for i in range(4):
        A("global_load_dwordx4 %s, %s, %s sc1" % (V(vA + 4 * i, 4), V(aHXL), sp(HXB[i])))
    for i in range(4):
        A("global_load_dwordx4 %s, %s, %s offset:2048 sc1" % (V(vA + 16 + 4 * i, 4), V(aHXL), sp(HXB[i])))
    A("s_waitcnt vmcnt(0)")
    for l0, l1 in zip(xsum(vA, vS), xsum(vA + 16, vQ)):
        A(l0)
        A(l1)
    A("v_cmp_u_f32 vcc, %s, %s" % (V(vS), V(vQ)))
    A("s_waitcnt lgkmcnt(0)")
    A("s_cbranch_vccnz Lxchk0")
    A.label("Lxok0")
    for l0, l1 in zip(xfin(vS, vP, 0), xfin(vQ, vP + 1, 2048)):
        A(l0)
        A(l1)
    A.label("Lxjoin")
    A("s_waitcnt lgkmcnt(0)")
    A("s_barrier")
    stampL("xs")
    A("s_cmp_eq_u32 s%d, 0" % sL)
    A("s_cselect_b32 s%d, 3, 0" % sT0)
    A("s_cmp_gt_u32 s%d, s%d" % (sWV, sT0))
    A("s_cbranch_scc1 Lmlp_skip")
    for i in range(4):
        A("ds_read_b64 %s, %s offset:%d" % (V(vXA + 2 * i, 2), V(lXP), 512 * i))
    A("ds_read_b32 %s, %s" % (V(vXA + 8), V(lXS)))
    vH, vY, vHP, vHS, vAD, vST = vA, vA + 10, vXR, vA + 26, vA, vS
    for i in range(9):
        A("v_mov_b32 %s, 0" % V(vY + i))
    A("s_waitcnt lgkmcnt(0)")
    stats_lane(vST)
    for l in stats_wave(vST, True):
        A(l)
    normalize(vH, vST, vST + 3)
    A("s_mov_b32 s%d, %s" % (sT0, hx(E0 * 0x10001)))
    for i in range(5):
        A("v_cvt_pk_bf16_f32 %s, %s, %s" % (V(vHP + i), V(vH + 2 * i), V(vH + min(2 * i + 1, 8))))
    for i in range(5):
        A("v_pk_sub_u16 %s, %s, s%d" % (V(vHS + i), V(vHP + i), sT0))
    for i in range(9):
        A("v_lshlrev_b32_sdwa %s, 1, %s dst_sel:DWORD dst_unused:UNUSED_PAD src0_sel:DWORD src1_sel:WORD_%d" % (
            V(vAD + i), V(vHS + (i >> 1)), i & 1))
        A("ds_read_u16_d16_hi %s, %s offset:%d" % (V(vY + i), V(vAD + i), TABP))
    A("v_or3_b32 %s, %s, %s, %s" % (V(vM), V(vHS), V(vHS + 1), V(vHS + 2)))
    A("v_or3_b32 %s, %s, %s, %s" % (V(vM), V(vM), V(vHS + 3), V(vHS + 4)))
    A("v_and_b32 %s, 0x78007800, %s" % (V(vM), V(vM)))
    A("v_cmp_ne_u32 vcc, 0, %s" % V(vM))
    A("s_waitcnt lgkmcnt(0)")
    A("s_cbranch_vccnz Lfallback")
    A.label("Lfb_done")
    stampL("lk")
    for i in range(4):
        A("v_pk_add_f32 %s, %s, %s" % (V(vXA + 2 * i, 2), V(vXA + 2 * i, 2), V(vY + 2 * i, 2)))
    A("v_add_f32 %s, %s, %s" % (V(vXA + 8), V(vXA + 8), V(vY + 8)))
    for i in range(5):
        A("v_cvt_pk_bf16_f32 %s, %s, %s" % (V(vHP + i), V(vXA + 2 * i), V(vXA + min(2 * i + 1, 8))))
    A("s_cmp_lg_u32 s%d, 0" % sL)
    A("s_cbranch_scc1 Lfinal")
    add64(sHQ, "%d" % L_HQ)
    A("s_call_b64 %s, Lqstage" % sp(sRET))
    A("s_cmp_lg_u32 s%d, 0" % sWV)
    A("s_cbranch_scc1 Lnext")
    for i in range(4):
        A("ds_write_b64 %s, %s offset:%d" % (V(lXP), V(vXA + 2 * i, 2), 512 * i + XSB - XSA))
    A("ds_write_b32 %s, %s offset:%d" % (V(lXS), V(vXA + 8), XSB - XSA))
    A("s_branch Lnext")
    A.label("Lmlp_skip")
    A("s_cmp_lg_u32 s%d, 0" % sL)
    A("s_cbranch_scc1 Lexit")
    add64(sHQ, "%d" % L_HQ)
    A.label("Lnext")
    add64(sHO, "%d" % L_HO)
    add64(sHM, "%d" % L_HM)
    for r in HXB:
        add64(r, "%d" % L_HX)
    for r in (lXC, lXP, lXS):
        A("v_add_u32 %s, %d, %s" % (V(r), XSB - XSA, V(r)))
    A("s_mov_b32 s%d, 1" % sL)
    A("s_barrier")
    stamp("q1")
    A("s_branch Lqpoll")
    A.label("Lfinal")
    A("v_lshlrev_b32 v249, 2, v1")
    A("v_lshlrev_b32 v250, 1, v1")
    for i in range(4):
        A("global_store_dword v249, %s, %s offset:%d" % (V(vHP + i), sp(sOUT), 256 * i))
    A("global_store_short v250, %s, %s offset:1024" % (V(vHP + 4), sp(sOUT)))
    A.label("Lexit")
    if DIAG:
        A("v_mov_b32 v251, s98")
        stamp("end")
        A("s_memtime %s" % sp(sMSK))
        A("s_waitcnt lgkmcnt(0)")
        A("s_sub_u32 s100, s%d, s100" % sMSK)
        A("s_lshl_b32 s%d, s2, 3" % sT0)
        A("s_add_u32 s%d, s%d, s%d" % (sT0, sT0, sWV))
        A("s_lshl_b32 s%d, s%d, 7" % (sT0, sT0))
        A("s_add_u32 s%d, s%d, %d" % (sT0, sT0, W_DIAG))
        A("v_mov_b32 v249, s%d" % sT0)
        A("s_mov_b64 exec, 1")
        for i in range(stamp_n[0]):
            A("v_mov_b32 v250, s%d" % (sSTAMP + 2 * i))
            A("global_store_dword v249, v250, %s offset:%d" % (sp(sWS), 4 * i))
        A("global_store_dword v249, v251, %s offset:112" % sp(sWS))
        A("v_mov_b32 v250, s100")
        A("global_store_dword v249, v250, %s offset:116" % sp(sWS))
        A("v_mov_b32 v250, s%d" % sCNT)
        A("global_store_dword v249, v250, %s offset:120" % sp(sWS))
        A("v_mov_b32 v250, s%d" % sFAST)
        A("global_store_dword v249, v250, %s offset:124" % sp(sWS))
        A("s_or_b32 s%d, s2, s%d" % (sT0, sWV))
        A("s_cbranch_scc1 Lend")
        A("v_mov_b32 v249, 0")
        for i in range(1, stamp_n[0]):
            A("s_sub_u32 s%d, s%d, s%d" % (sT0, sSTAMP + 2 * i, sSTAMP))
            A("v_mov_b32 v250, s%d" % sT0)
            A("global_store_dword v249, v250, %s offset:%d" % (sp(sDBG), 4 * i))
        A("v_mov_b32 v250, s100")
        A("global_store_dword v249, v250, %s offset:0" % sp(sDBG))
        A("v_mov_b32 v250, s%d" % sCNT)
        A("global_store_dword v249, v250, %s offset:60" % sp(sDBG))
    A.label("Lend")
    A("s_endpgm")

    A.label("Lqstage")
    for i in range(4):
        A("ds_write_b32 %s, %s offset:%d" % (V(lNW), V(vXR + i), 256 * i))
    A("ds_write_b16 %s, %s" % (V(lNH), V(vXR + 4)))
    for i in range(4):
        A("v_lshlrev_b32 %s, 16, %s" % (V(vXA + 2 * i), V(vXR + i)))
        A("v_and_b32 %s, 0xffff0000, %s" % (V(vXA + 2 * i + 1), V(vXR + i)))
    A("v_lshlrev_b32 %s, 16, %s" % (V(vXA + 8), V(vXR + 4)))
    xop = lambda ks: V(vA + 4 * ks, 4) if ks < 8 else V(244, 4)
    for ks in range(9):
        A("ds_read_b128 %s, %s offset:%d" % (xop(ks), V(lNR), 64 * ks))
    stats_lane(vS)
    rest = stats_wave(vS, False)
    rest.append("v_mul_f32 %s, %s, %s" % (V(vS + 2), V(vS), V(vS + 3)))
    for i in range(2):
        rest.append("v_pk_mul_f32 %s, %s, %s op_sel:[0,0] op_sel_hi:[1,0] neg_lo:[1,0] neg_hi:[1,0]" % (
            V(vS + 4 + 2 * i, 2), V(vSQ + 2 * i, 2), V(vS + 2, 2)))
    per = [2, 2, 2, 2, 2, 2, 2, 3, 100]
    for ks in range(9):
        A("s_waitcnt lgkmcnt(%d)" % (8 - ks))
        A("v_mfma_f32_16x16x32_bf16 %s, %s, %s, %s" % (V(vP, 4), V(vWQ + 4 * ks, 4), xop(ks), V(vP, 4) if ks else "0"))
        for l in rest[:per[ks]]:
            A(l)
        rest = rest[per[ks]:]
    for i in range(2):
        A("v_pk_fma_f32 %s, %s, %s, %s op_sel:[0,1,0] op_sel_hi:[1,1,1]" % (
            V(vP + 2 * i, 2), V(vP + 2 * i, 2), V(vS + 2, 2), V(vS + 4 + 2 * i, 2)))
    A("v_cvt_pk_bf16_f32 %s, %s, %s" % (V(vP), V(vP), V(vP + 1)))
    A("v_cvt_pk_bf16_f32 %s, %s, %s" % (V(vP + 1), V(vP + 2), V(vP + 3)))
    A("s_mov_b32 exec_lo, 0x00010001")
    A("s_mov_b32 exec_hi, 0x00010001")
    store2(["global_store_dwordx2 %s, %s, %s" % (V(aHQS), V(vP, 2), sp(sHQ))])
    A("s_mov_b64 exec, -1")
    A("s_setpc_b64 %s" % sp(sRET))

    A.label("Lkshuf")
    for pr in range(4):
        a, b = vK + 8 * pr, vK + 8 * pr + 4
        for d in range(4):
            A("v_mov_b32 %s, %s" % (V(vA + 16 + d), V(a + d)))
        for d in range(4):
            A("v_mov_b32_dpp %s, %s row_ror:8 row_mask:0xf bank_mask:0xc" % (V(a + d), V(b + d)))
        for d in range(4):
            A("v_mov_b32_dpp %s, %s row_ror:8 row_mask:0xf bank_mask:0x3" % (V(b + d), V(vA + 16 + d)))
    A("s_setpc_b64 %s" % sp(sRET))
    A.label("Lvperm")
    A("s_mov_b32 s%d, 0x05040100" % sT0)
    A("s_mov_b32 s%d, 0x07060302" % sT1)
    for j in range(8):
        for e in range(4):
            A("v_perm_b32 %s, %s, %s, s%d" % (
                V(vVT + 4 * j + e), V(vVR + 4 * (2 * e + 1) + (j >> 1)), V(vVR + 4 * (2 * e) + (j >> 1)), sT1 if j & 1 else sT0))
    for i in range(4):
        A("v_mov_b32 %s, 0x3f803f80" % V(vONES + i))
    A("s_setpc_b64 %s" % sp(sRET))
    A.label("Laddr")
    A("v_and_b32 v249, 1, v24")
    A("v_lshlrev_b32 v249, 9, v249")
    A("v_bfe_u32 v250, v24, 2, 1")
    A("v_lshl_add_u32 v249, v250, 8, v249")
    A("v_lshl_add_u32 %s, v25, 4, v249" % V(aHQL))
    A("s_and_b32 s%d, s%d, 3" % (sT0, sS))
    A("s_lshl_b32 s%d, s%d, 7" % (sT0, sT0))
    A("s_lshl_b32 s%d, s%d, 9" % (sT1, sP))
    A("s_add_u32 s%d, s%d, s%d" % (sT0, sT0, sT1))
    A("s_lshl_b32 s%d, s%d, 5" % (sT1, sWV))
    A("s_add_u32 s%d, s%d, s%d" % (sT0, sT0, sT1))
    A("v_lshl_add_u32 %s, v25, 3, s%d" % (V(aHQS), sT0))
    A("s_lshl_b32 s%d, s%d, 7" % (sT0, sWV))
    A("v_lshl_add_u32 v249, v27, 4, s%d" % sT0)
    A("v_lshl_add_u32 %s, v26, 10, v249" % V(aHOL))
    A("s_lshl_b32 s%d, s%d, 10" % (sT1, sS))
    A("v_add_u32 %s, s%d, v249" % (V(aHOS), sT1))
    A("v_mul_u32_u24 v250, %d, v26" % PSTR)
    A("v_add_u32 v250, %d, v250" % PART)
    A("v_add_u32 %s, v249, v250" % V(lPR))
    A("v_lshrrev_b32 v249, 1, v249")
    A("v_add_u32 %s, %d, v249" % (V(lOW), OV))
    A("s_lshr_b32 s%d, s%d, 2" % (sT0, sWV))
    A("s_lshl_b32 s%d, s%d, 3" % (sT0, sT0))
    A("v_lshl_add_u32 %s, v26, 4, s%d" % (V(aHML), sT0))
    A("v_add_u32 %s, %d, %s" % (V(lMR), ML, V(aHML)))
    A("s_lshl_b32 s%d, s%d, 8" % (sT0, sWV))
    A("v_lshl_add_u32 v249, v24, 4, s%d" % sT0)
    A("v_mul_u32_u24 v250, 2304, v25")
    A("v_add_u32 %s, v249, v250" % V(aHXL))
    A("v_lshrrev_b32 v250, 1, v25")
    A("v_and_b32 v253, 1, v25")
    A("v_lshl_add_u32 v250, v253, 1, v250")
    A("v_lshl_add_u32 v249, v250, 2, v249")
    A("v_add_u32 %s, %d, v249" % (V(lXC), XSA))
    A("s_mul_i32 s%d, s%d, 2304" % (sT0, sHKV))
    A("s_mul_i32 s%d, s%d, 288" % (sT1, sS))
    A("s_add_u32 s%d, s%d, s%d" % (sT0, sT0, sT1))
    A("s_lshl_b32 s%d, s%d, 6" % (sT1, sWV))
    A("s_add_u32 s%d, s%d, s%d" % (sT0, sT0, sT1))
    A("v_lshl_add_u32 %s, v25, 4, s%d" % (V(aHXS), sT0))
    A("s_mul_i32 s%d, s%d, %d" % (sT0, sWV, PSTR))
    A("s_add_u32 s%d, s%d, %d" % (sT0, sT0, PART))
    A("v_lshlrev_b32 v249, 9, v253")
    A("v_lshl_add_u32 v249, v24, 2, v249")
    A("v_add_u32 %s, s%d, v249" % (V(lPW), sT0))
    A("s_lshl_b32 s%d, s%d, 4" % (sT0, sWV))
    A("s_add_u32 s%d, s%d, %d" % (sT0, sT0, ML))
    A("v_lshl_add_u32 %s, v253, 3, s%d" % (V(lMW), sT0))
    A("v_lshlrev_b32 v249, 4, v25")
    A("v_add_u32 %s, %d, v249" % (V(lOR), OV))
    A("v_lshlrev_b32 v250, 3, v1")
    A("v_add_u32 %s, %d, v250" % (V(lXP), XSA))
    A("v_add_u32 %s, %d, v28" % (V(lXS), XSA + 2048))
    A("s_and_b32 s%d, s%d, 3" % (sT0, sWV))
    A("s_mul_i32 s%d, s%d, 1152" % (sT0, sT0))
    A("s_add_u32 s%d, s%d, %d" % (sT0, sT0, XN))
    A("v_add_u32 %s, s%d, v28" % (V(lNW), sT0))
    A("s_add_u32 s%d, s%d, 1024" % (sT1, sT0))
    A("v_add_u32 %s, s%d, v29" % (V(lNH), sT1))
    A("s_mul_i32 s%d, s%d, 576" % (sT1, sP))
    A("s_add_u32 s%d, s%d, s%d" % (sT0, sT0, sT1))
    A("v_add_u32 %s, s%d, v249" % (V(lNR), sT0))
    A("v_bfe_u32 v233, v1, 4, 1")
    A("v_lshlrev_b32 v233, 6, v233")
    A("v_bfe_u32 v250, v1, 2, 2")
    A("v_lshl_add_u32 v233, v250, 3, v233")
    A("v_lshrrev_b32 v250, 5, v1")
    A("v_add_u32 v233, v233, v250")
    A("v_mul_u32_u24 v233, 144, v233")
    A("v_and_b32 v250, 3, v1")
    A("v_lshl_add_u32 v233, v250, 3, v233")
    A("s_lshl_b32 s%d, s%d, 5" % (sT0, sWV))
    A("s_add_u32 s%d, s%d, %d" % (sT0, sT0, WOS))
    A("v_add_u32 v233, s%d, v233" % sT0)
    A("v_mov_b32 %s, %s" % (V(vINV), fl(1.0 / 576)))
    A("v_mov_b32 %s, %s" % (V(vC1), fl((1.0 + 1e-5) / 576)))
    A("v_mov_b32 %s, %s" % (V(vEPS), fl(1e-5)))
    A("v_mov_b32 %s, %s" % (V(vEPS2), fl(1e-10)))
    add64(sOUT, "s%d" % oX)
    A("s_mov_b32 s%d, 0" % sL)
    A("s_mov_b32 s%d, 0" % sFAST)
    A("s_mov_b32 s%d, %d" % (sCNT, POLL_LIMIT))
    A("s_mov_b32 s%d, %s" % (sSMC, fl(SMC)))
    A("s_setpc_b64 %s" % sp(sRET))

    A.label("Lfallback")
    for i in range(9):
        A("v_bfe_u32 %s, %s, %d, 4" % (V(vM), V(vHS + (i >> 1)), 11 + 16 * (i & 1)))
        A("v_cmp_ne_u32 %s, 0, %s" % (sp(sMSK), V(vM)))
        A("v_%s %s, %s, %s" % (("and_b32" if i & 1 else "lshlrev_b32"), V(vP), ("0xffff0000" if i & 1 else "16"), V(vHP + (i >> 1))))
        A.label("Lfb_l%d" % i)
        A("s_cmp_eq_u64 %s, 0" % sp(sMSK))
        A("s_cbranch_scc1 Lfb_n%d" % i)
        A("s_ff1_i32_b64 s%d, %s" % (sT3, sp(sMSK)))
        A("s_bitset0_b64 %s, s%d" % (sp(sMSK), sT3))
        A("v_readlane_b32 s%d, %s, s%d" % (sT2, V(vP), sT3))
        A("s_call_b64 %s, Lfb_eval" % sp(sRET))
        A("s_mov_b32 m0, s%d" % sT3)
        A("v_writelane_b32 %s, s%d, m0" % (V(vY + i), sT0))
        A("s_branch Lfb_l%d" % i)
        A.label("Lfb_n%d" % i)
    A("s_branch Lfb_done")
    A.label("Lfb_eval")
    fw, fu, fa, fo = vMA, vMA + 12, 244, 245
    A("s_nop 3")
    A("v_lshlrev_b32 %s, 4, v1" % V(fo))
    A("v_mov_b32 %s, 0" % V(fa))
    A("s_mov_b32 s%d, 9" % sT1)
    A.label("Lfb_loop")
    for i in range(3):
        A("global_load_dwordx4 %s, %s, %s" % (V(fw + 4 * i, 4), V(fo), sp((sW1, sB1, sW2)[i])))
    A("v_add_u32 %s, 1024, %s" % (V(fo), V(fo)))
    A("s_waitcnt vmcnt(0)")
    for j in range(8):
        for i in range(3):
            if j & 1:
                A("v_and_b32 %s, 0xffff0000, %s" % (V(fu + i), V(fw + 4 * i + (j >> 1))))
            else:
                A("v_lshlrev_b32 %s, 16, %s" % (V(fu + i), V(fw + 4 * i + (j >> 1))))
        A("v_fma_f32 %s, %s, s%d, %s" % (V(fu), V(fu), sT2, V(fu + 1)))
        A("v_mul_f32 %s, %s, %s" % (V(fu + 2), V(fu + 2), V(fu)))
        A("v_mul_f32 %s, %s, %s" % (V(fu + 1), V(fu), V(fu)))
        A("v_mul_f32 %s, %s, %s" % (V(fu + 1), fl(-K1), V(fu + 1)))
        A("v_add_f32 %s, %s, %s" % (V(fu + 1), fl(-K0), V(fu + 1)))
        A("v_mul_f32 %s, %s, %s" % (V(fu + 1), V(fu + 1), V(fu)))
        A("v_exp_f32 %s, %s" % (V(fu + 1), V(fu + 1)))
        A("v_add_f32 %s, 1.0, %s" % (V(fu + 1), V(fu + 1)))
        A("v_rcp_f32 %s, %s" % (V(fu + 1), V(fu + 1)))
        A("v_fmac_f32 %s, %s, %s" % (V(fa), V(fu + 2), V(fu + 1)))
    A("s_sub_u32 s%d, s%d, 1" % (sT1, sT1))
    A("s_cmp_lg_u32 s%d, 0" % sT1)
    A("s_cbranch_scc1 Lfb_loop")
    for ctl in ("quad_perm:[1,0,3,2]" + DPP, "quad_perm:[2,3,0,1]" + DPP, "row_half_mirror" + DPP,
                "row_mirror" + DPP, "row_bcast:15 row_mask:0xa bank_mask:0xf",
                "row_bcast:31 row_mask:0xc bank_mask:0xf"):
        A("v_add_f32_dpp %s, %s, %s %s" % (V(fa), V(fa), V(fa), ctl))
    A("v_cvt_pk_bf16_f32 %s, %s, %s" % (V(fa), V(fa), V(fa)))
    A("v_lshlrev_b32 %s, 16, %s" % (V(fa), V(fa)))
    A("v_add_f32 %s, %s, %s" % (V(fa), V(fa), V(vB2)))
    A("v_cvt_pk_bf16_f32 %s, %s, %s" % (V(fa), V(fa), V(fa)))
    A("v_lshlrev_b32 %s, 16, %s" % (V(fa), V(fa)))
    A("v_readlane_b32 s%d, %s, 63" % (sT0, V(fa)))
    A("s_nop 3")
    A("s_setpc_b64 %s" % sp(sRET))

    A.label("Lcode_end")
    body = A.finish()
    head = open("interleave_layers__sliding_block_cached__mixer_token_mlp__decode.s.ref").read().split(
        "; Override launch geometry")[0]
    head += "; @launch grid=(256,1,1) block=(512,1,1) lds=%d\n" % LDS
    if DIAG:
        head += "; STAMPS: " + " ".join(STAMPS) + "\n"
    head += '.amdgcn_target "amdgcn-amd-amdhsa--gfx950"\n.text\n.globl %s\n.p2align 8\n.type %s,@function\n' % (NAME, NAME)
    tail = """.section .rodata,"a"
.p2align 6
.amdhsa_kernel %s
  .amdhsa_next_free_vgpr 256
  .amdhsa_next_free_sgpr 102
  .amdhsa_accum_offset 256
  .amdhsa_group_segment_fixed_size 0
  .amdhsa_kernarg_size 104
  .amdhsa_user_sgpr_count 2
  .amdhsa_user_sgpr_kernarg_segment_ptr 1
  .amdhsa_system_sgpr_workgroup_id_x 1
.end_amdhsa_kernel
""" % NAME
    return head + body + tail


if __name__ == "__main__":
    out = sys.argv[1]
    kw = {}
    for a in sys.argv[2:]:
        k, v = a.split("=")
        kw[k] = eval(v)
    open(out, "w").write(gen(**kw))
```

```python
import re

TRANS = ("v_exp_f32", "v_log_f32", "v_rcp_f32", "v_rsq_f32", "v_sqrt_f32", "v_sin_f32", "v_cos_f32")


def split_ops(s):
    out, depth, cur = [], 0, ""
    for ch in s:
        if ch in "[(":
            depth += 1
        elif ch in "])":
            depth -= 1
        if ch == "," and depth == 0:
            out.append(cur.strip())
            cur = ""
        else:
            cur += ch
    if cur.strip():
        out.append(cur.strip())
    return out


def regs_of(tok):
    tok = tok.strip().split(" ")[0]
    tok = tok.lstrip("-").replace("abs(", "").replace(")", "").replace("|", "")
    m = re.fullmatch(r"([vsa])(\d+)", tok)
    if m:
        return {(m.group(1), int(m.group(2)))}
    m = re.fullmatch(r"([vsa])\[(\d+):(\d+)\]", tok)
    if m:
        return {(m.group(1), i) for i in range(int(m.group(2)), int(m.group(3)) + 1)}
    if tok == "vcc":
        return {("s", "vcc")}
    if tok == "m0":
        return {("s", "m0")}
    if tok == "exec":
        return {("s", "exec")}
    return set()


class Ins:
    def __init__(self, text):
        self.text = text
        t = text.split(";")[0].strip()
        self.label = None
        self.is_ins = False
        if t.endswith(":"):
            self.label = t[:-1]
            return
        if not t or t.startswith("."):
            return
        self.is_ins = True
        parts = t.split(None, 1)
        self.mn = mn = parts[0]
        ops = split_ops(parts[1]) if len(parts) > 1 else []
        self.ops = ops
        R = [regs_of(o) for o in ops]
        self.mfma = mn.startswith("v_mfma")
        self.valu = mn.startswith("v_") and not self.mfma
        self.trans = mn.replace("_e64", "").replace("_e32", "") in TRANS
        self.dpp = mn.endswith("_dpp")
        self.perml = mn.startswith("v_permlane")
        self.rdlane = mn.startswith("v_readlane") or mn.startswith("v_readfirstlane")
        self.wrlane = mn.startswith("v_writelane")
        self.ds = mn.startswith("ds_")
        self.vmem = mn.startswith("global_") or mn.startswith("buffer_")
        self.salu = mn.startswith("s_")
        self.ldsdma = mn.startswith("global_load_lds")
        self.ws = 1
        if mn == "s_nop":
            self.ws = int(ops[0]) + 1
        self.dst, self.src = set(), set()
        self.srcC = set()
        self.srcAB = set()
        self.stdata = set()
        self.lanesel = set()
        if self.mfma:
            self.dst = R[0]
            self.srcAB = R[1] | R[2]
            self.srcC = R[3]
            self.src = self.srcAB | self.srcC
        elif self.valu:
            self.dst = set(R[0])
            for r in R[1:]:
                self.src |= r
            if self.perml:
                self.dst |= R[1]
                self.src |= R[0]
            if mn.startswith("v_fmac") or self.wrlane or (self.dpp and mn.startswith("v_mov")):
                self.src |= R[0]
            if (mn.startswith("v_readlane") or self.wrlane) and len(R) > 2:
                self.lanesel = R[2]
        elif self.ds:
            if mn.startswith("ds_read") or mn.startswith("ds_bpermute"):
                self.dst = R[0]
                for r in R[1:]:
                    self.src |= r
            else:
                for r in R:
                    self.src |= r
        elif self.vmem:
            if self.ldsdma:
                for r in R:
                    self.src |= r
                self.src |= {("s", "m0")}
            elif "_load" in mn:
                self.dst = R[0]
                for r in R[1:]:
                    self.src |= r
            else:
                for r in R:
                    self.src |= r
                if mn.endswith("x4") or mn.endswith("x3"):
                    self.stdata = R[1]
        elif self.salu:
            if mn.startswith("s_cmp") or mn.startswith("s_cbranch") or mn.startswith("s_bitcmp") or mn in (
                "s_branch", "s_nop", "s_waitcnt", "s_barrier", "s_endpgm", "s_setprio", "s_sleep", "s_setpc_b64"):
                for r in R:
                    self.src |= r
            else:
                self.dst = R[0] if R else set()
                for r in R[1:]:
                    self.src |= r
        self.target = None
        if mn.startswith("s_cbranch") or mn == "s_branch":
            self.target = ops[0]
        if mn == "s_call_b64":
            self.target = ops[1]


def need(p, c):
    n = 0
    vd = {r for r in p.dst if r[0] in "va"}
    sd = {r for r in p.dst if r[0] == "s"}
    if p.valu:
        if vd & c.src:
            if c.dpp or c.perml:
                n = max(n, 2)
            if c.rdlane:
                n = max(n, 1)
            if c.mfma:
                n = max(n, 2)
            if p.trans and (c.valu or c.mfma):
                n = max(n, 1)
        if sd:
            if c.valu and (sd & c.src):
                n = max(n, 2)
            if sd & c.lanesel:
                n = max(n, 4)
            if c.vmem and (sd & c.src):
                n = max(n, 5)
    if p.mfma:
        if c.mfma:
            if p.dst & c.srcAB:
                n = max(n, 8)
            if (p.dst & c.srcC) and p.dst != c.srcC:
                n = max(n, 6)
            if (p.dst & c.dst) and p.dst != c.srcC:
                n = max(n, 8)
        elif (c.valu or c.ds or c.vmem) and (p.dst & (c.src | c.dst)):
            n = max(n, 8)
        if c.valu and (p.srcC & c.dst):
            n = max(n, 3)
    if p.stdata and (p.stdata & c.dst):
        n = max(n, 2)
    if p.salu and ("s", "m0") in p.dst and c.ldsdma:
        n = max(n, 1)
    return n


def pad(lines):
    ins = [Ins(l) for l in lines]
    WIN = 10
    for _ in range(4):
        at_label = getattr(pad, "_lab", {})
        new_lab = {}
        out = []
        hists = [[]]
        changed = False
        for x in ins:
            if x.label is not None:
                hists = hists + at_label.get(x.label, []) + new_lab.get(x.label, [])
                out.append(x)
                continue
            if not x.is_ins:
                out.append(x)
                continue
            req = 0
            for h in hists:
                d = 0
                dv = 0
                for p in reversed(h):
                    k = need(p, x)
                    dd = dv if p.valu else d
                    if k > dd:
                        req = max(req, k - dd)
                    d += p.ws
                    if not p.mfma:
                        dv += p.ws
                    if dv >= WIN:
                        break
            if req > 0:
                nop = Ins("s_nop %d" % (req - 1))
                out.append(nop)
                hists = [h + [nop] for h in hists]
                changed = True
            out.append(x)
            hists = [(h + [x])[-2 * WIN:] for h in hists]
            uniq = []
            for h in hists:
                if not any(len(h) == len(u) and all(a is b for a, b in zip(h, u)) for u in uniq):
                    uniq.append(h)
            hists = uniq
            if x.target is not None:
                new_lab.setdefault(x.target, []).extend([list(h) for h in hists])
            if x.mn in ("s_branch", "s_endpgm", "s_setpc_b64"):
                hists = [[]]
        ins = out
        pad._lab = new_lab
        if not changed and _ > 0:
            break
    pad._lab = {}
    return [x.text for x in ins]


class Asm:
    def __init__(self):
        self.lines = []

    def __call__(self, text):
        for l in text.strip("\n").split("\n"):
            l = l.strip()
            if l:
                self.lines.append(l)

    def label(self, name):
        self.lines.append(name + ":")

    def finish(self):
        out = []
        for l in pad(self.lines):
            if l.endswith(":") or l.startswith("."):
                out.append(l)
            else:
                out.append("    " + l)
        return "\n".join(out) + "\n"
```

```python
import math, struct, sys
from asmlib import Asm

NAME = "interleave_layers__sliding_block_cached__mixer_token_mlp__decode_kernel"


def f2u(x):
    return struct.unpack("<I", struct.pack("<f", x))[0]


def hx(x):
    return "0x%08x" % (x & 0xFFFFFFFF)


def fl(x):
    return hx(f2u(x))


def gen(DIAG=False, NTKV=" nt", NTW=" nt", E_LO=114, FORCE_SLOW=False, POLL_LIMIT=1 << 20,
        STAMPS="start wq q0 wo fl kv tab ho0 og0 hx0 xs0 q1 ho1 hx1 end",
        VSCHED={1: 1, 2: 1, 3: 1, 4: 1}, VBEARLY=False, WOGATE=8, WIN=12, WINO=12, QSPEC=False, DUMP=False, QW=4, QD=24, XNWAIT=False, XPACE="ack", NOTAB=False, PREF=True, BPRIO=0):
    A = Asm()
    LOG2E = math.log2(math.e)
    K0 = 2 * math.sqrt(2 / math.pi) * LOG2E
    K1 = K0 * 0.044715
    SC = K1 ** (1.0 / 3.0)
    KAP = K0 / SC
    SMC = 128 ** -0.5 * LOG2E
    E0 = E_LO << 7
    TABP, WQS, PART, PSTR = 0, 4096, 40960, 1040
    ML, OV, XSA, XSB, XN, TRED = 49280, 49408, 49920, 52224, 54528, 59136
    TABN, WOS, FLG = 65536, WQS, 59648
    QL, KB, VB = 60416, 69632, 104448
    RED, RSTR, FB = QL + 512, 320, FLG + 32
    LDS = 139264
    W_HQ, W_HO, W_HM, W_HX, W_HT, W_DIAG = 0, 131072, 655360, 663552, 737280, 1 << 20
    L_HQ, L_HO, L_HM, L_HX = 65536, 262144, 4096, 36864
    sX, sK, sV, sWQ, sWO, sW1, sB1, sW2, sB2, sOUT, sDBG, sWS = 4, 6, 8, 10, 12, 16, 18, 20, 22, 24, 26, 28
    sWV, sHKV, sB, sS, sGID, sL, sFAST, sXCC, sCNT, sP = 30, 31, 32, 33, 34, 35, 36, 37, 38, 39
    sH, sRET, sHQ, sHO, sHM, sHX = 40, 56, 58, 60, 62, 64
    sT0, sT1, sT2, sSMC, sT3 = 66, 67, 68, 69, 3
    sMSK = 14
    sFB, sFH = 10, 12
    sSTAMP = 70

    def sp(r):
        return "s[%d:%d]" % (r, r + 1)

    def V(a, n=1):
        return "v%d" % a if n == 1 else "v[%d:%d]" % (a, a + n - 1)

    vT, vL = 0, 1
    aHQL, aHQS, aHOL, aHOS, aHML, aHXL, aHXS = 2, 3, 4, 5, 6, 7, 11
    vC1, vEPS2, vEPS = 8, 9, 10
    vSQ = 188
    aHQG, lQW = 98, 99
    lNR2, vSEL = 96, 196
    sHX1, sHX2, sHX3 = 4, 6, 8
    lPW, lPR, lMR, lMW, lOW, lOR, lXC, lXP, lXS, lNW, lNH, lNR = 12, 13, 14, 15, 16, 17, 18, 19, 20, 21, 22, 23
    vS = 24
    vK = 32
    vA = 64
    vVT = 100
    vWQ = 132
    vWO = 168
    vVR = 200
    vONES, vMA, vB2 = 200, 204, 97
    vRW, vCA, vCC, vCW, vKAP, vONE, vSCL = 132, (162, 32), (164, 34), (166, 36), 250, 38, 252
    vQ = 234
    vXA = 234
    vP = 250
    vINV, vM = 254, 255
    vACC, vTT = 168, 184
    STAMPS = STAMPS.split()
    stamp_n = [len(STAMPS)]

    def stamp(name):
        if DIAG and "#" + name in STAMPS:
            A("s_mov_b32 s%d, s%d" % (sSTAMP + 2 * STAMPS.index("#" + name), sCNT))
        if DIAG and name in STAMPS:
            A("s_memrealtime %s" % sp(sSTAMP + 2 * STAMPS.index(name)))
            A("s_waitcnt lgkmcnt(0)")

    def stampL(name):
        if DIAG and any(p + name + l in STAMPS for p in ("", "#") for l in "01"):
            A("s_cmp_eq_u32 s%d, 0" % sL)
            A("s_cbranch_scc0 Lst_%s" % name)
            stamp(name + "0")
            A("s_branch Lste_%s" % name)
            A.label("Lst_%s" % name)
            stamp(name + "1")
            A.label("Lste_%s" % name)

    def bc(r):
        assert r % 2 == 0
        return V(r, 2)

    def add64(base, off_reg):
        A("s_add_u32 s%d, s%d, %s" % (base, base, off_reg))
        A("s_addc_u32 s%d, s%d, 0" % (base + 1, base + 1))

    def store2(text):
        n = len(A.lines)
        A("s_cmp_eq_u32 s%d, 0" % sFAST)
        A("s_cbranch_scc1 Lsl%d" % n)
        for t in text:
            A(t)
        A("s_branch Lsd%d" % n)
        A.label("Lsl%d" % n)
        for t in text:
            A(t + " sc1")
        A.label("Lsd%d" % n)

    def maxtree(dst, regs):
        regs = list(regs)
        A("v_max3_u32 %s, %s, %s, %s" % (V(dst), V(regs[0]), V(regs[1]), V(regs[2])))
        regs = regs[3:]
        while len(regs) >= 2:
            A("v_max3_u32 %s, %s, %s, %s" % (V(dst), V(dst), V(regs[0]), V(regs[1])))
            regs = regs[2:]
        if regs:
            A("v_max_u32 %s, %s, %s" % (V(dst), V(dst), V(regs[0])))

    def poll_tail(label, tmp, mask=None):
        A("v_cmp_eq_u32 vcc, -1, %s" % V(tmp))
        if mask:
            A("s_or_b32 vcc_lo, vcc_lo, vcc_hi")
            A("s_and_b32 vcc_lo, vcc_lo, %s" % mask)
            A("s_cbranch_scc0 %s_ok" % label)
        else:
            A("s_cbranch_vccz %s_ok" % label)
        A("s_sub_u32 s%d, s%d, 1" % (sCNT, sCNT))
        A("s_cbranch_scc0 %s" % label)
        A("s_mov_b32 s%d, 0" % sCNT)
        A.label("%s_ok" % label)

    DPP = " row_mask:0xf bank_mask:0xf"

    def stats_lane(t):
        x = lambda i: V(vXA + 2 * i, 2)
        a, b, q = V(t, 2), V(t + 2, 2), V(t + 4, 2)
        S, Q = t + 6, t + 7
        A("v_pk_add_f32 %s, %s, %s" % (a, x(0), x(1)))
        A("v_pk_mul_f32 %s, %s, %s" % (q, x(0), x(0)))
        A("v_pk_add_f32 %s, %s, %s" % (b, x(2), x(3)))
        A("v_pk_fma_f32 %s, %s, %s, %s" % (q, x(1), x(1), q))
        A("v_pk_add_f32 %s, %s, %s" % (a, a, b))
        A("v_pk_fma_f32 %s, %s, %s, %s" % (q, x(2), x(2), q))
        A("v_add_f32 %s, %s, %s" % (V(S), V(t), V(vXA + 8)))
        A("v_pk_fma_f32 %s, %s, %s, %s" % (q, x(3), x(3), q))
        A("v_add_f32 %s, %s, %s" % (V(S), V(S), V(t + 1)))
        A("v_fma_f32 %s, %s, %s, %s" % (V(Q), V(vXA + 8), V(vXA + 8), V(t + 4)))
        A("v_add_f32 %s, %s, %s" % (V(Q), V(Q), V(t + 5)))

    WAVE6 = ("quad_perm:[1,0,3,2]" + DPP, "quad_perm:[2,3,0,1]" + DPP, "row_half_mirror" + DPP,
             "row_mirror" + DPP, "row_bcast:15 row_mask:0xa bank_mask:0xf", "row_bcast:31 row_mask:0xc bank_mask:0xf")

    def stats_wave(t, twice):
        S, Q = t + 6, t + 7
        o = []
        for ctl in WAVE6:
            o.append("v_add_f32_dpp %s, %s, %s %s" % (V(S), V(S), V(S), ctl))
            o.append("v_add_f32_dpp %s, %s, %s %s" % (V(Q), V(Q), V(Q), ctl))
        o.append("v_readlane_b32 s%d, %s, 63" % (sT0, V(S)))
        o.append("v_readlane_b32 s%d, %s, 63" % (sT1, V(Q)))
        c, e = (vC1, vEPS2) if twice else (vINV, vEPS)
        o.append("v_mul_f32 %s, s%d, %s" % (V(t), sT0, V(vINV)))
        if twice:
            o.append("v_mul_f32 %s, s%d, %s" % (V(t + 2), sT0, V(vC1)))
        o.append("v_fma_f32 %s, s%d, %s, %s" % (V(t + 1), sT1, V(c), V(e)))
        o.append("v_fma_f32 %s, -%s, %s, %s" % (V(t + 1), V(t + 2 if twice else t), V(t), V(t + 1)))
        o.append("v_max_f32 %s, %s, %s" % (V(t + 1), V(e), V(t + 1)))
        o.append("v_rsq_f32 %s, %s" % (V(t + 2), V(t + 1)))
        return o

    def normalize(dst, t, r):
        A("v_mul_f32 %s, %s, %s" % (V(t + 4), V(t), V(r)))
        for i in range(4):
            A("v_pk_fma_f32 %s, %s, %s, %s op_sel_hi:[1,0,0] neg_lo:[0,0,1] neg_hi:[0,0,1]" % (
                V(dst + 2 * i, 2), V(vXA + 2 * i, 2), bc(r), bc(t + 4)))
        A("v_fma_f32 %s, %s, %s, -%s" % (V(dst + 8), V(vXA + 8), V(r), V(t + 4)))

    def reduce8(o, ml, M, e, norm, mid=None, fill=()):
        A("v_max_f32_dpp %s, %s, %s quad_perm:[1,0,3,2]%s" % (V(M), V(ml), V(ml), DPP))
        for l in fill[:2]:
            A(l)
        A("v_max_f32_dpp %s, %s, %s quad_perm:[2,3,0,1]%s" % (V(M), V(M), V(M), DPP))
        for l in fill[2:]:
            A(l)
        A("v_max_f32_dpp %s, %s, %s row_half_mirror%s" % (V(M), V(M), V(M), DPP))
        A("v_sub_f32 %s, %s, %s" % (V(e), V(ml), V(M)))
        A("v_exp_f32 %s, %s" % (V(e), V(e)))
        A("v_mov_b32 %s, %s" % (V(ml), V(M)))
        if mid:
            A(mid)
        A("v_mul_f32 %s, %s, %s" % (V(ml + 1), V(ml + 1), V(e)))
        for i in range(2):
            A("v_pk_mul_f32 %s, %s, %s op_sel_hi:[1,0]" % (V(o + 2 * i, 2), V(o + 2 * i, 2), bc(e)))
        for ctl in ("quad_perm:[1,0,3,2]", "quad_perm:[2,3,0,1]", "row_half_mirror"):
            for r in (ml + 1, o, o + 1, o + 2, o + 3):
                A("v_add_f32_dpp %s, %s, %s %s%s" % (V(r), V(r), V(r), ctl, DPP))
        if norm:
            A("v_rcp_f32 %s, %s" % (V(e), V(ml + 1)))
            for i in range(2):
                A("v_pk_mul_f32 %s, %s, %s op_sel_hi:[1,0]" % (V(o + 2 * i, 2), V(o + 2 * i, 2), bc(e)))

    vXR = vA + 20
    aK, aV, aW = vA, vA + 1, vA + 2

    aK2, aV2, aD = vWO, vWO + 1, vWO + 2

    def win():
        if WIN < 63:
            A("s_waitcnt vmcnt(%d)" % (WIN - 1))

    def dma8(base, lds):
        A("s_mul_i32 s%d, s%d, 8704" % (sT1, sWV))
        for i in range(8):
            A("s_add_u32 m0, s%d, %d" % (sT1, lds + 1088 * i - 1024 * (i & 3)))
            win()
            A("global_load_lds_dwordx4 %s, %s offset:%d%s" % (V(aD + (i >> 2)), sp(base), 1024 * (i & 3), NTKV))

    def kloads(aK):
        for T in range(2):
            for hf in range(2):
                for sub in range(2):
                    win()
                    A("global_load_dwordx4 %s, %s, %s offset:%d%s" % (
                        V(vK + 16 * T + 4 * (2 * hf + sub), 4), V(aK), sp(sK), (16 * T + 8 * sub) * 256 + hf * 128 - 4096, NTKV))

    def vload(i, aV):
        win()
        A("global_load_dwordx4 %s, %s, %s offset:%d%s" % (
            V(vVR + 4 * i, 4), V(aV), sp(sV), (16 * (i >> 2) + (i & 3)) * 256 - 4096, NTKV))

    def spin_tail(name, count):
        A("s_cmp_ge_u32 s%d, %s" % (sT0, count))
        A("s_cbranch_scc1 %s_ok" % name)
        A("s_sub_u32 s%d, s%d, 1" % (sCNT, sCNT))
        A("s_cbranch_scc0 %s" % name)
        A("s_mov_b32 s%d, 0" % sCNT)
        A.label("%s_ok" % name)

    def arrive_wait(off, count, name):
        A("v_mov_b32 v252, %d" % (FLG + off))
        A("v_mov_b32 v253, 1")
        A("s_mov_b64 exec, 1")
        A("ds_add_u32 v252, v253")
        A("s_mov_b64 exec, -1")
        if name is None:
            return
        A.label(name)
        A("ds_read_b32 v253, v252")
        A("s_waitcnt lgkmcnt(0)")
        A("v_readfirstlane_b32 s%d, v253" % sT0)
        spin_tail(name, "%d" % count)

    def spin(off, count, name):
        A("v_mov_b32 v252, %d" % (FLG + off))
        A.label(name)
        A("ds_read_b32 v253, v252")
        A("s_waitcnt lgkmcnt(0)")
        A("v_readfirstlane_b32 s%d, v253" % sT0)
        spin_tail(name, "%d" % count)

    A.label(NAME)
    A("s_cmp_ge_u32 s2, 0x100")
    A("s_cbranch_scc1 Lend")
    if DIAG:
        A("s_memrealtime s[98:99]")
    A("s_load_dwordx16 s[4:19], s[0:1], 0")
    A("s_load_dwordx8 s[20:27], s[0:1], 64")
    A("s_load_dwordx2 s[28:29], s[0:1], 96")
    A("v_lshrrev_b32 v24, 6, v0")
    A("v_and_b32 v1, 63, v0")
    A("v_readfirstlane_b32 s%d, v24" % sWV)
    if PREF:
        A("s_cmp_lg_u32 s%d, 3" % sWV)
        A("s_cbranch_scc1 Lnopref")
        A("s_getpc_b64 %s" % sp(sHQ))
        A.label("Lpc")
        A("v_lshlrev_b32 v24, 7, v1")
        A("v_add_u32 v25, 0x2000, v24")
        A("v_min_u32 v25, Lcode_end-Lpc-4, v25")
        A("global_load_dword v198, v24, %s" % sp(sHQ))
        A("global_load_dword v199, v25, %s" % sp(sHQ))
        A.label("Lnopref")
    A("s_and_b32 s%d, s2, 7" % sT0)
    A("s_lshr_b32 s%d, s2, 3" % sT1)
    A("s_lshr_b32 s%d, s%d, 4" % (sT2, sT1))
    A("s_lshl_b32 s%d, s%d, 1" % (sHKV, sT0))
    A("s_add_u32 s%d, s%d, s%d" % (sHKV, sHKV, sT2))
    A("s_bfe_u32 s%d, s%d, 0x10003" % (sB, sT1))
    A("s_and_b32 s%d, s%d, 7" % (sS, sT1))
    A("s_lshl_b32 s%d, s%d, 4" % (sGID, sB))
    A("s_add_u32 s%d, s%d, s%d" % (sGID, sGID, sHKV))
    A("s_lshr_b32 s%d, s%d, 1" % (sP, sS))
    A("v_lshlrev_b32 v28, 2, v1")
    A("v_lshlrev_b32 v29, 1, v1")
    A("v_mov_b32 %s, 0" % V(vB2))
    A("v_mov_b32 v248, 0")
    A("v_and_b32 v24, 15, v1")
    A("v_lshrrev_b32 v25, 4, v1")
    A("v_and_b32 v26, 7, v1")
    A("v_lshrrev_b32 v27, 3, v1")
    A("v_and_b32 v249, 1, v27")
    A("v_lshl_add_u32 v249, v249, 2, v25")
    A("v_lshlrev_b32 v249, 4, v249")
    A("v_lshl_add_u32 %s, v26, 8, v249" % V(aK))
    A("v_lshlrev_b32 v249, 4, v24")
    A("v_lshl_add_u32 %s, v25, 10, v249" % V(aV))
    oX, oKV, oWQ = sH, sH + 1, sH + 2
    A("s_mul_i32 s%d, s%d, 1152" % (oX, sB))
    A("s_lshl_b32 s%d, s%d, 21" % (oKV, sGID))
    A("s_lshl_b32 s%d, s%d, 16" % (sT1, sS))
    A("s_add_u32 s%d, s%d, s%d" % (oKV, oKV, sT1))
    A("s_lshl_b32 s%d, s%d, 13" % (sT1, sWV))
    A("s_add_u32 s%d, s%d, s%d" % (oKV, oKV, sT1))
    A("s_add_u32 s%d, s%d, %d" % (oKV, oKV, 6144 * 256 + 4096))

    def bases():
        for (r, base, mul, src) in ((sHQ, W_HQ, 2048, sGID), (sHO, W_HO, 8192, sGID), (sHX, W_HX, 18432, sB)):
            A("s_mul_i32 s%d, s%d, %d" % (sT0, src, mul))
            if base:
                A("s_add_u32 s%d, s%d, %d" % (sT0, sT0, base))
            A("s_add_u32 s%d, s%d, s%d" % (r, sWS, sT0))
            A("s_addc_u32 s%d, s%d, 0" % (r + 1, sWS + 1))

    A("s_cmp_gt_u32 s%d, 3" % sWV)
    A("s_cbranch_scc1 Lrole_b")
    A("s_mul_i32 s%d, s%d, %d" % (oWQ, sP, 144 * 8192))
    A("s_lshl_b32 s%d, s%d, 9" % (sT1, sHKV))
    A("s_add_u32 s%d, s%d, s%d" % (oWQ, oWQ, sT1))
    A("s_and_b32 s%d, s%d, 1" % (sT1, sS))
    A("s_lshl_b32 s%d, s%d, 8" % (sT1, sT1))
    A("s_add_u32 s%d, s%d, s%d" % (oWQ, oWQ, sT1))
    A("s_lshl_b32 s%d, s%d, 15" % (sT1, sWV))
    A("s_add_u32 s%d, s%d, s%d" % (oWQ, oWQ, sT1))
    A("v_lshlrev_b32 v249, 2, v25")
    A("v_xor_b32 v249, v249, v24")
    A("v_lshlrev_b32 v249, 4, v249")
    A("v_lshl_add_u32 %s, v25, 13, v249" % V(aW))
    A("v_mov_b32 v249, %d" % FLG)
    A("ds_write2_b32 v249, v248, v248 offset0:1 offset1:2")
    A("ds_write2_b32 v249, v248, v248 offset0:3 offset1:4")
    A("ds_write_b32 v249, v248 offset:20")
    A("v_lshlrev_b32 %s, 4, v1" % V(aD))
    A("v_add_u32 %s, %d, %s" % (V(aD), 32768 - 4096, V(aD)))
    A("v_add_u32 %s, 4096, %s" % (V(aD + 1), V(aD)))
    A("s_getreg_b32 s%d, hwreg(HW_REG_XCC_ID, 0, 4)" % sXCC)
    A("s_cmp_lg_u32 s%d, 2" % sWV)
    A("s_cbranch_scc1 Linit_a")
    for i in range(4):
        A("v_mov_b32 %s, -1" % V(244 + i))
    A("s_lshl_b32 s%d, s%d, 13" % (sT1, sGID))
    A("s_lshl_b32 s%d, s%d, 10" % (sT2, sS))
    A("s_add_u32 s%d, s%d, s%d" % (sT1, sT1, sT2))
    A("s_add_u32 s%d, s%d, %d" % (sT1, sT1, W_HO))
    A("v_lshl_add_u32 v251, v1, 4, s%d" % sT1)
    A("v_add_u32 v252, %d, v251" % L_HO)
    A("s_lshl_b32 s%d, s%d, 8" % (sT1, sS))
    A("s_lshl_b32 s%d, s%d, 11" % (sT2, sGID))
    A("s_add_u32 s%d, s%d, s%d" % (sT1, sT1, sT2))
    A("v_lshl_add_u32 v249, v1, 4, s%d" % sT1)

    def seg(first, sreg, const):
        A("v_cmp_le_u32 vcc, %d, v1" % first)
        A("s_add_u32 s%d, s%d, %d" % (sT0, sreg, const - 16 * first))
        A("v_lshl_add_u32 v250, v1, 4, s%d" % sT0)
        A("v_cndmask_b32 v249, v249, v250, vcc")

    seg(16, sT1, W_HQ + L_HQ)
    A("s_mul_i32 s%d, s%d, 1152" % (sT1, sGID))
    A("s_mul_i32 s%d, s%d, 144" % (sT2, sS))
    A("s_add_u32 s%d, s%d, s%d" % (sT1, sT1, sT2))
    seg(32, sT1, W_HX)
    seg(41, sT1, W_HX + L_HX)
    A("s_lshl_b32 s%d, s2, 5" % sT1)
    seg(50, sT1, W_HT)
    A("s_waitcnt lgkmcnt(0)")
    A("global_store_dwordx4 v251, v[244:247], %s sc1" % sp(sWS))
    A("global_store_dwordx4 v252, v[244:247], %s sc1" % sp(sWS))
    A("s_mov_b32 exec_hi, 0x000fffff")
    A("global_store_dwordx4 v249, v[244:247], %s sc1" % sp(sWS))
    A("s_mov_b32 exec_hi, -1")
    A.label("Linit_a")
    A("s_waitcnt lgkmcnt(0)")
    stamp("start")
    if DIAG:
        A("s_memtime s[100:101]")
        A("s_waitcnt lgkmcnt(0)")
    add64(sX, "s%d" % oX)
    add64(sWQ, "s%d" % oWQ)
    A("global_load_short_d16_hi %s, v248, %s" % (V(vB2), sp(sB2)))
    for i in range(4):
        A("global_load_dword %s, v28, %s offset:%d" % (V(vXR + i), sp(sX), 256 * i))
    A("global_load_ushort %s, v29, %s offset:1024" % (V(vXR + 4), sp(sX)))
    add64(sK, "s%d" % oKV)
    add64(sV, "s%d" % oKV)
    A("s_lshl_b32 s%d, s%d, 10" % (sT1, sWV))
    A("s_barrier")
    for i in range(9):
        A("s_add_u32 m0, s%d, %d" % (sT1, WQS + 4096 * i))
        if i:
            A("v_add_u32 %s, 0x20000, %s" % (V(aW), V(aW)))
        A("global_load_lds_dwordx4 %s, %s%s" % (V(aW), sp(sWQ), NTW))
    A("s_cmp_lg_u32 s%d, 2" % sWV)
    A("s_cbranch_scc1 Lnoflag")
    A("s_or_b32 s%d, s%d, 0x80" % (sT0, sXCC))
    A("s_and_b32 s%d, s2, 3" % sT1)
    A("s_lshl_b32 s%d, s%d, 3" % (sT1, sT1))
    A("s_lshl_b32 s%d, s%d, s%d" % (sT0, sT0, sT1))
    A("s_and_b32 s%d, s2, 0xfc" % sT1)
    A("v_mov_b32 v249, s%d" % sT1)
    A("v_mov_b32 v250, s%d" % sT0)
    A("s_waitcnt vmcnt(15)")
    A("s_mov_b64 exec, 1")
    A("global_atomic_or v249, v250, %s sc1" % sp(sDBG))
    A("s_mov_b64 exec, -1")
    A.label("Lnoflag")
    dma8(sK, KB)
    kloads(aK)
    if VBEARLY:
        dma8(sV, VB)
    bases()
    A("s_call_b64 %s, Laddr" % sp(sRET))
    A("v_bfe_u32 v248, v1, 2, 2")
    A("v_xor_b32 v249, s%d, v248" % sWV)
    A("v_and_b32 v250, 3, v1")
    A("v_lshl_add_u32 v249, v249, 2, v250")
    A("v_lshlrev_b32 v249, 4, v249")
    A("v_lshl_add_u32 v249, v248, 8, v249")
    A("v_add_u32 v249, %d, v249" % WQS)
    A("v_lshrrev_b32 v250, 4, v1")
    A("v_lshl_add_u32 v248, v250, 10, v249")
    A("v_lshl_add_u32 v249, v250, 11, v249")
    for i in range(4):
        A("v_mov_b32 %s, 0x3f803f80" % V(244 + i))
    A("v_mov_b32 %s, %s" % (V(aV2), V(aV)))
    aV = aV2
    A("s_waitcnt vmcnt(%d)" % (24 if VBEARLY else 16))
    arrive_wait(4, 4, "Lsync_a")
    stamp("wq")
    for u in range(2):
        for ks in range(4):
            for hh in range(2):
                A("ds_read_b64_tr_b16 %s, v249 offset:%d" % (V(vWQ + 18 * u + 4 * ks + 2 * hh, 2), (32 * ks + 4 * hh) * 256 + 8 * u))
        A("ds_read_b64_tr_b16 %s, v248 offset:%d" % (V(vWQ + 18 * u + 16, 2), 128 * 256 + 8 * u))
    A("s_waitcnt lgkmcnt(0)")
    for ks in range(4):
        for u in range(2):
            A("v_mfma_f32_16x16x32_bf16 %s, %s, v[244:247], %s" % (
                V(vSQ + 4 * u, 4), V(vWQ + 18 * u + 4 * ks, 4), V(vSQ + 4 * u, 4) if ks else "0"))
    A("s_nop 5")
    for u in range(2):
        A("v_mfma_f32_16x16x16_bf16 %s, %s, v[244:245], %s" % (V(vSQ + 4 * u, 4), V(vWQ + 18 * u + 16, 2), V(vSQ + 4 * u, 4)))
    A("s_call_b64 %s, Lqstage" % sp(sRET))
    arrive_wait(4, 0, None)
    stamp("q0")
    A("s_cmp_lg_u32 s%d, 0" % sWV)
    A("s_cbranch_scc1 Lnolook")
    A("v_lshlrev_b32 v250, 2, v1")
    A("global_load_dword v253, v250, %s sc1" % sp(sDBG))
    A.label("Lnolook")
    if not VBEARLY:
        dma8(sV, VB)
    for i in range(8):
        vload(i, aV)
    stamp("iss")
    A("s_cmp_eq_u32 s%d, 0" % sWV)
    A("s_cbranch_scc1 Lwave0")
    A("s_cmp_lg_u32 s%d, 3" % sWV)
    A("s_cbranch_scc1 Lnox0")
    for i in range(4):
        A("ds_write_b64 %s, %s offset:%d" % (V(lXP), V(vXA + 2 * i, 2), 512 * i))
    A("ds_write_b32 %s, %s" % (V(lXS), V(vXA + 8)))
    A.label("Lnox0")
    A("s_mul_i32 s%d, s%d, %d" % (sT0, sHKV, 256 * 1152))
    A("s_mul_i32 s%d, s%d, 144" % (sT1, sS))
    A("s_add_u32 s%d, s%d, s%d" % (sT0, sT0, sT1))
    add64(sWO, "s%d" % sT0)
    A("s_mul_i32 s%d, s%d, 48" % (sT0, sWV))
    A("s_sub_u32 s%d, s%d, 48" % (sT0, sT0))
    A("v_min_u32 v249, 47, v1")
    A("v_add_u32 v249, s%d, v249" % sT0)
    A("v_mul_u32_u24 v250, 7282, v249")
    A("v_lshrrev_b32 v250, 16, v250")
    A("v_mul_u32_u24 v250, %d, v250" % (9216 - 144))
    A("v_lshl_add_u32 %s, v249, 4, v250" % V(vA))
    A("s_waitcnt vmcnt(%d)" % (8 if VBEARLY else 16))
    A("s_call_b64 %s, Lkshuf" % sp(sRET))
    A("s_waitcnt vmcnt(8)")
    arrive_wait(12, 0, None)
    A("s_mul_i32 s%d, s%d, 768" % (sT1, sWV))
    spin(4, 9, "Lsync_wo")
    A("s_waitcnt vmcnt(%d)" % WOGATE)
    A("s_mov_b32 exec_hi, 0xffff")
    for i in range(16):
        A("s_add_u32 m0, s%d, %d" % (sT1, WOS - 768 + 2304 * i))
        if i:
            add64(sWO, "%d" % (1152 * (121 if i == 8 else 1)))
        if WINO < 63:
            A("s_waitcnt vmcnt(%d)" % (WINO - 1))
        A("global_load_lds_dwordx4 %s, %s%s" % (V(vA), sp(sWO), NTW))
    A("s_mov_b32 exec_hi, -1")
    stamp("wo")
    A("s_waitcnt vmcnt(16)")
    stamp("kv")
    A("s_call_b64 %s, Lvperm" % sp(sRET))
    A("s_branch Lmeet")
    A.label("Lwave0")
    A("s_lshr_b32 s%d, s2, 6" % sT0)
    A("s_lshl_b32 s%d, s%d, 4" % (sT0, sT0))
    A("s_bfe_u32 s%d, s2, 0x10002" % sT1)
    A("s_add_u32 s%d, s%d, s%d" % (sT0, sT0, sT1))
    A("s_mov_b64 %s, 0x5555" % sp(sMSK))
    A("s_lshl_b64 %s, %s, s%d" % (sp(sMSK), sp(sMSK), sT0))
    A("s_and_b32 s%d, s2, 3" % sT2)
    A("s_lshl_b32 s%d, s%d, 3" % (sT2, sT2))
    A("s_waitcnt vmcnt(%d)" % (8 if VBEARLY else 16))
    A("s_branch Lflagchk")
    A.label("Lflagpoll")
    A("s_sleep 8")
    A("global_load_dword v253, v250, %s sc1" % sp(sDBG))
    A("s_waitcnt vmcnt(0)")
    A.label("Lflagchk")
    A("v_bfe_u32 v251, v253, s%d, 8" % sT2)
    A("v_cmp_gt_u32 vcc, 0x80, v251")
    A("s_and_b64 vcc, vcc, %s" % sp(sMSK))
    A("s_cbranch_scc0 Lflagok")
    A("s_sub_u32 s%d, s%d, 1" % (sCNT, sCNT))
    A("s_cbranch_scc0 Lflagpoll")
    A("s_mov_b32 s%d, 0" % sCNT)
    A.label("Lflagok")
    stamp("fl")
    for h in range(2):
        A("global_load_dwordx4 %s, %s, %s offset:%d sc1" % (V(vQ + 4 * h, 4), V(aHQG), sp(sHQ), 256 * h))
    A("global_load_dword %s, v250, %s sc1" % (V(vA), sp(sDBG)))
    A("v_and_b32 v251, 15, v251")
    A("v_cmp_ne_u32 vcc, s%d, v251" % sXCC)
    A("v_mov_b32 v251, %d" % FLG)
    A("s_and_b64 vcc, vcc, %s" % sp(sMSK))
    A("s_cselect_b32 s%d, 0, %d" % (sT0, 0 if FORCE_SLOW else 1))
    A("v_mov_b32 v253, s%d" % sT0)
    A("ds_write_b32 v251, v253")
    arrive_wait(4, 0, None)
    A("s_call_b64 %s, Lkshuf" % sp(sRET))
    A("s_waitcnt vmcnt(11)")
    arrive_wait(12, 0, None)
    A("s_waitcnt vmcnt(3)")
    stamp("kv")
    A("s_call_b64 %s, Lvperm" % sp(sRET))
    A("s_branch Lq0chk")
    A.label("Lq0poll")
    A("s_sleep 2")
    for h in range(2):
        A("global_load_dwordx4 %s, %s, %s offset:%d sc1" % (V(vQ + 4 * h, 4), V(aHQG), sp(sHQ), 256 * h))
    A("global_load_dword %s, v250, %s sc1" % (V(vA), sp(sDBG)))
    A.label("Lq0chk")
    A("s_waitcnt vmcnt(0)")
    for h in range(2):
        A("v_mfma_f32_16x16x32_bf16 %s, %s, %s, 0" % (V(vS + 4 * h, 4), V(vSEL, 4), V(vQ + 4 * h, 4)))
    maxtree(vM, range(vQ, vQ + 8))
    A("v_and_b32 %s, 0x80808080, %s" % (V(vA), V(vA)))
    A("v_cmp_ne_u32 vcc, 0x80808080, %s" % V(vA))
    A("v_cndmask_b32 %s, %s, -1, vcc" % (V(vM), V(vM)))
    poll_tail("Lq0poll", vM)
    for i in range(4):
        A("v_cvt_pk_bf16_f32 %s, %s, %s" % (V(vQ + i), V(vS + 2 * i), V(vS + 2 * i + 1)))
    A("s_mov_b32 exec_hi, 0")
    for h in range(2):
        A("ds_write_b64 %s, %s offset:%d" % (V(lQW), V(vQ + 2 * h, 2), 256 * h))
    A("s_mov_b32 exec_hi, -1")
    A("s_branch Lmeet")
    aK, aV = vA, vA + 1
    A.label("Lrole_b")
    if BPRIO:
        A("s_setprio %d" % BPRIO)
    A("v_subrev_u32 v31, 0x100, v0")
    A("v_lshlrev_b32 v30, 4, v31")
    A("v_add_u32 v249, 0x1000, v30")
    A("v_lshlrev_b32 v31, 2, v31")
    A("v_add_u32 v31, 0x2000, v31")
    A("s_waitcnt lgkmcnt(0)")
    stamp("start")
    if DIAG:
        A("s_memtime s[100:101]")
        A("s_waitcnt lgkmcnt(0)")
    for i in range(3):
        r, p = vRW + 10 * i, sp((sW1, sB1, sW2)[i])
        A("global_load_dwordx4 %s, v30, %s" % (V(r, 4), p))
        A("global_load_dwordx4 %s, v249, %s" % (V(r + 4, 4), p))
        A("global_load_dword %s, v31, %s" % (V(r + 8), p))
    A("global_load_short_d16_hi %s, v248, %s" % (V(vB2), sp(sB2)))
    A("s_barrier")
    stamp("iss")
    bases()
    A("s_call_b64 %s, Laddr" % sp(sRET))
    A("s_and_b32 s%d, s2, 127" % sT0)
    A("s_lshl_b32 s%d, s%d, 4" % (sT0, sT0))
    A("s_add_u32 s%d, s%d, %d" % (sT0, sT0, E0))
    A("s_lshr_b32 s%d, s2, 7" % sT1)
    A("s_lshl_b32 s%d, s%d, 15" % (sT1, sT1))
    A("s_add_u32 s%d, s%d, s%d" % (sT0, sT0, sT1))
    A("v_add_u32 v249, s%d, v1" % sT0)
    A("v_lshlrev_b32 v249, 16, v249")
    A("v_mul_f32 v249, %s, v249" % fl(SC))
    A("v_mov_b32 %s, %s" % (V(vKAP), fl(KAP)))
    A("v_mov_b32 %s, 1.0" % V(vONE))
    A("v_mov_b32 %s, %s" % (V(vSCL), fl(SC)))
    for i in range(16):
        A("v_readlane_b32 s%d, v249, %d" % (sH + i, i))
        A("v_mov_b32 %s, 0" % V(vACC + i))
    A("s_mov_b32 s%d, 0" % sT3)
    A("s_waitcnt vmcnt(0)")
    stamp("wq")
    A.label("Ltabloop")
    A("s_set_gpr_idx_on s%d, gpr_idx(SRC1)" % sT3)
    for i, d in enumerate((vCA, vCC, vCW)):
        A("v_lshlrev_b32 %s, 16, %s" % (V(d[0]), V(vRW + 10 * i)))
        A("v_and_b32 %s, 0xffff0000, %s" % (V(d[1]), V(vRW + 10 * i)))
    A("s_set_gpr_idx_off")
    for f in range(2):
        A("v_mul_f32 %s, %s, %s" % (V(vCC[f]), V(vCC[f]), V(vSCL)))
    for f in range(2):
        for k2 in range(0 if NOTAB else 4):
            seq = []
            for h in range(2):
                k = 2 * k2 + h
                u, t, e, uw = (V(vTT + 8 * h + 2 * i, 2) for i in range(4))
                e0, e1 = vTT + 8 * h + 4, vTT + 8 * h + 5
                t0, t1 = vTT + 8 * h + 2, vTT + 8 * h + 3
                seq.append([
                    "v_pk_fma_f32 %s, %s, %s, %s op_sel_hi:[0,1,0]" % (u, bc(vCA[f]), sp(sH + 2 * k), bc(vCC[f])),
                    "v_pk_fma_f32 %s, %s, %s, %s op_sel_hi:[1,1,0]" % (t, u, u, bc(vKAP)),
                    "v_pk_mul_f32 %s, %s, %s neg_lo:[1,0] neg_hi:[1,0]" % (t, t, u),
                    "v_exp_f32 %s, %s" % (V(e0), V(t0)),
                    "v_exp_f32 %s, %s" % (V(e1), V(t1)),
                    "v_pk_mul_f32 %s, %s, %s op_sel_hi:[1,0]" % (uw, u, bc(vCW[f])),
                    "v_pk_add_f32 %s, %s, %s op_sel_hi:[1,0]" % (e, e, bc(vONE)),
                    "v_rcp_f32 %s, %s" % (V(e0), V(e0)),
                    "v_rcp_f32 %s, %s" % (V(e1), V(e1)),
                    "v_pk_fma_f32 %s, %s, %s, %s" % (V(vACC + 2 * k, 2), uw, e, V(vACC + 2 * k, 2)),
                ])
            s0, s1 = seq
            for l in (s0[0], s1[0], s0[1], s1[1], s0[2], s1[2], s0[3], s0[4], s1[3], s1[4], s0[5], s0[6], s1[5], s1[6],
                      s0[7], s0[8], s1[7], s1[8], s0[9], s1[9]):
                A(l)
    A("s_add_u32 s%d, s%d, 1" % (sT3, sT3))
    A("s_cmp_lt_u32 s%d, 9" % sT3)
    A("s_cbranch_scc1 Ltabloop")
    stamp("q0")
    for k in range(8):
        A("v_permlane32_swap_b32 %s, %s" % (V(vACC + 2 * k), V(vACC + 2 * k + 1)))
    for k in range(8):
        A("v_add_f32 %s, %s, %s" % (V(vACC + 2 * k), V(vACC + 2 * k), V(vACC + 2 * k + 1)))
    for k in range(4):
        A("v_permlane16_swap_b32 %s, %s" % (V(vACC + 4 * k), V(vACC + 4 * k + 2)))
    for k in range(4):
        A("v_add_f32 %s, %s, %s" % (V(vACC + 4 * k), V(vACC + 4 * k), V(vACC + 4 * k + 2)))
    for ctl in ("quad_perm:[1,0,3,2]", "quad_perm:[2,3,0,1]", "row_half_mirror", "row_mirror"):
        for k in range(4):
            A("v_add_f32_dpp %s, %s, %s %s%s" % (V(vACC + 4 * k), V(vACC + 4 * k), V(vACC + 4 * k), ctl, DPP))
    A("v_lshrrev_b32 v251, 5, v1")
    A("v_bfe_u32 v250, v1, 4, 1")
    A("v_lshl_add_u32 v251, v250, 1, v251")
    A("s_lshl_b32 s%d, s%d, 6" % (sT0, sWV))
    A("s_add_u32 s%d, s%d, %d" % (sT0, sT0, TRED - 256))
    A("v_lshl_add_u32 v251, v251, 2, s%d" % sT0)
    A("s_mov_b32 exec_lo, 0x00010001")
    A("s_mov_b32 exec_hi, 0x00010001")
    A("ds_write2_b32 v251, %s, %s offset0:0 offset1:4" % (V(vACC), V(vACC + 4)))
    A("ds_write2_b32 v251, %s, %s offset0:8 offset1:12" % (V(vACC + 8), V(vACC + 12)))
    A("s_mov_b64 exec, -1")
    if BPRIO:
        A("s_setprio 0")
    arrive_wait(8, 0, None)
    A("s_cmp_lg_u32 s%d, 7" % sWV)
    A("s_cbranch_scc1 Lnotab")
    spin(8, 4, "Lsync_b")
    A("v_and_b32 v250, 15, v1")
    A("v_lshlrev_b32 v250, 2, v250")
    A("v_add_u32 v251, %d, v250" % TRED)
    for i in range(2):
        A("ds_read2_b32 %s, v251 offset0:%d offset1:%d" % (V(vS + 2 * i, 2), 32 * i, 32 * i + 16))
    A("s_waitcnt lgkmcnt(0)")
    A("v_pk_add_f32 %s, %s, %s" % (V(vS, 2), V(vS, 2), V(vS + 2, 2)))
    A("v_add_f32 %s, %s, %s" % (V(vS), V(vS), V(vS + 1)))
    A("v_mul_f32 %s, %s, %s" % (V(vS), fl(1.0 / SC), V(vS)))
    A("v_cvt_pk_bf16_f32 %s, %s, %s" % (V(vS), V(vS), V(vS)))
    A("v_lshlrev_b32 %s, 16, %s" % (V(vS), V(vS)))
    A("v_add_f32 %s, %s, %s" % (V(vS), V(vS), V(vB2)))
    A("v_mov_b32_dpp %s, %s quad_perm:[1,1,3,3]%s" % (V(vS + 1), V(vS), DPP))
    A("v_cvt_pk_bf16_f32 %s, %s, %s" % (V(vS), V(vS), V(vS + 1)))
    A("v_lshrrev_b32 v250, 1, v250")
    A("s_lshl_b32 s%d, s2, 5" % sT0)
    A("s_add_u32 s%d, s%d, %d" % (sT0, sT0, W_HT))
    A("v_add_u32 v250, s%d, v250" % sT0)
    A("s_mov_b64 exec, 0x5555")
    A("global_store_dword v250, %s, %s sc1" % (V(vS), sp(sWS)))
    A("s_mov_b64 exec, -1")
    A.label("Lnotab")
    A("v_bfe_u32 v249, v1, 2, 2")
    A("v_mul_u32_u24 v249, 1088, v249")
    A("v_and_b32 v250, 3, v1")
    A("v_lshl_add_u32 v249, v250, 8, v249")
    A("v_lshrrev_b32 v250, 4, v1")
    A("v_lshl_add_u32 v249, v250, 4, v249")
    A("v_mul_u32_u24 v250, 1088, v250")
    A("v_and_b32 v251, 15, v1")
    A("v_lshl_add_u32 v250, v251, 4, v250")
    A("s_mul_i32 s%d, s%d, 8704" % (sT1, sWV))
    A("s_add_u32 s%d, s%d, %d" % (sT2, sT1, KB - 4 * 8704))
    A("v_add_u32 v249, s%d, v249" % sT2)
    A("s_add_u32 s%d, s%d, %d" % (sT2, sT1, VB - 4 * 8704))
    A("v_add_u32 v250, s%d, v250" % sT2)
    spin(12, 4, "Lsync_kv")
    stamp("fl")
    for i in range(8):
        A("ds_read_b128 %s, v250 offset:%d" % (V(vVR + 4 * i, 4), (i >> 2) * 4352 + (i & 3) * 256))
    for T in range(2):
        for ks in range(4):
            A("ds_read_b128 %s, v249 offset:%d" % (V(vK + 16 * T + 4 * ks, 4), T * 4352 + ks * 64))
    A("s_waitcnt lgkmcnt(8)")
    A("s_call_b64 %s, Lvperm" % sp(sRET))
    A("s_mul_i32 s%d, s%d, 8704" % (sT1, sWV))
    A("s_add_u32 s%d, s%d, %d" % (sT1, sT1, KB - 4 * 8704))
    A("v_lshl_add_u32 v250, v1, 4, s%d" % sT1)
    A("v_lshl_add_u32 v251, v1, 2, s%d" % sT1)
    A("s_waitcnt lgkmcnt(0)")
    for i in range(3):
        A("ds_write_b128 v250, %s offset:%d" % (V(vRW + 10 * i, 4), 2304 * i))
        A("ds_write_b128 v250, %s offset:%d" % (V(vRW + 10 * i + 4, 4), 2304 * i + 1024))
        A("ds_write_b32 v251, %s offset:%d" % (V(vRW + 10 * i + 8), 2304 * i + 2048))
    stamp("kv")
    A.label("Lmeet")
    for i, r in enumerate((sHX1, sHX2, sHX3)):
        A("s_add_u32 s%d, s%d, %d" % (r, sHX, 4608 * (i + 1)))
        A("s_addc_u32 s%d, s%d, 0" % (r + 1, sHX + 1))
    A("v_mov_b32 v251, %d" % FLG)
    A("s_waitcnt lgkmcnt(0)")
    A("s_barrier")
    stamp("tab")
    A("ds_read_b32 v251, v251")
    A("s_waitcnt lgkmcnt(0)")
    A("v_readfirstlane_b32 s%d, v251" % sFAST)
    A.label("Latt")
    for ks in range(4):
        A("ds_read_b128 %s, %s offset:%d" % (V(vQ + 4 * ks, 4), V(aHQL), 64 * ks))
    for ks in range(4):
        A("s_waitcnt lgkmcnt(%d)" % (3 - ks))
        for T in range(2):
            A("v_mfma_f32_16x16x32_bf16 %s, %s, %s, %s" % (
                V(vS + 4 * T, 4), V(vK + 16 * T + 4 * ks, 4), V(vQ + 4 * ks, 4), V(vS + 4 * T, 4) if ks else "0"))
    stampL("qV")
    A("v_max3_f32 %s, %s, %s, %s" % (V(vM), V(vS), V(vS + 1), V(vS + 2)))
    A("v_max3_f32 %s, %s, %s, %s" % (V(vP), V(vS + 3), V(vS + 4), V(vS + 5)))
    A("v_max3_f32 %s, %s, %s, %s" % (V(vM), V(vM), V(vS + 6), V(vS + 7)))
    A("v_max_f32 %s, %s, %s" % (V(vP + 1), V(vM), V(vP)))
    A("v_max_f32 %s, %s, %s" % (V(vM), V(vM), V(vP)))
    A("v_permlane16_swap_b32 %s, %s" % (V(vM), V(vP + 1)))
    A("v_max_f32 %s, %s, %s" % (V(vP), V(vM), V(vP + 1)))
    A("v_max_f32 %s, %s, %s" % (V(vM), V(vM), V(vP + 1)))
    A("v_permlane32_swap_b32 %s, %s" % (V(vM), V(vP)))
    A("v_max_f32 %s, %s, %s" % (V(vM), V(vM), V(vP)))
    A("v_mul_f32 %s, s%d, %s" % (V(vM), sSMC, V(vM)))
    for r in range(8):
        A("v_fma_f32 %s, %s, s%d, -%s" % (V(vS + r), V(vS + r), sSMC, V(vM)))
        if r:
            A("v_exp_f32 %s, %s" % (V(vS + r - 1), V(vS + r - 1)))
    A("v_exp_f32 %s, %s" % (V(vS + 7), V(vS + 7)))
    for r in range(4):
        A("v_cvt_pk_bf16_f32 %s, %s, %s" % (V(vP + r), V(vS + 2 * r), V(vS + 2 * r + 1)))
    stampL("sm")
    for j in range(8):
        A("v_mfma_f32_16x16x32_bf16 %s, %s, %s, 0" % (V(vA + 4 * j, 4), V(vP, 4), V(vVT + 4 * j, 4)))
    A("v_mfma_f32_16x16x32_bf16 %s, %s, %s, 0" % (V(vS, 4), V(vP, 4), V(vONES, 4)))
    A("s_mov_b32 exec_hi, 0")
    for j in range(0, 8, 2):
        A("ds_write2_b32 %s, %s, %s offset0:%d offset1:%d" % (V(lPW), V(vA + 4 * j), V(vA + 4 * j + 4), 16 * j, 16 * j + 16))
    A("s_mov_b32 exec_lo, 0x100001")
    A("ds_write2_b32 %s, %s, %s offset0:0 offset1:1" % (V(lMW), V(vM), V(vS)))
    A("s_mov_b64 exec, -1")
    A("s_waitcnt lgkmcnt(0)")
    stampL("pv")
    A("s_barrier")
    A("ds_read_b64 %s, %s" % (V(vA + 4, 2), V(lMR)))
    A("ds_read_b128 %s, %s" % (V(vA, 4), V(lPR)))
    A("s_waitcnt lgkmcnt(1)")
    reduce8(vA, vA + 4, vA + 7, vA + 6, False, "s_waitcnt lgkmcnt(0)")
    A("v_cvt_pk_bf16_f32 %s, %s, %s" % (V(vA + 3), V(vA + 2), V(vA + 3)))
    A("v_cvt_pk_bf16_f32 %s, %s, %s" % (V(vA + 2), V(vA), V(vA + 1)))
    A("s_mov_b32 exec_lo, 0x01010101")
    A("s_mov_b32 exec_hi, 0x01010101")
    store2(["global_store_dwordx4 %s, %s, %s" % (V(aHOS), V(vA + 2, 4), sp(sHO))])
    A("s_mov_b64 exec, -1")
    stampL("ho")
    A.label("Lopoll")
    A("global_load_dwordx4 %s, %s, %s sc1" % (V(vA + 10, 4), V(aHOL), sp(sHO)))
    A("s_waitcnt vmcnt(0)")
    maxtree(vM, range(vA + 10, vA + 14))
    poll_tail("Lopoll", vM)
    stampL("og")
    A("s_cmp_lg_u32 s%d, 0" % sL)
    A("s_cbranch_scc1 Lnotg")
    A("v_lshlrev_b32 v249, 4, v0")
    A("v_add_u32 v248, %d, v249" % W_HT)
    A("global_load_dwordx4 %s, v248, %s sc1" % (V(vQ, 4), sp(sWS)))
    A("s_barrier")
    for t in range(5):
        for hh in range(2):
            A("ds_read_b64_tr_b16 %s, v233 offset:%d" % (V(vWO + 4 * t + 2 * hh, 2), 576 * hh + 32 * t))
    A.label("Lnotg")
    reduce8(vA + 16, vA + 12, vA + 15, vA + 14, True, fill=[
        "v_lshlrev_b32 %s, 16, %s" % (V(vA + 16), V(vA + 10)), "v_and_b32 %s, 0xffff0000, %s" % (V(vA + 17), V(vA + 10)),
        "v_lshlrev_b32 %s, 16, %s" % (V(vA + 18), V(vA + 11)), "v_and_b32 %s, 0xffff0000, %s" % (V(vA + 19), V(vA + 11))])
    A("v_cvt_pk_bf16_f32 %s, %s, %s" % (V(vA), V(vA + 16), V(vA + 17)))
    A("v_cvt_pk_bf16_f32 %s, %s, %s" % (V(vA + 1), V(vA + 18), V(vA + 19)))
    A("v_mov_b32_dpp %s, %s row_ror:8%s" % (V(vA + 2), V(vA), DPP))
    A("v_mov_b32_dpp %s, %s row_ror:8%s" % (V(vA + 3), V(vA + 1), DPP))
    A("s_waitcnt lgkmcnt(0)")
    for t in range(5):
        A("v_mfma_f32_16x16x32_bf16 %s, %s, %s, 0" % (V(vA + 4 + 4 * t, 4), V(vA, 4), V(vWO + 4 * t, 4)))
    A("s_mov_b64 exec, 0xffff")
    A("ds_write2_b32 %s, %s, %s offset0:0 offset1:16" % (V(lOW), V(vA + 4), V(vA + 8)))
    A("ds_write2_b32 %s, %s, %s offset0:32 offset1:48" % (V(lOW), V(vA + 12), V(vA + 16)))
    A("ds_write_b32 %s, %s offset:256" % (V(lOW), V(vA + 20)))
    A("s_mov_b64 exec, -1")
    A("s_waitcnt lgkmcnt(0)")
    A("s_barrier")
    stampL("ov")
    A("s_cmp_lg_u32 s%d, 0" % sWV)
    A("s_cbranch_scc1 Lwo_done")
    for w in range(8):
        A("ds_read_b128 %s, %s offset:%d" % (V(vA + 4 * w, 4), V(lOR), RSTR * w))
    for w in range(1, 8, 2):
        A("s_waitcnt lgkmcnt(%d)" % (7 - w))
        for i in range(2):
            A("v_pk_add_f32 %s, %s, %s" % (V(vA + 4 * w - 4 + 2 * i, 2), V(vA + 4 * w - 4 + 2 * i, 2), V(vA + 4 * w + 2 * i, 2)))
        if w in (3, 7):
            for i in range(2):
                A("v_pk_add_f32 %s, %s, %s" % (V(vA + 4 * w - 12 + 2 * i, 2), V(vA + 4 * w - 12 + 2 * i, 2), V(vA + 4 * w - 4 + 2 * i, 2)))
    for i in range(2):
        A("v_pk_add_f32 %s, %s, %s" % (V(vA + 2 * i, 2), V(vA + 2 * i, 2), V(vA + 16 + 2 * i, 2)))
    A("v_cvt_pk_bf16_f32 %s, %s, %s" % (V(vA), V(vA), V(vA + 1)))
    A("v_cvt_pk_bf16_f32 %s, %s, %s" % (V(vA + 1), V(vA + 2), V(vA + 3)))
    A("s_mov_b64 exec, 0x3ffff")
    A("global_store_dwordx2 %s, %s, %s sc1" % (V(aHXS), V(vA, 2), sp(sHX)))
    A("s_mov_b64 exec, -1")
    A.label("Lwo_done")
    stampL("hx")
    A("s_cmp_eq_u32 s%d, 0" % sL)
    A("s_cbranch_scc1 Ltabg")
    A("s_or_b32 s%d, s%d, s%d" % (sT0, sHKV, sS))
    A("s_cbranch_scc1 Lexit")
    A("s_branch Lxwait")
    A.label("Ltpoll")
    A("s_sleep 4")
    A("global_load_dwordx4 %s, v248, %s sc1" % (V(vQ, 4), sp(sWS)))
    A("s_waitcnt vmcnt(0)")
    A.label("Ltabg")
    A("s_cmp_gt_u32 s%d, 3" % sWV)
    A("s_cselect_b32 s%d, %d, %d" % (sT0, TABN - 4096, TABP))
    A("v_add_u32 v250, s%d, v249" % sT0)
    A("s_waitcnt vmcnt(1)")
    A("s_cmp_eq_u32 s%d, 0" % sWV)
    A("s_cbranch_scc1 Ltabw")
    A("s_waitcnt vmcnt(0)")
    A.label("Ltabw")
    maxtree(vM, range(vQ, vQ + 4))
    poll_tail("Ltpoll", vM)
    A("ds_write_b128 v250, %s" % V(vQ, 4))
    A.label("Lxwait")
    A("ds_read_b128 %s, %s" % (V(vP, 4), V(lXC)))
    if XPACE == "ack":
        A("s_waitcnt vmcnt(0)")
    if XPACE != "none":
        A("s_barrier")
    stampL("xp")
    HXB = (sHX, sHX1, sHX2, sHX3)
    A("s_cmp_gt_u32 s%d, 4" % sWV)
    A("s_cbranch_scc1 Lxjoin")
    A("s_cmp_eq_u32 s%d, 4" % sWV)
    A("s_cselect_b32 s%d, 0x00ff00ff, -1" % sT2)
    A.label("Lxpoll")
    A("s_mov_b32 exec_lo, s%d" % sT2)
    A("s_mov_b32 exec_hi, s%d" % sT2)
    for i in range(4):
        A("global_load_dwordx4 %s, %s, %s sc1" % (V(vA + 4 * i, 4), V(aHXL), sp(HXB[i])))
    A("s_mov_b64 exec, -1")
    for i in range(4):
        A("s_waitcnt vmcnt(%d)" % (3 - i))
        A("v_mfma_f32_16x16x32_bf16 %s, %s, %s, %s" % (V(vS, 4), V(vSEL, 4), V(vA + 4 * i, 4), V(vS, 4) if i else "0"))
    A("s_mov_b32 exec_lo, s%d" % sT2)
    A("s_mov_b32 exec_hi, 0")
    A("s_waitcnt lgkmcnt(0)")
    A("v_cmp_u_f32 vcc, %s, %s" % (V(vS), V(vS)))
    A("v_cvt_pk_bf16_f32 %s, %s, %s" % (V(vS + 4), V(vS), V(vS + 1)))
    A("v_cvt_pk_bf16_f32 %s, %s, %s" % (V(vS + 5), V(vS + 2), V(vS + 3)))
    A("s_cbranch_vccnz Lxchk")
    A.label("Lxok")
    for rnd in range(2):
        for i in range(2):
            A("v_lshlrev_b32 %s, 16, %s" % (V(vS + 2 * i), V(vS + 4 + i)))
            A("v_and_b32 %s, 0xffff0000, %s" % (V(vS + 2 * i + 1), V(vS + 4 + i)))
        if rnd == 0:
            for i in range(2):
                A("v_pk_add_f32 %s, %s, %s" % (V(vS + 2 * i, 2), V(vS + 2 * i, 2), V(vP + 2 * i, 2)))
            for i in range(2):
                A("v_cvt_pk_bf16_f32 %s, %s, %s" % (V(vS + 4 + i), V(vS + 2 * i), V(vS + 2 * i + 1)))
    A("ds_write_b128 %s, %s" % (V(lXC), V(vS, 4)))
    A("s_mov_b64 exec, -1")
    A.label("Lxjoin")
    A("s_waitcnt lgkmcnt(0)")
    A("s_barrier")
    stampL("xs")
    A("s_cmp_gt_u32 s%d, 3" % sWV)
    A("s_cbranch_scc1 Lmlp_skip")
    A("s_mul_i32 s%d, s%d, s%d" % (sT0, sL, sWV))
    A("s_cmp_lg_u32 s%d, 0" % sT0)
    A("s_cbranch_scc1 Lhelper")
    A.label("Lmlp")
    for i in range(4):
        A("ds_read_b64 %s, %s offset:%d" % (V(vXA + 2 * i, 2), V(lXP), 512 * i))
    A("ds_read_b32 %s, %s" % (V(vXA + 8), V(lXS)))
    vH, vY, vHP, vHS, vAD, vST = vA, vA + 10, vXR, vA + 26, vA, vS
    for i in range(9):
        A("v_mov_b32 %s, 0" % V(vY + i))
    A("s_waitcnt lgkmcnt(0)")
    stats_lane(vST)
    for l in stats_wave(vST, True):
        A(l)
    normalize(vH, vST, vST + 2)
    A("s_mov_b32 s%d, %s" % (sT0, hx(E0 * 0x10001)))
    for i in range(5):
        A("v_cvt_pk_bf16_f32 %s, %s, %s" % (V(vHP + i), V(vH + 2 * i), V(vH + min(2 * i + 1, 8))))
    for i in range(5):
        A("v_pk_sub_u16 %s, %s, s%d" % (V(vHS + i), V(vHP + i), sT0))
    for i in range(9):
        A("v_lshlrev_b32_sdwa %s, 1, %s dst_sel:DWORD dst_unused:UNUSED_PAD src0_sel:DWORD src1_sel:WORD_%d" % (
            V(vAD + i), V(vHS + (i >> 1)), i & 1))
        A("ds_read_u16_d16_hi %s, %s offset:%d" % (V(vY + i), V(vAD + i), TABP))
    A("v_or3_b32 %s, %s, %s, %s" % (V(vM), V(vHS), V(vHS + 1), V(vHS + 2)))
    A("v_or3_b32 %s, %s, %s, %s" % (V(vM), V(vM), V(vHS + 3), V(vHS + 4)))
    A("v_and_b32 %s, 0x78007800, %s" % (V(vM), V(vM)))
    A("v_cmp_ne_u32 vcc, 0, %s" % V(vM))
    A("s_waitcnt lgkmcnt(0)")
    A("s_cbranch_vccnz Lfallback")
    A.label("Lfb_done")
    stampL("lk")
    for i in range(4):
        A("v_pk_add_f32 %s, %s, %s" % (V(vXA + 2 * i, 2), V(vXA + 2 * i, 2), V(vY + 2 * i, 2)))
    A("v_add_f32 %s, %s, %s" % (V(vXA + 8), V(vXA + 8), V(vY + 8)))
    for i in range(5):
        A("v_cvt_pk_bf16_f32 %s, %s, %s" % (V(vHP + i), V(vXA + 2 * i), V(vXA + min(2 * i + 1, 8))))
    A("s_cmp_lg_u32 s%d, 0" % sL)
    A("s_cbranch_scc1 Lfinal")
    if DUMP:
        A("s_lshl_b32 s%d, s2, 2" % sT0)
        A("s_add_u32 s%d, s%d, s%d" % (sT0, sT0, sWV))
        A("s_mul_i32 s%d, s%d, 8192" % (sT0, sT0))
        A("s_add_u32 s%d, s%d, %d" % (sT0, sT0, 2 << 20))
        A("v_lshl_add_u32 v252, v1, 2, s%d" % sT0)
        A("v_add_u32 v253, 4096, v252")
        for i, r in enumerate(list(range(vHS, vHS + 5)) + list(range(vY, vY + 9)) + list(range(vHP, vHP + 5)) + list(range(vAD, vAD + 9)) + [vS, vS + 2, vS + 6, vS + 7]):
            A("global_store_dword %s, %s, %s offset:%d" % ("v252" if i < 16 else "v253", V(r), sp(sWS), 256 * (i % 16)))
    add64(sHQ, "%d" % L_HQ)
    A("s_call_b64 %s, Lqstage" % sp(sRET))
    A("s_cmp_lg_u32 s%d, 0" % sWV)
    A("s_cbranch_scc1 Lnext")
    for i in range(4):
        A("ds_write_b64 %s, %s offset:%d" % (V(lXP), V(vXA + 2 * i, 2), 512 * i + XSB - XSA))
    A("ds_write_b32 %s, %s offset:%d" % (V(lXS), V(vXA + 8), XSB - XSA))
    A("s_branch Lnext")
    A.label("Lmlp_skip")
    A("s_cmp_lg_u32 s%d, 0" % sL)
    A("s_cbranch_scc1 Lexit")
    add64(sHQ, "%d" % L_HQ)
    A("s_lshr_b32 s%d, s%d, 1" % (sT0, sWV))
    A("s_cmp_lg_u32 s%d, %d" % (sT0, QW // 2))
    A("s_cbranch_scc1 Lnext")
    A.label("Lqpoll")
    A("global_load_dwordx4 %s, %s, %s sc1" % (V(vQ, 4), V(aHQG), sp(sHQ)))
    A("s_waitcnt vmcnt(0)")
    if QSPEC:
        A("v_mfma_f32_16x16x32_bf16 %s, %s, %s, 0" % (V(QD, 4), V(vSEL, 4), V(vQ, 4)))
    maxtree(vM, range(vQ, vQ + 4))
    poll_tail("Lqpoll", vM)
    if not QSPEC:
        A("v_mfma_f32_16x16x32_bf16 %s, %s, %s, 0" % (V(QD, 4), V(vSEL, 4), V(vQ, 4)))
    for i in range(2):
        A("v_cvt_pk_bf16_f32 %s, %s, %s" % (V(vQ + i), V(QD + 2 * i), V(QD + 2 * i + 1)))
    A("s_mov_b32 exec_hi, 0")
    A("ds_write_b64 %s, %s" % (V(lQW), V(vQ, 2)))
    A("s_mov_b32 exec_hi, -1")
    A.label("Lnext")
    add64(sHO, "%d" % L_HO)
    for r in HXB:
        add64(r, "%d" % L_HX)
    for r in (lXC, lXP, lXS):
        A("v_add_u32 %s, %d, %s" % (V(r), XSB - XSA, V(r)))
    A("s_mov_b32 s%d, 1" % sL)
    stamp("qs")
    A("s_waitcnt lgkmcnt(0)")
    A("s_barrier")
    stamp("q1")
    A("s_branch Latt")
    A.label("Lhelper")
    spin(20, 1, "Lhelp_spin")
    A("s_cmp_eq_u32 s%d, 2" % sT0)
    A("s_cbranch_scc1 Lmlp")
    A("s_branch Lexit")
    A.label("Lxchk")
    A("s_mov_b32 exec_hi, s%d" % sT2)
    maxtree(vM, range(vA, vA + 16))
    A("v_cmp_eq_u32 vcc, -1, %s" % V(vM))
    A("s_mov_b32 exec_hi, 0")
    A("s_cbranch_vccz Lxok")
    A("s_sub_u32 s%d, s%d, 1" % (sCNT, sCNT))
    A("s_cbranch_scc0 Lxpoll")
    A("s_mov_b32 s%d, 0" % sCNT)
    A("s_branch Lxok")
    A.label("Lfinal")
    A("s_cmp_lg_u32 s%d, 0" % sWV)
    A("s_cbranch_scc1 Lexit")
    A("v_lshlrev_b32 v249, 2, v1")
    A("v_lshlrev_b32 v250, 1, v1")
    for i in range(4):
        A("global_store_dword v249, %s, %s offset:%d" % (V(vHP + i), sp(sOUT), 256 * i))
    A("global_store_short v250, %s, %s offset:1024" % (V(vHP + 4), sp(sOUT)))
    A("v_mov_b32 v252, %d" % (FLG + 20))
    A("v_mov_b32 v253, 1")
    A("ds_max_u32 v252, v253")
    A.label("Lexit")
    if DIAG:
        A("v_mov_b32 v251, s98")
        stamp("end")
        A("s_memtime %s" % sp(sMSK))
        A("s_waitcnt lgkmcnt(0)")
        A("s_sub_u32 s100, s%d, s100" % sMSK)
        A("s_lshl_b32 s%d, s2, 3" % sT0)
        A("s_add_u32 s%d, s%d, s%d" % (sT0, sT0, sWV))
        A("s_lshl_b32 s%d, s%d, 7" % (sT0, sT0))
        A("s_add_u32 s%d, s%d, %d" % (sT0, sT0, W_DIAG))
        A("v_mov_b32 v249, s%d" % sT0)
        A("s_mov_b64 exec, 1")
        for i in range(stamp_n[0]):
            A("v_mov_b32 v250, s%d" % (sSTAMP + 2 * i))
            A("global_store_dword v249, v250, %s offset:%d" % (sp(sWS), 4 * i))
        A("global_store_dword v249, v251, %s offset:112" % sp(sWS))
        A("v_mov_b32 v250, s100")
        A("global_store_dword v249, v250, %s offset:116" % sp(sWS))
        A("v_mov_b32 v250, s%d" % sCNT)
        A("global_store_dword v249, v250, %s offset:120" % sp(sWS))
        A("v_mov_b32 v250, s%d" % sFAST)
        A("global_store_dword v249, v250, %s offset:124" % sp(sWS))
        A("s_or_b32 s%d, s2, s%d" % (sT0, sWV))
        A("s_cbranch_scc1 Lend")
        A("v_mov_b32 v249, 0")
        for i in range(1, stamp_n[0]):
            A("s_sub_u32 s%d, s%d, s%d" % (sT0, sSTAMP + 2 * i, sSTAMP))
            A("v_mov_b32 v250, s%d" % sT0)
            A("global_store_dword v249, v250, %s offset:%d" % (sp(sDBG), 4 * i))
        A("v_mov_b32 v250, s100")
        A("global_store_dword v249, v250, %s offset:0" % sp(sDBG))
        A("v_mov_b32 v250, s%d" % sCNT)
        A("global_store_dword v249, v250, %s offset:60" % sp(sDBG))
    A.label("Lend")
    A("s_endpgm")

    A.label("Lqstage")
    for i in range(4):
        A("ds_write_b32 %s, %s offset:%d" % (V(lNW), V(vXR + i), 256 * i))
    A("ds_write_b16 %s, %s" % (V(lNH), V(vXR + 4)))
    for i in range(4):
        A("v_lshlrev_b32 %s, 16, %s" % (V(vXA + 2 * i), V(vXR + i)))
        A("v_and_b32 %s, 0xffff0000, %s" % (V(vXA + 2 * i + 1), V(vXR + i)))
    A("v_lshlrev_b32 %s, 16, %s" % (V(vXA + 8), V(vXR + 4)))
    if XNWAIT:
        A("s_waitcnt lgkmcnt(0)")
    for ks in range(4):
        A("ds_read_b128 %s, %s offset:%d" % (V(vA + 4 * ks, 4), V(lNR), 64 * ks))
    A("ds_read_b64 %s, %s" % (V(vA + 16, 2), V(lNR2)))
    stats_lane(vS)
    rest = stats_wave(vS, False)
    rest.append("v_mul_f32 %s, %s, %s" % (V(vS + 4), V(vS), V(vS + 2)))
    vQC = vA + 24
    for i in range(4):
        rest.append("v_pk_mul_f32 %s, %s, %s op_sel_hi:[1,0] neg_lo:[1,0] neg_hi:[1,0]" % (
            V(vQC + 2 * i, 2), V(vSQ + 2 * i, 2), bc(vS + 4)))
    acc = (vP, 244)
    per = [2, 2, 2, 2, 2, 2, 2, 2, 3, 100]
    for ks in range(5):
        A("s_waitcnt lgkmcnt(%d)" % (4 - ks))
        for u in range(2):
            if ks < 4:
                A("v_mfma_f32_16x16x32_bf16 %s, %s, %s, %s" % (
                    V(acc[u], 4), V(vWQ + 18 * u + 4 * ks, 4), V(vA + 4 * ks, 4), V(acc[u], 4) if ks else "0"))
            else:
                A("v_mfma_f32_16x16x16_bf16 %s, %s, %s, %s" % (V(acc[u], 4), V(vWQ + 18 * u + 16, 2), V(vA + 16, 2), V(acc[u], 4)))
            n = per[2 * ks + u]
            for l in rest[:n]:
                A(l)
            rest = rest[n:]
    for u in range(2):
        for i in range(2):
            A("v_pk_fma_f32 %s, %s, %s, %s op_sel_hi:[1,0,1]" % (
                V(acc[u] + 2 * i, 2), V(acc[u] + 2 * i, 2), bc(vS + 2), V(vQC + 4 * u + 2 * i, 2)))
        for i in range(2):
            A("v_cvt_pk_bf16_f32 %s, %s, %s" % (V(vA + 2 * u + i), V(acc[u] + 2 * i), V(acc[u] + 2 * i + 1)))
    A("s_mov_b32 exec_lo, 0x00010001")
    A("s_mov_b32 exec_hi, 0x00010001")
    store2(["global_store_dwordx4 %s, %s, %s" % (V(aHQS), V(vA, 4), sp(sHQ))])
    A("s_mov_b64 exec, -1")
    A("s_nop 0")
    A("s_setpc_b64 %s" % sp(sRET))

    A.label("Lkshuf")
    for pr in range(4):
        a, b = vK + 8 * pr, vK + 8 * pr + 4
        for d in range(4):
            A("v_mov_b32 %s, %s" % (V(vA + 16 + d), V(a + d)))
        for d in range(4):
            A("v_mov_b32_dpp %s, %s row_ror:8 row_mask:0xf bank_mask:0xc" % (V(a + d), V(b + d)))
        for d in range(4):
            A("v_mov_b32_dpp %s, %s row_ror:8 row_mask:0xf bank_mask:0x3" % (V(b + d), V(vA + 16 + d)))
    A("s_setpc_b64 %s" % sp(sRET))
    A.label("Lvperm")
    A("s_mov_b32 s%d, 0x05040100" % sT0)
    A("s_mov_b32 s%d, 0x07060302" % sT1)
    for j in range(8):
        for e in range(4):
            A("v_perm_b32 %s, %s, %s, s%d" % (
                V(vVT + 4 * j + e), V(vVR + 4 * (2 * e + 1) + (j >> 1)), V(vVR + 4 * (2 * e) + (j >> 1)), sT1 if j & 1 else sT0))
    for i in range(4):
        A("v_mov_b32 %s, 0x3f803f80" % V(vONES + i))
    A("v_and_b32 %s, 1, v1" % V(vMA))
    A("v_lshlrev_b32 %s, 4, %s" % (V(vMA), V(vMA)))
    A("v_lshlrev_b32 %s, %s, %s" % (V(vMA), V(vMA), V(vONES)))
    A("v_bfe_u32 %s, v1, 1, 3" % V(vMA + 1))
    A("v_and_b32 %s, 1, v1" % V(vMA + 2))
    A("v_cmp_eq_u32 vcc, 0, %s" % V(vMA + 2))
    A("v_and_b32 %s, 0xffff, %s" % (V(vMA + 2), V(vMA)))
    A("v_cndmask_b32 %s, %s, %s, vcc" % (V(vMA), V(vMA), V(vMA + 2)))
    for d in range(4):
        A("v_cmp_eq_u32 vcc, %d, %s" % (d, V(vMA + 1)))
        A("v_cndmask_b32 %s, 0, %s, vcc" % (V(vSEL + d), V(vMA)))
    A("s_setpc_b64 %s" % sp(sRET))
    A.label("Laddr")
    A("v_bfe_u32 v250, v24, 2, 1")
    A("v_lshlrev_b32 v249, 8, v250")
    A("v_lshl_add_u32 v249, v25, 4, v249")
    A("v_add_u32 %s, %d, v249" % (V(aHQL), QL))
    A("s_and_b32 s%d, s%d, 1" % (sT0, sWV))
    A("s_lshl_b32 s%d, s%d, 8" % (sT0, sT0))
    A("v_lshl_add_u32 v249, v24, 4, s%d" % sT0)
    A("v_lshl_add_u32 %s, v25, 9, v249" % V(aHQG))
    A("v_and_b32 v250, 1, v25")
    A("v_lshl_add_u32 v249, v250, 3, v249")
    A("v_add_u32 %s, %d, v249" % (V(lQW), QL))
    A("s_lshl_b32 s%d, s%d, 8" % (sT0, sS))
    A("s_lshl_b32 s%d, s%d, 6" % (sT1, sWV))
    A("s_add_u32 s%d, s%d, s%d" % (sT0, sT0, sT1))
    A("v_lshl_add_u32 %s, v25, 4, s%d" % (V(aHQS), sT0))
    A("s_lshl_b32 s%d, s%d, 7" % (sT0, sWV))
    A("v_lshl_add_u32 v249, v27, 4, s%d" % sT0)
    A("v_lshl_add_u32 %s, v26, 10, v249" % V(aHOL))
    A("s_lshl_b32 s%d, s%d, 10" % (sT1, sS))
    A("v_add_u32 %s, s%d, v249" % (V(aHOS), sT1))
    A("v_mul_u32_u24 v250, %d, v26" % PSTR)
    A("v_add_u32 v250, %d, v250" % PART)
    A("v_add_u32 %s, v249, v250" % V(lPR))
    A("s_mul_i32 s%d, s%d, %d" % (sT0, sWV, RSTR))
    A("s_add_u32 s%d, s%d, %d" % (sT0, sT0, RED))
    A("v_lshl_add_u32 %s, v24, 2, s%d" % (V(lOW), sT0))
    A("s_lshr_b32 s%d, s%d, 2" % (sT0, sWV))
    A("s_lshl_b32 s%d, s%d, 3" % (sT0, sT0))
    A("v_lshl_add_u32 %s, v26, 4, s%d" % (V(aHML), sT0))
    A("v_add_u32 %s, %d, %s" % (V(lMR), ML, V(aHML)))
    A("s_lshl_b32 s%d, s%d, 8" % (sT0, sWV))
    A("v_lshl_add_u32 v249, v24, 4, s%d" % sT0)
    A("v_mul_u32_u24 v250, 1152, v25")
    A("v_add_u32 %s, v249, v250" % V(aHXL))
    A("v_and_b32 v253, 1, v25")
    A("v_lshlrev_b32 v249, 1, v249")
    A("v_lshl_add_u32 v249, v253, 4, v249")
    A("v_add_u32 %s, %d, v249" % (V(lXC), XSA))
    A("s_mul_i32 s%d, s%d, 1152" % (sT0, sHKV))
    A("s_mul_i32 s%d, s%d, 144" % (sT1, sS))
    A("s_add_u32 s%d, s%d, s%d" % (sT0, sT0, sT1))
    A("v_lshl_add_u32 %s, v1, 3, s%d" % (V(aHXS), sT0))
    A("s_mul_i32 s%d, s%d, %d" % (sT0, sWV, PSTR))
    A("s_add_u32 s%d, s%d, %d" % (sT0, sT0, PART))
    A("v_lshlrev_b32 v249, 9, v253")
    A("v_lshl_add_u32 v249, v24, 2, v249")
    A("v_add_u32 %s, s%d, v249" % (V(lPW), sT0))
    A("s_lshl_b32 s%d, s%d, 4" % (sT0, sWV))
    A("s_add_u32 s%d, s%d, %d" % (sT0, sT0, ML))
    A("v_lshl_add_u32 %s, v253, 3, s%d" % (V(lMW), sT0))
    A("v_lshlrev_b32 v249, 4, v1")
    A("v_add_u32 %s, %d, v249" % (V(lOR), RED))
    A("v_lshlrev_b32 v249, 4, v25")
    A("v_lshlrev_b32 v250, 3, v1")
    A("v_add_u32 %s, %d, v250" % (V(lXP), XSA))
    A("v_add_u32 %s, %d, v28" % (V(lXS), XSA + 2048))
    A("s_and_b32 s%d, s%d, 3" % (sT0, sWV))
    A("s_mul_i32 s%d, s%d, 1152" % (sT0, sT0))
    A("s_add_u32 s%d, s%d, %d" % (sT0, sT0, XN))
    A("v_add_u32 %s, s%d, v28" % (V(lNW), sT0))
    A("s_add_u32 s%d, s%d, 1024" % (sT1, sT0))
    A("v_add_u32 %s, s%d, v29" % (V(lNH), sT1))
    A("s_mul_i32 s%d, s%d, 288" % (sT1, sP))
    A("s_add_u32 s%d, s%d, s%d" % (sT0, sT0, sT1))
    A("v_add_u32 %s, s%d, v249" % (V(lNR), sT0))
    A("s_add_u32 s%d, s%d, 256" % (sT0, sT0))
    A("v_lshl_add_u32 %s, v25, 3, s%d" % (V(lNR2), sT0))
    A("v_bfe_u32 v250, v1, 2, 2")
    A("v_lshl_add_u32 v250, v25, 3, v250")
    A("v_mul_u32_u24 v233, 144, v250")
    A("v_and_b32 v250, 3, v1")
    A("v_lshl_add_u32 v233, v250, 3, v233")
    A("s_mul_i32 s%d, s%d, %d" % (sT0, sWV, 32 * 144))
    A("s_add_u32 s%d, s%d, %d" % (sT0, sT0, WOS))
    A("v_add_u32 v233, s%d, v233" % sT0)
    A("s_mov_b32 s%d, 0" % sFB)
    A("v_mov_b32 %s, %s" % (V(vINV), fl(1.0 / 576)))
    A("v_mov_b32 %s, %s" % (V(vC1), fl((1.0 + 1e-5) / 576)))
    A("v_mov_b32 %s, %s" % (V(vEPS), fl(1e-5)))
    A("v_mov_b32 %s, %s" % (V(vEPS2), fl(1e-10)))
    add64(sOUT, "s%d" % oX)
    A("s_mov_b32 s%d, 0" % sL)
    A("s_mov_b32 s%d, 0" % sFAST)
    A("s_mov_b32 s%d, %d" % (sCNT, POLL_LIMIT))
    A("s_mov_b32 s%d, %s" % (sSMC, fl(SMC)))
    A("s_setpc_b64 %s" % sp(sRET))

    A.label("Lfallback")
    A("v_mov_b32 v252, %d" % (FLG + 20))
    A("v_lshlrev_b32 v253, 1, s%d" % sL)
    A("ds_max_u32 v252, v253")
    fw, ft = vMA, 244
    A("s_mul_i32 s%d, s%d, 8704" % (sT1, sWV))
    A("s_add_u32 s%d, s%d, %d" % (sT1, sT1, KB))
    A("v_lshl_add_u32 v250, v1, 4, s%d" % sT1)
    A("v_lshl_add_u32 v251, v1, 2, s%d" % sT1)
    for i in range(3):
        A("ds_read_b128 %s, v250 offset:%d" % (V(fw + 10 * i, 4), 2304 * i))
        A("ds_read_b128 %s, v250 offset:%d" % (V(fw + 10 * i + 4, 4), 2304 * i + 1024))
        A("ds_read_b32 %s, v251 offset:%d" % (V(fw + 10 * i + 8), 2304 * i + 2048))
    for i in range(9):
        A("v_bfe_u32 %s, %s, %d, 4" % (V(vM), V(vHS + (i >> 1)), 11 + 16 * (i & 1)))
        A("v_cmp_ne_u32 %s, 0, %s" % (sp(sMSK), V(vM)))
        A("v_%s %s, %s, %s" % (("and_b32" if i & 1 else "lshlrev_b32"), V(vM), ("0xffff0000" if i & 1 else "16"), V(vHP + (i >> 1))))
        A.label("Lfb_l%d" % i)
        A("s_cmp_eq_u64 %s, 0" % sp(sMSK))
        A("s_cbranch_scc1 Lfb_n%d" % i)
        A("s_ff1_i32_b64 s%d, %s" % (sT3, sp(sMSK)))
        A("s_bitset0_b64 %s, s%d" % (sp(sMSK), sT3))
        A("v_readlane_b32 s%d, %s, s%d" % (sFH, V(vM), sT3))
        A("s_call_b64 %s, Lfb_eval" % sp(sRET))
        A("s_mov_b32 m0, s%d" % sT3)
        A("v_writelane_b32 %s, s%d, m0" % (V(vY + i), sT0))
        A("s_branch Lfb_l%d" % i)
        A.label("Lfb_n%d" % i)
    A("s_branch Lfb_done")
    A.label("Lfb_eval")
    A("v_mov_b32 %s, 0" % V(ft))
    A("v_mov_b32 %s, 0" % V(ft + 1))
    A("v_mov_b32 %s, %s" % (V(ft + 2), fl(-K1)))
    A("v_mov_b32 %s, %s" % (V(ft + 6), fl(-K0)))
    A("v_mov_b32 %s, 1.0" % V(ft + 4))
    A("s_waitcnt lgkmcnt(0)")
    seqs = []
    for j in range(9):
        b = vS if j & 1 else vA
        a, c, w, t = (V(b + 2 * i, 2) for i in range(4))
        q = []
        for i in range(3):
            q.append("v_lshlrev_b32 %s, 16, %s" % (V(b + 2 * i), V(fw + 10 * i + j)))
            q.append("v_and_b32 %s, 0xffff0000, %s" % (V(b + 2 * i + 1), V(fw + 10 * i + j)))
        q += ["v_pk_fma_f32 %s, %s, %s, %s op_sel_hi:[1,0,1]" % (a, a, sp(sFH), c),
              "v_pk_mul_f32 %s, %s, %s" % (t, a, a),
              "v_pk_mul_f32 %s, %s, %s" % (w, w, a),
              "v_pk_fma_f32 %s, %s, %s, %s op_sel_hi:[1,0,0]" % (t, t, bc(ft + 2), bc(ft + 6)),
              "v_pk_mul_f32 %s, %s, %s" % (t, t, a),
              "v_exp_f32 %s, %s" % (V(b + 6), V(b + 6)),
              "v_exp_f32 %s, %s" % (V(b + 7), V(b + 7)),
              "v_pk_add_f32 %s, %s, %s op_sel_hi:[1,0]" % (t, t, V(ft + 4, 2)),
              "v_rcp_f32 %s, %s" % (V(b + 6), V(b + 6)),
              "v_rcp_f32 %s, %s" % (V(b + 7), V(b + 7)),
              "v_pk_fma_f32 %s, %s, %s, %s" % (V(ft, 2), w, t, V(ft, 2))]
        seqs.append(q)
    for j in range(0, 8, 2):
        for l0, l1 in zip(seqs[j], seqs[j + 1]):
            A(l0)
            A(l1)
    for l in seqs[8]:
        A(l)
    A("v_add_f32 %s, %s, %s" % (V(ft), V(ft), V(ft + 1)))
    for ctl in WAVE6:
        A("v_add_f32_dpp %s, %s, %s %s" % (V(ft), V(ft), V(ft), ctl))
    A("s_and_b32 s%d, s%d, 4" % (sT0, sFB))
    A("s_lshl_b32 s%d, s%d, 2" % (sT0, sT0))
    A("s_add_u32 s%d, s%d, %d" % (sT0, sT0, FB))
    A("s_lshl_b32 s%d, s%d, 2" % (sT1, sWV))
    A("s_add_u32 s%d, s%d, s%d" % (sT1, sT1, sT0))
    A("v_mov_b32 %s, s%d" % (V(ft + 5), sT1))
    A("v_mov_b32 %s, s%d" % (V(ft + 6), sT0))
    A("s_add_u32 s%d, s%d, 4" % (sFB, sFB))
    A("s_mov_b32 exec_lo, 0")
    A("s_mov_b32 exec_hi, 0x80000000")
    A("ds_write_b32 %s, %s" % (V(ft + 5), V(ft)))
    A("s_mov_b64 exec, -1")
    arrive_wait(16, 0, None)
    A.label("Lfb_spin")
    A("ds_read_b32 v253, v252")
    A("s_waitcnt lgkmcnt(0)")
    A("v_readfirstlane_b32 s%d, v253" % sT0)
    spin_tail("Lfb_spin", "s%d" % sFB)
    A("ds_read_b128 %s, %s" % (V(ft, 4), V(ft + 6)))
    A("s_waitcnt lgkmcnt(0)")
    A("v_pk_add_f32 %s, %s, %s" % (V(ft, 2), V(ft, 2), V(ft + 2, 2)))
    A("v_add_f32 %s, %s, %s" % (V(ft), V(ft), V(ft + 1)))
    A("v_cvt_pk_bf16_f32 %s, %s, %s" % (V(ft), V(ft), V(ft)))
    A("v_lshlrev_b32 %s, 16, %s" % (V(ft), V(ft)))
    A("v_add_f32 %s, %s, %s" % (V(ft), V(ft), V(vB2)))
    A("v_cvt_pk_bf16_f32 %s, %s, %s" % (V(ft), V(ft), V(ft)))
    A("v_lshlrev_b32 %s, 16, %s" % (V(ft), V(ft)))
    A("v_readfirstlane_b32 s%d, %s" % (sT0, V(ft)))
    A("s_nop 3")
    A("s_setpc_b64 %s" % sp(sRET))

    A.label("Lcode_end")
    body = A.finish()
    head = open("interleave_layers__sliding_block_cached__mixer_token_mlp__decode.s.ref").read().split(
        "; Override launch geometry")[0]
    head += "; @launch grid=(256,1,1) block=(512,1,1) lds=%d\n" % LDS
    if DIAG:
        head += "; STAMPS: " + " ".join(STAMPS) + "\n"
    head += '.amdgcn_target "amdgcn-amd-amdhsa--gfx950"\n.text\n.globl %s\n.p2align 8\n.type %s,@function\n' % (NAME, NAME)
    tail = """.section .rodata,"a"
.p2align 6
.amdhsa_kernel %s
  .amdhsa_next_free_vgpr 256
  .amdhsa_next_free_sgpr 102
  .amdhsa_accum_offset 256
  .amdhsa_group_segment_fixed_size 0
  .amdhsa_kernarg_size 104
  .amdhsa_user_sgpr_count 2
  .amdhsa_user_sgpr_kernarg_segment_ptr 1
  .amdhsa_system_sgpr_workgroup_id_x 1
.end_amdhsa_kernel
""" % NAME
    return head + body + tail


if __name__ == "__main__":
    out = sys.argv[1]
    kw = {}
    for a in sys.argv[2:]:
        k, v = a.split("=")
        kw[k] = eval(v)
    open(out, "w").write(gen(**kw))
```

```python
import math, struct, sys
from asmlib import Asm

NAME = "interleave_layers__sliding_block_cached__mixer_token_mlp__decode_kernel"


def f2u(x):
    return struct.unpack("<I", struct.pack("<f", x))[0]


def hx(x):
    return "0x%08x" % (x & 0xFFFFFFFF)


def fl(x):
    return hx(f2u(x))


def gen(DIAG=False, NTKV=" nt", NTW=" nt", E_LO=114, FORCE_SLOW=False, POLL_LIMIT=1 << 20,
        STAMPS="start wq q0 wo fl kv tab ho0 og0 hx0 xs0 q1 ho1 hx1 end",
        VSCHED={1: 1, 2: 1, 3: 1, 4: 1}, VBEARLY=False, WOGATE=8, WIN=12, WINO=63, QSPEC=False, DUMP=False, QW=4, QD=24, WO1=8, LEAD=False, FEARLY=False, XMASK=False, QPOS=0, NREP=3, WOB=False, WOEARLY=True, WIN1=12, ENDSTAMP=False, WB=0, XNWAIT=False, XPACE="ack", NOTAB=False, PREF=True, BPRIO=0):
    assert not LEAD and NREP in (1, 3, 6)
    A = Asm()
    LOG2E = math.log2(math.e)
    K0 = 2 * math.sqrt(2 / math.pi) * LOG2E
    K1 = K0 * 0.044715
    SC = K1 ** (1.0 / 3.0)
    KAP = K0 / SC
    SMC = 128 ** -0.5 * LOG2E
    E0 = E_LO << 7
    TABP, WQS, PART, PSTR = 0, 4096, 40960, 1040
    ML, OV, XSA, XSB, XN, TRED = 49280, 49408, 49920, 52224, 54528, 59136
    TABN, WOS, FLG = 65536, WQS, 59648
    QL, KB, VB = 60416, 69632, 104448
    RED, RSTR, FB = QL + 512, 320, FLG + 32
    LDS = 139264
    W_HQ, W_HO, W_HT, W_HX, W_DIAG = 0, 131072, 655360, 663552, 1 << 20
    W_HY = W_HT + 8192
    L_HQ, L_HO, L_HM, L_HX = 65536, 262144, 4096, 36864
    sX, sK, sV, sWQ, sWO, sW1, sB1, sW2, sB2, sOUT, sDBG, sWS = 4, 6, 8, 10, 12, 16, 18, 20, 22, 24, 26, 28
    sWV, sHKV, sB, sS, sGID, sL, sFAST, sXCC, sCNT, sP = 30, 31, 32, 33, 34, 35, 36, 37, 38, 39
    sH, sRET, sHQ, sHO, sHM, sHX = 40, 56, 58, 60, 62, 64
    sT0, sT1, sT2, sSMC, sT3 = 66, 67, 68, 69, 3
    sMSK = 14
    sXM = 22
    sHXS, sXD = 20, 19
    sHY, sYW = 16, 18
    sFB, sFH = 10, 12
    sSTAMP = 70

    def sp(r):
        return "s[%d:%d]" % (r, r + 1)

    def V(a, n=1):
        return "v%d" % a if n == 1 else "v[%d:%d]" % (a, a + n - 1)

    vT, vL = 0, 1
    aHQL, aHQS, aHOL, aHOS, aHML, aHXL, aHXS = 2, 3, 4, 5, 6, 7, 11
    vC1, vEPS2, vEPS = 8, 9, 10
    vSQ = 188
    aHQG, lQW = 98, 99
    lNR2, vSEL = 96, 196
    sHX1, sHX2, sHX3 = 4, 6, 8
    lPW, lPR, lMR, lMW, lOW, lOR, lXC, lXP, lXS, lNW, lNH, lNR = 12, 13, 14, 15, 16, 17, 18, 19, 20, 21, 22, 23
    vS = 24
    vK = 32
    vA = 64
    vVT = 100
    vWQ = 132
    vWO = 168
    vVR = 200
    vONES, vMA, vB2 = 200, 204, 97
    vRW, vCA, vCC, vCW, vKAP, vONE, vSCL = 132, (162, 32), (164, 34), (166, 36), 250, 38, 252
    vQ = 234
    vXA = 234
    vP = 250
    vINV, vM = 254, 255
    vACC, vTT = 168, 184
    STAMPS = STAMPS.split()
    stamp_n = [len(STAMPS)]

    def stamp(name):
        if DIAG and "#" + name in STAMPS:
            A("s_mov_b32 s%d, s%d" % (sSTAMP + 2 * STAMPS.index("#" + name), sCNT))
        if DIAG and name in STAMPS:
            A("s_memrealtime %s" % sp(sSTAMP + 2 * STAMPS.index(name)))
            A("s_waitcnt lgkmcnt(0)")

    def stampL(name):
        if DIAG and any(p + name + l in STAMPS for p in ("", "#") for l in "01"):
            A("s_cmp_eq_u32 s%d, 0" % sL)
            A("s_cbranch_scc0 Lst_%s" % name)
            stamp(name + "0")
            A("s_branch Lste_%s" % name)
            A.label("Lst_%s" % name)
            stamp(name + "1")
            A.label("Lste_%s" % name)

    def bc(r):
        assert r % 2 == 0
        return V(r, 2)

    def add64(base, off_reg):
        A("s_add_u32 s%d, s%d, %s" % (base, base, off_reg))
        A("s_addc_u32 s%d, s%d, 0" % (base + 1, base + 1))

    def store2(text):
        n = len(A.lines)
        A("s_cmp_eq_u32 s%d, 0" % sFAST)
        A("s_cbranch_scc1 Lsl%d" % n)
        for t in text:
            A(t)
        A("s_branch Lsd%d" % n)
        A.label("Lsl%d" % n)
        for t in text:
            A(t + " sc1")
        A.label("Lsd%d" % n)

    def maxtree(dst, regs):
        regs = list(regs)
        A("v_max3_u32 %s, %s, %s, %s" % (V(dst), V(regs[0]), V(regs[1]), V(regs[2])))
        regs = regs[3:]
        while len(regs) >= 2:
            A("v_max3_u32 %s, %s, %s, %s" % (V(dst), V(dst), V(regs[0]), V(regs[1])))
            regs = regs[2:]
        if regs:
            A("v_max_u32 %s, %s, %s" % (V(dst), V(dst), V(regs[0])))

    def poll_tail(label, tmp, mask=None):
        A("v_cmp_eq_u32 vcc, -1, %s" % V(tmp))
        if mask:
            A("s_or_b32 vcc_lo, vcc_lo, vcc_hi")
            A("s_and_b32 vcc_lo, vcc_lo, %s" % mask)
            A("s_cbranch_scc0 %s_ok" % label)
        else:
            A("s_cbranch_vccz %s_ok" % label)
        A("s_sub_u32 s%d, s%d, 1" % (sCNT, sCNT))
        A("s_cbranch_scc0 %s" % label)
        A("s_mov_b32 s%d, 0" % sCNT)
        A.label("%s_ok" % label)

    DPP = " row_mask:0xf bank_mask:0xf"

    def stats_lane(t):
        x = lambda i: V(vXA + 2 * i, 2)
        a, b, q = V(t, 2), V(t + 2, 2), V(t + 4, 2)
        S, Q = t + 6, t + 7
        A("v_pk_add_f32 %s, %s, %s" % (a, x(0), x(1)))
        A("v_pk_mul_f32 %s, %s, %s" % (q, x(0), x(0)))
        A("v_pk_add_f32 %s, %s, %s" % (b, x(2), x(3)))
        A("v_pk_fma_f32 %s, %s, %s, %s" % (q, x(1), x(1), q))
        A("v_pk_add_f32 %s, %s, %s" % (a, a, b))
        A("v_pk_fma_f32 %s, %s, %s, %s" % (q, x(2), x(2), q))
        A("v_add_f32 %s, %s, %s" % (V(S), V(t), V(vXA + 8)))
        A("v_pk_fma_f32 %s, %s, %s, %s" % (q, x(3), x(3), q))
        A("v_add_f32 %s, %s, %s" % (V(S), V(S), V(t + 1)))
        A("v_fma_f32 %s, %s, %s, %s" % (V(Q), V(vXA + 8), V(vXA + 8), V(t + 4)))
        A("v_add_f32 %s, %s, %s" % (V(Q), V(Q), V(t + 5)))

    WAVE6 = ("quad_perm:[1,0,3,2]" + DPP, "quad_perm:[2,3,0,1]" + DPP, "row_half_mirror" + DPP,
             "row_mirror" + DPP, "row_bcast:15 row_mask:0xa bank_mask:0xf", "row_bcast:31 row_mask:0xc bank_mask:0xf")

    def stats_wave(t, twice):
        S, Q = t + 6, t + 7
        o = []
        for ctl in WAVE6:
            o.append("v_add_f32_dpp %s, %s, %s %s" % (V(S), V(S), V(S), ctl))
            o.append("v_add_f32_dpp %s, %s, %s %s" % (V(Q), V(Q), V(Q), ctl))
        o.append("v_readlane_b32 s%d, %s, 63" % (sT0, V(S)))
        o.append("v_readlane_b32 s%d, %s, 63" % (sT1, V(Q)))
        c, e = (vC1, vEPS2) if twice else (vINV, vEPS)
        o.append("v_mul_f32 %s, s%d, %s" % (V(t), sT0, V(vINV)))
        if twice:
            o.append("v_mul_f32 %s, s%d, %s" % (V(t + 2), sT0, V(vC1)))
        o.append("v_fma_f32 %s, s%d, %s, %s" % (V(t + 1), sT1, V(c), V(e)))
        o.append("v_fma_f32 %s, -%s, %s, %s" % (V(t + 1), V(t + 2 if twice else t), V(t), V(t + 1)))
        o.append("v_max_f32 %s, %s, %s" % (V(t + 1), V(e), V(t + 1)))
        o.append("v_rsq_f32 %s, %s" % (V(t + 2), V(t + 1)))
        return o

    def normalize(dst, t, r):
        A("v_mul_f32 %s, %s, %s" % (V(t + 4), V(t), V(r)))
        for i in range(4):
            A("v_pk_fma_f32 %s, %s, %s, %s op_sel_hi:[1,0,0] neg_lo:[0,0,1] neg_hi:[0,0,1]" % (
                V(dst + 2 * i, 2), V(vXA + 2 * i, 2), bc(r), bc(t + 4)))
        A("v_fma_f32 %s, %s, %s, -%s" % (V(dst + 8), V(vXA + 8), V(r), V(t + 4)))

    def reduce8(o, ml, M, e, norm, mid=None, fill=()):
        A("v_max_f32_dpp %s, %s, %s quad_perm:[1,0,3,2]%s" % (V(M), V(ml), V(ml), DPP))
        for l in fill[:2]:
            A(l)
        A("v_max_f32_dpp %s, %s, %s quad_perm:[2,3,0,1]%s" % (V(M), V(M), V(M), DPP))
        for l in fill[2:]:
            A(l)
        A("v_max_f32_dpp %s, %s, %s row_half_mirror%s" % (V(M), V(M), V(M), DPP))
        A("v_sub_f32 %s, %s, %s" % (V(e), V(ml), V(M)))
        A("v_exp_f32 %s, %s" % (V(e), V(e)))
        A("v_mov_b32 %s, %s" % (V(ml), V(M)))
        if mid:
            A(mid)
        A("v_mul_f32 %s, %s, %s" % (V(ml + 1), V(ml + 1), V(e)))
        for i in range(2):
            A("v_pk_mul_f32 %s, %s, %s op_sel_hi:[1,0]" % (V(o + 2 * i, 2), V(o + 2 * i, 2), bc(e)))
        for ctl in ("quad_perm:[1,0,3,2]", "quad_perm:[2,3,0,1]", "row_half_mirror"):
            for r in (ml + 1, o, o + 1, o + 2, o + 3):
                A("v_add_f32_dpp %s, %s, %s %s%s" % (V(r), V(r), V(r), ctl, DPP))
        if norm:
            A("v_rcp_f32 %s, %s" % (V(e), V(ml + 1)))
            for i in range(2):
                A("v_pk_mul_f32 %s, %s, %s op_sel_hi:[1,0]" % (V(o + 2 * i, 2), V(o + 2 * i, 2), bc(e)))

    vXR = vA + 20
    aK, aV, aW = vA, vA + 1, vA + 2

    aK2, aV2, aD, vFL = vWO, vWO + 1, vWO + 2, vWO + 4

    def win():
        if WIN < 63:
            A("s_waitcnt vmcnt(%d)" % (WIN - 1))

    def dma8(base, lds):
        A("s_mul_i32 s%d, s%d, 8704" % (sT1, sWV))
        for i in range(8):
            A("s_add_u32 m0, s%d, %d" % (sT1, lds + 1088 * i - 1024 * (i & 3)))
            win()
            A("global_load_lds_dwordx4 %s, %s offset:%d%s" % (V(aD + (i >> 2)), sp(base), 1024 * (i & 3), NTKV))

    def kloads(aK):
        for T in range(2):
            if T == 1 and FEARLY:
                look()
            for hf in range(2):
                for sub in range(2):
                    win()
                    A("global_load_dwordx4 %s, %s, %s offset:%d%s" % (
                        V(vK + 16 * T + 4 * (2 * hf + sub), 4), V(aK), sp(sK), (16 * T + 8 * sub) * 256 + hf * 128 - 4096, NTKV))

    def look():
        A("s_cmp_lg_u32 s%d, 0" % sWV)
        A("s_cbranch_scc1 Lnolook")
        A("v_lshlrev_b32 v250, 2, v1")
        A("global_load_dword %s, v250, %s sc1" % (V(vFL), sp(sDBG)))
        A.label("Lnolook")

    def vload(i, aV):
        win()
        A("global_load_dwordx4 %s, %s, %s offset:%d%s" % (
            V(vVR + 4 * i, 4), V(aV), sp(sV), (16 * (i >> 2) + (i & 3)) * 256 - 4096, NTKV))

    def spin_tail(name, count):
        A("s_cmp_ge_u32 s%d, %s" % (sT0, count))
        A("s_cbranch_scc1 %s_ok" % name)
        A("s_sub_u32 s%d, s%d, 1" % (sCNT, sCNT))
        A("s_cbranch_scc0 %s" % name)
        A("s_mov_b32 s%d, 0" % sCNT)
        A.label("%s_ok" % name)

    def arrive_wait(off, count, name):
        A("v_mov_b32 v252, %d" % (FLG + off))
        A("v_mov_b32 v253, 1")
        A("s_mov_b64 exec, 1")
        A("ds_add_u32 v252, v253")
        A("s_mov_b64 exec, -1")
        if name is None:
            return
        A.label(name)
        A("ds_read_b32 v253, v252")
        A("s_waitcnt lgkmcnt(0)")
        A("v_readfirstlane_b32 s%d, v253" % sT0)
        spin_tail(name, "%d" % count)

    def spin(off, count, name):
        A("v_mov_b32 v252, %d" % (FLG + off))
        A.label(name)
        A("ds_read_b32 v253, v252")
        A("s_waitcnt lgkmcnt(0)")
        A("v_readfirstlane_b32 s%d, v253" % sT0)
        spin_tail(name, "%d" % count)

    A.label(NAME)
    A("s_cmp_ge_u32 s2, 0x100")
    A("s_cbranch_scc1 Lend")
    if DIAG:
        A("s_memrealtime s[98:99]")
    A("s_load_dwordx16 s[4:19], s[0:1], 0")
    A("s_load_dwordx8 s[20:27], s[0:1], 64")
    A("s_load_dwordx2 s[28:29], s[0:1], 96")
    A("v_lshrrev_b32 v24, 6, v0")
    A("v_and_b32 v1, 63, v0")
    A("v_readfirstlane_b32 s%d, v24" % sWV)
    if PREF:
        A("s_cmp_lg_u32 s%d, 3" % sWV)
        A("s_cbranch_scc1 Lnopref")
        A("s_getpc_b64 %s" % sp(sHQ))
        A.label("Lpc")
        A("v_lshlrev_b32 v24, 7, v1")
        A("v_add_u32 v25, 0x2000, v24")
        A("v_min_u32 v25, Lcode_end-Lpc-4, v25")
        A("global_load_dword v198, v24, %s" % sp(sHQ))
        A("global_load_dword v199, v25, %s" % sp(sHQ))
        A.label("Lnopref")
    A("s_and_b32 s%d, s2, 7" % sT0)
    A("s_lshr_b32 s%d, s2, 3" % sT1)
    A("s_lshr_b32 s%d, s%d, 4" % (sT2, sT1))
    A("s_lshl_b32 s%d, s%d, 1" % (sHKV, sT0))
    A("s_add_u32 s%d, s%d, s%d" % (sHKV, sHKV, sT2))
    A("s_bfe_u32 s%d, s%d, 0x10003" % (sB, sT1))
    A("s_and_b32 s%d, s%d, 7" % (sS, sT1))
    A("s_lshl_b32 s%d, s%d, 4" % (sGID, sB))
    A("s_add_u32 s%d, s%d, s%d" % (sGID, sGID, sHKV))
    A("s_lshr_b32 s%d, s%d, 1" % (sP, sS))
    A("v_lshlrev_b32 v28, 2, v1")
    A("v_lshlrev_b32 v29, 1, v1")
    A("v_mov_b32 %s, 0" % V(vB2))
    A("v_mov_b32 v248, 0")
    A("v_and_b32 v24, 15, v1")
    A("v_lshrrev_b32 v25, 4, v1")
    A("v_and_b32 v26, 7, v1")
    A("v_lshrrev_b32 v27, 3, v1")
    A("v_and_b32 v249, 1, v27")
    A("v_lshl_add_u32 v249, v249, 2, v25")
    A("v_lshlrev_b32 v249, 4, v249")
    A("v_lshl_add_u32 %s, v26, 8, v249" % V(aK))
    A("v_lshlrev_b32 v249, 4, v24")
    A("v_lshl_add_u32 %s, v25, 10, v249" % V(aV))
    oX, oKV, oWQ = sH, sH + 1, sH + 2
    A("s_mul_i32 s%d, s%d, 1152" % (oX, sB))
    A("s_lshl_b32 s%d, s%d, 21" % (oKV, sGID))
    A("s_lshl_b32 s%d, s%d, 16" % (sT1, sS))
    A("s_add_u32 s%d, s%d, s%d" % (oKV, oKV, sT1))
    A("s_lshl_b32 s%d, s%d, 13" % (sT1, sWV))
    A("s_add_u32 s%d, s%d, s%d" % (oKV, oKV, sT1))
    A("s_add_u32 s%d, s%d, %d" % (oKV, oKV, 6144 * 256 + 4096))

    def bases():
        for (r, base, mul, src) in ((sHQ, W_HQ, 2048, sGID), (sHO, W_HO, 8192, sGID), (sHX, W_HX, 18432, sB)):
            A("s_mul_i32 s%d, s%d, %d" % (sT0, src, mul))
            if base:
                A("s_add_u32 s%d, s%d, %d" % (sT0, sT0, base))
            A("s_add_u32 s%d, s%d, s%d" % (r, sWS, sT0))
            A("s_addc_u32 s%d, s%d, 0" % (r + 1, sWS + 1))

    A("s_cmp_gt_u32 s%d, 3" % sWV)
    A("s_cbranch_scc1 Lrole_b")
    A("s_mul_i32 s%d, s%d, %d" % (oWQ, sP, 144 * 8192))
    A("s_lshl_b32 s%d, s%d, 9" % (sT1, sHKV))
    A("s_add_u32 s%d, s%d, s%d" % (oWQ, oWQ, sT1))
    A("s_and_b32 s%d, s%d, 1" % (sT1, sS))
    A("s_lshl_b32 s%d, s%d, 8" % (sT1, sT1))
    A("s_add_u32 s%d, s%d, s%d" % (oWQ, oWQ, sT1))
    A("s_lshl_b32 s%d, s%d, 15" % (sT1, sWV))
    A("s_add_u32 s%d, s%d, s%d" % (oWQ, oWQ, sT1))
    A("v_lshlrev_b32 v249, 2, v25")
    A("v_xor_b32 v249, v249, v24")
    A("v_lshlrev_b32 v249, 4, v249")
    A("v_lshl_add_u32 %s, v25, 13, v249" % V(aW))
    A("v_mov_b32 v249, %d" % FLG)
    A("ds_write2_b32 v249, v248, v248 offset0:1 offset1:2")
    A("ds_write2_b32 v249, v248, v248 offset0:3 offset1:4")
    A("ds_write_b32 v249, v248 offset:20")
    A("v_lshlrev_b32 %s, 4, v1" % V(aD))
    A("v_add_u32 %s, %d, %s" % (V(aD), 32768 - 4096, V(aD)))
    A("v_add_u32 %s, 4096, %s" % (V(aD + 1), V(aD)))
    A("s_getreg_b32 s%d, hwreg(HW_REG_XCC_ID, 0, 4)" % sXCC)
    A("s_cmp_lg_u32 s%d, 2" % sWV)
    A("s_cbranch_scc1 Linit_a")
    for i in range(4):
        A("v_mov_b32 %s, -1" % V(244 + i))
    A("s_lshl_b32 s%d, s%d, 13" % (sT1, sGID))
    A("s_lshl_b32 s%d, s%d, 10" % (sT2, sS))
    A("s_add_u32 s%d, s%d, s%d" % (sT1, sT1, sT2))
    A("s_add_u32 s%d, s%d, %d" % (sT1, sT1, W_HO))
    A("v_lshl_add_u32 v251, v1, 4, s%d" % sT1)
    A("v_add_u32 v252, %d, v251" % L_HO)
    A("s_lshl_b32 s%d, s%d, 8" % (sT1, sS))
    A("s_lshl_b32 s%d, s%d, 11" % (sT2, sGID))
    A("s_add_u32 s%d, s%d, s%d" % (sT1, sT1, sT2))
    A("v_lshl_add_u32 v249, v1, 4, s%d" % sT1)

    def seg(first, sreg, const):
        A("v_cmp_le_u32 vcc, %d, v1" % first)
        A("s_add_u32 s%d, s%d, %d" % (sT0, sreg, const - 16 * first))
        A("v_lshl_add_u32 v250, v1, 4, s%d" % sT0)
        A("v_cndmask_b32 v249, v249, v250, vcc")

    seg(16, sT1, W_HQ + L_HQ)
    A("s_lshl_b32 s%d, s2, 7" % sT1)
    seg(32, sT1, W_HT)
    per = (9 * (NREP + 1) + 7) // 8
    A("v_min_u32 v243, %d, v27" % (per - 1))
    A("s_mul_i32 s%d, s%d, %d" % (sT0, sS, per))
    A("v_add_u32 v243, s%d, v243" % sT0)
    A("v_min_u32 v243, %d, v243" % (9 * (NREP + 1) - 1))
    A("v_mul_u32_u24 v250, 7282, v243")
    A("v_lshrrev_b32 v250, 16, v250")
    A("v_mul_u32_u24 v250, %d, v250" % (L_HX - 1152))
    A("v_lshl_add_u32 v243, v243, 7, v250")
    A("v_lshl_add_u32 v243, v26, 4, v243")
    A("s_mul_i32 s%d, s%d, 1152" % (sT0, sGID))
    A("s_add_u32 s%d, s%d, %d" % (sT0, sT0, W_HX))
    A("v_add_u32 v243, s%d, v243" % sT0)
    A("s_cmp_lt_u32 s2, 64")
    A("s_cselect_b32 s%d, 0xff, 0" % sT0)
    A("s_waitcnt lgkmcnt(0)")
    A("global_store_dwordx4 v251, v[244:247], %s sc1" % sp(sWS))
    A("global_store_dwordx4 v252, v[244:247], %s sc1" % sp(sWS))
    A("global_store_dwordx4 v243, v[244:247], %s sc1" % sp(sWS))
    A("s_mov_b32 exec_hi, s%d" % sT0)
    A("global_store_dwordx4 v249, v[244:247], %s sc1" % sp(sWS))
    A("s_mov_b32 exec_hi, -1")
    A.label("Linit_a")
    A("s_waitcnt lgkmcnt(0)")
    stamp("start")
    if DIAG:
        A("s_memtime s[100:101]")
        A("s_waitcnt lgkmcnt(0)")
    add64(sX, "s%d" % oX)
    add64(sWQ, "s%d" % oWQ)
    A("global_load_short_d16_hi %s, v248, %s" % (V(vB2), sp(sB2)))
    for i in range(4):
        A("global_load_dword %s, v28, %s offset:%d" % (V(vXR + i), sp(sX), 256 * i))
    A("global_load_ushort %s, v29, %s offset:1024" % (V(vXR + 4), sp(sX)))
    add64(sK, "s%d" % oKV)
    add64(sV, "s%d" % oKV)
    A("s_lshl_b32 s%d, s%d, 10" % (sT1, sWV))
    A("s_barrier")
    for i in range(9):
        A("s_add_u32 m0, s%d, %d" % (sT1, WQS + 4096 * i))
        if i:
            A("v_add_u32 %s, 0x20000, %s" % (V(aW), V(aW)))
        A("global_load_lds_dwordx4 %s, %s%s" % (V(aW), sp(sWQ), NTW))
    A("s_cmp_lg_u32 s%d, 2" % sWV)
    A("s_cbranch_scc1 Lnoflag")
    A("s_or_b32 s%d, s%d, 0x80" % (sT0, sXCC))
    A("s_and_b32 s%d, s2, 3" % sT1)
    A("s_lshl_b32 s%d, s%d, 3" % (sT1, sT1))
    A("s_lshl_b32 s%d, s%d, s%d" % (sT0, sT0, sT1))
    A("s_and_b32 s%d, s2, 0xfc" % sT1)
    A("v_mov_b32 v249, s%d" % sT1)
    A("v_mov_b32 v250, s%d" % sT0)
    A("s_waitcnt vmcnt(15)")
    A("s_mov_b64 exec, 1")
    A("global_atomic_or v249, v250, %s sc1" % sp(sDBG))
    A("s_mov_b64 exec, -1")
    A.label("Lnoflag")
    dma8(sK, KB)
    kloads(aK)
    bases()
    A("s_call_b64 %s, Laddr" % sp(sRET))
    A("v_bfe_u32 v248, v1, 2, 2")
    A("v_xor_b32 v249, s%d, v248" % sWV)
    A("v_and_b32 v250, 3, v1")
    A("v_lshl_add_u32 v249, v249, 2, v250")
    A("v_lshlrev_b32 v249, 4, v249")
    A("v_lshl_add_u32 v249, v248, 8, v249")
    A("v_add_u32 v249, %d, v249" % WQS)
    A("v_lshrrev_b32 v250, 4, v1")
    A("v_lshl_add_u32 v248, v250, 10, v249")
    A("v_lshl_add_u32 v249, v250, 11, v249")
    for i in range(4):
        A("v_mov_b32 %s, 0x3f803f80" % V(244 + i))
    A("v_mov_b32 %s, %s" % (V(aV2), V(aV)))
    aV = aV2
    A("s_waitcnt vmcnt(16)")
    arrive_wait(4, 4, "Lsync_a")
    stamp("wq")
    for u in range(2):
        for ks in range(4):
            for hh in range(2):
                A("ds_read_b64_tr_b16 %s, v249 offset:%d" % (V(vWQ + 18 * u + 4 * ks + 2 * hh, 2), (32 * ks + 4 * hh) * 256 + 8 * u))
        A("ds_read_b64_tr_b16 %s, v248 offset:%d" % (V(vWQ + 18 * u + 16, 2), 128 * 256 + 8 * u))
    A("s_waitcnt lgkmcnt(0)")
    for ks in range(4):
        for u in range(2):
            A("v_mfma_f32_16x16x32_bf16 %s, %s, v[244:247], %s" % (
                V(vSQ + 4 * u, 4), V(vWQ + 18 * u + 4 * ks, 4), V(vSQ + 4 * u, 4) if ks else "0"))
    A("s_nop 5")
    for u in range(2):
        A("v_mfma_f32_16x16x16_bf16 %s, %s, v[244:245], %s" % (V(vSQ + 4 * u, 4), V(vWQ + 18 * u + 16, 2), V(vSQ + 4 * u, 4)))
    A("s_mov_b32 s%d, -1" % sYW)
    A("s_call_b64 %s, Lqstage" % sp(sRET))
    A("s_mov_b32 s%d, 0" % sYW)
    arrive_wait(4, 0, None)
    stamp("q0")
    if not FEARLY:
        look()
    dma8(sV, VB)
    A("s_waitcnt vmcnt(16)")
    arrive_wait(12, 0, None)
    A("s_call_b64 %s, Lsel" % sp(sRET))
    A("s_cmp_eq_u32 s%d, 0" % sWV)
    A("s_cbranch_scc1 Lwave0")
    for i in range(8):
        vload(i, aV)
    stamp("iss")
    A("s_cmp_lg_u32 s%d, 3" % sWV)
    A("s_cbranch_scc1 Lnox0")
    for i in range(4):
        A("ds_write_b64 %s, %s offset:%d" % (V(lXP), V(vXA + 2 * i, 2), 512 * i))
    A("ds_write_b32 %s, %s" % (V(lXS), V(vXA + 8)))
    A.label("Lnox0")
    def woaddr(half):
        A("s_mul_i32 s%d, s%d, %d" % (sT0, sHKV, 256 * 1152))
        A("s_mul_i32 s%d, s%d, 144" % (sT1, sS))
        A("s_add_u32 s%d, s%d, s%d" % (sT0, sT0, sT1))
        if half:
            A("s_add_u32 s%d, s%d, %d" % (sT0, sT0, 128 * 1152))
        add64(sWO, "s%d" % sT0)
        A("s_mul_i32 s%d, s%d, 48" % (sT0, sWV))
        A("s_sub_u32 s%d, s%d, %d" % (sT0, sT0, 48 * (1 + 4 * half)))
        A("v_min_u32 v248, 47, v1")
        A("v_add_u32 v248, s%d, v248" % sT0)
        A("v_mul_u32_u24 v250, 7282, v248")
        A("v_lshrrev_b32 v250, 16, v250")
        A("v_mul_u32_u24 v250, %d, v250" % (9216 - 144))
        A("v_lshl_add_u32 %s, v248, 4, v250" % V(vA))

    woaddr(0)
    A("s_waitcnt vmcnt(16)")
    A("s_call_b64 %s, Lkshuf" % sp(sRET))
    spin(4, 9, "Lsync_wo")

    def woloads(lo, hi, window, first=1):
        A("s_mul_i32 s%d, s%d, 768" % (sT1, sWV))
        A("s_mov_b32 exec_hi, 0xffff")
        for i in range(lo, hi):
            A("s_add_u32 m0, s%d, %d" % (sT1, WOS - 768 * first + 2304 * i))
            if i and not (first == 5 and i == lo):
                add64(sWO, "%d" % (1152 * (121 if i == 8 else 1)))
            if window(i) < 63:
                A("s_waitcnt vmcnt(%d)" % (window(i) - 1))
            A("global_load_lds_dwordx4 %s, %s%s" % (V(vA), sp(sWO), NTW))
        A("s_mov_b32 exec_hi, -1")

    woloads(0, WO1, lambda i: WIN1)
    A("s_waitcnt vmcnt(%d)" % (8 + WO1))
    stamp("wo")
    A("s_branch Lmeet")
    A.label("Lwave0")
    A("s_lshr_b32 s%d, s2, 6" % sT0)
    A("s_lshl_b32 s%d, s%d, 4" % (sT0, sT0))
    A("s_bfe_u32 s%d, s2, 0x10002" % sT1)
    A("s_add_u32 s%d, s%d, s%d" % (sT0, sT0, sT1))
    A("s_mov_b64 %s, 0x5555" % sp(sMSK))
    A("s_lshl_b64 %s, %s, s%d" % (sp(sMSK), sp(sMSK), sT0))
    A("s_and_b32 s%d, s2, 3" % sT2)
    A("s_lshl_b32 s%d, s%d, 3" % (sT2, sT2))
    A("v_lshlrev_b32 v250, 2, v1")
    A("s_waitcnt vmcnt(%d)" % (12 if FEARLY else 8))
    A("s_branch Lflagchk")
    A.label("Lflagpoll")
    A("s_sleep 8")
    A("global_load_dword %s, v250, %s sc1" % (V(vFL), sp(sDBG)))
    A("s_waitcnt vmcnt(0)")
    A.label("Lflagchk")
    A("v_bfe_u32 v251, %s, s%d, 8" % (V(vFL), sT2))
    A("v_cmp_gt_u32 vcc, 0x80, v251")
    A("s_and_b64 vcc, vcc, %s" % sp(sMSK))
    A("s_cbranch_scc0 Lflagok")
    A("s_sub_u32 s%d, s%d, 1" % (sCNT, sCNT))
    A("s_cbranch_scc0 Lflagpoll")
    A("s_mov_b32 s%d, 0" % sCNT)
    A.label("Lflagok")
    stamp("fl")
    for i in range(QPOS):
        vload(i, aV)
    for h in range(2):
        A("global_load_dwordx4 %s, %s, %s offset:%d sc1" % (V(vQ + 4 * h, 4), V(aHQG), sp(sHQ), 256 * h))
    A("global_load_dword %s, v250, %s sc1" % (V(vA), sp(sDBG)))
    A("v_and_b32 v251, 15, v251")
    A("v_cmp_ne_u32 vcc, s%d, v251" % sXCC)
    A("v_mov_b32 v251, %d" % FLG)
    A("s_and_b64 vcc, vcc, %s" % sp(sMSK))
    A("s_cselect_b32 s%d, 0, %d" % (sT0, 0 if FORCE_SLOW else 1))
    A("v_mov_b32 v253, s%d" % sT0)
    A("ds_write_b32 v251, v253")
    arrive_wait(4, 0, None)
    for i in range(QPOS, 8):
        vload(i, aV)
    stamp("iss")
    A("s_call_b64 %s, Lkshuf" % sp(sRET))
    A("s_waitcnt vmcnt(%d)" % (8 - QPOS))
    A("s_branch Lq0chk")
    A.label("Lq0poll")
    A("s_sleep 2")
    for h in range(2):
        A("global_load_dwordx4 %s, %s, %s offset:%d sc1" % (V(vQ + 4 * h, 4), V(aHQG), sp(sHQ), 256 * h))
    A("global_load_dword %s, v250, %s sc1" % (V(vA), sp(sDBG)))
    A("s_waitcnt vmcnt(0)")
    A.label("Lq0chk")
    for h in range(2):
        A("v_mfma_f32_16x16x32_bf16 %s, %s, %s, 0" % (V(vS + 4 * h, 4), V(vSEL, 4), V(vQ + 4 * h, 4)))
    maxtree(vM, range(vQ, vQ + 8))
    A("v_and_b32 %s, 0x80808080, %s" % (V(vA), V(vA)))
    A("v_cmp_ne_u32 vcc, 0x80808080, %s" % V(vA))
    A("v_cndmask_b32 %s, %s, -1, vcc" % (V(vM), V(vM)))
    poll_tail("Lq0poll", vM)
    for i in range(4):
        A("v_cvt_pk_bf16_f32 %s, %s, %s" % (V(vQ + i), V(vS + 2 * i), V(vS + 2 * i + 1)))
    A("s_mov_b32 exec_hi, 0")
    for h in range(2):
        A("ds_write_b64 %s, %s offset:%d" % (V(lQW), V(vQ + 2 * h, 2), 256 * h))
    A("s_mov_b32 exec_hi, -1")
    A("s_branch Lmeet")
    aK, aV = vA, vA + 1
    A.label("Lrole_b")
    if BPRIO:
        A("s_setprio %d" % BPRIO)
    A("v_subrev_u32 v31, 0x100, v0")
    A("v_lshlrev_b32 v30, 4, v31")
    A("v_add_u32 v249, 0x1000, v30")
    A("v_lshlrev_b32 v31, 2, v31")
    A("v_add_u32 v31, 0x2000, v31")
    A("s_waitcnt lgkmcnt(0)")
    stamp("start")
    if DIAG:
        A("s_memtime s[100:101]")
        A("s_waitcnt lgkmcnt(0)")
    for i in range(3):
        r, p = vRW + 10 * i, sp((sW1, sB1, sW2)[i])
        A("global_load_dwordx4 %s, v30, %s" % (V(r, 4), p))
        A("global_load_dwordx4 %s, v249, %s" % (V(r + 4, 4), p))
        A("global_load_dword %s, v31, %s" % (V(r + 8), p))
    A("global_load_short_d16_hi %s, v248, %s" % (V(vB2), sp(sB2)))
    A("s_barrier")
    stamp("iss")
    bases()
    A("s_call_b64 %s, Laddr" % sp(sRET))
    A("s_and_b32 s%d, s2, 127" % sT0)
    A("s_lshl_b32 s%d, s%d, 4" % (sT0, sT0))
    A("s_add_u32 s%d, s%d, %d" % (sT0, sT0, E0))
    A("s_lshr_b32 s%d, s2, 7" % sT1)
    A("s_lshl_b32 s%d, s%d, 15" % (sT1, sT1))
    A("s_add_u32 s%d, s%d, s%d" % (sT0, sT0, sT1))
    A("v_add_u32 v249, s%d, v1" % sT0)
    A("v_lshlrev_b32 v249, 16, v249")
    A("v_mul_f32 v249, %s, v249" % fl(SC))
    A("v_mov_b32 %s, %s" % (V(vKAP), fl(KAP)))
    A("v_mov_b32 %s, 1.0" % V(vONE))
    A("v_mov_b32 %s, %s" % (V(vSCL), fl(SC)))
    for i in range(16):
        A("v_readlane_b32 s%d, v249, %d" % (sH + i, i))
        A("v_mov_b32 %s, 0" % V(vACC + i))
    A("s_mov_b32 s%d, 0" % sT3)
    A("s_waitcnt vmcnt(0)")
    stamp("wq")
    A.label("Ltabloop")
    A("s_set_gpr_idx_on s%d, gpr_idx(SRC1)" % sT3)
    for i, d in enumerate((vCA, vCC, vCW)):
        A("v_lshlrev_b32 %s, 16, %s" % (V(d[0]), V(vRW + 10 * i)))
        A("v_and_b32 %s, 0xffff0000, %s" % (V(d[1]), V(vRW + 10 * i)))
    A("s_set_gpr_idx_off")
    for f in range(2):
        A("v_mul_f32 %s, %s, %s" % (V(vCC[f]), V(vCC[f]), V(vSCL)))
    for f in range(2):
        for k2 in range(0 if NOTAB else 4):
            seq = []
            for h in range(2):
                k = 2 * k2 + h
                u, t, e, uw = (V(vTT + 8 * h + 2 * i, 2) for i in range(4))
                e0, e1 = vTT + 8 * h + 4, vTT + 8 * h + 5
                t0, t1 = vTT + 8 * h + 2, vTT + 8 * h + 3
                seq.append([
                    "v_pk_fma_f32 %s, %s, %s, %s op_sel_hi:[0,1,0]" % (u, bc(vCA[f]), sp(sH + 2 * k), bc(vCC[f])),
                    "v_pk_fma_f32 %s, %s, %s, %s op_sel_hi:[1,1,0]" % (t, u, u, bc(vKAP)),
                    "v_pk_mul_f32 %s, %s, %s neg_lo:[1,0] neg_hi:[1,0]" % (t, t, u),
                    "v_exp_f32 %s, %s" % (V(e0), V(t0)),
                    "v_exp_f32 %s, %s" % (V(e1), V(t1)),
                    "v_pk_mul_f32 %s, %s, %s op_sel_hi:[1,0]" % (uw, u, bc(vCW[f])),
                    "v_pk_add_f32 %s, %s, %s op_sel_hi:[1,0]" % (e, e, bc(vONE)),
                    "v_rcp_f32 %s, %s" % (V(e0), V(e0)),
                    "v_rcp_f32 %s, %s" % (V(e1), V(e1)),
                    "v_pk_fma_f32 %s, %s, %s, %s" % (V(vACC + 2 * k, 2), uw, e, V(vACC + 2 * k, 2)),
                ])
            s0, s1 = seq
            for l in (s0[0], s1[0], s0[1], s1[1], s0[2], s1[2], s0[3], s0[4], s1[3], s1[4], s0[5], s0[6], s1[5], s1[6],
                      s0[7], s0[8], s1[7], s1[8], s0[9], s1[9]):
                A(l)
    A("s_add_u32 s%d, s%d, 1" % (sT3, sT3))
    A("s_cmp_lt_u32 s%d, 9" % sT3)
    A("s_cbranch_scc1 Ltabloop")
    stamp("q0")
    for k in range(8):
        A("v_permlane32_swap_b32 %s, %s" % (V(vACC + 2 * k), V(vACC + 2 * k + 1)))
    for k in range(8):
        A("v_add_f32 %s, %s, %s" % (V(vACC + 2 * k), V(vACC + 2 * k), V(vACC + 2 * k + 1)))
    for k in range(4):
        A("v_permlane16_swap_b32 %s, %s" % (V(vACC + 4 * k), V(vACC + 4 * k + 2)))
    for k in range(4):
        A("v_add_f32 %s, %s, %s" % (V(vACC + 4 * k), V(vACC + 4 * k), V(vACC + 4 * k + 2)))
    for ctl in ("quad_perm:[1,0,3,2]", "quad_perm:[2,3,0,1]", "row_half_mirror", "row_mirror"):
        for k in range(4):
            A("v_add_f32_dpp %s, %s, %s %s%s" % (V(vACC + 4 * k), V(vACC + 4 * k), V(vACC + 4 * k), ctl, DPP))
    A("v_lshrrev_b32 v251, 5, v1")
    A("v_bfe_u32 v250, v1, 4, 1")
    A("v_lshl_add_u32 v251, v250, 1, v251")
    A("s_lshl_b32 s%d, s%d, 6" % (sT0, sWV))
    A("s_add_u32 s%d, s%d, %d" % (sT0, sT0, TRED - 256))
    A("v_lshl_add_u32 v251, v251, 2, s%d" % sT0)
    A("s_mov_b32 exec_lo, 0x00010001")
    A("s_mov_b32 exec_hi, 0x00010001")
    A("ds_write2_b32 v251, %s, %s offset0:0 offset1:4" % (V(vACC), V(vACC + 4)))
    A("ds_write2_b32 v251, %s, %s offset0:8 offset1:12" % (V(vACC + 8), V(vACC + 12)))
    A("s_mov_b64 exec, -1")
    if BPRIO:
        A("s_setprio 0")
    arrive_wait(8, 0, None)
    A("s_cmp_lg_u32 s%d, 7" % sWV)
    A("s_cbranch_scc1 Lnotab")
    spin(8, 4, "Lsync_b")
    A("v_and_b32 v250, 15, v1")
    A("v_lshlrev_b32 v250, 2, v250")
    A("v_add_u32 v251, %d, v250" % TRED)
    for i in range(2):
        A("ds_read2_b32 %s, v251 offset0:%d offset1:%d" % (V(vS + 2 * i, 2), 32 * i, 32 * i + 16))
    A("s_waitcnt lgkmcnt(0)")
    A("v_pk_add_f32 %s, %s, %s" % (V(vS, 2), V(vS, 2), V(vS + 2, 2)))
    A("v_add_f32 %s, %s, %s" % (V(vS), V(vS), V(vS + 1)))
    A("v_mul_f32 %s, %s, %s" % (V(vS), fl(1.0 / SC), V(vS)))
    A("v_cvt_pk_bf16_f32 %s, %s, %s" % (V(vS), V(vS), V(vS)))
    A("v_lshlrev_b32 %s, 16, %s" % (V(vS), V(vS)))
    A("v_add_f32 %s, %s, %s" % (V(vS), V(vS), V(vB2)))
    A("v_mov_b32_dpp %s, %s quad_perm:[1,1,3,3]%s" % (V(vS + 1), V(vS), DPP))
    A("v_cvt_pk_bf16_f32 %s, %s, %s" % (V(vS), V(vS), V(vS + 1)))
    A("v_lshrrev_b32 v250, 1, v250")
    A("s_lshl_b32 s%d, s2, 5" % sT0)
    A("s_add_u32 s%d, s%d, %d" % (sT0, sT0, W_HT))
    A("v_add_u32 v250, s%d, v250" % sT0)
    A("s_mov_b64 exec, 0x5555")
    A("global_store_dword v250, %s, %s sc1" % (V(vS), sp(sWS)))
    A("s_mov_b64 exec, -1")
    A.label("Lnotab")
    A("v_bfe_u32 v249, v1, 2, 2")
    A("v_mul_u32_u24 v249, 1088, v249")
    A("v_and_b32 v250, 3, v1")
    A("v_lshl_add_u32 v249, v250, 8, v249")
    A("v_lshrrev_b32 v250, 4, v1")
    A("v_lshl_add_u32 v249, v250, 4, v249")
    A("v_mul_u32_u24 v250, 1088, v250")
    A("v_and_b32 v251, 15, v1")
    A("v_lshl_add_u32 v250, v251, 4, v250")
    A("s_mul_i32 s%d, s%d, 8704" % (sT1, sWV))
    A("s_add_u32 s%d, s%d, %d" % (sT2, sT1, KB - 4 * 8704))
    A("v_add_u32 v249, s%d, v249" % sT2)
    A("s_add_u32 s%d, s%d, %d" % (sT2, sT1, VB - 4 * 8704))
    A("v_add_u32 %s, s%d, v250" % (V(vA + 1), sT2))
    spin(12, 4, "Lsync_kv")
    stamp("fl")
    for T in range(2):
        for ks in range(4):
            A("ds_read_b128 %s, v249 offset:%d" % (V(vK + 16 * T + 4 * ks, 4), T * 4352 + ks * 64))
    A("s_call_b64 %s, Lsel" % sp(sRET))
    if WOB:
        assert WO1 == 8
        A("s_cmp_eq_u32 s%d, 4" % sWV)
        A("s_cbranch_scc1 Lmeet")
        woaddr(1)
        spin(4, 9, "Lsync_wo2")
        woloads(8, 16, lambda i: 63, 5)
    A.label("Lmeet")
    if NREP > 1:
        A("s_mov_b64 %s, %s" % (sp(sHXS), sp(sHX)))
        A("s_and_b32 s%d, s2, 7" % sT0)
        A("s_mul_i32 s%d, s%d, %d" % (sT0, sT0, NREP))
        A("s_lshr_b32 s%d, s%d, 3" % (sT0, sT0))
        A("s_mul_i32 s%d, s%d, %d" % (sT0, sT0, L_HX))
        A("s_add_u32 s%d, s%d, s%d" % (sHX, sHXS, sT0))
        A("s_addc_u32 s%d, s%d, 0" % (sHX + 1, sHXS + 1))
        A("s_sub_u32 s%d, %d, s%d" % (sXD, NREP * L_HX, sT0))
        A("s_mov_b32 s%d, -1" % sXM)
        A("s_mov_b32 s%d, 0x3fffff" % (sXM + 1))
    for i, r in enumerate((sHX1, sHX2, sHX3)):
        A("s_add_u32 s%d, s%d, %d" % (r, sHX, 4608 * (i + 1)))
        A("s_addc_u32 s%d, s%d, 0" % (r + 1, sHX + 1))
    A("s_mul_i32 s%d, s%d, 1280" % (sT0, sGID))
    A("s_add_u32 s%d, s%d, %d" % (sT0, sT0, W_HY))
    A("s_add_u32 s%d, s%d, s%d" % (sHY, sWS, sT0))
    A("s_addc_u32 s%d, s%d, 0" % (sHY + 1, sWS + 1))
    A("v_mov_b32 v251, %d" % FLG)
    A("s_waitcnt lgkmcnt(0)")
    A("s_barrier")
    stamp("tab")
    A("ds_read_b32 v251, v251")
    A("s_waitcnt lgkmcnt(0)")
    A("v_readfirstlane_b32 s%d, v251" % sFAST)
    A.label("Latt")
    for ks in range(4):
        A("ds_read_b128 %s, %s offset:%d" % (V(vQ + 4 * ks, 4), V(aHQL), 64 * ks))
    for ks in range(4):
        A("s_waitcnt lgkmcnt(%d)" % (3 - ks))
        for T in range(2):
            A("v_mfma_f32_16x16x32_bf16 %s, %s, %s, %s" % (
                V(vS + 4 * T, 4), V(vK + 16 * T + 4 * ks, 4), V(vQ + 4 * ks, 4), V(vS + 4 * T, 4) if ks else "0"))
    A("s_cmp_eq_u32 s%d, 0" % sL)
    A("s_cbranch_scc1 Lv_read")
    A.label("Lv_read_done")
    stampL("qV")
    A("v_max3_f32 %s, %s, %s, %s" % (V(vM), V(vS), V(vS + 1), V(vS + 2)))
    A("v_max3_f32 %s, %s, %s, %s" % (V(vP), V(vS + 3), V(vS + 4), V(vS + 5)))
    A("v_max3_f32 %s, %s, %s, %s" % (V(vM), V(vM), V(vS + 6), V(vS + 7)))
    A("v_max_f32 %s, %s, %s" % (V(vP + 1), V(vM), V(vP)))
    A("v_max_f32 %s, %s, %s" % (V(vM), V(vM), V(vP)))
    A("v_permlane16_swap_b32 %s, %s" % (V(vM), V(vP + 1)))
    A("v_max_f32 %s, %s, %s" % (V(vP), V(vM), V(vP + 1)))
    A("v_max_f32 %s, %s, %s" % (V(vM), V(vM), V(vP + 1)))
    A("v_permlane32_swap_b32 %s, %s" % (V(vM), V(vP)))
    A("v_max_f32 %s, %s, %s" % (V(vM), V(vM), V(vP)))
    A("v_mul_f32 %s, s%d, %s" % (V(vM), sSMC, V(vM)))
    for r in range(8):
        A("v_fma_f32 %s, %s, s%d, -%s" % (V(vS + r), V(vS + r), sSMC, V(vM)))
        if r:
            A("v_exp_f32 %s, %s" % (V(vS + r - 1), V(vS + r - 1)))
    A("v_exp_f32 %s, %s" % (V(vS + 7), V(vS + 7)))
    for r in range(4):
        A("v_cvt_pk_bf16_f32 %s, %s, %s" % (V(vP + r), V(vS + 2 * r), V(vS + 2 * r + 1)))
    A("s_cmp_eq_u32 s%d, 0" % sL)
    A("s_cbranch_scc1 Lv_wait")
    A.label("Lv_ready")
    stampL("sm")
    for j in range(8):
        A("v_mfma_f32_16x16x32_bf16 %s, %s, %s, 0" % (V(vA + 4 * j, 4), V(vP, 4), V(vVT + 4 * j, 4)))
    A("v_mfma_f32_16x16x32_bf16 %s, %s, %s, 0" % (V(vS, 4), V(vP, 4), V(vONES, 4)))
    A("s_mov_b32 exec_hi, 0")
    for j in range(0, 8, 2):
        A("ds_write2_b32 %s, %s, %s offset0:%d offset1:%d" % (V(lPW), V(vA + 4 * j), V(vA + 4 * j + 4), 16 * j, 16 * j + 16))
    A("s_mov_b32 exec_lo, 0x100001")
    A("ds_write2_b32 %s, %s, %s offset0:0 offset1:1" % (V(lMW), V(vM), V(vS)))
    A("s_mov_b64 exec, -1")
    A("s_waitcnt lgkmcnt(0)")
    stampL("pv")
    A("s_barrier")
    A("ds_read_b64 %s, %s" % (V(vA + 4, 2), V(lMR)))
    A("ds_read_b128 %s, %s" % (V(vA, 4), V(lPR)))
    A("s_waitcnt lgkmcnt(1)")
    reduce8(vA, vA + 4, vA + 7, vA + 6, False, "s_waitcnt lgkmcnt(0)")
    A("v_cvt_pk_bf16_f32 %s, %s, %s" % (V(vA + 3), V(vA + 2), V(vA + 3)))
    A("v_cvt_pk_bf16_f32 %s, %s, %s" % (V(vA + 2), V(vA), V(vA + 1)))
    A("s_mov_b32 exec_lo, 0x01010101")
    A("s_mov_b32 exec_hi, 0x01010101")
    store2(["global_store_dwordx4 %s, %s, %s" % (V(aHOS), V(vA + 2, 4), sp(sHO))])
    A("s_mov_b64 exec, -1")
    stampL("ho")
    A("s_cmp_eq_u32 s%d, 0" % sL)
    A("s_cbranch_scc1 Lstash")
    A.label("Lopoll")
    A("global_load_dwordx4 %s, %s, %s sc1" % (V(vA + 10, 4), V(aHOL), sp(sHO)))
    A("s_waitcnt vmcnt(0)")
    maxtree(vM, range(vA + 10, vA + 14))
    poll_tail("Lopoll", vM)
    stampL("og")
    A("s_cmp_lg_u32 s%d, 0" % sL)
    A("s_cbranch_scc1 Lnotg")
    A("v_lshlrev_b32 v249, 4, v0")
    A("v_add_u32 v248, %d, v249" % W_HT)
    if LEAD:
        A("s_cmp_lg_u32 s%d, 0" % sS)
        A("s_cbranch_scc1 Lnoht")
    A("global_load_dwordx4 %s, v248, %s sc1" % (V(vQ, 4), sp(sWS)))
    A.label("Lnoht")

    def woread():
        A("s_barrier")
        for t in range(5):
            for hh in range(2):
                A("ds_read_b64_tr_b16 %s, v233 offset:%d" % (V(vWO + 4 * t + 2 * hh, 2), 576 * hh + 32 * t))

    if not WOEARLY:
        woread()
    A.label("Lnotg")
    reduce8(vA + 16, vA + 12, vA + 15, vA + 14, True, fill=[
        "v_lshlrev_b32 %s, 16, %s" % (V(vA + 16), V(vA + 10)), "v_and_b32 %s, 0xffff0000, %s" % (V(vA + 17), V(vA + 10)),
        "v_lshlrev_b32 %s, 16, %s" % (V(vA + 18), V(vA + 11)), "v_and_b32 %s, 0xffff0000, %s" % (V(vA + 19), V(vA + 11))])
    A("v_cvt_pk_bf16_f32 %s, %s, %s" % (V(vA), V(vA + 16), V(vA + 17)))
    A("v_cvt_pk_bf16_f32 %s, %s, %s" % (V(vA + 1), V(vA + 18), V(vA + 19)))
    A("v_mov_b32_dpp %s, %s row_ror:8%s" % (V(vA + 2), V(vA), DPP))
    A("v_mov_b32_dpp %s, %s row_ror:8%s" % (V(vA + 3), V(vA + 1), DPP))
    A("s_waitcnt lgkmcnt(0)")
    for t in range(5):
        A("v_mfma_f32_16x16x32_bf16 %s, %s, %s, 0" % (V(vA + 4 + 4 * t, 4), V(vA, 4), V(vWO + 4 * t, 4)))
    A("s_mov_b64 exec, 0xffff")
    A("ds_write2_b32 %s, %s, %s offset0:0 offset1:16" % (V(lOW), V(vA + 4), V(vA + 8)))
    A("ds_write2_b32 %s, %s, %s offset0:32 offset1:48" % (V(lOW), V(vA + 12), V(vA + 16)))
    A("ds_write_b32 %s, %s offset:256" % (V(lOW), V(vA + 20)))
    A("s_mov_b64 exec, -1")
    A("s_waitcnt lgkmcnt(0)")
    A("s_barrier")
    stampL("ov")
    A("s_cmp_lg_u32 s%d, 0" % sWV)
    A("s_cbranch_scc1 Lwo_done")
    for w in range(8):
        A("ds_read_b128 %s, %s offset:%d" % (V(vA + 4 * w, 4), V(lOR), RSTR * w))
    for w in range(1, 8, 2):
        A("s_waitcnt lgkmcnt(%d)" % (7 - w))
        for i in range(2):
            A("v_pk_add_f32 %s, %s, %s" % (V(vA + 4 * w - 4 + 2 * i, 2), V(vA + 4 * w - 4 + 2 * i, 2), V(vA + 4 * w + 2 * i, 2)))
        if w in (3, 7):
            for i in range(2):
                A("v_pk_add_f32 %s, %s, %s" % (V(vA + 4 * w - 12 + 2 * i, 2), V(vA + 4 * w - 12 + 2 * i, 2), V(vA + 4 * w - 4 + 2 * i, 2)))
    for i in range(2):
        A("v_pk_add_f32 %s, %s, %s" % (V(vA + 2 * i, 2), V(vA + 2 * i, 2), V(vA + 16 + 2 * i, 2)))
    A("v_cvt_pk_bf16_f32 %s, %s, %s" % (V(vA), V(vA), V(vA + 1)))
    A("v_cvt_pk_bf16_f32 %s, %s, %s" % (V(vA + 1), V(vA + 2), V(vA + 3)))
    if NREP > 1:
        A("s_mov_b64 exec, %s" % sp(sXM))
        A("global_store_dwordx2 %s, %s, %s sc1" % (V(aHXS), V(vA, 2), sp(sHXS)))
        if NREP > 3:
            A("s_cmp_lg_u32 s%d, 0" % sL)
            A("s_cbranch_scc1 Lonecopy")
            A("global_store_dwordx2 %s, %s, %s sc1" % (V(aHML), V(vA, 2), sp(sHXS)))
            A.label("Lonecopy")
    else:
        A("s_mov_b64 exec, 0x3ffff")
        A("global_store_dwordx2 %s, %s, %s sc1" % (V(aHXS), V(vA, 2), sp(sHX)))
    A("s_mov_b64 exec, -1")
    A.label("Lwo_done")
    stampL("hx")
    A("s_cmp_eq_u32 s%d, 0" % sL)
    A("s_cbranch_scc1 %s" % ("Lwho" if LEAD else "Ltabg"))
    A("s_or_b32 s%d, s%d, s%d" % (sT0, sHKV, sS))
    A("s_cbranch_scc1 %s" % ("Lwb" if WB else "Lexit"))
    A("s_branch Lxwait")
    A.label("Ltpoll")
    A("s_sleep 4")
    A("global_load_dwordx4 %s, v248, %s sc1" % (V(vQ, 4), sp(sWS)))
    A("s_waitcnt vmcnt(0)")
    A.label("Ltabg")
    A("s_cmp_gt_u32 s%d, 3" % sWV)
    A("s_cselect_b32 s%d, %d, %d" % (sT0, TABN - 4096, TABP))
    A("v_add_u32 v250, s%d, v249" % sT0)
    A("s_waitcnt vmcnt(1)")
    A("s_cmp_eq_u32 s%d, 0" % sWV)
    A("s_cbranch_scc1 Ltabw")
    A("s_waitcnt vmcnt(0)")
    A.label("Ltabw")
    maxtree(vM, range(vQ, vQ + 4))
    poll_tail("Ltpoll", vM)
    A("ds_write_b128 v250, %s" % V(vQ, 4))
    A.label("Lxwait")
    A("ds_read_b128 %s, %s" % (V(vP, 4), V(lXC)))
    if XPACE == "ack":
        A("s_waitcnt vmcnt(0)")
    if XPACE != "none":
        A("s_barrier")
    stampL("xp")
    HXB = (sHX, sHX1, sHX2, sHX3)
    A("s_cmp_gt_u32 s%d, 4" % sWV)
    A("s_cbranch_scc1 Lxjoin")
    A("s_cmp_eq_u32 s%d, 4" % sWV)
    A("s_cselect_b32 s%d, 0x00ff00ff, -1" % sT2)
    A.label("Lxpoll")
    A("s_mov_b32 exec_lo, s%d" % sT2)
    A("s_mov_b32 exec_hi, s%d" % sT2)
    for i in range(4):
        A("global_load_dwordx4 %s, %s, %s sc1" % (V(vA + 4 * i, 4), V(aHXL), sp(HXB[i])))
    A("s_mov_b64 exec, -1")
    A.label("Lxsum")
    for i in range(4):
        A("s_waitcnt vmcnt(%d)" % (3 - i))
        A("v_mfma_f32_16x16x32_bf16 %s, %s, %s, %s" % (V(vS, 4), V(vSEL, 4), V(vA + 4 * i, 4), V(vS, 4) if i else "0"))
    A("s_mov_b32 exec_lo, s%d" % sT2)
    A("s_mov_b32 exec_hi, 0")
    A("s_waitcnt lgkmcnt(0)")
    A("v_cmp_u_f32 vcc, %s, %s" % (V(vS), V(vS)))
    A("v_cvt_pk_bf16_f32 %s, %s, %s" % (V(vS + 4), V(vS), V(vS + 1)))
    A("v_cvt_pk_bf16_f32 %s, %s, %s" % (V(vS + 5), V(vS + 2), V(vS + 3)))
    A("s_cbranch_vccnz Lxchk")
    A.label("Lxok")
    for rnd in range(2):
        for i in range(2):
            A("v_lshlrev_b32 %s, 16, %s" % (V(vS + 2 * i), V(vS + 4 + i)))
            A("v_and_b32 %s, 0xffff0000, %s" % (V(vS + 2 * i + 1), V(vS + 4 + i)))
        if rnd == 0:
            for i in range(2):
                A("v_pk_add_f32 %s, %s, %s" % (V(vS + 2 * i, 2), V(vS + 2 * i, 2), V(vP + 2 * i, 2)))
            for i in range(2):
                A("v_cvt_pk_bf16_f32 %s, %s, %s" % (V(vS + 4 + i), V(vS + 2 * i), V(vS + 2 * i + 1)))
    A("ds_write_b128 %s, %s" % (V(lXC), V(vS, 4)))
    A("s_mov_b64 exec, -1")
    A.label("Lxjoin")
    A("s_waitcnt lgkmcnt(0)")
    A("s_barrier")
    stampL("xs")
    A("s_cmp_gt_u32 s%d, 3" % sWV)
    A("s_cbranch_scc1 Lmlp_skip")
    A("s_mul_i32 s%d, s%d, s%d" % (sT0, sL, sWV))
    A("s_cmp_lg_u32 s%d, 0" % sT0)
    A("s_cbranch_scc1 Lhelper")
    A.label("Lmlp")
    for i in range(4):
        A("ds_read_b64 %s, %s offset:%d" % (V(vXA + 2 * i, 2), V(lXP), 512 * i))
    A("ds_read_b32 %s, %s" % (V(vXA + 8), V(lXS)))
    vH, vY, vHP, vHS, vAD, vST = vA, vA + 10, vXR, vA + 26, vA, vS
    for i in range(9):
        A("v_mov_b32 %s, 0" % V(vY + i))
    A("s_waitcnt lgkmcnt(0)")
    stats_lane(vST)
    for l in stats_wave(vST, True):
        A(l)
    normalize(vH, vST, vST + 2)
    A("s_mov_b32 s%d, %s" % (sT0, hx(E0 * 0x10001)))
    for i in range(5):
        A("v_cvt_pk_bf16_f32 %s, %s, %s" % (V(vHP + i), V(vH + 2 * i), V(vH + min(2 * i + 1, 8))))
    for i in range(5):
        A("v_pk_sub_u16 %s, %s, s%d" % (V(vHS + i), V(vHP + i), sT0))
    for i in range(9):
        A("v_lshlrev_b32_sdwa %s, 1, %s dst_sel:DWORD dst_unused:UNUSED_PAD src0_sel:DWORD src1_sel:WORD_%d" % (
            V(vAD + i), V(vHS + (i >> 1)), i & 1))
        A("ds_read_u16_d16_hi %s, %s offset:%d" % (V(vY + i), V(vAD + i), TABP))
    A("v_or3_b32 %s, %s, %s, %s" % (V(vM), V(vHS), V(vHS + 1), V(vHS + 2)))
    A("v_or3_b32 %s, %s, %s, %s" % (V(vM), V(vM), V(vHS + 3), V(vHS + 4)))
    A("v_and_b32 %s, 0x78007800, %s" % (V(vM), V(vM)))
    A("v_cmp_ne_u32 vcc, 0, %s" % V(vM))
    A("s_waitcnt lgkmcnt(0)")
    A("s_cbranch_vccnz Lfallback")
    A.label("Lfb_done")
    stampL("lk")
    for i in range(4):
        A("v_pk_add_f32 %s, %s, %s" % (V(vXA + 2 * i, 2), V(vXA + 2 * i, 2), V(vY + 2 * i, 2)))
    A("v_add_f32 %s, %s, %s" % (V(vXA + 8), V(vXA + 8), V(vY + 8)))
    for i in range(5):
        A("v_cvt_pk_bf16_f32 %s, %s, %s" % (V(vHP + i), V(vXA + 2 * i), V(vXA + min(2 * i + 1, 8))))
    A("s_cmp_lg_u32 s%d, 0" % sL)
    A("s_cbranch_scc1 Lfinal")
    if DUMP:
        A("s_lshl_b32 s%d, s2, 2" % sT0)
        A("s_add_u32 s%d, s%d, s%d" % (sT0, sT0, sWV))
        A("s_mul_i32 s%d, s%d, 8192" % (sT0, sT0))
        A("s_add_u32 s%d, s%d, %d" % (sT0, sT0, 2 << 20))
        A("v_lshl_add_u32 v252, v1, 2, s%d" % sT0)
        A("v_add_u32 v253, 4096, v252")
        for i, r in enumerate(list(range(vHS, vHS + 5)) + list(range(vY, vY + 9)) + list(range(vHP, vHP + 5)) + list(range(vAD, vAD + 9)) + [vS, vS + 2, vS + 6, vS + 7]):
            A("global_store_dword %s, %s, %s offset:%d" % ("v252" if i < 16 else "v253", V(r), sp(sWS), 256 * (i % 16)))
    if LEAD:
        A("s_cmp_lg_u32 s%d, 1" % sWV)
        A("s_cbranch_scc1 Lnoy")
        A("v_lshlrev_b32 v249, 2, v1")
        A("v_lshlrev_b32 v250, 1, v1")
        store2(["global_store_dword v249, %s, %s offset:%d" % (V(vHP + i), sp(sHY), 256 * i) for i in range(4)] +
               ["global_store_short v250, %s, %s offset:1024" % (V(vHP + 4), sp(sHY))])
        A.label("Lnoy")
    add64(sHQ, "%d" % L_HQ)
    A("s_call_b64 %s, Lqstage" % sp(sRET))
    A("s_cmp_lg_u32 s%d, 0" % sWV)
    A("s_cbranch_scc1 Lnext")
    for i in range(4):
        A("ds_write_b64 %s, %s offset:%d" % (V(lXP), V(vXA + 2 * i, 2), 512 * i + XSB - XSA))
    A("ds_write_b32 %s, %s offset:%d" % (V(lXS), V(vXA + 8), XSB - XSA))
    A("s_branch Lnext")
    if LEAD:
        A.label("Lwho")
        A("s_cmp_eq_u32 s%d, 0" % sS)
        A("s_cbranch_scc1 Ltabg")
        A("s_cmp_gt_u32 s%d, 3" % sWV)
        A("s_cbranch_scc1 Lqwait")
        A("s_mul_i32 s%d, s%d, 1152" % (sT0, sWV))
        A("s_add_u32 s%d, s%d, %d" % (sT0, sT0, XN))
        A("v_subrev_u32 v248, s%d, %s" % (sT0, V(lNR)))
        A("v_subrev_u32 v249, s%d, %s" % (sT0, V(lNR2)))
        A("v_mov_b32 v243, 0")
        add64(sHQ, "%d" % L_HQ)
        A.label("Lypoll")
        for ks in range(4):
            A("global_load_dwordx4 %s, v248, %s offset:%d sc1" % (V(vA + 4 * ks, 4), sp(sHY), 64 * ks))
        A("global_load_dwordx2 %s, v249, %s sc1" % (V(vA + 16, 2), sp(sHY)))
        A("global_load_dwordx3 %s, v243, %s offset:1152 sc1" % (V(vS + 2, 3), sp(sHY)))
        A("s_waitcnt vmcnt(1)")
        maxtree(vM, range(vA, vA + 18))
        A("s_waitcnt vmcnt(0)")
        A("v_max3_u32 %s, %s, %s, %s" % (V(vM), V(vM), V(vS + 2), V(vS + 4)))
        poll_tail("Lypoll", vM)
        stamp("yy")
        A("s_call_b64 %s, Lq_mm" % sp(sRET))
        A("s_branch Lnext")
    A.label("Lmlp_skip")
    A("s_cmp_lg_u32 s%d, 0" % sL)
    A("s_cbranch_scc1 Lexit")
    A.label("Lqwait")
    add64(sHQ, "%d" % L_HQ)
    A("s_lshr_b32 s%d, s%d, 1" % (sT0, sWV))
    A("s_cmp_lg_u32 s%d, %d" % (sT0, QW // 2))
    A("s_cbranch_scc1 Lnext")
    A.label("Lqpoll")
    A("global_load_dwordx4 %s, %s, %s sc1" % (V(vQ, 4), V(aHQG), sp(sHQ)))
    A("s_waitcnt vmcnt(0)")
    if QSPEC:
        A("v_mfma_f32_16x16x32_bf16 %s, %s, %s, 0" % (V(QD, 4), V(vSEL, 4), V(vQ, 4)))
    maxtree(vM, range(vQ, vQ + 4))
    poll_tail("Lqpoll", vM)
    if not QSPEC:
        A("v_mfma_f32_16x16x32_bf16 %s, %s, %s, 0" % (V(QD, 4), V(vSEL, 4), V(vQ, 4)))
    for i in range(2):
        A("v_cvt_pk_bf16_f32 %s, %s, %s" % (V(vQ + i), V(QD + 2 * i), V(QD + 2 * i + 1)))
    A("s_mov_b32 exec_hi, 0")
    A("ds_write_b64 %s, %s" % (V(lQW), V(vQ, 2)))
    A("s_mov_b32 exec_hi, -1")
    A.label("Lnext")
    add64(sHO, "%d" % L_HO)
    if NREP > 1:
        for r in HXB:
            add64(r, "s%d" % sXD)
        A("s_mov_b64 %s, %s" % (sp(sHXS), sp(sHX)))
        A("s_mov_b64 %s, 0x3ffff" % sp(sXM))
    else:
        for r in HXB:
            add64(r, "%d" % L_HX)
    for r in (lXC, lXP, lXS):
        A("v_add_u32 %s, %d, %s" % (V(r), XSB - XSA, V(r)))
    A("s_mov_b32 s%d, 1" % sL)
    stamp("qs")
    A("s_waitcnt lgkmcnt(0)")
    A("s_barrier")
    stamp("q1")
    A("s_branch Latt")
    A.label("Lv_read")
    A("s_cmp_lt_u32 s%d, 4" % sWV)
    A("s_cbranch_scc1 Lv_read_done")
    for i in range(8):
        A("ds_read_b128 %s, %s offset:%d" % (V(vVR + 4 * i, 4), V(vA + 1), (i >> 2) * 4352 + (i & 3) * 256))
    A("s_branch Lv_read_done")
    A.label("Lv_wait")
    if WOB:
        A("s_waitcnt vmcnt(8) lgkmcnt(0)")
        A("s_cmp_lg_u32 s%d, 0" % sWV)
        A("s_cbranch_scc1 Lv_perm")
        A("s_waitcnt vmcnt(0)")
    else:
        A("s_sub_u32 s%d, s%d, 1" % (sT0, sWV))
        A("s_cmp_lt_u32 s%d, 3" % sT0)
        A("s_cbranch_scc1 Lv_wo")
        A("s_waitcnt vmcnt(0) lgkmcnt(0)")
        A("s_branch Lv_perm")
        A.label("Lv_wo")
        woloads(WO1, 16, WINO if callable(WINO) else lambda i: WINO)
        A("s_waitcnt vmcnt(16)")
    A.label("Lv_perm")
    stamp("kv")
    A("s_mov_b32 s%d, 0x05040100" % sT0)
    A("s_mov_b32 s%d, 0x07060302" % sT1)
    for j in range(8):
        for e in range(4):
            A("v_perm_b32 %s, %s, %s, s%d" % (
                V(vVT + 4 * j + e), V(vVR + 4 * (2 * e + 1) + (j >> 1)), V(vVR + 4 * (2 * e) + (j >> 1)), sT1 if j & 1 else sT0))
    for i in range(4):
        A("v_mov_b32 %s, 0x3f803f80" % V(vONES + i))
    A("s_branch Lv_ready")
    A.label("Lstash")
    A("s_cmp_lt_u32 s%d, 4" % sWV)
    A("s_cbranch_scc1 Lstashed")
    A("s_mul_i32 s%d, s%d, 8704" % (sT1, sWV))
    A("s_add_u32 s%d, s%d, %d" % (sT1, sT1, KB - 4 * 8704))
    A("v_lshl_add_u32 v250, v1, 4, s%d" % sT1)
    A("v_lshl_add_u32 v251, v1, 2, s%d" % sT1)
    for i in range(3):
        A("ds_write_b128 v250, %s offset:%d" % (V(vRW + 10 * i, 4), 2304 * i))
        A("ds_write_b128 v250, %s offset:%d" % (V(vRW + 10 * i + 4, 4), 2304 * i + 1024))
        A("ds_write_b32 v251, %s offset:%d" % (V(vRW + 10 * i + 8), 2304 * i + 2048))
    A.label("Lstashed")
    if WOEARLY:
        A("s_waitcnt vmcnt(0)")
        woread()
    A("s_branch Lopoll")
    A.label("Lhelper")
    spin(20, 1, "Lhelp_spin")
    A("s_cmp_eq_u32 s%d, 2" % sT0)
    A("s_cbranch_scc1 Lmlp")
    A("s_branch Lexit")
    A.label("Lxchk")
    A("s_mov_b32 exec_hi, s%d" % sT2)
    if XMASK:
        for i in range(4):
            maxtree(vS + i, range(vA + 4 * i, vA + 4 * i + 4))
        for i in range(4):
            A("v_cmp_eq_u32 %s, -1, %s" % (sp(sH + 2 * i), V(vS + i)))
        A("s_mov_b32 exec_hi, 0")
        A("s_or_b64 vcc, %s, %s" % (sp(sH), sp(sH + 2)))
        A("s_or_b64 vcc, vcc, %s" % sp(sH + 4))
        A("s_or_b64 vcc, vcc, %s" % sp(sH + 6))
        A("s_cbranch_scc0 Lxok")
        A("s_sub_u32 s%d, s%d, 1" % (sCNT, sCNT))
        A("s_cbranch_scc1 Lxgiveup")
        for i in range(4):
            A("s_mov_b64 exec, %s" % sp(sH + 2 * i))
            A("global_load_dwordx4 %s, %s, %s sc1" % (V(vA + 4 * i, 4), V(aHXL), sp(HXB[i])))
        A("s_mov_b64 exec, -1")
        A("s_waitcnt vmcnt(0)")
        A("s_branch Lxsum")
        A.label("Lxgiveup")
    else:
        maxtree(vM, range(vA, vA + 16))
        A("v_cmp_eq_u32 vcc, -1, %s" % V(vM))
        A("s_mov_b32 exec_hi, 0")
        A("s_cbranch_vccz Lxok")
        A("s_sub_u32 s%d, s%d, 1" % (sCNT, sCNT))
        A("s_cbranch_scc0 Lxpoll")
    A("s_mov_b32 s%d, 0" % sCNT)
    A("s_branch Lxok")
    A.label("Lfinal")
    A("s_cmp_lg_u32 s%d, 0" % sWV)
    A("s_cbranch_scc1 Lexit")
    A("v_lshlrev_b32 v249, 2, v1")
    A("v_lshlrev_b32 v250, 1, v1")
    for i in range(4):
        A("global_store_dword v249, %s, %s offset:%d" % (V(vHP + i), sp(sOUT), 256 * i))
    A("global_store_short v250, %s, %s offset:1024" % (V(vHP + 4), sp(sOUT)))
    A("v_mov_b32 v252, %d" % (FLG + 20))
    A("v_mov_b32 v253, 1")
    A("ds_max_u32 v252, v253")
    if ENDSTAMP:
        A("s_memrealtime s[70:71] ; ENDSTAMP")
        A("s_lshl_b32 s%d, s2, 2" % sT0)
        A("s_add_u32 s%d, s%d, %d" % (sT0, sT0, W_DIAG))
        A("v_mov_b32 v249, s%d" % sT0)
        A("s_waitcnt lgkmcnt(0)")
        A("v_mov_b32 v250, s70")
        A("global_store_dword v249, v250, %s" % sp(sWS))
    if WB:
        A("s_branch Lexit")
        A.label("Lwb")
        A("s_cmp_lg_u32 s%d, 0" % sWV)
        A("s_cbranch_scc1 Lexit")
        if WB == 2:
            A("s_cmp_lg_u32 s%d, 7" % sS)
            A("s_cbranch_scc1 Lexit")
        A("s_waitcnt vmcnt(0)")
        A("buffer_wbl2 sc1")
    A.label("Lexit")
    if DIAG:
        A("v_mov_b32 v251, s98")
        stamp("end")
        A("s_memtime %s" % sp(sMSK))
        A("s_waitcnt lgkmcnt(0)")
        A("s_sub_u32 s100, s%d, s100" % sMSK)
        A("s_lshl_b32 s%d, s2, 3" % sT0)
        A("s_add_u32 s%d, s%d, s%d" % (sT0, sT0, sWV))
        A("s_lshl_b32 s%d, s%d, 7" % (sT0, sT0))
        A("s_add_u32 s%d, s%d, %d" % (sT0, sT0, W_DIAG))
        A("v_mov_b32 v249, s%d" % sT0)
        A("s_mov_b64 exec, 1")
        for i in range(stamp_n[0]):
            A("v_mov_b32 v250, s%d" % (sSTAMP + 2 * i))
            A("global_store_dword v249, v250, %s offset:%d" % (sp(sWS), 4 * i))
        A("global_store_dword v249, v251, %s offset:112" % sp(sWS))
        A("v_mov_b32 v250, s100")
        A("global_store_dword v249, v250, %s offset:116" % sp(sWS))
        A("v_mov_b32 v250, s%d" % sCNT)
        A("global_store_dword v249, v250, %s offset:120" % sp(sWS))
        A("v_mov_b32 v250, s%d" % sFAST)
        A("global_store_dword v249, v250, %s offset:124" % sp(sWS))
        A("s_or_b32 s%d, s2, s%d" % (sT0, sWV))
        A("s_cbranch_scc1 Lend")
        A("v_mov_b32 v249, 0")
        for i in range(1, stamp_n[0]):
            A("s_sub_u32 s%d, s%d, s%d" % (sT0, sSTAMP + 2 * i, sSTAMP))
            A("v_mov_b32 v250, s%d" % sT0)
            A("global_store_dword v249, v250, %s offset:%d" % (sp(sDBG), 4 * i))
        A("v_mov_b32 v250, s100")
        A("global_store_dword v249, v250, %s offset:0" % sp(sDBG))
        A("v_mov_b32 v250, s%d" % sCNT)
        A("global_store_dword v249, v250, %s offset:60" % sp(sDBG))
    A.label("Lend")
    A("s_endpgm")

    A.label("Lqstage")
    for i in range(4):
        A("ds_write_b32 %s, %s offset:%d" % (V(lNW), V(vXR + i), 256 * i))
    A("ds_write_b16 %s, %s" % (V(lNH), V(vXR + 4)))
    for i in range(4):
        A("v_lshlrev_b32 %s, 16, %s" % (V(vXA + 2 * i), V(vXR + i)))
        A("v_and_b32 %s, 0xffff0000, %s" % (V(vXA + 2 * i + 1), V(vXR + i)))
    A("v_lshlrev_b32 %s, 16, %s" % (V(vXA + 8), V(vXR + 4)))
    if XNWAIT:
        A("s_waitcnt lgkmcnt(0)")
    for ks in range(4):
        A("ds_read_b128 %s, %s offset:%d" % (V(vA + 4 * ks, 4), V(lNR), 64 * ks))
    A("ds_read_b64 %s, %s" % (V(vA + 16, 2), V(lNR2)))
    stats_lane(vS)
    rest = stats_wave(vS, False)
    rest.append("v_mul_f32 %s, %s, %s" % (V(vS + 4), V(vS), V(vS + 2)))
    if LEAD:
        for l in rest:
            A(l)
        rest = []
        A("s_cmp_lg_u32 s%d, s%d" % (sWV, sYW))
        A("s_cbranch_scc1 Lq_mm")
        A("v_mov_b32 v243, 0")
        A("s_mov_b64 exec, 1")
        store2(["global_store_dwordx3 v243, %s, %s offset:1152" % (V(vS + 2, 3), sp(sHY))])
        A("s_mov_b64 exec, -1")
        A.label("Lq_mm")
    vQC = vA + 24
    for i in range(4):
        rest.append("v_pk_mul_f32 %s, %s, %s op_sel_hi:[1,0] neg_lo:[1,0] neg_hi:[1,0]" % (
            V(vQC + 2 * i, 2), V(vSQ + 2 * i, 2), bc(vS + 4)))
    acc = (vP, 244)
    per = [2, 2, 2, 2, 2, 2, 2, 2, 3, 100]
    if LEAD:
        per = [0, 0, 0, 0, 0, 0, 0, 5, 0, 0]
        rest.append("s_nop 1")
    for ks in range(5):
        A("s_waitcnt lgkmcnt(%d)" % (4 - ks))
        for u in range(2):
            if ks < 4:
                A("v_mfma_f32_16x16x32_bf16 %s, %s, %s, %s" % (
                    V(acc[u], 4), V(vWQ + 18 * u + 4 * ks, 4), V(vA + 4 * ks, 4), V(acc[u], 4) if ks else "0"))
            else:
                A("v_mfma_f32_16x16x16_bf16 %s, %s, %s, %s" % (V(acc[u], 4), V(vWQ + 18 * u + 16, 2), V(vA + 16, 2), V(acc[u], 4)))
            n = per[2 * ks + u]
            for l in rest[:n]:
                A(l)
            rest = rest[n:]
    for u in range(2):
        for i in range(2):
            A("v_pk_fma_f32 %s, %s, %s, %s op_sel_hi:[1,0,1]" % (
                V(acc[u] + 2 * i, 2), V(acc[u] + 2 * i, 2), bc(vS + 2), V(vQC + 4 * u + 2 * i, 2)))
        for i in range(2):
            A("v_cvt_pk_bf16_f32 %s, %s, %s" % (V(vA + 2 * u + i), V(acc[u] + 2 * i), V(acc[u] + 2 * i + 1)))
    A("s_mov_b32 exec_lo, 0x00010001")
    A("s_mov_b32 exec_hi, 0x00010001")
    store2(["global_store_dwordx4 %s, %s, %s" % (V(aHQS), V(vA, 4), sp(sHQ))])
    A("s_mov_b64 exec, -1")
    A("s_nop 0")
    A("s_setpc_b64 %s" % sp(sRET))

    A.label("Lkshuf")
    for pr in range(4):
        a, b = vK + 8 * pr, vK + 8 * pr + 4
        for d in range(4):
            A("v_mov_b32 %s, %s" % (V(vA + 16 + d), V(a + d)))
        for d in range(4):
            A("v_mov_b32_dpp %s, %s row_ror:8 row_mask:0xf bank_mask:0xc" % (V(a + d), V(b + d)))
        for d in range(4):
            A("v_mov_b32_dpp %s, %s row_ror:8 row_mask:0xf bank_mask:0x3" % (V(b + d), V(vA + 16 + d)))
    A("s_setpc_b64 %s" % sp(sRET))
    A.label("Lsel")
    A("v_mov_b32 %s, 0x3f803f80" % V(vS + 3))
    A("v_and_b32 %s, 1, v1" % V(vS))
    A("v_lshlrev_b32 %s, 4, %s" % (V(vS), V(vS)))
    A("v_lshlrev_b32 %s, %s, %s" % (V(vS), V(vS), V(vS + 3)))
    A("v_bfe_u32 %s, v1, 1, 3" % V(vS + 1))
    A("v_and_b32 %s, 1, v1" % V(vS + 2))
    A("v_cmp_eq_u32 vcc, 0, %s" % V(vS + 2))
    A("v_and_b32 %s, 0xffff, %s" % (V(vS + 2), V(vS)))
    A("v_cndmask_b32 %s, %s, %s, vcc" % (V(vS), V(vS), V(vS + 2)))
    for d in range(4):
        A("v_cmp_eq_u32 vcc, %d, %s" % (d, V(vS + 1)))
        A("v_cndmask_b32 %s, 0, %s, vcc" % (V(vSEL + d), V(vS)))
    A("s_setpc_b64 %s" % sp(sRET))
    A.label("Laddr")
    A("v_bfe_u32 v250, v24, 2, 1")
    A("v_lshlrev_b32 v249, 8, v250")
    A("v_lshl_add_u32 v249, v25, 4, v249")
    A("v_add_u32 %s, %d, v249" % (V(aHQL), QL))
    A("s_and_b32 s%d, s%d, 1" % (sT0, sWV))
    A("s_lshl_b32 s%d, s%d, 8" % (sT0, sT0))
    A("v_lshl_add_u32 v249, v24, 4, s%d" % sT0)
    A("v_lshl_add_u32 %s, v25, 9, v249" % V(aHQG))
    A("v_and_b32 v250, 1, v25")
    A("v_lshl_add_u32 v249, v250, 3, v249")
    A("v_add_u32 %s, %d, v249" % (V(lQW), QL))
    A("s_lshl_b32 s%d, s%d, 8" % (sT0, sS))
    A("s_lshl_b32 s%d, s%d, 6" % (sT1, sWV))
    A("s_add_u32 s%d, s%d, s%d" % (sT0, sT0, sT1))
    A("v_lshl_add_u32 %s, v25, 4, s%d" % (V(aHQS), sT0))
    A("s_lshl_b32 s%d, s%d, 7" % (sT0, sWV))
    A("v_lshl_add_u32 v249, v27, 4, s%d" % sT0)
    A("v_lshl_add_u32 %s, v26, 10, v249" % V(aHOL))
    A("s_lshl_b32 s%d, s%d, 10" % (sT1, sS))
    A("v_add_u32 %s, s%d, v249" % (V(aHOS), sT1))
    A("v_mul_u32_u24 v250, %d, v26" % PSTR)
    A("v_add_u32 v250, %d, v250" % PART)
    A("v_add_u32 %s, v249, v250" % V(lPR))
    A("s_mul_i32 s%d, s%d, %d" % (sT0, sWV, RSTR))
    A("s_add_u32 s%d, s%d, %d" % (sT0, sT0, RED))
    A("v_lshl_add_u32 %s, v24, 2, s%d" % (V(lOW), sT0))
    A("s_lshr_b32 s%d, s%d, 2" % (sT0, sWV))
    A("s_lshl_b32 s%d, s%d, 3" % (sT0, sT0))
    A("v_lshl_add_u32 %s, v26, 4, s%d" % (V(aHML), sT0))
    A("v_add_u32 %s, %d, %s" % (V(lMR), ML, V(aHML)))
    A("s_lshl_b32 s%d, s%d, 8" % (sT0, sWV))
    A("v_lshl_add_u32 v249, v24, 4, s%d" % sT0)
    A("v_mul_u32_u24 v250, 1152, v25")
    A("v_add_u32 %s, v249, v250" % V(aHXL))
    A("v_and_b32 v253, 1, v25")
    A("v_lshlrev_b32 v249, 1, v249")
    A("v_lshl_add_u32 v249, v253, 4, v249")
    A("v_add_u32 %s, %d, v249" % (V(lXC), XSA))
    A("s_mul_i32 s%d, s%d, 1152" % (sT0, sHKV))
    A("s_mul_i32 s%d, s%d, 144" % (sT1, sS))
    A("s_add_u32 s%d, s%d, s%d" % (sT0, sT0, sT1))
    A("v_mul_u32_u24 v250, 3641, v1")
    A("v_lshrrev_b32 v250, 16, v250")
    A("v_mul_u32_u24 v249, 18, v250")
    A("v_sub_u32 v249, v1, v249")
    A("v_lshlrev_b32 %s, 4, v249" % V(lOR))
    A("v_add_u32 %s, %d, %s" % (V(lOR), RED, V(lOR)))
    A("v_lshl_add_u32 %s, v249, 3, s%d" % (V(aHXS), sT0))
    A("v_mul_u32_u24 v250, %d, v250" % L_HX)
    A("v_add_u32 %s, v250, %s" % (V(aHXS), V(aHXS)))
    A("v_add_u32 %s, %d, %s" % (V(aHML), 3 * L_HX, V(aHXS)))
    A("s_mul_i32 s%d, s%d, %d" % (sT0, sWV, PSTR))
    A("s_add_u32 s%d, s%d, %d" % (sT0, sT0, PART))
    A("v_lshlrev_b32 v249, 9, v253")
    A("v_lshl_add_u32 v249, v24, 2, v249")
    A("v_add_u32 %s, s%d, v249" % (V(lPW), sT0))
    A("s_lshl_b32 s%d, s%d, 4" % (sT0, sWV))
    A("s_add_u32 s%d, s%d, %d" % (sT0, sT0, ML))
    A("v_lshl_add_u32 %s, v253, 3, s%d" % (V(lMW), sT0))
    A("v_lshlrev_b32 v249, 4, v25")
    A("v_lshlrev_b32 v250, 3, v1")
    A("v_add_u32 %s, %d, v250" % (V(lXP), XSA))
    A("v_add_u32 %s, %d, v28" % (V(lXS), XSA + 2048))
    A("s_and_b32 s%d, s%d, 3" % (sT0, sWV))
    A("s_mul_i32 s%d, s%d, 1152" % (sT0, sT0))
    A("s_add_u32 s%d, s%d, %d" % (sT0, sT0, XN))
    A("v_add_u32 %s, s%d, v28" % (V(lNW), sT0))
    A("s_add_u32 s%d, s%d, 1024" % (sT1, sT0))
    A("v_add_u32 %s, s%d, v29" % (V(lNH), sT1))
    A("s_mul_i32 s%d, s%d, 288" % (sT1, sP))
    A("s_add_u32 s%d, s%d, s%d" % (sT0, sT0, sT1))
    A("v_add_u32 %s, s%d, v249" % (V(lNR), sT0))
    A("s_add_u32 s%d, s%d, 256" % (sT0, sT0))
    A("v_lshl_add_u32 %s, v25, 3, s%d" % (V(lNR2), sT0))
    A("v_bfe_u32 v250, v1, 2, 2")
    A("v_lshl_add_u32 v250, v25, 3, v250")
    A("v_mul_u32_u24 v233, 144, v250")
    A("v_and_b32 v250, 3, v1")
    A("v_lshl_add_u32 v233, v250, 3, v233")
    A("s_mul_i32 s%d, s%d, %d" % (sT0, sWV, 32 * 144))
    A("s_add_u32 s%d, s%d, %d" % (sT0, sT0, WOS))
    A("v_add_u32 v233, s%d, v233" % sT0)
    A("s_mov_b32 s%d, 0" % sFB)
    A("v_mov_b32 %s, %s" % (V(vINV), fl(1.0 / 576)))
    A("v_mov_b32 %s, %s" % (V(vC1), fl((1.0 + 1e-5) / 576)))
    A("v_mov_b32 %s, %s" % (V(vEPS), fl(1e-5)))
    A("v_mov_b32 %s, %s" % (V(vEPS2), fl(1e-10)))
    add64(sOUT, "s%d" % oX)
    A("s_mov_b32 s%d, 0" % sL)
    A("s_mov_b32 s%d, 0" % sFAST)
    A("s_mov_b32 s%d, %d" % (sCNT, POLL_LIMIT))
    A("s_mov_b32 s%d, %s" % (sSMC, fl(SMC)))
    A("s_setpc_b64 %s" % sp(sRET))

    A.label("Lfallback")
    A("v_mov_b32 v252, %d" % (FLG + 20))
    A("v_lshlrev_b32 v253, 1, s%d" % sL)
    A("ds_max_u32 v252, v253")
    fw, ft = vMA, 244
    A("s_mul_i32 s%d, s%d, 8704" % (sT1, sWV))
    A("s_add_u32 s%d, s%d, %d" % (sT1, sT1, KB))
    A("v_lshl_add_u32 v250, v1, 4, s%d" % sT1)
    A("v_lshl_add_u32 v251, v1, 2, s%d" % sT1)
    for i in range(3):
        A("ds_read_b128 %s, v250 offset:%d" % (V(fw + 10 * i, 4), 2304 * i))
        A("ds_read_b128 %s, v250 offset:%d" % (V(fw + 10 * i + 4, 4), 2304 * i + 1024))
        A("ds_read_b32 %s, v251 offset:%d" % (V(fw + 10 * i + 8), 2304 * i + 2048))
    for i in range(9):
        A("v_bfe_u32 %s, %s, %d, 4" % (V(vM), V(vHS + (i >> 1)), 11 + 16 * (i & 1)))
        A("v_cmp_ne_u32 %s, 0, %s" % (sp(sMSK), V(vM)))
        A("v_%s %s, %s, %s" % (("and_b32" if i & 1 else "lshlrev_b32"), V(vM), ("0xffff0000" if i & 1 else "16"), V(vHP + (i >> 1))))
        A.label("Lfb_l%d" % i)
        A("s_cmp_eq_u64 %s, 0" % sp(sMSK))
        A("s_cbranch_scc1 Lfb_n%d" % i)
        A("s_ff1_i32_b64 s%d, %s" % (sT3, sp(sMSK)))
        A("s_bitset0_b64 %s, s%d" % (sp(sMSK), sT3))
        A("v_readlane_b32 s%d, %s, s%d" % (sFH, V(vM), sT3))
        A("s_call_b64 %s, Lfb_eval" % sp(sRET))
        A("s_mov_b32 m0, s%d" % sT3)
        A("v_writelane_b32 %s, s%d, m0" % (V(vY + i), sT0))
        A("s_branch Lfb_l%d" % i)
        A.label("Lfb_n%d" % i)
    A("s_branch Lfb_done")
    A.label("Lfb_eval")
    A("v_mov_b32 %s, 0" % V(ft))
    A("v_mov_b32 %s, 0" % V(ft + 1))
    A("v_mov_b32 %s, %s" % (V(ft + 2), fl(-K1)))
    A("v_mov_b32 %s, %s" % (V(ft + 6), fl(-K0)))
    A("v_mov_b32 %s, 1.0" % V(ft + 4))
    A("s_waitcnt lgkmcnt(0)")
    seqs = []
    for j in range(9):
        b = vS if j & 1 else vA
        a, c, w, t = (V(b + 2 * i, 2) for i in range(4))
        q = []
        for i in range(3):
            q.append("v_lshlrev_b32 %s, 16, %s" % (V(b + 2 * i), V(fw + 10 * i + j)))
            q.append("v_and_b32 %s, 0xffff0000, %s" % (V(b + 2 * i + 1), V(fw + 10 * i + j)))
        q += ["v_pk_fma_f32 %s, %s, %s, %s op_sel_hi:[1,0,1]" % (a, a, sp(sFH), c),
              "v_pk_mul_f32 %s, %s, %s" % (t, a, a),
              "v_pk_mul_f32 %s, %s, %s" % (w, w, a),
              "v_pk_fma_f32 %s, %s, %s, %s op_sel_hi:[1,0,0]" % (t, t, bc(ft + 2), bc(ft + 6)),
              "v_pk_mul_f32 %s, %s, %s" % (t, t, a),
              "v_exp_f32 %s, %s" % (V(b + 6), V(b + 6)),
              "v_exp_f32 %s, %s" % (V(b + 7), V(b + 7)),
              "v_pk_add_f32 %s, %s, %s op_sel_hi:[1,0]" % (t, t, V(ft + 4, 2)),
              "v_rcp_f32 %s, %s" % (V(b + 6), V(b + 6)),
              "v_rcp_f32 %s, %s" % (V(b + 7), V(b + 7)),
              "v_pk_fma_f32 %s, %s, %s, %s" % (V(ft, 2), w, t, V(ft, 2))]
        seqs.append(q)
    for j in range(0, 8, 2):
        for l0, l1 in zip(seqs[j], seqs[j + 1]):
            A(l0)
            A(l1)
    for l in seqs[8]:
        A(l)
    A("v_add_f32 %s, %s, %s" % (V(ft), V(ft), V(ft + 1)))
    for ctl in WAVE6:
        A("v_add_f32_dpp %s, %s, %s %s" % (V(ft), V(ft), V(ft), ctl))
    A("s_and_b32 s%d, s%d, 4" % (sT0, sFB))
    A("s_lshl_b32 s%d, s%d, 2" % (sT0, sT0))
    A("s_add_u32 s%d, s%d, %d" % (sT0, sT0, FB))
    A("s_lshl_b32 s%d, s%d, 2" % (sT1, sWV))
    A("s_add_u32 s%d, s%d, s%d" % (sT1, sT1, sT0))
    A("v_mov_b32 %s, s%d" % (V(ft + 5), sT1))
    A("v_mov_b32 %s, s%d" % (V(ft + 6), sT0))
    A("s_add_u32 s%d, s%d, 4" % (sFB, sFB))
    A("s_mov_b32 exec_lo, 0")
    A("s_mov_b32 exec_hi, 0x80000000")
    A("ds_write_b32 %s, %s" % (V(ft + 5), V(ft)))
    A("s_mov_b64 exec, -1")
    arrive_wait(16, 0, None)
    A.label("Lfb_spin")
    A("ds_read_b32 v253, v252")
    A("s_waitcnt lgkmcnt(0)")
    A("v_readfirstlane_b32 s%d, v253" % sT0)
    spin_tail("Lfb_spin", "s%d" % sFB)
    A("ds_read_b128 %s, %s" % (V(ft, 4), V(ft + 6)))
    A("s_waitcnt lgkmcnt(0)")
    A("v_pk_add_f32 %s, %s, %s" % (V(ft, 2), V(ft, 2), V(ft + 2, 2)))
    A("v_add_f32 %s, %s, %s" % (V(ft), V(ft), V(ft + 1)))
    A("v_cvt_pk_bf16_f32 %s, %s, %s" % (V(ft), V(ft), V(ft)))
    A("v_lshlrev_b32 %s, 16, %s" % (V(ft), V(ft)))
    A("v_add_f32 %s, %s, %s" % (V(ft), V(ft), V(vB2)))
    A("v_cvt_pk_bf16_f32 %s, %s, %s" % (V(ft), V(ft), V(ft)))
    A("v_lshlrev_b32 %s, 16, %s" % (V(ft), V(ft)))
    A("v_readfirstlane_b32 s%d, %s" % (sT0, V(ft)))
    A("s_nop 3")
    A("s_setpc_b64 %s" % sp(sRET))

    A.label("Lcode_end")
    body = A.finish()
    head = open("interleave_layers__sliding_block_cached__mixer_token_mlp__decode.s.ref").read().split(
        "; Override launch geometry")[0]
    head += "; @launch grid=(256,1,1) block=(512,1,1) lds=%d\n" % LDS
    if DIAG:
        head += "; STAMPS: " + " ".join(STAMPS) + "\n"
    head += '.amdgcn_target "amdgcn-amd-amdhsa--gfx950"\n.text\n.globl %s\n.p2align 8\n.type %s,@function\n' % (NAME, NAME)
    tail = """.section .rodata,"a"
.p2align 6
.amdhsa_kernel %s
  .amdhsa_next_free_vgpr 256
  .amdhsa_next_free_sgpr 102
  .amdhsa_accum_offset 256
  .amdhsa_group_segment_fixed_size 0
  .amdhsa_kernarg_size 104
  .amdhsa_user_sgpr_count 2
  .amdhsa_user_sgpr_kernarg_segment_ptr 1
  .amdhsa_system_sgpr_workgroup_id_x 1
.end_amdhsa_kernel
""" % NAME
    return head + body + tail


if __name__ == "__main__":
    out = sys.argv[1]
    kw = {}
    for a in sys.argv[2:]:
        k, v = a.split("=")
        kw[k] = eval(v)
    open(out, "w").write(gen(**kw))
```

```python
import math, struct, sys
from asmlib import Asm

NAME = "interleave_layers__sliding_block_cached__mixer_token_mlp__decode_kernel"


def f2u(x):
    return struct.unpack("<I", struct.pack("<f", x))[0]


def hx(x):
    return "0x%08x" % (x & 0xFFFFFFFF)


def fl(x):
    return hx(f2u(x))


def gen(DIAG=False, NTKV=" nt", NTW=" nt", E_LO=114, FORCE_SLOW=False, POLL_LIMIT=1 << 20,
        STAMPS="start wq q0 wo fl kv tab ho0 og0 hx0 xs0 q1 ho1 hx1 end",
        VSCHED={1: 1, 2: 1, 3: 1, 4: 1}, VBEARLY=False, WOGATE=8, WIN=12, WINO=63, QSPEC=False, DUMP=False, QW=4, QD=24, WO1=10, LEAD=False, FEARLY=False, XMASK=False, QPOS=0, NREP=6, WOB=False, WOEARLY=True, VPRE=True, WOPOST=False, KQ=8, RESTORE=False, WARM=0, SPLIT=True, DELAY=None, OUTF="", FLW=0, PKS=True, WIN1=12, ENDSTAMP=False, WB=0, XNWAIT=False, XPACE="ack", NOTAB=False, PREF=True, BPRIO=0):
    assert not LEAD and NREP in (1, 3, 6)
    A = Asm()
    LOG2E = math.log2(math.e)
    K0 = 2 * math.sqrt(2 / math.pi) * LOG2E
    K1 = K0 * 0.044715
    SC = K1 ** (1.0 / 3.0)
    KAP = K0 / SC
    SMC = 128 ** -0.5 * LOG2E
    E0 = E_LO << 7
    TABP, WQS, PART, PSTR = 0, 4096, 40960, 1040
    ML, OV, XSA, XSB, XN, TRED = 49280, 49408, 49920, 52224, 54528, 59136
    TABN, WOS, FLG = 65536, WQS, 59648
    QL, KB, VB = 60416, 69632, 104448
    RED, RSTR, FB = QL + 512, 320, FLG + 32
    LDS = 139264
    W_HQ, W_HO, W_HT, W_HX, W_DIAG = 0, 131072, 655360, 663552, 1 << 20
    W_HY = W_HT + 8192
    L_HQ, L_HO, L_HM, L_HX = 65536, 262144, 4096, 36864
    sX, sK, sV, sWQ, sWO, sW1, sB1, sW2, sB2, sOUT, sDBG, sWS = 4, 6, 8, 10, 12, 16, 18, 20, 22, 24, 26, 28
    sWV, sHKV, sB, sS, sGID, sL, sFAST, sXCC, sCNT, sP = 30, 31, 32, 33, 34, 35, 36, 37, 38, 39
    sH, sRET, sHQ, sHO, sHM, sHX = 40, 56, 58, 60, 62, 64
    sT0, sT1, sT2, sSMC, sT3 = 66, 67, 68, 69, 3
    sMSK = 14
    sSM2 = 48
    sXM = 22
    sHXS, sXD = 20, 19
    sHY, sYW = 16, 18
    sFB, sFH = 10, 12
    sSTAMP = 70

    def sp(r):
        return "s[%d:%d]" % (r, r + 1)

    def V(a, n=1):
        return "v%d" % a if n == 1 else "v[%d:%d]" % (a, a + n - 1)

    vT, vL = 0, 1
    aHQL, aHQS, aHOL, aHOS, aHML, aHXL, aHXS = 2, 3, 4, 5, 6, 7, 11
    vC1, vEPS2, vEPS = 8, 9, 10
    vSQ = 188
    aHQG, lQW = 98, 99
    lNR2, vSEL = 96, 196
    sHX1, sHX2, sHX3 = 4, 6, 8
    lPW, lPR, lMR, lMW, lOW, lOR, lXC, lXP, lXS, lNW, lNH, lNR = 12, 13, 14, 15, 16, 17, 18, 19, 20, 21, 22, 23
    vS = 24
    vK = 32
    vA = 64
    vVT = 100
    vWQ = 132
    vWO = 168
    vVR = 200
    vONES, vMA, vB2 = 200, 204, 97
    vRW, vCA, vCC, vCW, vKAP, vONE, vSCL = 132, (162, 32), (164, 34), (166, 36), 250, 38, 252
    vQ = 234
    vXA = 234
    vP = 250
    vINV, vM = 254, 255
    vACC, vTT = 168, 184
    STAMPS = STAMPS.split()
    stamp_n = [len(STAMPS)]

    def stamp(name):
        if DIAG and "#" + name in STAMPS:
            A("s_mov_b32 s%d, s%d" % (sSTAMP + 2 * STAMPS.index("#" + name), sCNT))
        if DIAG and name in STAMPS:
            A("s_memrealtime %s" % sp(sSTAMP + 2 * STAMPS.index(name)))
            A("s_waitcnt lgkmcnt(0)")

    def stampL(name):
        if DIAG and any(p + name + l in STAMPS for p in ("", "#") for l in "01"):
            A("s_cmp_eq_u32 s%d, 0" % sL)
            A("s_cbranch_scc0 Lst_%s" % name)
            stamp(name + "0")
            A("s_branch Lste_%s" % name)
            A.label("Lst_%s" % name)
            stamp(name + "1")
            A.label("Lste_%s" % name)

    def bc(r):
        assert r % 2 == 0
        return V(r, 2)

    def add64(base, off_reg):
        A("s_add_u32 s%d, s%d, %s" % (base, base, off_reg))
        A("s_addc_u32 s%d, s%d, 0" % (base + 1, base + 1))

    def store2(text):
        n = len(A.lines)
        A("s_cmp_eq_u32 s%d, 0" % sFAST)
        A("s_cbranch_scc1 Lsl%d" % n)
        for t in text:
            A(t)
        A("s_branch Lsd%d" % n)
        A.label("Lsl%d" % n)
        for t in text:
            A(t + " sc1")
        A.label("Lsd%d" % n)

    def maxtree(dst, regs):
        regs = list(regs)
        A("v_max3_u32 %s, %s, %s, %s" % (V(dst), V(regs[0]), V(regs[1]), V(regs[2])))
        regs = regs[3:]
        while len(regs) >= 2:
            A("v_max3_u32 %s, %s, %s, %s" % (V(dst), V(dst), V(regs[0]), V(regs[1])))
            regs = regs[2:]
        if regs:
            A("v_max_u32 %s, %s, %s" % (V(dst), V(dst), V(regs[0])))

    def poll_tail(label, tmp, mask=None):
        A("v_cmp_eq_u32 vcc, -1, %s" % V(tmp))
        if mask:
            A("s_or_b32 vcc_lo, vcc_lo, vcc_hi")
            A("s_and_b32 vcc_lo, vcc_lo, %s" % mask)
            A("s_cbranch_scc0 %s_ok" % label)
        else:
            A("s_cbranch_vccz %s_ok" % label)
        A("s_sub_u32 s%d, s%d, 1" % (sCNT, sCNT))
        A("s_cbranch_scc0 %s" % label)
        A("s_mov_b32 s%d, 0" % sCNT)
        A.label("%s_ok" % label)

    DPP = " row_mask:0xf bank_mask:0xf"

    def stats_lane(t):
        x = lambda i: V(vXA + 2 * i, 2)
        a, b, q = V(t, 2), V(t + 2, 2), V(t + 4, 2)
        S, Q = t + 6, t + 7
        A("v_pk_add_f32 %s, %s, %s" % (a, x(0), x(1)))
        A("v_pk_mul_f32 %s, %s, %s" % (q, x(0), x(0)))
        A("v_pk_add_f32 %s, %s, %s" % (b, x(2), x(3)))
        A("v_pk_fma_f32 %s, %s, %s, %s" % (q, x(1), x(1), q))
        A("v_pk_add_f32 %s, %s, %s" % (a, a, b))
        A("v_pk_fma_f32 %s, %s, %s, %s" % (q, x(2), x(2), q))
        A("v_add_f32 %s, %s, %s" % (V(S), V(t), V(vXA + 8)))
        A("v_pk_fma_f32 %s, %s, %s, %s" % (q, x(3), x(3), q))
        A("v_add_f32 %s, %s, %s" % (V(S), V(S), V(t + 1)))
        A("v_fma_f32 %s, %s, %s, %s" % (V(Q), V(vXA + 8), V(vXA + 8), V(t + 4)))
        A("v_add_f32 %s, %s, %s" % (V(Q), V(Q), V(t + 5)))

    WAVE6 = ("quad_perm:[1,0,3,2]" + DPP, "quad_perm:[2,3,0,1]" + DPP, "row_half_mirror" + DPP,
             "row_mirror" + DPP, "row_bcast:15 row_mask:0xa bank_mask:0xf", "row_bcast:31 row_mask:0xc bank_mask:0xf")

    def stats_wave(t, twice):
        S, Q = t + 6, t + 7
        o = []
        for ctl in WAVE6:
            o.append("v_add_f32_dpp %s, %s, %s %s" % (V(S), V(S), V(S), ctl))
            o.append("v_add_f32_dpp %s, %s, %s %s" % (V(Q), V(Q), V(Q), ctl))
        o.append("v_readlane_b32 s%d, %s, 63" % (sT0, V(S)))
        o.append("v_readlane_b32 s%d, %s, 63" % (sT1, V(Q)))
        c, e = (vC1, vEPS2) if twice else (vINV, vEPS)
        o.append("v_mul_f32 %s, s%d, %s" % (V(t), sT0, V(vINV)))
        if twice:
            o.append("v_mul_f32 %s, s%d, %s" % (V(t + 2), sT0, V(vC1)))
        o.append("v_fma_f32 %s, s%d, %s, %s" % (V(t + 1), sT1, V(c), V(e)))
        o.append("v_fma_f32 %s, -%s, %s, %s" % (V(t + 1), V(t + 2 if twice else t), V(t), V(t + 1)))
        o.append("v_max_f32 %s, %s, %s" % (V(t + 1), V(e), V(t + 1)))
        o.append("v_rsq_f32 %s, %s" % (V(t + 2), V(t + 1)))
        return o

    def normalize(dst, t, r):
        A("v_mul_f32 %s, %s, %s" % (V(t + 4), V(t), V(r)))
        for i in range(4):
            A("v_pk_fma_f32 %s, %s, %s, %s op_sel_hi:[1,0,0] neg_lo:[0,0,1] neg_hi:[0,0,1]" % (
                V(dst + 2 * i, 2), V(vXA + 2 * i, 2), bc(r), bc(t + 4)))
        A("v_fma_f32 %s, %s, %s, -%s" % (V(dst + 8), V(vXA + 8), V(r), V(t + 4)))

    def reduce8(o, ml, M, e, norm, mid=None, fill=()):
        A("v_max_f32_dpp %s, %s, %s quad_perm:[1,0,3,2]%s" % (V(M), V(ml), V(ml), DPP))
        for l in fill[:2]:
            A(l)
        A("v_max_f32_dpp %s, %s, %s quad_perm:[2,3,0,1]%s" % (V(M), V(M), V(M), DPP))
        for l in fill[2:]:
            A(l)
        A("v_max_f32_dpp %s, %s, %s row_half_mirror%s" % (V(M), V(M), V(M), DPP))
        A("v_sub_f32 %s, %s, %s" % (V(e), V(ml), V(M)))
        A("v_exp_f32 %s, %s" % (V(e), V(e)))
        A("v_mov_b32 %s, %s" % (V(ml), V(M)))
        if mid:
            A(mid)
        A("v_mul_f32 %s, %s, %s" % (V(ml + 1), V(ml + 1), V(e)))
        for i in range(2):
            A("v_pk_mul_f32 %s, %s, %s op_sel_hi:[1,0]" % (V(o + 2 * i, 2), V(o + 2 * i, 2), bc(e)))
        for ctl in ("quad_perm:[1,0,3,2]", "quad_perm:[2,3,0,1]", "row_half_mirror"):
            for r in (ml + 1, o, o + 1, o + 2, o + 3):
                A("v_add_f32_dpp %s, %s, %s %s%s" % (V(r), V(r), V(r), ctl, DPP))
        if norm:
            A("v_rcp_f32 %s, %s" % (V(e), V(ml + 1)))
            for i in range(2):
                A("v_pk_mul_f32 %s, %s, %s op_sel_hi:[1,0]" % (V(o + 2 * i, 2), V(o + 2 * i, 2), bc(e)))

    vXR = vA + 20
    aK, aV, aW = vA, vA + 1, vA + 2

    aK2, aV2, aD, vFL = vWO, vWO + 1, vWO + 2, vWO + 4

    def win():
        if WIN < 63:
            A("s_waitcnt vmcnt(%d)" % (WIN - 1))

    def dma8(base, lds):
        A("s_mul_i32 s%d, s%d, 8704" % (sT1, sWV))
        for i in range(8):
            A("s_add_u32 m0, s%d, %d" % (sT1, lds + 1088 * i - 1024 * (i & 3)))
            win()
            A("global_load_lds_dwordx4 %s, %s offset:%d%s" % (V(aD + (i >> 2)), sp(base), 1024 * (i & 3), NTKV))

    def kloads(aK, lo, hi):
        for T in range(2):
            if T == 1 and FEARLY:
                look()
            for hf in range(2):
                for sub in range(2):
                    if not lo <= 4 * T + 2 * hf + sub < hi:
                        continue
                    win()
                    A("global_load_dwordx4 %s, %s, %s offset:%d%s" % (
                        V(vK + 16 * T + 4 * (2 * hf + sub), 4), V(aK), sp(sK), (16 * T + 8 * sub) * 256 + hf * 128 - 4096, NTKV))

    def look():
        A("s_cmp_lg_u32 s%d, 0" % sWV)
        A("s_cbranch_scc1 Lnolook")
        A("v_lshlrev_b32 v250, 2, v1")
        A("global_load_dword %s, v250, %s sc1" % (V(vFL), sp(sDBG)))
        A.label("Lnolook")

    def vload(i, aV):
        win()
        A("global_load_dwordx4 %s, %s, %s offset:%d%s" % (
            V(vVR + 4 * i, 4), V(aV), sp(sV), (16 * (i >> 2) + (i & 3)) * 256 - 4096, NTKV))

    def spin_tail(name, count):
        A("s_cmp_ge_u32 s%d, %s" % (sT0, count))
        A("s_cbranch_scc1 %s_ok" % name)
        A("s_sub_u32 s%d, s%d, 1" % (sCNT, sCNT))
        A("s_cbranch_scc0 %s" % name)
        A("s_mov_b32 s%d, 0" % sCNT)
        A.label("%s_ok" % name)

    def arrive_wait(off, count, name):
        A("v_mov_b32 v252, %d" % (FLG + off))
        A("v_mov_b32 v253, 1")
        A("s_mov_b64 exec, 1")
        A("ds_add_u32 v252, v253")
        A("s_mov_b64 exec, -1")
        if name is None:
            return
        A.label(name)
        A("ds_read_b32 v253, v252")
        A("s_waitcnt lgkmcnt(0)")
        A("v_readfirstlane_b32 s%d, v253" % sT0)
        spin_tail(name, "%d" % count)

    def mark_v():
        A("s_lshl_b32 s%d, 1, s%d" % (sT0, sWV))
        A("v_mov_b32 v252, %d" % (FLG + 24))
        A("v_mov_b32 v253, s%d" % sT0)
        A("s_mov_b64 exec, 1")
        A("ds_or_b32 v252, v253")
        A("s_mov_b64 exec, -1")

    def spin(off, count, name):
        A("v_mov_b32 v252, %d" % (FLG + off))
        A.label(name)
        A("ds_read_b32 v253, v252")
        A("s_waitcnt lgkmcnt(0)")
        A("v_readfirstlane_b32 s%d, v253" % sT0)
        spin_tail(name, "%d" % count)

    A.label(NAME)
    A("s_cmp_ge_u32 s2, 0x100")
    A("s_cbranch_scc1 Lend")
    if DELAY:
        A("v_readfirstlane_b32 s4, v0")
        A("s_lshl_b32 s4, s4, 2")
        A("s_or_b32 s4, s4, s2")
        A("s_and_b32 s4, s4, %d" % DELAY[0])
        A("s_cmp_lg_u32 s4, %d" % DELAY[1])
        A("s_cbranch_scc1 Lnodelay")
        for i in range(DELAY[2]):
            A("s_sleep 127")
        A.label("Lnodelay")
    if DIAG:
        A("s_memrealtime s[98:99]")
    A("s_load_dwordx16 s[4:19], s[0:1], 0")
    A("s_load_dwordx8 s[20:27], s[0:1], 64")
    A("s_load_dwordx2 s[28:29], s[0:1], 96")
    A("v_lshrrev_b32 v24, 6, v0")
    A("v_and_b32 v1, 63, v0")
    A("v_readfirstlane_b32 s%d, v24" % sWV)
    if PREF:
        A("s_cmp_lg_u32 s%d, 3" % sWV)
        A("s_cbranch_scc1 Lnopref")
        A("s_getpc_b64 %s" % sp(sHQ))
        A.label("Lpc")
        A("v_lshlrev_b32 v24, 7, v1")
        A("v_add_u32 v25, 0x2000, v24")
        A("v_min_u32 v25, Lcode_end-Lpc-4, v25")
        A("global_load_dword v198, v24, %s" % sp(sHQ))
        A("global_load_dword v199, v25, %s" % sp(sHQ))
        A.label("Lnopref")
    A("s_and_b32 s%d, s2, 7" % sT0)
    A("s_lshr_b32 s%d, s2, 3" % sT1)
    A("s_lshr_b32 s%d, s%d, 4" % (sT2, sT1))
    A("s_lshl_b32 s%d, s%d, 1" % (sHKV, sT0))
    A("s_add_u32 s%d, s%d, s%d" % (sHKV, sHKV, sT2))
    A("s_bfe_u32 s%d, s%d, 0x10003" % (sB, sT1))
    A("s_and_b32 s%d, s%d, 7" % (sS, sT1))
    A("s_lshl_b32 s%d, s%d, 4" % (sGID, sB))
    A("s_add_u32 s%d, s%d, s%d" % (sGID, sGID, sHKV))
    A("s_lshr_b32 s%d, s%d, 1" % (sP, sS))
    A("v_lshlrev_b32 v28, 2, v1")
    A("v_lshlrev_b32 v29, 1, v1")
    A("v_mov_b32 %s, 0" % V(vB2))
    A("v_mov_b32 v248, 0")
    A("v_and_b32 v24, 15, v1")
    A("v_lshrrev_b32 v25, 4, v1")
    A("v_and_b32 v26, 7, v1")
    A("v_lshrrev_b32 v27, 3, v1")
    A("v_and_b32 v249, 1, v27")
    A("v_lshl_add_u32 v249, v249, 2, v25")
    A("v_lshlrev_b32 v249, 4, v249")
    A("v_lshl_add_u32 %s, v26, 8, v249" % V(aK))
    A("v_lshlrev_b32 v249, 4, v24")
    A("v_lshl_add_u32 %s, v25, 10, v249" % V(aV))
    oX, oKV, oWQ = sH, sH + 1, sH + 2
    A("s_mul_i32 s%d, s%d, 1152" % (oX, sB))
    A("s_lshl_b32 s%d, s%d, 21" % (oKV, sGID))
    A("s_lshl_b32 s%d, s%d, 16" % (sT1, sS))
    A("s_add_u32 s%d, s%d, s%d" % (oKV, oKV, sT1))
    A("s_lshl_b32 s%d, s%d, 13" % (sT1, sWV))
    A("s_add_u32 s%d, s%d, s%d" % (oKV, oKV, sT1))
    A("s_add_u32 s%d, s%d, %d" % (oKV, oKV, 6144 * 256 + 4096))

    def bases():
        for (r, base, mul, src) in ((sHQ, W_HQ, 2048, sGID), (sHO, W_HO, 8192, sGID), (sHX, W_HX, 18432, sB)):
            A("s_mul_i32 s%d, s%d, %d" % (sT0, src, mul))
            if base:
                A("s_add_u32 s%d, s%d, %d" % (sT0, sT0, base))
            A("s_add_u32 s%d, s%d, s%d" % (r, sWS, sT0))
            A("s_addc_u32 s%d, s%d, 0" % (r + 1, sWS + 1))

    A("s_cmp_gt_u32 s%d, 3" % sWV)
    A("s_cbranch_scc1 Lrole_b")
    A("s_mul_i32 s%d, s%d, %d" % (oWQ, sP, 144 * 8192))
    A("s_lshl_b32 s%d, s%d, 9" % (sT1, sHKV))
    A("s_add_u32 s%d, s%d, s%d" % (oWQ, oWQ, sT1))
    A("s_and_b32 s%d, s%d, 1" % (sT1, sS))
    A("s_lshl_b32 s%d, s%d, 8" % (sT1, sT1))
    A("s_add_u32 s%d, s%d, s%d" % (oWQ, oWQ, sT1))
    A("s_lshl_b32 s%d, s%d, 15" % (sT1, sWV))
    A("s_add_u32 s%d, s%d, s%d" % (oWQ, oWQ, sT1))
    A("v_lshlrev_b32 v249, 2, v25")
    A("v_xor_b32 v249, v249, v24")
    A("v_lshlrev_b32 v249, 4, v249")
    A("v_lshl_add_u32 %s, v25, 13, v249" % V(aW))
    A("v_mov_b32 v249, %d" % FLG)
    A("ds_write2_b32 v249, v248, v248 offset0:1 offset1:2")
    A("ds_write2_b32 v249, v248, v248 offset0:3 offset1:4")
    A("ds_write2_b32 v249, v248, v248 offset0:5 offset1:6")
    A("ds_write_b32 v249, v248 offset:28")
    A("v_lshlrev_b32 %s, 4, v1" % V(aD))
    A("v_add_u32 %s, %d, %s" % (V(aD), 32768 - 4096, V(aD)))
    A("v_add_u32 %s, 4096, %s" % (V(aD + 1), V(aD)))
    A("s_getreg_b32 s%d, hwreg(HW_REG_XCC_ID, 0, 4)" % sXCC)
    A("s_cmp_lg_u32 s%d, 2" % sWV)
    A("s_cbranch_scc1 Linit_a")
    for i in range(4):
        A("v_mov_b32 %s, -1" % V(244 + i))
    A("s_lshl_b32 s%d, s%d, 13" % (sT1, sGID))
    A("s_lshl_b32 s%d, s%d, 10" % (sT2, sS))
    A("s_add_u32 s%d, s%d, s%d" % (sT1, sT1, sT2))
    A("s_add_u32 s%d, s%d, %d" % (sT1, sT1, W_HO))
    A("v_lshl_add_u32 v251, v1, 4, s%d" % sT1)
    A("v_add_u32 v252, %d, v251" % L_HO)
    A("s_lshl_b32 s%d, s%d, 8" % (sT1, sS))
    A("s_lshl_b32 s%d, s%d, 11" % (sT2, sGID))
    A("s_add_u32 s%d, s%d, s%d" % (sT1, sT1, sT2))
    A("v_lshl_add_u32 v249, v1, 4, s%d" % sT1)

    def seg(first, sreg, const):
        A("v_cmp_le_u32 vcc, %d, v1" % first)
        A("s_add_u32 s%d, s%d, %d" % (sT0, sreg, const - 16 * first))
        A("v_lshl_add_u32 v250, v1, 4, s%d" % sT0)
        A("v_cndmask_b32 v249, v249, v250, vcc")

    seg(16, sT1, W_HQ + L_HQ)
    A("s_lshl_b32 s%d, s2, 5" % sT1)
    seg(32, sT1, W_HT)
    per = (9 * (NREP + 1) + 7) // 8
    A("v_min_u32 v243, %d, v27" % (per - 1))
    A("s_mul_i32 s%d, s%d, %d" % (sT0, sS, per))
    A("v_add_u32 v243, s%d, v243" % sT0)
    A("v_min_u32 v243, %d, v243" % (9 * (NREP + 1) - 1))
    A("v_mul_u32_u24 v250, 7282, v243")
    A("v_lshrrev_b32 v250, 16, v250")
    A("v_mul_u32_u24 v250, %d, v250" % (L_HX - 1152))
    A("v_lshl_add_u32 v243, v243, 7, v250")
    A("v_lshl_add_u32 v243, v26, 4, v243")
    A("s_mul_i32 s%d, s%d, 1152" % (sT0, sGID))
    A("s_add_u32 s%d, s%d, %d" % (sT0, sT0, W_HX))
    A("v_add_u32 v243, s%d, v243" % sT0)
    A("s_waitcnt lgkmcnt(0)")
    A("global_store_dwordx4 v251, v[244:247], %s sc1" % sp(sWS))
    A("global_store_dwordx4 v252, v[244:247], %s sc1" % sp(sWS))
    A("global_store_dwordx4 v243, v[244:247], %s sc1" % sp(sWS))
    A("s_mov_b32 exec_hi, 3")
    A("global_store_dwordx4 v249, v[244:247], %s sc1" % sp(sWS))
    A("s_mov_b32 exec_hi, -1")
    A.label("Linit_a")
    A("s_waitcnt lgkmcnt(0)")
    stamp("start")
    if DIAG:
        A("s_memtime s[100:101]")
        A("s_waitcnt lgkmcnt(0)")
    add64(sX, "s%d" % oX)
    add64(sWQ, "s%d" % oWQ)
    A("global_load_short_d16_hi %s, v248, %s" % (V(vB2), sp(sB2)))
    for i in range(4):
        A("global_load_dword %s, v28, %s offset:%d" % (V(vXR + i), sp(sX), 256 * i))
    A("global_load_ushort %s, v29, %s offset:1024" % (V(vXR + 4), sp(sX)))
    add64(sK, "s%d" % oKV)
    add64(sV, "s%d" % oKV)
    A("s_lshl_b32 s%d, s%d, 10" % (sT1, sWV))
    A("s_barrier")
    for i in range(9):
        A("s_add_u32 m0, s%d, %d" % (sT1, WQS + 4096 * i))
        if i:
            A("v_add_u32 %s, 0x20000, %s" % (V(aW), V(aW)))
        A("global_load_lds_dwordx4 %s, %s%s" % (V(aW), sp(sWQ), NTW))
    A("s_cmp_lg_u32 s%d, 2" % sWV)
    A("s_cbranch_scc1 Lnoflag")
    A("s_or_b32 s%d, s%d, 0x80" % (sT0, sXCC))
    A("s_and_b32 s%d, s2, 3" % sT1)
    A("s_lshl_b32 s%d, s%d, 3" % (sT1, sT1))
    A("s_lshl_b32 s%d, s%d, s%d" % (sT0, sT0, sT1))
    A("s_and_b32 s%d, s2, 0xfc" % sT1)
    A("v_mov_b32 v249, s%d" % sT1)
    A("v_mov_b32 v250, s%d" % sT0)
    A("s_waitcnt vmcnt(15)")
    A("s_mov_b64 exec, 1")
    A("global_atomic_or v249, v250, %s sc1" % sp(sDBG))
    A("s_mov_b64 exec, -1")
    A.label("Lnoflag")
    dma8(sK, KB)
    kloads(aK, 0, KQ)
    bases()
    A("s_call_b64 %s, Laddr" % sp(sRET))
    A("v_bfe_u32 v248, v1, 2, 2")
    A("v_xor_b32 v249, s%d, v248" % sWV)
    A("v_and_b32 v250, 3, v1")
    A("v_lshl_add_u32 v249, v249, 2, v250")
    A("v_lshlrev_b32 v249, 4, v249")
    A("v_lshl_add_u32 v249, v248, 8, v249")
    A("v_add_u32 v249, %d, v249" % WQS)
    A("v_lshrrev_b32 v250, 4, v1")
    A("v_lshl_add_u32 v248, v250, 10, v249")
    A("v_lshl_add_u32 v249, v250, 11, v249")
    for i in range(4):
        A("v_mov_b32 %s, 0x3f803f80" % V(244 + i))
    A("v_mov_b32 %s, %s" % (V(aV2), V(aV)))
    A("v_mov_b32 %s, %s" % (V(aK2), V(aK)))
    aV = aV2
    A("s_waitcnt vmcnt(%d)" % (8 + KQ))
    arrive_wait(4, 4, "Lsync_a")
    stamp("wq")
    for u in range(2):
        for ks in range(4):
            for hh in range(2):
                A("ds_read_b64_tr_b16 %s, v249 offset:%d" % (V(vWQ + 18 * u + 4 * ks + 2 * hh, 2), (32 * ks + 4 * hh) * 256 + 8 * u))
        A("ds_read_b64_tr_b16 %s, v248 offset:%d" % (V(vWQ + 18 * u + 16, 2), 128 * 256 + 8 * u))
    A("s_waitcnt lgkmcnt(0)")
    for ks in range(4):
        for u in range(2):
            A("v_mfma_f32_16x16x32_bf16 %s, %s, v[244:247], %s" % (
                V(vSQ + 4 * u, 4), V(vWQ + 18 * u + 4 * ks, 4), V(vSQ + 4 * u, 4) if ks else "0"))
    A("s_nop 5")
    for u in range(2):
        A("v_mfma_f32_16x16x16_bf16 %s, %s, v[244:245], %s" % (V(vSQ + 4 * u, 4), V(vWQ + 18 * u + 16, 2), V(vSQ + 4 * u, 4)))
    A("s_mov_b32 s%d, -1" % sYW)
    A("s_call_b64 %s, Lqstage" % sp(sRET))
    A("s_mov_b32 s%d, 0" % sYW)
    arrive_wait(4, 0, None)
    stamp("q0")
    if not FEARLY:
        look()
    kloads(aK2, KQ, 8)
    dma8(sV, VB)
    A("s_waitcnt vmcnt(16)")
    arrive_wait(12, 0, None)
    A("s_call_b64 %s, Lsel" % sp(sRET))
    A("s_cmp_eq_u32 s%d, 0" % sWV)
    A("s_cbranch_scc1 Lwave0")
    for i in range(8):
        vload(i, aV)
    stamp("iss")
    A("s_cmp_lg_u32 s%d, 3" % sWV)
    A("s_cbranch_scc1 Lnox0")
    for i in range(4):
        A("ds_write_b64 %s, %s offset:%d" % (V(lXP), V(vXA + 2 * i, 2), 512 * i))
    A("ds_write_b32 %s, %s" % (V(lXS), V(vXA + 8)))
    A.label("Lnox0")
    def woaddr(half):
        A("s_mul_i32 s%d, s%d, %d" % (sT0, sHKV, 256 * 1152))
        A("s_mul_i32 s%d, s%d, 144" % (sT1, sS))
        A("s_add_u32 s%d, s%d, s%d" % (sT0, sT0, sT1))
        if half:
            A("s_add_u32 s%d, s%d, %d" % (sT0, sT0, 128 * 1152))
        add64(sWO, "s%d" % sT0)
        A("s_mul_i32 s%d, s%d, 48" % (sT0, sWV))
        A("s_sub_u32 s%d, s%d, %d" % (sT0, sT0, 48 * (1 + 4 * half)))
        A("v_min_u32 v248, 47, v1")
        A("v_add_u32 v248, s%d, v248" % sT0)
        A("v_mul_u32_u24 v250, 7282, v248")
        A("v_lshrrev_b32 v250, 16, v250")
        A("v_mul_u32_u24 v250, %d, v250" % (9216 - 144))
        A("v_lshl_add_u32 v232, v248, 4, v250")

    woaddr(0)
    A("s_waitcnt vmcnt(16)")
    A("s_call_b64 %s, Lkshuf" % sp(sRET))
    spin(4, 9, "Lsync_wo")

    def woloads(lo, hi, window, first=1):
        A("s_mul_i32 s%d, s%d, 768" % (sT1, sWV))
        A("s_mov_b32 exec_hi, 0xffff")
        for i in range(lo, hi):
            A("s_add_u32 m0, s%d, %d" % (sT1, WOS - 768 * first + 2304 * i))
            if i and not (first == 5 and i == lo):
                add64(sWO, "%d" % (1152 * (121 if i == 8 else 1)))
            if window(i) < 63:
                A("s_waitcnt vmcnt(%d)" % (window(i) - 1))
            A("global_load_lds_dwordx4 v232, %s%s" % (sp(sWO), NTW))
        A("s_mov_b32 exec_hi, -1")

    if VPRE:
        woloads(0, 4, lambda i: WIN1)
        A("s_waitcnt vmcnt(12)")
        mark_v()
        woloads(4, WO1, lambda i: WIN1)
    else:
        woloads(0, WO1, lambda i: WIN1)
        A("s_waitcnt vmcnt(%d)" % (8 + WO1))
    stamp("wo")
    A("s_branch Lmeet")
    A.label("Lwave0")
    A("s_lshr_b32 s%d, s2, 6" % sT0)
    A("s_lshl_b32 s%d, s%d, 4" % (sT0, sT0))
    A("s_bfe_u32 s%d, s2, 0x10002" % sT1)
    A("s_add_u32 s%d, s%d, s%d" % (sT0, sT0, sT1))
    A("s_mov_b64 %s, 0x5555" % sp(sMSK))
    A("s_lshl_b64 %s, %s, s%d" % (sp(sMSK), sp(sMSK), sT0))
    A("s_and_b32 s%d, s2, 3" % sT2)
    A("s_lshl_b32 s%d, s%d, 3" % (sT2, sT2))
    A("v_lshlrev_b32 v250, 2, v1")
    A("s_waitcnt vmcnt(%d)" % (12 if FEARLY else FLW if FLW else 16 - KQ))
    A("s_branch Lflagchk")
    A.label("Lflagpoll")
    A("s_sleep 8")
    A("global_load_dword %s, v250, %s sc1" % (V(vFL), sp(sDBG)))
    A("s_waitcnt vmcnt(0)")
    A.label("Lflagchk")
    A("v_bfe_u32 v251, %s, s%d, 8" % (V(vFL), sT2))
    A("v_cmp_gt_u32 vcc, 0x80, v251")
    A("s_and_b64 vcc, vcc, %s" % sp(sMSK))
    A("s_cbranch_scc0 Lflagok")
    A("s_sub_u32 s%d, s%d, 1" % (sCNT, sCNT))
    A("s_cbranch_scc0 Lflagpoll")
    A("s_mov_b32 s%d, 0" % sCNT)
    A.label("Lflagok")
    stamp("fl")
    for i in range(QPOS):
        vload(i, aV)
    for h in range(2):
        A("global_load_dwordx4 %s, %s, %s offset:%d sc1" % (V(vQ + 4 * h, 4), V(aHQG), sp(sHQ), 256 * h))
    A("global_load_dword %s, v250, %s sc1" % (V(vA), sp(sDBG)))
    A("v_and_b32 v251, 15, v251")
    A("v_cmp_ne_u32 vcc, s%d, v251" % sXCC)
    A("v_mov_b32 v251, %d" % FLG)
    A("s_and_b64 vcc, vcc, %s" % sp(sMSK))
    A("s_cselect_b32 s%d, 0, %d" % (sT0, 0 if FORCE_SLOW else 1))
    A("v_mov_b32 v253, s%d" % sT0)
    A("ds_write_b32 v251, v253")
    arrive_wait(4, 0, None)
    for i in range(QPOS, 8):
        vload(i, aV)
    stamp("iss")
    A("s_call_b64 %s, Lkshuf" % sp(sRET))
    if VPRE:
        A("s_waitcnt vmcnt(11)")
        mark_v()
    A("s_waitcnt vmcnt(%d)" % (8 - QPOS))
    A("s_branch Lq0chk")
    A.label("Lq0poll")
    A("s_sleep 2")
    for h in range(2):
        A("global_load_dwordx4 %s, %s, %s offset:%d sc1" % (V(vQ + 4 * h, 4), V(aHQG), sp(sHQ), 256 * h))
    A("global_load_dword %s, v250, %s sc1" % (V(vA), sp(sDBG)))
    A("s_waitcnt vmcnt(0)")
    A.label("Lq0chk")
    for h in range(2):
        A("v_mfma_f32_16x16x32_bf16 %s, %s, %s, 0" % (V(vS + 4 * h, 4), V(vSEL, 4), V(vQ + 4 * h, 4)))
    maxtree(vM, range(vQ, vQ + 8))
    A("v_and_b32 %s, 0x80808080, %s" % (V(vA), V(vA)))
    A("v_cmp_ne_u32 vcc, 0x80808080, %s" % V(vA))
    A("v_cndmask_b32 %s, %s, -1, vcc" % (V(vM), V(vM)))
    poll_tail("Lq0poll", vM)
    for i in range(4):
        A("v_cvt_pk_bf16_f32 %s, %s, %s" % (V(vQ + i), V(vS + 2 * i), V(vS + 2 * i + 1)))
    A("s_mov_b32 exec_hi, 0")
    for h in range(2):
        A("ds_write_b64 %s, %s offset:%d" % (V(lQW), V(vQ + 2 * h, 2), 256 * h))
    A("s_mov_b32 exec_hi, -1")
    A("s_branch Lmeet")
    aK, aV = vA, vA + 1
    A.label("Lrole_b")
    if BPRIO:
        A("s_setprio %d" % BPRIO)
    A("v_subrev_u32 v31, 0x100, v0")
    A("v_lshlrev_b32 v30, 4, v31")
    A("v_add_u32 v249, 0x1000, v30")
    A("v_lshlrev_b32 v31, 2, v31")
    A("v_add_u32 v31, 0x2000, v31")
    A("s_waitcnt lgkmcnt(0)")
    stamp("start")
    if DIAG:
        A("s_memtime s[100:101]")
        A("s_waitcnt lgkmcnt(0)")
    for i in range(3):
        r, p = vRW + 10 * i, sp((sW1, sB1, sW2)[i])
        A("global_load_dwordx4 %s, v30, %s" % (V(r, 4), p))
        A("global_load_dwordx4 %s, v249, %s" % (V(r + 4, 4), p))
        A("global_load_dword %s, v31, %s" % (V(r + 8), p))
    A("global_load_short_d16_hi %s, v248, %s" % (V(vB2), sp(sB2)))
    A("s_barrier")
    stamp("iss")
    bases()
    A("s_call_b64 %s, Laddr" % sp(sRET))
    A("s_and_b32 s%d, s2, 127" % sT0)
    A("s_lshl_b32 s%d, s%d, 4" % (sT0, sT0))
    A("s_add_u32 s%d, s%d, %d" % (sT0, sT0, E0))
    A("s_lshr_b32 s%d, s2, 7" % sT1)
    A("s_lshl_b32 s%d, s%d, 15" % (sT1, sT1))
    A("s_add_u32 s%d, s%d, s%d" % (sT0, sT0, sT1))
    A("v_add_u32 v249, s%d, v1" % sT0)
    A("v_lshlrev_b32 v249, 16, v249")
    A("v_mul_f32 v249, %s, v249" % fl(SC))
    A("v_mov_b32 %s, %s" % (V(vKAP), fl(KAP)))
    A("v_mov_b32 %s, 1.0" % V(vONE))
    A("v_mov_b32 %s, %s" % (V(vSCL), fl(SC)))
    for i in range(16):
        A("v_readlane_b32 s%d, v249, %d" % (sH + i, i))
        A("v_mov_b32 %s, 0" % V(vACC + i))
    A("s_mov_b32 s%d, 0" % sT3)
    A("s_waitcnt vmcnt(0)")
    stamp("wq")
    A.label("Ltabloop")
    A("s_set_gpr_idx_on s%d, gpr_idx(SRC1)" % sT3)
    for i, d in enumerate((vCA, vCC, vCW)):
        A("v_lshlrev_b32 %s, 16, %s" % (V(d[0]), V(vRW + 10 * i)))
        A("v_and_b32 %s, 0xffff0000, %s" % (V(d[1]), V(vRW + 10 * i)))
    A("s_set_gpr_idx_off")
    for f in range(2):
        A("v_mul_f32 %s, %s, %s" % (V(vCC[f]), V(vCC[f]), V(vSCL)))
    for f in range(2):
        for k2 in range(0 if NOTAB else 4):
            seq = []
            for h in range(2):
                k = 2 * k2 + h
                u, t, e, uw = (V(vTT + 8 * h + 2 * i, 2) for i in range(4))
                e0, e1 = vTT + 8 * h + 4, vTT + 8 * h + 5
                t0, t1 = vTT + 8 * h + 2, vTT + 8 * h + 3
                seq.append([
                    "v_pk_fma_f32 %s, %s, %s, %s op_sel_hi:[0,1,0]" % (u, bc(vCA[f]), sp(sH + 2 * k), bc(vCC[f])),
                    "v_pk_fma_f32 %s, %s, %s, %s op_sel_hi:[1,1,0]" % (t, u, u, bc(vKAP)),
                    "v_pk_mul_f32 %s, %s, %s neg_lo:[1,0] neg_hi:[1,0]" % (t, t, u),
                    "v_exp_f32 %s, %s" % (V(e0), V(t0)),
                    "v_exp_f32 %s, %s" % (V(e1), V(t1)),
                    "v_pk_mul_f32 %s, %s, %s op_sel_hi:[1,0]" % (uw, u, bc(vCW[f])),
                    "v_pk_add_f32 %s, %s, %s op_sel_hi:[1,0]" % (e, e, bc(vONE)),
                    "v_rcp_f32 %s, %s" % (V(e0), V(e0)),
                    "v_rcp_f32 %s, %s" % (V(e1), V(e1)),
                    "v_pk_fma_f32 %s, %s, %s, %s" % (V(vACC + 2 * k, 2), uw, e, V(vACC + 2 * k, 2)),
                ])
            s0, s1 = seq
            for l in (s0[0], s1[0], s0[1], s1[1], s0[2], s1[2], s0[3], s0[4], s1[3], s1[4], s0[5], s0[6], s1[5], s1[6],
                      s0[7], s0[8], s1[7], s1[8], s0[9], s1[9]):
                A(l)
    A("s_add_u32 s%d, s%d, 1" % (sT3, sT3))
    A("s_cmp_lt_u32 s%d, 9" % sT3)
    A("s_cbranch_scc1 Ltabloop")
    stamp("q0")
    for k in range(8):
        A("v_permlane32_swap_b32 %s, %s" % (V(vACC + 2 * k), V(vACC + 2 * k + 1)))
    for k in range(8):
        A("v_add_f32 %s, %s, %s" % (V(vACC + 2 * k), V(vACC + 2 * k), V(vACC + 2 * k + 1)))
    for k in range(4):
        A("v_permlane16_swap_b32 %s, %s" % (V(vACC + 4 * k), V(vACC + 4 * k + 2)))
    for k in range(4):
        A("v_add_f32 %s, %s, %s" % (V(vACC + 4 * k), V(vACC + 4 * k), V(vACC + 4 * k + 2)))
    for ctl in ("quad_perm:[1,0,3,2]", "quad_perm:[2,3,0,1]", "row_half_mirror", "row_mirror"):
        for k in range(4):
            A("v_add_f32_dpp %s, %s, %s %s%s" % (V(vACC + 4 * k), V(vACC + 4 * k), V(vACC + 4 * k), ctl, DPP))
    A("v_lshrrev_b32 v251, 5, v1")
    A("v_bfe_u32 v250, v1, 4, 1")
    A("v_lshl_add_u32 v251, v250, 1, v251")
    A("s_lshl_b32 s%d, s%d, 6" % (sT0, sWV))
    A("s_add_u32 s%d, s%d, %d" % (sT0, sT0, TRED - 256))
    A("v_lshl_add_u32 v251, v251, 2, s%d" % sT0)
    A("s_mov_b32 exec_lo, 0x00010001")
    A("s_mov_b32 exec_hi, 0x00010001")
    A("ds_write2_b32 v251, %s, %s offset0:0 offset1:4" % (V(vACC), V(vACC + 4)))
    A("ds_write2_b32 v251, %s, %s offset0:8 offset1:12" % (V(vACC + 8), V(vACC + 12)))
    A("s_mov_b64 exec, -1")
    if BPRIO:
        A("s_setprio 0")
    arrive_wait(8, 0, None)
    spin(12, 4, "Lsync_kv")
    A("s_cmp_lg_u32 s%d, 7" % sWV)
    A("s_cbranch_scc1 Lnotab")
    spin(8, 4, "Lsync_b")
    A("v_and_b32 v250, 15, v1")
    A("v_lshlrev_b32 v250, 2, v250")
    A("v_add_u32 v251, %d, v250" % TRED)
    for i in range(2):
        A("ds_read2_b32 %s, v251 offset0:%d offset1:%d" % (V(vS + 2 * i, 2), 32 * i, 32 * i + 16))
    A("s_waitcnt lgkmcnt(0)")
    A("v_pk_add_f32 %s, %s, %s" % (V(vS, 2), V(vS, 2), V(vS + 2, 2)))
    A("v_add_f32 %s, %s, %s" % (V(vS), V(vS), V(vS + 1)))
    A("v_mul_f32 %s, %s, %s" % (V(vS), fl(1.0 / SC), V(vS)))
    A("v_cvt_pk_bf16_f32 %s, %s, %s" % (V(vS), V(vS), V(vS)))
    A("v_lshlrev_b32 %s, 16, %s" % (V(vS), V(vS)))
    A("v_add_f32 %s, %s, %s" % (V(vS), V(vS), V(vB2)))
    A("v_mov_b32_dpp %s, %s quad_perm:[1,1,3,3]%s" % (V(vS + 1), V(vS), DPP))
    A("v_cvt_pk_bf16_f32 %s, %s, %s" % (V(vS), V(vS), V(vS + 1)))
    A("v_lshrrev_b32 v250, 1, v250")
    A("s_lshl_b32 s%d, s2, 5" % sT0)
    A("s_add_u32 s%d, s%d, %d" % (sT0, sT0, W_HT))
    A("v_add_u32 v250, s%d, v250" % sT0)
    A("s_mov_b64 exec, 0x5555")
    A("global_store_dword v250, %s, %s sc1" % (V(vS), sp(sWS)))
    A("s_mov_b64 exec, -1")
    A.label("Lnotab")
    A("v_bfe_u32 v249, v1, 2, 2")
    A("v_mul_u32_u24 v249, 1088, v249")
    A("v_and_b32 v250, 3, v1")
    A("v_lshl_add_u32 v249, v250, 8, v249")
    A("v_lshrrev_b32 v250, 4, v1")
    A("v_lshl_add_u32 v249, v250, 4, v249")
    A("v_mul_u32_u24 v250, 1088, v250")
    A("v_and_b32 v251, 15, v1")
    A("v_lshl_add_u32 v250, v251, 4, v250")
    A("s_mul_i32 s%d, s%d, 8704" % (sT1, sWV))
    A("s_add_u32 s%d, s%d, %d" % (sT2, sT1, KB - 4 * 8704))
    A("v_add_u32 v249, s%d, v249" % sT2)
    A("s_add_u32 s%d, s%d, %d" % (sT2, sT1, VB - 4 * 8704))
    A("v_add_u32 %s, s%d, v250" % (V(vA + 1), sT2))
    stamp("fl")
    for T in range(2):
        for ks in range(4):
            A("ds_read_b128 %s, v249 offset:%d" % (V(vK + 16 * T + 4 * ks, 4), T * 4352 + ks * 64))
    A("s_call_b64 %s, Lsel" % sp(sRET))
    if VPRE:
        A("s_sub_u32 s%d, s%d, 4" % (sT1, sWV))
        A("v_mov_b32 v252, %d" % (FLG + 24))
        A.label("Lsync_v")
        A("ds_read_b32 v253, v252")
        A("s_waitcnt lgkmcnt(0)")
        A("v_readfirstlane_b32 s%d, v253" % sT0)
        A("s_bitcmp1_b32 s%d, s%d" % (sT0, sT1))
        A("s_cbranch_scc1 Lsync_v_ok")
        A("s_sub_u32 s%d, s%d, 1" % (sCNT, sCNT))
        A("s_cbranch_scc0 Lsync_v")
        A("s_mov_b32 s%d, 0" % sCNT)
        A.label("Lsync_v_ok")
        for i in range(8):
            A("ds_read_b128 %s, %s offset:%d" % (V(vVR + 4 * i, 4), V(vA + 1), (i >> 2) * 4352 + (i & 3) * 256))
        A("s_waitcnt lgkmcnt(0)")
        A("s_branch Lv_perm")
        A.label("Lv_back")
    if WOB:
        assert WO1 == 8
        A("s_cmp_eq_u32 s%d, 4" % sWV)
        A("s_cbranch_scc1 Lmeet")
        woaddr(1)
        spin(4, 9, "Lsync_wo2")
        woloads(8, 16, lambda i: 63, 5)
    A.label("Lmeet")
    A("s_mov_b32 s%d, s%d" % (sSM2, sSMC))
    if NREP > 1:
        A("s_mov_b64 %s, %s" % (sp(sHXS), sp(sHX)))
        A("s_and_b32 s%d, s2, 7" % sT0)
        A("s_mul_i32 s%d, s%d, %d" % (sT0, sT0, NREP))
        A("s_lshr_b32 s%d, s%d, 3" % (sT0, sT0))
        A("s_mul_i32 s%d, s%d, %d" % (sT0, sT0, L_HX))
        A("s_add_u32 s%d, s%d, s%d" % (sHX, sHXS, sT0))
        A("s_addc_u32 s%d, s%d, 0" % (sHX + 1, sHXS + 1))
        A("s_sub_u32 s%d, %d, s%d" % (sXD, NREP * L_HX, sT0))
        A("s_mov_b32 s%d, -1" % sXM)
        A("s_mov_b32 s%d, 0x3fffff" % (sXM + 1))
    for i, r in enumerate((sHX1, sHX2, sHX3)):
        A("s_add_u32 s%d, s%d, %d" % (r, sHX, 4608 * (i + 1)))
        A("s_addc_u32 s%d, s%d, 0" % (r + 1, sHX + 1))
    A("s_mul_i32 s%d, s%d, 1280" % (sT0, sGID))
    A("s_add_u32 s%d, s%d, %d" % (sT0, sT0, W_HY))
    A("s_add_u32 s%d, s%d, s%d" % (sHY, sWS, sT0))
    A("s_addc_u32 s%d, s%d, 0" % (sHY + 1, sWS + 1))
    A("v_mov_b32 v251, %d" % FLG)
    A("s_waitcnt lgkmcnt(0)")
    A("s_barrier")
    stamp("tab")
    A("ds_read_b32 v251, v251")
    A("s_waitcnt lgkmcnt(0)")
    A("v_readfirstlane_b32 s%d, v251" % sFAST)
    A.label("Latt")
    for ks in range(4):
        A("ds_read_b128 %s, %s offset:%d" % (V(vQ + 4 * ks, 4), V(aHQL), 64 * ks))
    for ks in range(4):
        A("s_waitcnt lgkmcnt(%d)" % (3 - ks))
        for T in range(2):
            A("v_mfma_f32_16x16x32_bf16 %s, %s, %s, %s" % (
                V(vS + 4 * T, 4), V(vK + 16 * T + 4 * ks, 4), V(vQ + 4 * ks, 4), V(vS + 4 * T, 4) if ks else "0"))
    if not VPRE:
        A("s_cmp_eq_u32 s%d, 0" % sL)
        A("s_cbranch_scc1 Lv_read")
    A.label("Lv_read_done")
    stampL("qV")
    A("v_max3_f32 %s, %s, %s, %s" % (V(vM), V(vS), V(vS + 1), V(vS + 2)))
    A("v_max3_f32 %s, %s, %s, %s" % (V(vP), V(vS + 3), V(vS + 4), V(vS + 5)))
    A("v_max3_f32 %s, %s, %s, %s" % (V(vM), V(vM), V(vS + 6), V(vS + 7)))
    A("v_max_f32 %s, %s, %s" % (V(vP + 1), V(vM), V(vP)))
    A("v_max_f32 %s, %s, %s" % (V(vM), V(vM), V(vP)))
    A("v_permlane16_swap_b32 %s, %s" % (V(vM), V(vP + 1)))
    A("v_max_f32 %s, %s, %s" % (V(vP), V(vM), V(vP + 1)))
    A("v_max_f32 %s, %s, %s" % (V(vM), V(vM), V(vP + 1)))
    A("v_permlane32_swap_b32 %s, %s" % (V(vM), V(vP)))
    A("v_max_f32 %s, %s, %s" % (V(vM), V(vM), V(vP)))
    if PKS:
        A("v_mul_f32 %s, s%d, %s" % (V(vP), sSMC, V(vM)))
        A("v_mul_f32 %s, s%d, %s" % (V(vM), sSMC, V(vM)))
        for r in range(4):
            A("v_pk_fma_f32 %s, %s, %s, %s op_sel_hi:[1,0,0] neg_lo:[0,0,1] neg_hi:[0,0,1]" % (
                V(vS + 2 * r, 2), V(vS + 2 * r, 2), sp(sSM2), bc(vP)))
            if r:
                for h in range(2):
                    A("v_exp_f32 %s, %s" % (V(vS + 2 * r - 2 + h), V(vS + 2 * r - 2 + h)))
        for h in range(2):
            A("v_exp_f32 %s, %s" % (V(vS + 6 + h), V(vS + 6 + h)))
    else:
        A("v_mul_f32 %s, s%d, %s" % (V(vM), sSMC, V(vM)))
        for r in range(8):
            A("v_fma_f32 %s, %s, s%d, -%s" % (V(vS + r), V(vS + r), sSMC, V(vM)))
            if r:
                A("v_exp_f32 %s, %s" % (V(vS + r - 1), V(vS + r - 1)))
        A("v_exp_f32 %s, %s" % (V(vS + 7), V(vS + 7)))
    for r in range(4):
        A("v_cvt_pk_bf16_f32 %s, %s, %s" % (V(vP + r), V(vS + 2 * r), V(vS + 2 * r + 1)))
    A("s_cmp_eq_u32 s%d, 0" % sL)
    A("s_cbranch_scc1 Lv_wait")
    A.label("Lv_ready")
    stampL("sm")
    for j in range(8):
        A("v_mfma_f32_16x16x32_bf16 %s, %s, %s, 0" % (V(vA + 4 * j, 4), V(vP, 4), V(vVT + 4 * j, 4)))
    A("v_mfma_f32_16x16x32_bf16 %s, %s, %s, 0" % (V(vS, 4), V(vP, 4), V(vONES, 4)))
    A("s_mov_b32 exec_hi, 0")
    for j in range(0, 8, 2):
        A("ds_write2_b32 %s, %s, %s offset0:%d offset1:%d" % (V(lPW), V(vA + 4 * j), V(vA + 4 * j + 4), 16 * j, 16 * j + 16))
    A("s_mov_b32 exec_lo, 0x100001")
    A("ds_write2_b32 %s, %s, %s offset0:0 offset1:1" % (V(lMW), V(vM), V(vS)))
    A("s_mov_b64 exec, -1")
    if WOPOST:
        A("s_cmp_eq_u32 s%d, 0" % sL)
        A("s_cbranch_scc1 Lwo_rest")
        A.label("Lwo_back")
    A("s_waitcnt lgkmcnt(0)")
    stampL("pv")
    A("s_barrier")
    A("ds_read_b64 %s, %s" % (V(vA + 4, 2), V(lMR)))
    A("ds_read_b128 %s, %s" % (V(vA, 4), V(lPR)))
    A("s_waitcnt lgkmcnt(1)")
    reduce8(vA, vA + 4, vA + 7, vA + 6, False, "s_waitcnt lgkmcnt(0)")
    A("v_cvt_pk_bf16_f32 %s, %s, %s" % (V(vA + 3), V(vA + 2), V(vA + 3)))
    A("v_cvt_pk_bf16_f32 %s, %s, %s" % (V(vA + 2), V(vA), V(vA + 1)))
    A("s_mov_b32 exec_lo, 0x01010101")
    A("s_mov_b32 exec_hi, 0x01010101")
    store2(["global_store_dwordx4 %s, %s, %s" % (V(aHOS), V(vA + 2, 4), sp(sHO))])
    A("s_mov_b64 exec, -1")
    stampL("ho")
    A("s_cmp_eq_u32 s%d, 0" % sL)
    A("s_cbranch_scc1 Lstash")
    A.label("Lopoll")
    A("global_load_dwordx4 %s, %s, %s sc1" % (V(vA + 10, 4), V(aHOL), sp(sHO)))
    A("s_waitcnt vmcnt(0)")
    maxtree(vM, range(vA + 10, vA + 14))
    poll_tail("Lopoll", vM)
    if RESTORE:
        A("s_mov_b32 exec_lo, 0x01010101")
        A("s_mov_b32 exec_hi, 0x01010101")
        A("global_store_dwordx4 %s, %s, %s sc1" % (V(aHOS), V(vA + 2, 4), sp(sHO)))
        A("s_mov_b64 exec, -1")
    stampL("og")
    A("s_cmp_lg_u32 s%d, 0" % sL)
    A("s_cbranch_scc1 Lnotg")
    A("v_lshlrev_b32 v249, 4, v0")
    A("v_add_u32 v248, %d, v249" % W_HT)
    if LEAD:
        A("s_cmp_lg_u32 s%d, 0" % sS)
        A("s_cbranch_scc1 Lnoht")
    A("global_load_dwordx4 %s, v248, %s sc1" % (V(vQ, 4), sp(sWS)))
    A.label("Lnoht")

    def woread():
        A("s_barrier")
        for t in range(5):
            for hh in range(2):
                A("ds_read_b64_tr_b16 %s, v233 offset:%d" % (V(vWO + 4 * t + 2 * hh, 2), 576 * hh + 32 * t))

    if not WOEARLY:
        woread()
    A.label("Lnotg")
    reduce8(vA + 16, vA + 12, vA + 15, vA + 14, True, fill=[
        "v_lshlrev_b32 %s, 16, %s" % (V(vA + 16), V(vA + 10)), "v_and_b32 %s, 0xffff0000, %s" % (V(vA + 17), V(vA + 10)),
        "v_lshlrev_b32 %s, 16, %s" % (V(vA + 18), V(vA + 11)), "v_and_b32 %s, 0xffff0000, %s" % (V(vA + 19), V(vA + 11))])
    A("v_cvt_pk_bf16_f32 %s, %s, %s" % (V(vA), V(vA + 16), V(vA + 17)))
    A("v_cvt_pk_bf16_f32 %s, %s, %s" % (V(vA + 1), V(vA + 18), V(vA + 19)))
    A("v_mov_b32_dpp %s, %s row_ror:8%s" % (V(vA + 2), V(vA), DPP))
    A("v_mov_b32_dpp %s, %s row_ror:8%s" % (V(vA + 3), V(vA + 1), DPP))
    A("s_waitcnt lgkmcnt(0)")
    for t in range(5):
        A("v_mfma_f32_16x16x32_bf16 %s, %s, %s, 0" % (V(vA + 4 + 4 * t, 4), V(vA, 4), V(vWO + 4 * t, 4)))
    A("s_mov_b64 exec, 0xffff")
    A("ds_write2_b32 %s, %s, %s offset0:0 offset1:16" % (V(lOW), V(vA + 4), V(vA + 8)))
    A("ds_write2_b32 %s, %s, %s offset0:32 offset1:48" % (V(lOW), V(vA + 12), V(vA + 16)))
    A("ds_write_b32 %s, %s offset:256" % (V(lOW), V(vA + 20)))
    A("s_mov_b64 exec, -1")
    A("s_waitcnt lgkmcnt(0)")
    A("s_barrier")
    stampL("ov")
    A("s_cmp_lg_u32 s%d, 0" % sWV)
    A("s_cbranch_scc1 Lwo_done")
    for w in range(8):
        A("ds_read_b128 %s, %s offset:%d" % (V(vA + 4 * w, 4), V(lOR), RSTR * w))
    for w in range(1, 8, 2):
        A("s_waitcnt lgkmcnt(%d)" % (7 - w))
        for i in range(2):
            A("v_pk_add_f32 %s, %s, %s" % (V(vA + 4 * w - 4 + 2 * i, 2), V(vA + 4 * w - 4 + 2 * i, 2), V(vA + 4 * w + 2 * i, 2)))
        if w in (3, 7):
            for i in range(2):
                A("v_pk_add_f32 %s, %s, %s" % (V(vA + 4 * w - 12 + 2 * i, 2), V(vA + 4 * w - 12 + 2 * i, 2), V(vA + 4 * w - 4 + 2 * i, 2)))
    for i in range(2):
        A("v_pk_add_f32 %s, %s, %s" % (V(vA + 2 * i, 2), V(vA + 2 * i, 2), V(vA + 16 + 2 * i, 2)))
    A("v_cvt_pk_bf16_f32 %s, %s, %s" % (V(vA), V(vA), V(vA + 1)))
    A("v_cvt_pk_bf16_f32 %s, %s, %s" % (V(vA + 1), V(vA + 2), V(vA + 3)))
    if NREP > 1:
        A("s_mov_b64 exec, %s" % sp(sXM))
        A("global_store_dwordx2 %s, %s, %s sc1" % (V(aHXS), V(vA, 2), sp(sHXS)))
        if NREP > 3:
            A("s_cmp_lg_u32 s%d, 0" % sL)
            A("s_cbranch_scc1 Lonecopy")
            A("global_store_dwordx2 %s, %s, %s sc1" % (V(aHML), V(vA, 2), sp(sHXS)))
            A.label("Lonecopy")
    else:
        A("s_mov_b64 exec, 0x3ffff")
        A("global_store_dwordx2 %s, %s, %s sc1" % (V(aHXS), V(vA, 2), sp(sHX)))
    A("s_mov_b64 exec, -1")
    A.label("Lwo_done")
    stampL("hx")
    A("s_cmp_eq_u32 s%d, 0" % sL)
    A("s_cbranch_scc1 %s" % ("Lwho" if LEAD else "Ltabg"))
    A("s_or_b32 s%d, s%d, s%d" % (sT0, sHKV, sS))
    A("s_cbranch_scc1 %s" % ("Lwb" if WB else "Lexit"))
    A("s_branch Lxwait")
    A.label("Ltpoll")
    A("s_sleep 4")
    A("global_load_dwordx4 %s, v248, %s sc1" % (V(vQ, 4), sp(sWS)))
    A("s_waitcnt vmcnt(0)")
    A.label("Ltabg")
    A("s_cmp_gt_u32 s%d, 3" % sWV)
    A("s_cselect_b32 s%d, %d, %d" % (sT0, TABN - 4096, TABP))
    A("v_add_u32 v250, s%d, v249" % sT0)
    A("s_waitcnt vmcnt(1)")
    A("s_cmp_eq_u32 s%d, 0" % sWV)
    A("s_cbranch_scc1 Ltabw")
    A("s_waitcnt vmcnt(0)")
    A.label("Ltabw")
    maxtree(vM, range(vQ, vQ + 4))
    poll_tail("Ltpoll", vM)
    A("ds_write_b128 v250, %s" % V(vQ, 4))
    if WARM & 1:
        A("s_cmp_lg_u32 s%d, 7" % sWV)
        A("s_cbranch_scc1 Lxwait")
        A("s_mov_b64 exec, 0")
        A("s_branch Lmlp")
        A.label("Lwarm1")
        A("s_mov_b64 exec, -1")
    A.label("Lxwait")
    A("ds_read_b128 %s, %s" % (V(vP, 4), V(lXC)))
    if XPACE == "ack":
        A("s_waitcnt vmcnt(0)")
    if XPACE != "none":
        A("s_barrier")
    stampL("xp")
    HXB = (sHX, sHX1, sHX2, sHX3)
    A("s_cmp_gt_u32 s%d, 4" % sWV)
    A("s_cbranch_scc1 Lxjoin")
    A("s_cmp_eq_u32 s%d, 4" % sWV)
    A("s_cselect_b32 s%d, 0x00ff00ff, -1" % sT2)
    A.label("Lxpoll")
    A("s_mov_b32 exec_lo, s%d" % sT2)
    A("s_mov_b32 exec_hi, s%d" % sT2)
    for i in range(4):
        A("global_load_dwordx4 %s, %s, %s sc1" % (V(vA + 4 * i, 4), V(aHXL), sp(HXB[i])))
    A("s_mov_b64 exec, -1")
    A.label("Lxsum")
    for i in range(4):
        A("s_waitcnt vmcnt(%d)" % (3 - i))
        A("v_mfma_f32_16x16x32_bf16 %s, %s, %s, %s" % (V(vS, 4), V(vSEL, 4), V(vA + 4 * i, 4), V(vS, 4) if i else "0"))
    A("s_mov_b32 exec_lo, s%d" % sT2)
    A("s_mov_b32 exec_hi, 0")
    A("s_waitcnt lgkmcnt(0)")
    A("v_cmp_u_f32 vcc, %s, %s" % (V(vS), V(vS)))
    A("v_cvt_pk_bf16_f32 %s, %s, %s" % (V(vS + 4), V(vS), V(vS + 1)))
    A("v_cvt_pk_bf16_f32 %s, %s, %s" % (V(vS + 5), V(vS + 2), V(vS + 3)))
    A("s_cbranch_vccnz Lxchk")
    A.label("Lxok")
    for rnd in range(2):
        for i in range(2):
            A("v_lshlrev_b32 %s, 16, %s" % (V(vS + 2 * i), V(vS + 4 + i)))
            A("v_and_b32 %s, 0xffff0000, %s" % (V(vS + 2 * i + 1), V(vS + 4 + i)))
        if rnd == 0:
            for i in range(2):
                A("v_pk_add_f32 %s, %s, %s" % (V(vS + 2 * i, 2), V(vS + 2 * i, 2), V(vP + 2 * i, 2)))
            for i in range(2):
                A("v_cvt_pk_bf16_f32 %s, %s, %s" % (V(vS + 4 + i), V(vS + 2 * i), V(vS + 2 * i + 1)))
    A("ds_write_b128 %s, %s" % (V(lXC), V(vS, 4)))
    A("s_mov_b64 exec, -1")
    A.label("Lxjoin")
    A("s_waitcnt lgkmcnt(0)")
    A("s_barrier")
    stampL("xs")
    A("s_cmp_gt_u32 s%d, 3" % sWV)
    A("s_cbranch_scc1 Lmlp_skip")
    vH, vY, vHP, vHS, vAD, vST = vA, vA + 10, vXR, vA + 26, vA, vS
    if SPLIT:
        vXO, vFG = 244, 243
        sFIN = sH
        for i in range(4):
            A("ds_read_b64 %s, %s offset:%d" % (V(vXA + 2 * i, 2), V(lXP), 512 * i))
        A("ds_read_b32 %s, %s" % (V(vXA + 8), V(lXS)))
        A("s_lshl_b32 s%d, s%d, 9" % (sT0, sWV))
        A("v_add_u32 v246, s%d, %s" % (sT0, V(lXP)))
        A("ds_read_b64 %s, v246" % V(vXO, 2))
        for i in range(3):
            A("v_mov_b32 %s, 0" % V(vY + i))
        A("s_lshl_b32 s%d, s%d, 8" % (sT0, sWV))
        A("v_add_u32 v246, s%d, %s" % (sT0, V(lNW)))
        A("v_lshl_add_u32 v247, v1, 2, s%d" % sT0)
        A("v_lshlrev_b32 v248, 1, v1")
        A("v_mov_b32 v249, %d" % (FLG + 28))
        A("s_waitcnt lgkmcnt(1)")
        stats_lane(vST)
        for l in stats_wave(vST, True):
            A(l)
        A("s_mov_b32 s%d, %s" % (sT0, hx(E0 * 0x10001)))
        A("s_waitcnt lgkmcnt(0)")
        A("v_mul_f32 %s, %s, %s" % (V(vST + 4), V(vST), V(vST + 2)))
        A("v_pk_fma_f32 %s, %s, %s, %s op_sel_hi:[1,0,0] neg_lo:[0,0,1] neg_hi:[0,0,1]" % (V(vH, 2), V(vXO, 2), bc(vST + 2), bc(vST + 4)))
        A("v_fma_f32 %s, %s, %s, -%s" % (V(vH + 2), V(vXA + 8), V(vST + 2), V(vST + 4)))
        A("v_cvt_pk_bf16_f32 %s, %s, %s" % (V(vHS), V(vH), V(vH + 1)))
        A("v_cvt_pk_bf16_f32 %s, %s, %s" % (V(vHS + 1), V(vH + 2), V(vH + 2)))
        for i in range(2):
            A("v_pk_sub_u16 %s, %s, s%d" % (V(vHS + i), V(vHS + i), sT0))
        for i in range(3):
            A("v_lshlrev_b32_sdwa %s, 1, %s dst_sel:DWORD dst_unused:UNUSED_PAD src0_sel:DWORD src1_sel:WORD_%d" % (
                V(vAD + i), V(vHS + (i >> 1)), i & 1))
            A("ds_read_u16_d16_hi %s, %s offset:%d" % (V(vY + i), V(vAD + i), TABP))
        A("v_or_b32 %s, %s, %s" % (V(vM), V(vHS), V(vHS + 1)))
        A("v_and_b32 %s, 0x78007800, %s" % (V(vM), V(vM)))
        A("v_cmp_ne_u32 vcc, 0, %s" % V(vM))
        A("s_cmp_lg_u32 s%d, 0" % sL)
        A("s_waitcnt lgkmcnt(0)")
        A("v_pk_add_f32 %s, %s, %s" % (V(vXO, 2), V(vXO, 2), V(vY, 2)))
        A("v_add_f32 %s, %s, %s" % (V(vXA + 8), V(vXA + 8), V(vY + 2)))
        A("s_cbranch_vccnz Lmiss")
        A("v_cvt_pk_bf16_f32 %s, %s, %s" % (V(vHP), V(vXO), V(vXO + 1)))
        A("v_cvt_pk_bf16_f32 %s, %s, %s" % (V(vHP + 4), V(vXA + 8), V(vXA + 8)))
        A("s_cbranch_scc1 Lfin2")
        A("ds_write_b32 v246, %s" % V(vHP))
        A("ds_write_b16 %s, %s" % (V(lNH), V(vHP + 4)))
        A.label("Lshare")
        stampL("lk")
        A("s_waitcnt lgkmcnt(0)")
        A("s_barrier")
        A("ds_read_b32 %s, v249" % V(vFG))
        for i in range(4):
            A("ds_read_b32 %s, %s offset:%d" % (V(vXR + i), V(lNW), 256 * i))
        A("ds_read_u16 %s, %s" % (V(vXR + 4), V(lNH)))
        for ks in range(4):
            A("ds_read_b128 %s, %s offset:%d" % (V(vA + 4 * ks, 4), V(lNR), 64 * ks))
        A("ds_read_b64 %s, %s" % (V(vA + 16, 2), V(lNR2)))
        A("s_waitcnt lgkmcnt(10)")
        A("v_cmp_ne_u32 vcc, 0, %s" % V(vFG))
        A("s_cbranch_vccnz Lmlp")
        add64(sHQ, "%d" % L_HQ)
        A("s_waitcnt lgkmcnt(5)")
        A("s_call_b64 %s, Lq_unpack" % sp(sRET))
        A("s_branch Lq_done")
        A.label("Lmiss")
        A("v_lshlrev_b32 v250, s%d, 1" % sL)
        A("ds_or_b32 v249, v250")
        A("s_cbranch_scc0 Lshare")
        A("s_branch Lfin3")
        A.label("Lfin2")
        A("global_store_dword v247, %s, %s%s" % (V(vHP), sp(sOUT), OUTF))
        A("s_cmp_lg_u32 s%d, 0" % sWV)
        A("s_cbranch_scc1 Lfin3")
        A("global_store_short v248, %s, %s offset:1024%s" % (V(vHP + 4), sp(sOUT), OUTF))
        A.label("Lfin3")
        stamp("lk1")
        A("s_waitcnt lgkmcnt(0)")
        A("s_barrier")
        A("ds_read_b32 %s, v249" % V(vFG))
        A("s_waitcnt lgkmcnt(0)")
        A("v_cmp_lt_u32 vcc, 1, %s" % V(vFG))
        A("s_cbranch_vccz Lexit")
    else:
        A("s_mul_i32 s%d, s%d, s%d" % (sT0, sL, sWV))
        A("s_cmp_lg_u32 s%d, 0" % sT0)
        A("s_cbranch_scc1 Lhelper")
    A.label("Lmlp")
    if SPLIT:
        A("s_waitcnt lgkmcnt(0)")
    for i in range(4):
        A("ds_read_b64 %s, %s offset:%d" % (V(vXA + 2 * i, 2), V(lXP), 512 * i))
    A("ds_read_b32 %s, %s" % (V(vXA + 8), V(lXS)))
    for i in range(9):
        A("v_mov_b32 %s, 0" % V(vY + i))
    A("s_waitcnt lgkmcnt(0)")
    stats_lane(vST)
    for l in stats_wave(vST, True):
        A(l)
    normalize(vH, vST, vST + 2)
    A("s_mov_b32 s%d, %s" % (sT0, hx(E0 * 0x10001)))
    for i in range(5):
        A("v_cvt_pk_bf16_f32 %s, %s, %s" % (V(vHP + i), V(vH + 2 * i), V(vH + min(2 * i + 1, 8))))
    for i in range(5):
        A("v_pk_sub_u16 %s, %s, s%d" % (V(vHS + i), V(vHP + i), sT0))
    for i in range(9):
        A("v_lshlrev_b32_sdwa %s, 1, %s dst_sel:DWORD dst_unused:UNUSED_PAD src0_sel:DWORD src1_sel:WORD_%d" % (
            V(vAD + i), V(vHS + (i >> 1)), i & 1))
        A("ds_read_u16_d16_hi %s, %s offset:%d" % (V(vY + i), V(vAD + i), TABP))
    A("v_or3_b32 %s, %s, %s, %s" % (V(vM), V(vHS), V(vHS + 1), V(vHS + 2)))
    A("v_or3_b32 %s, %s, %s, %s" % (V(vM), V(vM), V(vHS + 3), V(vHS + 4)))
    A("v_and_b32 %s, 0x78007800, %s" % (V(vM), V(vM)))
    A("v_cmp_ne_u32 vcc, 0, %s" % V(vM))
    A("s_waitcnt lgkmcnt(0)")
    A("s_cbranch_vccnz Lfallback")
    A.label("Lfb_done")
    if not SPLIT:
        stampL("lk")
    for i in range(4):
        A("v_pk_add_f32 %s, %s, %s" % (V(vXA + 2 * i, 2), V(vXA + 2 * i, 2), V(vY + 2 * i, 2)))
    A("v_add_f32 %s, %s, %s" % (V(vXA + 8), V(vXA + 8), V(vY + 8)))
    for i in range(5):
        A("v_cvt_pk_bf16_f32 %s, %s, %s" % (V(vHP + i), V(vXA + 2 * i), V(vXA + min(2 * i + 1, 8))))
    A("s_cmp_lg_u32 s%d, 0" % sL)
    A("s_cbranch_scc1 Lfinal")
    if WARM & 1:
        A("s_cbranch_execz Lwarm1")
    if DUMP:
        A("s_lshl_b32 s%d, s2, 2" % sT0)
        A("s_add_u32 s%d, s%d, s%d" % (sT0, sT0, sWV))
        A("s_mul_i32 s%d, s%d, 8192" % (sT0, sT0))
        A("s_add_u32 s%d, s%d, %d" % (sT0, sT0, 2 << 20))
        A("v_lshl_add_u32 v252, v1, 2, s%d" % sT0)
        A("v_add_u32 v253, 4096, v252")
        for i, r in enumerate(list(range(vHS, vHS + 5)) + list(range(vY, vY + 9)) + list(range(vHP, vHP + 5)) + list(range(vAD, vAD + 9)) + [vS, vS + 2, vS + 6, vS + 7]):
            A("global_store_dword %s, %s, %s offset:%d" % ("v252" if i < 16 else "v253", V(r), sp(sWS), 256 * (i % 16)))
    if LEAD:
        A("s_cmp_lg_u32 s%d, 1" % sWV)
        A("s_cbranch_scc1 Lnoy")
        A("v_lshlrev_b32 v249, 2, v1")
        A("v_lshlrev_b32 v250, 1, v1")
        store2(["global_store_dword v249, %s, %s offset:%d" % (V(vHP + i), sp(sHY), 256 * i) for i in range(4)] +
               ["global_store_short v250, %s, %s offset:1024" % (V(vHP + 4), sp(sHY))])
        A.label("Lnoy")
    add64(sHQ, "%d" % L_HQ)
    A("s_call_b64 %s, Lqstage" % sp(sRET))
    A.label("Lq_done")
    A("s_cmp_lg_u32 s%d, 0" % sWV)
    A("s_cbranch_scc1 Lnext")
    for i in range(4):
        A("ds_write_b64 %s, %s offset:%d" % (V(lXP), V(vXA + 2 * i, 2), 512 * i + XSB - XSA))
    A("ds_write_b32 %s, %s offset:%d" % (V(lXS), V(vXA + 8), XSB - XSA))
    A("s_branch Lnext")
    if LEAD:
        A.label("Lwho")
        A("s_cmp_eq_u32 s%d, 0" % sS)
        A("s_cbranch_scc1 Ltabg")
        A("s_cmp_gt_u32 s%d, 3" % sWV)
        A("s_cbranch_scc1 Lqwait")
        A("s_mul_i32 s%d, s%d, 1152" % (sT0, sWV))
        A("s_add_u32 s%d, s%d, %d" % (sT0, sT0, XN))
        A("v_subrev_u32 v248, s%d, %s" % (sT0, V(lNR)))
        A("v_subrev_u32 v249, s%d, %s" % (sT0, V(lNR2)))
        A("v_mov_b32 v243, 0")
        add64(sHQ, "%d" % L_HQ)
        A.label("Lypoll")
        for ks in range(4):
            A("global_load_dwordx4 %s, v248, %s offset:%d sc1" % (V(vA + 4 * ks, 4), sp(sHY), 64 * ks))
        A("global_load_dwordx2 %s, v249, %s sc1" % (V(vA + 16, 2), sp(sHY)))
        A("global_load_dwordx3 %s, v243, %s offset:1152 sc1" % (V(vS + 2, 3), sp(sHY)))
        A("s_waitcnt vmcnt(1)")
        maxtree(vM, range(vA, vA + 18))
        A("s_waitcnt vmcnt(0)")
        A("v_max3_u32 %s, %s, %s, %s" % (V(vM), V(vM), V(vS + 2), V(vS + 4)))
        poll_tail("Lypoll", vM)
        stamp("yy")
        A("s_call_b64 %s, Lq_mm" % sp(sRET))
        A("s_branch Lnext")
    A.label("Lmlp_skip")
    A("s_cmp_lg_u32 s%d, 0" % sL)
    A("s_cbranch_scc1 Lexit")
    if SPLIT:
        A("s_barrier")
    A.label("Lqwait")
    add64(sHQ, "%d" % L_HQ)
    A("s_lshr_b32 s%d, s%d, 1" % (sT0, sWV))
    A("s_cmp_lg_u32 s%d, %d" % (sT0, QW // 2))
    A("s_cbranch_scc1 Lnext")
    A.label("Lqpoll")
    A("global_load_dwordx4 %s, %s, %s sc1" % (V(vQ, 4), V(aHQG), sp(sHQ)))
    A("s_waitcnt vmcnt(0)")
    if QSPEC:
        A("v_mfma_f32_16x16x32_bf16 %s, %s, %s, 0" % (V(QD, 4), V(vSEL, 4), V(vQ, 4)))
    maxtree(vM, range(vQ, vQ + 4))
    poll_tail("Lqpoll", vM)
    if not QSPEC:
        A("v_mfma_f32_16x16x32_bf16 %s, %s, %s, 0" % (V(QD, 4), V(vSEL, 4), V(vQ, 4)))
    for i in range(2):
        A("v_cvt_pk_bf16_f32 %s, %s, %s" % (V(vQ + i), V(QD + 2 * i), V(QD + 2 * i + 1)))
    A("s_mov_b32 exec_hi, 0")
    A("ds_write_b64 %s, %s" % (V(lQW), V(vQ, 2)))
    A("s_mov_b32 exec_hi, -1")
    A.label("Lnext")
    add64(sHO, "%d" % L_HO)
    if NREP > 1:
        for r in HXB:
            add64(r, "s%d" % sXD)
        A("s_mov_b64 %s, %s" % (sp(sHXS), sp(sHX)))
        A("s_mov_b64 %s, 0x3ffff" % sp(sXM))
    else:
        for r in HXB:
            add64(r, "%d" % L_HX)
    for r in (lXC, lXP, lXS):
        A("v_add_u32 %s, %d, %s" % (V(r), XSB - XSA, V(r)))
    A("s_mov_b32 s%d, 1" % sL)
    stamp("qs")
    A("s_waitcnt lgkmcnt(0)")
    A("s_barrier")
    stamp("q1")
    A("s_branch Latt")
    A.label("Lv_read")
    A("s_cmp_lt_u32 s%d, 4" % sWV)
    A("s_cbranch_scc1 Lv_read_done")
    for i in range(8):
        A("ds_read_b128 %s, %s offset:%d" % (V(vVR + 4 * i, 4), V(vA + 1), (i >> 2) * 4352 + (i & 3) * 256))
    A("s_branch Lv_read_done")
    A.label("Lv_wait")
    if VPRE:
        A("s_cmp_gt_u32 s%d, 3" % sWV)
        A("s_cbranch_scc1 Lv_ready")
    if WOB or WOPOST:
        A("s_waitcnt vmcnt(%d) lgkmcnt(0)" % WO1)
        A("s_cmp_lg_u32 s%d, 0" % sWV)
        A("s_cbranch_scc1 Lv_perm")
        A("s_waitcnt vmcnt(0)")
    else:
        A("s_sub_u32 s%d, s%d, 1" % (sT0, sWV))
        A("s_cmp_lt_u32 s%d, 3" % sT0)
        A("s_cbranch_scc1 Lv_wo")
        A("s_waitcnt vmcnt(0) lgkmcnt(0)")
        A("s_branch Lv_perm")
        A.label("Lv_wo")
        woloads(WO1, 16, WINO if callable(WINO) else lambda i: WINO)
        A("s_waitcnt vmcnt(16)")
    A.label("Lv_perm")
    stamp("kv")
    A("s_mov_b32 s%d, 0x05040100" % sT0)
    A("s_mov_b32 s%d, 0x07060302" % sT1)
    for j in range(8):
        for e in range(4):
            A("v_perm_b32 %s, %s, %s, s%d" % (
                V(vVT + 4 * j + e), V(vVR + 4 * (2 * e + 1) + (j >> 1)), V(vVR + 4 * (2 * e) + (j >> 1)), sT1 if j & 1 else sT0))
    for i in range(4):
        A("v_mov_b32 %s, 0x3f803f80" % V(vONES + i))
    if VPRE:
        A("s_cmp_gt_u32 s%d, 3" % sWV)
        A("s_cbranch_scc1 Lv_back")
    A("s_branch Lv_ready")
    if WOPOST:
        A.label("Lwo_rest")
        A("s_sub_u32 s%d, s%d, 1" % (sT0, sWV))
        A("s_cmp_lt_u32 s%d, 3" % sT0)
        A("s_cbranch_scc0 Lwo_back")
        woloads(WO1, 16, lambda i: 63)
        A("s_branch Lwo_back")
    A.label("Lstash")
    A("s_cmp_lt_u32 s%d, 4" % sWV)
    A("s_cbranch_scc1 Lstashed")
    A("s_mul_i32 s%d, s%d, 8704" % (sT1, sWV))
    A("s_add_u32 s%d, s%d, %d" % (sT1, sT1, KB - 4 * 8704))
    A("v_lshl_add_u32 v250, v1, 4, s%d" % sT1)
    A("v_lshl_add_u32 v251, v1, 2, s%d" % sT1)
    for i in range(3):
        A("ds_write_b128 v250, %s offset:%d" % (V(vRW + 10 * i, 4), 2304 * i))
        A("ds_write_b128 v250, %s offset:%d" % (V(vRW + 10 * i + 4, 4), 2304 * i + 1024))
        A("ds_write_b32 v251, %s offset:%d" % (V(vRW + 10 * i + 8), 2304 * i + 2048))
    A.label("Lstashed")
    if WOEARLY:
        A("s_waitcnt vmcnt(0)")
        woread()
    A("s_branch Lopoll")
    A.label("Lhelper")
    spin(20, 1, "Lhelp_spin")
    A("s_cmp_eq_u32 s%d, 2" % sT0)
    A("s_cbranch_scc1 Lmlp")
    A("s_branch Lexit")
    A.label("Lxchk")
    A("s_mov_b32 exec_hi, s%d" % sT2)
    if XMASK:
        for i in range(4):
            maxtree(vS + i, range(vA + 4 * i, vA + 4 * i + 4))
        for i in range(4):
            A("v_cmp_eq_u32 %s, -1, %s" % (sp(sH + 2 * i), V(vS + i)))
        A("s_mov_b32 exec_hi, 0")
        A("s_or_b64 vcc, %s, %s" % (sp(sH), sp(sH + 2)))
        A("s_or_b64 vcc, vcc, %s" % sp(sH + 4))
        A("s_or_b64 vcc, vcc, %s" % sp(sH + 6))
        A("s_cbranch_scc0 Lxok")
        A("s_sub_u32 s%d, s%d, 1" % (sCNT, sCNT))
        A("s_cbranch_scc1 Lxgiveup")
        for i in range(4):
            A("s_mov_b64 exec, %s" % sp(sH + 2 * i))
            A("global_load_dwordx4 %s, %s, %s sc1" % (V(vA + 4 * i, 4), V(aHXL), sp(HXB[i])))
        A("s_mov_b64 exec, -1")
        A("s_waitcnt vmcnt(0)")
        A("s_branch Lxsum")
        A.label("Lxgiveup")
    else:
        maxtree(vM, range(vA, vA + 16))
        A("v_cmp_eq_u32 vcc, -1, %s" % V(vM))
        A("s_mov_b32 exec_hi, 0")
        A("s_cbranch_vccz Lxok")
        A("s_sub_u32 s%d, s%d, 1" % (sCNT, sCNT))
        A("s_cbranch_scc0 Lxpoll")
    A("s_mov_b32 s%d, 0" % sCNT)
    A("s_branch Lxok")
    A.label("Lfinal")
    A("s_cmp_lg_u32 s%d, 0" % sWV)
    A("s_cbranch_scc1 Lexit")
    A("v_lshlrev_b32 v249, 2, v1")
    A("v_lshlrev_b32 v250, 1, v1")
    for i in range(4):
        A("global_store_dword v249, %s, %s offset:%d%s" % (V(vHP + i), sp(sOUT), 256 * i, OUTF))
    A("global_store_short v250, %s, %s offset:1024%s" % (V(vHP + 4), sp(sOUT), OUTF))
    A("v_mov_b32 v252, %d" % (FLG + 20))
    A("v_mov_b32 v253, 1")
    A("ds_max_u32 v252, v253")
    if ENDSTAMP:
        A("s_memrealtime s[70:71] ; ENDSTAMP")
        A("s_lshl_b32 s%d, s2, 2" % sT0)
        A("s_add_u32 s%d, s%d, %d" % (sT0, sT0, W_DIAG))
        A("v_mov_b32 v249, s%d" % sT0)
        A("s_waitcnt lgkmcnt(0)")
        A("v_mov_b32 v250, s70")
        A("global_store_dword v249, v250, %s" % sp(sWS))
    if WB:
        A("s_branch Lexit")
        A.label("Lwb")
        A("s_cmp_lg_u32 s%d, 0" % sWV)
        A("s_cbranch_scc1 Lexit")
        if WB == 2:
            A("s_cmp_lg_u32 s%d, 7" % sS)
            A("s_cbranch_scc1 Lexit")
        A("s_waitcnt vmcnt(0)")
        A("buffer_wbl2 sc1")
    A.label("Lexit")
    if DIAG:
        A("v_mov_b32 v251, s98")
        stamp("end")
        A("s_memtime %s" % sp(sMSK))
        A("s_waitcnt lgkmcnt(0)")
        A("s_sub_u32 s100, s%d, s100" % sMSK)
        A("s_lshl_b32 s%d, s2, 3" % sT0)
        A("s_add_u32 s%d, s%d, s%d" % (sT0, sT0, sWV))
        A("s_lshl_b32 s%d, s%d, 7" % (sT0, sT0))
        A("s_add_u32 s%d, s%d, %d" % (sT0, sT0, W_DIAG))
        A("v_mov_b32 v249, s%d" % sT0)
        A("s_mov_b64 exec, 1")
        for i in range(stamp_n[0]):
            A("v_mov_b32 v250, s%d" % (sSTAMP + 2 * i))
            A("global_store_dword v249, v250, %s offset:%d" % (sp(sWS), 4 * i))
        A("global_store_dword v249, v251, %s offset:112" % sp(sWS))
        A("v_mov_b32 v250, s100")
        A("global_store_dword v249, v250, %s offset:116" % sp(sWS))
        A("v_mov_b32 v250, s%d" % sCNT)
        A("global_store_dword v249, v250, %s offset:120" % sp(sWS))
        A("v_mov_b32 v250, s%d" % sFAST)
        A("global_store_dword v249, v250, %s offset:124" % sp(sWS))
        A("s_or_b32 s%d, s2, s%d" % (sT0, sWV))
        A("s_cbranch_scc1 Lend")
        A("v_mov_b32 v249, 0")
        for i in range(1, stamp_n[0]):
            A("s_sub_u32 s%d, s%d, s%d" % (sT0, sSTAMP + 2 * i, sSTAMP))
            A("v_mov_b32 v250, s%d" % sT0)
            A("global_store_dword v249, v250, %s offset:%d" % (sp(sDBG), 4 * i))
        A("v_mov_b32 v250, s100")
        A("global_store_dword v249, v250, %s offset:0" % sp(sDBG))
        A("v_mov_b32 v250, s%d" % sCNT)
        A("global_store_dword v249, v250, %s offset:60" % sp(sDBG))
    A.label("Lend")
    A("s_endpgm")

    A.label("Lqstage")
    for i in range(4):
        A("ds_write_b32 %s, %s offset:%d" % (V(lNW), V(vXR + i), 256 * i))
    A("ds_write_b16 %s, %s" % (V(lNH), V(vXR + 4)))
    for ks in range(4):
        A("ds_read_b128 %s, %s offset:%d" % (V(vA + 4 * ks, 4), V(lNR), 64 * ks))
    A("ds_read_b64 %s, %s" % (V(vA + 16, 2), V(lNR2)))
    A.label("Lq_unpack")
    for i in range(4):
        A("v_lshlrev_b32 %s, 16, %s" % (V(vXA + 2 * i), V(vXR + i)))
        A("v_and_b32 %s, 0xffff0000, %s" % (V(vXA + 2 * i + 1), V(vXR + i)))
    A("v_lshlrev_b32 %s, 16, %s" % (V(vXA + 8), V(vXR + 4)))
    stats_lane(vS)
    rest = stats_wave(vS, False)
    rest.append("v_mul_f32 %s, %s, %s" % (V(vS + 4), V(vS), V(vS + 2)))
    if LEAD:
        for l in rest:
            A(l)
        rest = []
        A("s_cmp_lg_u32 s%d, s%d" % (sWV, sYW))
        A("s_cbranch_scc1 Lq_mm")
        A("v_mov_b32 v243, 0")
        A("s_mov_b64 exec, 1")
        store2(["global_store_dwordx3 v243, %s, %s offset:1152" % (V(vS + 2, 3), sp(sHY))])
        A("s_mov_b64 exec, -1")
        A.label("Lq_mm")
    vQC = vA + 24
    for i in range(4):
        rest.append("v_pk_mul_f32 %s, %s, %s op_sel_hi:[1,0] neg_lo:[1,0] neg_hi:[1,0]" % (
            V(vQC + 2 * i, 2), V(vSQ + 2 * i, 2), bc(vS + 4)))
    acc = (vP, 244)
    per = [2, 2, 2, 2, 2, 2, 2, 2, 3, 100]
    if LEAD:
        per = [0, 0, 0, 0, 0, 0, 0, 5, 0, 0]
        rest.append("s_nop 1")
    for ks in range(5):
        A("s_waitcnt lgkmcnt(%d)" % (4 - ks))
        for u in range(2):
            if ks < 4:
                A("v_mfma_f32_16x16x32_bf16 %s, %s, %s, %s" % (
                    V(acc[u], 4), V(vWQ + 18 * u + 4 * ks, 4), V(vA + 4 * ks, 4), V(acc[u], 4) if ks else "0"))
            else:
                A("v_mfma_f32_16x16x16_bf16 %s, %s, %s, %s" % (V(acc[u], 4), V(vWQ + 18 * u + 16, 2), V(vA + 16, 2), V(acc[u], 4)))
            n = per[2 * ks + u]
            for l in rest[:n]:
                A(l)
            rest = rest[n:]
    for u in range(2):
        for i in range(2):
            A("v_pk_fma_f32 %s, %s, %s, %s op_sel_hi:[1,0,1]" % (
                V(acc[u] + 2 * i, 2), V(acc[u] + 2 * i, 2), bc(vS + 2), V(vQC + 4 * u + 2 * i, 2)))
        for i in range(2):
            A("v_cvt_pk_bf16_f32 %s, %s, %s" % (V(vA + 2 * u + i), V(acc[u] + 2 * i), V(acc[u] + 2 * i + 1)))
    A("s_mov_b32 exec_lo, 0x00010001")
    A("s_mov_b32 exec_hi, 0x00010001")
    store2(["global_store_dwordx4 %s, %s, %s" % (V(aHQS), V(vA, 4), sp(sHQ))])
    A("s_mov_b64 exec, -1")
    A("s_nop 0")
    A("s_setpc_b64 %s" % sp(sRET))

    A.label("Lkshuf")
    for pr in range(4):
        a, b = vK + 8 * pr, vK + 8 * pr + 4
        for d in range(4):
            A("v_mov_b32 %s, %s" % (V(vA + 16 + d), V(a + d)))
        for d in range(4):
            A("v_mov_b32_dpp %s, %s row_ror:8 row_mask:0xf bank_mask:0xc" % (V(a + d), V(b + d)))
        for d in range(4):
            A("v_mov_b32_dpp %s, %s row_ror:8 row_mask:0xf bank_mask:0x3" % (V(b + d), V(vA + 16 + d)))
    A("s_setpc_b64 %s" % sp(sRET))
    A.label("Lsel")
    A("v_mov_b32 %s, 0x3f803f80" % V(vS + 3))
    A("v_and_b32 %s, 1, v1" % V(vS))
    A("v_lshlrev_b32 %s, 4, %s" % (V(vS), V(vS)))
    A("v_lshlrev_b32 %s, %s, %s" % (V(vS), V(vS), V(vS + 3)))
    A("v_bfe_u32 %s, v1, 1, 3" % V(vS + 1))
    A("v_and_b32 %s, 1, v1" % V(vS + 2))
    A("v_cmp_eq_u32 vcc, 0, %s" % V(vS + 2))
    A("v_and_b32 %s, 0xffff, %s" % (V(vS + 2), V(vS)))
    A("v_cndmask_b32 %s, %s, %s, vcc" % (V(vS), V(vS), V(vS + 2)))
    for d in range(4):
        A("v_cmp_eq_u32 vcc, %d, %s" % (d, V(vS + 1)))
        A("v_cndmask_b32 %s, 0, %s, vcc" % (V(vSEL + d), V(vS)))
    A("s_setpc_b64 %s" % sp(sRET))
    A.label("Laddr")
    A("v_mov_b32 v232, 0")
    A("v_bfe_u32 v250, v24, 2, 1")
    A("v_lshlrev_b32 v249, 8, v250")
    A("v_lshl_add_u32 v249, v25, 4, v249")
    A("v_add_u32 %s, %d, v249" % (V(aHQL), QL))
    A("s_and_b32 s%d, s%d, 1" % (sT0, sWV))
    A("s_lshl_b32 s%d, s%d, 8" % (sT0, sT0))
    A("v_lshl_add_u32 v249, v24, 4, s%d" % sT0)
    A("v_lshl_add_u32 %s, v25, 9, v249" % V(aHQG))
    A("v_and_b32 v250, 1, v25")
    A("v_lshl_add_u32 v249, v250, 3, v249")
    A("v_add_u32 %s, %d, v249" % (V(lQW), QL))
    A("s_lshl_b32 s%d, s%d, 8" % (sT0, sS))
    A("s_lshl_b32 s%d, s%d, 6" % (sT1, sWV))
    A("s_add_u32 s%d, s%d, s%d" % (sT0, sT0, sT1))
    A("v_lshl_add_u32 %s, v25, 4, s%d" % (V(aHQS), sT0))
    A("s_lshl_b32 s%d, s%d, 7" % (sT0, sWV))
    A("v_lshl_add_u32 v249, v27, 4, s%d" % sT0)
    A("v_lshl_add_u32 %s, v26, 10, v249" % V(aHOL))
    A("s_lshl_b32 s%d, s%d, 10" % (sT1, sS))
    A("v_add_u32 %s, s%d, v249" % (V(aHOS), sT1))
    A("v_mul_u32_u24 v250, %d, v26" % PSTR)
    A("v_add_u32 v250, %d, v250" % PART)
    A("v_add_u32 %s, v249, v250" % V(lPR))
    A("s_mul_i32 s%d, s%d, %d" % (sT0, sWV, RSTR))
    A("s_add_u32 s%d, s%d, %d" % (sT0, sT0, RED))
    A("v_lshl_add_u32 %s, v24, 2, s%d" % (V(lOW), sT0))
    A("s_lshr_b32 s%d, s%d, 2" % (sT0, sWV))
    A("s_lshl_b32 s%d, s%d, 3" % (sT0, sT0))
    A("v_lshl_add_u32 %s, v26, 4, s%d" % (V(aHML), sT0))
    A("v_add_u32 %s, %d, %s" % (V(lMR), ML, V(aHML)))
    A("s_lshl_b32 s%d, s%d, 8" % (sT0, sWV))
    A("v_lshl_add_u32 v249, v24, 4, s%d" % sT0)
    A("v_mul_u32_u24 v250, 1152, v25")
    A("v_add_u32 %s, v249, v250" % V(aHXL))
    A("v_and_b32 v253, 1, v25")
    A("v_lshlrev_b32 v249, 1, v249")
    A("v_lshl_add_u32 v249, v253, 4, v249")
    A("v_add_u32 %s, %d, v249" % (V(lXC), XSA))
    A("s_mul_i32 s%d, s%d, 1152" % (sT0, sHKV))
    A("s_mul_i32 s%d, s%d, 144" % (sT1, sS))
    A("s_add_u32 s%d, s%d, s%d" % (sT0, sT0, sT1))
    A("v_mul_u32_u24 v250, 3641, v1")
    A("v_lshrrev_b32 v250, 16, v250")
    A("v_mul_u32_u24 v249, 18, v250")
    A("v_sub_u32 v249, v1, v249")
    A("v_lshlrev_b32 %s, 4, v249" % V(lOR))
    A("v_add_u32 %s, %d, %s" % (V(lOR), RED, V(lOR)))
    A("v_lshl_add_u32 %s, v249, 3, s%d" % (V(aHXS), sT0))
    A("v_mul_u32_u24 v250, %d, v250" % L_HX)
    A("v_add_u32 %s, v250, %s" % (V(aHXS), V(aHXS)))
    A("v_add_u32 %s, %d, %s" % (V(aHML), 3 * L_HX, V(aHXS)))
    A("s_mul_i32 s%d, s%d, %d" % (sT0, sWV, PSTR))
    A("s_add_u32 s%d, s%d, %d" % (sT0, sT0, PART))
    A("v_lshlrev_b32 v249, 9, v253")
    A("v_lshl_add_u32 v249, v24, 2, v249")
    A("v_add_u32 %s, s%d, v249" % (V(lPW), sT0))
    A("s_lshl_b32 s%d, s%d, 4" % (sT0, sWV))
    A("s_add_u32 s%d, s%d, %d" % (sT0, sT0, ML))
    A("v_lshl_add_u32 %s, v253, 3, s%d" % (V(lMW), sT0))
    A("v_lshlrev_b32 v249, 4, v25")
    A("v_lshlrev_b32 v250, 3, v1")
    A("v_add_u32 %s, %d, v250" % (V(lXP), XSA))
    A("v_add_u32 %s, %d, v28" % (V(lXS), XSA + 2048))
    A("s_mov_b32 s%d, %d" % (sT0, XN))
    A("v_add_u32 %s, s%d, v28" % (V(lNW), sT0))
    A("s_add_u32 s%d, s%d, 1024" % (sT1, sT0))
    A("v_add_u32 %s, s%d, v29" % (V(lNH), sT1))
    A("s_mul_i32 s%d, s%d, 288" % (sT1, sP))
    A("s_add_u32 s%d, s%d, s%d" % (sT0, sT0, sT1))
    A("v_add_u32 %s, s%d, v249" % (V(lNR), sT0))
    A("s_add_u32 s%d, s%d, 256" % (sT0, sT0))
    A("v_lshl_add_u32 %s, v25, 3, s%d" % (V(lNR2), sT0))
    A("v_bfe_u32 v250, v1, 2, 2")
    A("v_lshl_add_u32 v250, v25, 3, v250")
    A("v_mul_u32_u24 v233, 144, v250")
    A("v_and_b32 v250, 3, v1")
    A("v_lshl_add_u32 v233, v250, 3, v233")
    A("s_mul_i32 s%d, s%d, %d" % (sT0, sWV, 32 * 144))
    A("s_add_u32 s%d, s%d, %d" % (sT0, sT0, WOS))
    A("v_add_u32 v233, s%d, v233" % sT0)
    A("s_mov_b32 s%d, 0" % sFB)
    A("v_mov_b32 %s, %s" % (V(vINV), fl(1.0 / 576)))
    A("v_mov_b32 %s, %s" % (V(vC1), fl((1.0 + 1e-5) / 576)))
    A("v_mov_b32 %s, %s" % (V(vEPS), fl(1e-5)))
    A("v_mov_b32 %s, %s" % (V(vEPS2), fl(1e-10)))
    add64(sOUT, "s%d" % oX)
    A("s_mov_b32 s%d, 0" % sL)
    A("s_mov_b32 s%d, 0" % sFAST)
    A("s_mov_b32 s%d, %d" % (sCNT, POLL_LIMIT))
    A("s_mov_b32 s%d, %s" % (sSMC, fl(SMC)))
    A("s_setpc_b64 %s" % sp(sRET))

    A.label("Lfallback")
    A("v_mov_b32 v252, %d" % (FLG + 20))
    A("v_lshlrev_b32 v253, 1, s%d" % sL)
    A("ds_max_u32 v252, v253")
    fw, ft = vMA, 244
    A("s_mul_i32 s%d, s%d, 8704" % (sT1, sWV))
    A("s_add_u32 s%d, s%d, %d" % (sT1, sT1, KB))
    A("v_lshl_add_u32 v250, v1, 4, s%d" % sT1)
    A("v_lshl_add_u32 v251, v1, 2, s%d" % sT1)
    for i in range(3):
        A("ds_read_b128 %s, v250 offset:%d" % (V(fw + 10 * i, 4), 2304 * i))
        A("ds_read_b128 %s, v250 offset:%d" % (V(fw + 10 * i + 4, 4), 2304 * i + 1024))
        A("ds_read_b32 %s, v251 offset:%d" % (V(fw + 10 * i + 8), 2304 * i + 2048))
    for i in range(9):
        A("v_bfe_u32 %s, %s, %d, 4" % (V(vM), V(vHS + (i >> 1)), 11 + 16 * (i & 1)))
        A("v_cmp_ne_u32 %s, 0, %s" % (sp(sMSK), V(vM)))
        A("v_%s %s, %s, %s" % (("and_b32" if i & 1 else "lshlrev_b32"), V(vM), ("0xffff0000" if i & 1 else "16"), V(vHP + (i >> 1))))
        A.label("Lfb_l%d" % i)
        A("s_cmp_eq_u64 %s, 0" % sp(sMSK))
        A("s_cbranch_scc1 Lfb_n%d" % i)
        A("s_ff1_i32_b64 s%d, %s" % (sT3, sp(sMSK)))
        A("s_bitset0_b64 %s, s%d" % (sp(sMSK), sT3))
        A("v_readlane_b32 s%d, %s, s%d" % (sFH, V(vM), sT3))
        A("s_call_b64 %s, Lfb_eval" % sp(sRET))
        A("s_mov_b32 m0, s%d" % sT3)
        A("v_writelane_b32 %s, s%d, m0" % (V(vY + i), sT0))
        A("s_branch Lfb_l%d" % i)
        A.label("Lfb_n%d" % i)
    A("s_branch Lfb_done")
    A.label("Lfb_eval")
    A("v_mov_b32 %s, 0" % V(ft))
    A("v_mov_b32 %s, 0" % V(ft + 1))
    A("v_mov_b32 %s, %s" % (V(ft + 2), fl(-K1)))
    A("v_mov_b32 %s, %s" % (V(ft + 6), fl(-K0)))
    A("v_mov_b32 %s, 1.0" % V(ft + 4))
    A("s_waitcnt lgkmcnt(0)")
    seqs = []
    for j in range(9):
        b = vS if j & 1 else vA
        a, c, w, t = (V(b + 2 * i, 2) for i in range(4))
        q = []
        for i in range(3):
            q.append("v_lshlrev_b32 %s, 16, %s" % (V(b + 2 * i), V(fw + 10 * i + j)))
            q.append("v_and_b32 %s, 0xffff0000, %s" % (V(b + 2 * i + 1), V(fw + 10 * i + j)))
        q += ["v_pk_fma_f32 %s, %s, %s, %s op_sel_hi:[1,0,1]" % (a, a, sp(sFH), c),
              "v_pk_mul_f32 %s, %s, %s" % (t, a, a),
              "v_pk_mul_f32 %s, %s, %s" % (w, w, a),
              "v_pk_fma_f32 %s, %s, %s, %s op_sel_hi:[1,0,0]" % (t, t, bc(ft + 2), bc(ft + 6)),
              "v_pk_mul_f32 %s, %s, %s" % (t, t, a),
              "v_exp_f32 %s, %s" % (V(b + 6), V(b + 6)),
              "v_exp_f32 %s, %s" % (V(b + 7), V(b + 7)),
              "v_pk_add_f32 %s, %s, %s op_sel_hi:[1,0]" % (t, t, V(ft + 4, 2)),
              "v_rcp_f32 %s, %s" % (V(b + 6), V(b + 6)),
              "v_rcp_f32 %s, %s" % (V(b + 7), V(b + 7)),
              "v_pk_fma_f32 %s, %s, %s, %s" % (V(ft, 2), w, t, V(ft, 2))]
        seqs.append(q)
    for j in range(0, 8, 2):
        for l0, l1 in zip(seqs[j], seqs[j + 1]):
            A(l0)
            A(l1)
    for l in seqs[8]:
        A(l)
    A("v_add_f32 %s, %s, %s" % (V(ft), V(ft), V(ft + 1)))
    for ctl in WAVE6:
        A("v_add_f32_dpp %s, %s, %s %s" % (V(ft), V(ft), V(ft), ctl))
    A("s_and_b32 s%d, s%d, 4" % (sT0, sFB))
    A("s_lshl_b32 s%d, s%d, 2" % (sT0, sT0))
    A("s_add_u32 s%d, s%d, %d" % (sT0, sT0, FB))
    A("s_lshl_b32 s%d, s%d, 2" % (sT1, sWV))
    A("s_add_u32 s%d, s%d, s%d" % (sT1, sT1, sT0))
    A("v_mov_b32 %s, s%d" % (V(ft + 5), sT1))
    A("v_mov_b32 %s, s%d" % (V(ft + 6), sT0))
    A("s_add_u32 s%d, s%d, 4" % (sFB, sFB))
    A("s_mov_b32 exec_lo, 0")
    A("s_mov_b32 exec_hi, 0x80000000")
    A("ds_write_b32 %s, %s" % (V(ft + 5), V(ft)))
    A("s_mov_b64 exec, -1")
    arrive_wait(16, 0, None)
    A.label("Lfb_spin")
    A("ds_read_b32 v253, v252")
    A("s_waitcnt lgkmcnt(0)")
    A("v_readfirstlane_b32 s%d, v253" % sT0)
    spin_tail("Lfb_spin", "s%d" % sFB)
    A("ds_read_b128 %s, %s" % (V(ft, 4), V(ft + 6)))
    A("s_waitcnt lgkmcnt(0)")
    A("v_pk_add_f32 %s, %s, %s" % (V(ft, 2), V(ft, 2), V(ft + 2, 2)))
    A("v_add_f32 %s, %s, %s" % (V(ft), V(ft), V(ft + 1)))
    A("v_cvt_pk_bf16_f32 %s, %s, %s" % (V(ft), V(ft), V(ft)))
    A("v_lshlrev_b32 %s, 16, %s" % (V(ft), V(ft)))
    A("v_add_f32 %s, %s, %s" % (V(ft), V(ft), V(vB2)))
    A("v_cvt_pk_bf16_f32 %s, %s, %s" % (V(ft), V(ft), V(ft)))
    A("v_lshlrev_b32 %s, 16, %s" % (V(ft), V(ft)))
    A("v_readfirstlane_b32 s%d, %s" % (sT0, V(ft)))
    A("s_nop 3")
    A("s_setpc_b64 %s" % sp(sRET))

    A.label("Lcode_end")
    body = A.finish()
    head = open("interleave_layers__sliding_block_cached__mixer_token_mlp__decode.s.ref").read().split(
        "; Override launch geometry")[0]
    head += "; @launch grid=(256,1,1) block=(512,1,1) lds=%d\n" % LDS
    if DIAG:
        head += "; STAMPS: " + " ".join(STAMPS) + "\n"
    head += '.amdgcn_target "amdgcn-amd-amdhsa--gfx950"\n.text\n.globl %s\n.p2align 8\n.type %s,@function\n' % (NAME, NAME)
    tail = """.section .rodata,"a"
.p2align 6
.amdhsa_kernel %s
  .amdhsa_next_free_vgpr 256
  .amdhsa_next_free_sgpr 102
  .amdhsa_accum_offset 256
  .amdhsa_group_segment_fixed_size 0
  .amdhsa_kernarg_size 104
  .amdhsa_user_sgpr_count 2
  .amdhsa_user_sgpr_kernarg_segment_ptr 1
  .amdhsa_system_sgpr_workgroup_id_x 1
.end_amdhsa_kernel
""" % NAME
    return head + body + tail


if __name__ == "__main__":
    out = sys.argv[1]
    kw = {}
    for a in sys.argv[2:]:
        k, v = a.split("=")
        kw[k] = eval(v)
    open(out, "w").write(gen(**kw))
```

```python
import math, struct, sys
from asmlib import Asm

NAME = "interleave_layers__sliding_block_cached__mixer_token_mlp__decode_kernel"


def f2u(x):
    return struct.unpack("<I", struct.pack("<f", x))[0]


def hx(x):
    return "0x%08x" % (x & 0xFFFFFFFF)


def fl(x):
    return hx(f2u(x))


def gen(DIAG=False, NTKV=" nt", NTW=" nt", E_LO=114, FORCE_SLOW=False, POLL_LIMIT=1 << 20,
        STAMPS="start wq q0 wo fl kv tab ho0 og0 hx0 xs0 q1 ho1 hx1 end",
        VSCHED={1: 1, 2: 1, 3: 1, 4: 1}, VBEARLY=False, WOGATE=8, WIN=12, WINO=63, QSPEC=False, DUMP=False, QW=4, QD=24, WO1=10, LEAD=False, FEARLY=False, XMASK=False, QPOS=0, NREP=6, WOB=False, WOEARLY=True, VPRE=True, WOPOST=False, KQ=8, RESTORE=False, WARM=0, SPLIT=True, LM=7, OEARLY=1, TEARLY=False, TPOS=0, TREP=1, DELAY=None, OUTF="", FLW=0, PKS=True, WIN1=12, ENDSTAMP=False, WB=0, XNWAIT=False, XPACE="ack", NOTAB=False, PREF=True, BPRIO=0):
    assert not LEAD and NREP in (1, 3, 6)
    A = Asm()
    LOG2E = math.log2(math.e)
    K0 = 2 * math.sqrt(2 / math.pi) * LOG2E
    K1 = K0 * 0.044715
    SC = K1 ** (1.0 / 3.0)
    KAP = K0 / SC
    SMC = 128 ** -0.5 * LOG2E
    E0 = E_LO << 7
    TABP, WQS, PART, PSTR = 0, 4096, 40960, 1040
    ML, OV, XSA, XSB, XN, TRED = 49280, 49408, 49920, 52224, 54528, 59136
    TABN, WOS, FLG = 65536, WQS, 59648
    QL, KB, VB = 60416, 69632, 104448
    RED, RSTR, FB = QL + 512, 320, FLG + 32
    LDS = 139264
    W_HQ, W_HO, W_HT, W_HX, W_DIAG = 0, 131072, 655360 if TREP == 1 else 950272, 663552, 1 << 20
    W_HY = W_HT + 8192
    L_HQ, L_HO, L_HM, L_HX = 65536, 262144, 4096, 36864
    sX, sK, sV, sWQ, sWO, sW1, sB1, sW2, sB2, sOUT, sDBG, sWS = 4, 6, 8, 10, 12, 16, 18, 20, 22, 24, 26, 28
    sWV, sHKV, sB, sS, sGID, sL, sFAST, sXCC, sCNT, sP = 30, 31, 32, 33, 34, 35, 36, 37, 38, 39
    sH, sRET, sHQ, sHO, sHM, sHX = 40, 56, 58, 60, 62, 64
    sT0, sT1, sT2, sSMC, sT3 = 66, 67, 68, 69, 3
    sMSK = 14
    sQM, sBM, sOM = 50, 52, 54
    sSM2 = 48
    sXM = 22
    sHXS, sXD = 20, 19
    sHY, sYW = 16, 18
    sFB, sFH = 10, 12
    sSTAMP = 70

    def sp(r):
        return "s[%d:%d]" % (r, r + 1)

    def V(a, n=1):
        return "v%d" % a if n == 1 else "v[%d:%d]" % (a, a + n - 1)

    vT, vL = 0, 1
    aHQL, aHQS, aHOL, aHOS, aHML, aHXL, aHXS = 2, 3, 4, 5, 6, 7, 11
    vC1, vEPS2, vEPS = 8, 9, 10
    vSQ = 188
    aHQG, lQW = 98, 99
    lNR2, vSEL = 96, 196
    sHX1, sHX2, sHX3 = 4, 6, 8
    lPW, lPR, lMR, lMW, lOW, lOR, lXC, lXP, lXS, lNW, lNH, lNR = 12, 13, 14, 15, 16, 17, 18, 19, 20, 21, 22, 23
    vS = 24
    vK = 32
    vA = 64
    vVT = 100
    vWQ = 132
    vWO = 168
    vVR = 200
    vONES, vMA, vB2 = 200, 204, 97
    vRW, vCA, vCC, vCW, vKAP, vONE, vSCL = 132, (162, 32), (164, 34), (166, 36), 250, 38, 252
    vQ = 234
    vXA = 234
    vP = 250
    vINV, vM = 254, 255
    vACC, vTT = 168, 184
    STAMPS = STAMPS.split()
    stamp_n = [len(STAMPS)]

    def stamp(name):
        if DIAG and "#" + name in STAMPS:
            A("s_mov_b32 s%d, s%d" % (sSTAMP + 2 * STAMPS.index("#" + name), sCNT))
        if DIAG and name in STAMPS:
            A("s_memrealtime %s" % sp(sSTAMP + 2 * STAMPS.index(name)))
            A("s_waitcnt lgkmcnt(0)")

    def stampL(name):
        if DIAG and any(p + name + l in STAMPS for p in ("", "#") for l in "01"):
            A("s_cmp_eq_u32 s%d, 0" % sL)
            A("s_cbranch_scc0 Lst_%s" % name)
            stamp(name + "0")
            A("s_branch Lste_%s" % name)
            A.label("Lst_%s" % name)
            stamp(name + "1")
            A.label("Lste_%s" % name)

    def bc(r):
        assert r % 2 == 0
        return V(r, 2)

    def add64(base, off_reg):
        A("s_add_u32 s%d, s%d, %s" % (base, base, off_reg))
        A("s_addc_u32 s%d, s%d, 0" % (base + 1, base + 1))

    def store2(text):
        n = len(A.lines)
        A("s_cmp_eq_u32 s%d, 0" % sFAST)
        A("s_cbranch_scc1 Lsl%d" % n)
        for t in text:
            A(t)
        A("s_branch Lsd%d" % n)
        A.label("Lsl%d" % n)
        for t in text:
            A(t + " sc1")
        A.label("Lsd%d" % n)

    def maxtree(dst, regs):
        regs = list(regs)
        A("v_max3_u32 %s, %s, %s, %s" % (V(dst), V(regs[0]), V(regs[1]), V(regs[2])))
        regs = regs[3:]
        while len(regs) >= 2:
            A("v_max3_u32 %s, %s, %s, %s" % (V(dst), V(dst), V(regs[0]), V(regs[1])))
            regs = regs[2:]
        if regs:
            A("v_max_u32 %s, %s, %s" % (V(dst), V(dst), V(regs[0])))

    retries = []

    def poll_tail(label, tmp, mask=None, far=False):
        A("v_cmp_eq_u32 vcc, -1, %s" % V(tmp))
        if mask:
            A("s_or_b32 vcc_lo, vcc_lo, vcc_hi")
            A("s_and_b32 vcc_lo, vcc_lo, %s" % mask)
            A("s_cbranch_scc0 %s_ok" % label)
        elif far:
            A("s_cbranch_vccnz %s_again" % label)
            A.label("%s_ok" % label)
            retries.append(label)
            return
        else:
            A("s_cbranch_vccz %s_ok" % label)
        A("s_sub_u32 s%d, s%d, 1" % (sCNT, sCNT))
        A("s_cbranch_scc0 %s" % label)
        A("s_mov_b32 s%d, 0" % sCNT)
        A.label("%s_ok" % label)

    DPP = " row_mask:0xf bank_mask:0xf"

    def stats_lane(t):
        x = lambda i: V(vXA + 2 * i, 2)
        a, b, q = V(t, 2), V(t + 2, 2), V(t + 4, 2)
        S, Q = t + 6, t + 7
        A("v_pk_add_f32 %s, %s, %s" % (a, x(0), x(1)))
        A("v_pk_mul_f32 %s, %s, %s" % (q, x(0), x(0)))
        A("v_pk_add_f32 %s, %s, %s" % (b, x(2), x(3)))
        A("v_pk_fma_f32 %s, %s, %s, %s" % (q, x(1), x(1), q))
        A("v_pk_add_f32 %s, %s, %s" % (a, a, b))
        A("v_pk_fma_f32 %s, %s, %s, %s" % (q, x(2), x(2), q))
        A("v_add_f32 %s, %s, %s" % (V(S), V(t), V(vXA + 8)))
        A("v_pk_fma_f32 %s, %s, %s, %s" % (q, x(3), x(3), q))
        A("v_add_f32 %s, %s, %s" % (V(S), V(S), V(t + 1)))
        A("v_fma_f32 %s, %s, %s, %s" % (V(Q), V(vXA + 8), V(vXA + 8), V(t + 4)))
        A("v_add_f32 %s, %s, %s" % (V(Q), V(Q), V(t + 5)))

    WAVE6 = ("quad_perm:[1,0,3,2]" + DPP, "quad_perm:[2,3,0,1]" + DPP, "row_half_mirror" + DPP,
             "row_mirror" + DPP, "row_bcast:15 row_mask:0xa bank_mask:0xf", "row_bcast:31 row_mask:0xc bank_mask:0xf")

    def stats_wave(t, twice):
        S, Q = t + 6, t + 7
        o = []
        for ctl in WAVE6:
            o.append("v_add_f32_dpp %s, %s, %s %s" % (V(S), V(S), V(S), ctl))
            o.append("v_add_f32_dpp %s, %s, %s %s" % (V(Q), V(Q), V(Q), ctl))
        o.append("v_readlane_b32 s%d, %s, 63" % (sT0, V(S)))
        o.append("v_readlane_b32 s%d, %s, 63" % (sT1, V(Q)))
        c, e = (vC1, vEPS2) if twice else (vINV, vEPS)
        o.append("v_mul_f32 %s, s%d, %s" % (V(t), sT0, V(vINV)))
        if twice:
            o.append("v_mul_f32 %s, s%d, %s" % (V(t + 2), sT0, V(vC1)))
        o.append("v_fma_f32 %s, s%d, %s, %s" % (V(t + 1), sT1, V(c), V(e)))
        o.append("v_fma_f32 %s, -%s, %s, %s" % (V(t + 1), V(t + 2 if twice else t), V(t), V(t + 1)))
        o.append("v_max_f32 %s, %s, %s" % (V(t + 1), V(e), V(t + 1)))
        o.append("v_rsq_f32 %s, %s" % (V(t + 2), V(t + 1)))
        return o

    def normalize(dst, t, r):
        A("v_mul_f32 %s, %s, %s" % (V(t + 4), V(t), V(r)))
        for i in range(4):
            A("v_pk_fma_f32 %s, %s, %s, %s op_sel_hi:[1,0,0] neg_lo:[0,0,1] neg_hi:[0,0,1]" % (
                V(dst + 2 * i, 2), V(vXA + 2 * i, 2), bc(r), bc(t + 4)))
        A("v_fma_f32 %s, %s, %s, -%s" % (V(dst + 8), V(vXA + 8), V(r), V(t + 4)))

    def reduce8(o, ml, M, e, norm, mid=None, fill=()):
        A("v_max_f32_dpp %s, %s, %s quad_perm:[1,0,3,2]%s" % (V(M), V(ml), V(ml), DPP))
        for l in fill[:2]:
            A(l)
        A("v_max_f32_dpp %s, %s, %s quad_perm:[2,3,0,1]%s" % (V(M), V(M), V(M), DPP))
        for l in fill[2:]:
            A(l)
        A("v_max_f32_dpp %s, %s, %s row_half_mirror%s" % (V(M), V(M), V(M), DPP))
        A("v_sub_f32 %s, %s, %s" % (V(e), V(ml), V(M)))
        A("v_exp_f32 %s, %s" % (V(e), V(e)))
        A("v_mov_b32 %s, %s" % (V(ml), V(M)))
        if mid:
            A(mid)
        A("v_mul_f32 %s, %s, %s" % (V(ml + 1), V(ml + 1), V(e)))
        for i in range(2):
            A("v_pk_mul_f32 %s, %s, %s op_sel_hi:[1,0]" % (V(o + 2 * i, 2), V(o + 2 * i, 2), bc(e)))
        for ctl in ("quad_perm:[1,0,3,2]", "quad_perm:[2,3,0,1]", "row_half_mirror"):
            for r in (ml + 1, o, o + 1, o + 2, o + 3):
                A("v_add_f32_dpp %s, %s, %s %s%s" % (V(r), V(r), V(r), ctl, DPP))
        if norm:
            A("v_rcp_f32 %s, %s" % (V(e), V(ml + 1)))
            for i in range(2):
                A("v_pk_mul_f32 %s, %s, %s op_sel_hi:[1,0]" % (V(o + 2 * i, 2), V(o + 2 * i, 2), bc(e)))

    vXR = vA + 20
    aK, aV, aW = vA, vA + 1, vA + 2

    aK2, aV2, aD, vFL = vWO, vWO + 1, vWO + 2, vWO + 4

    def win():
        if WIN < 63:
            A("s_waitcnt vmcnt(%d)" % (WIN - 1))

    def dma8(base, lds):
        A("s_mul_i32 s%d, s%d, 8704" % (sT1, sWV))
        for i in range(8):
            A("s_add_u32 m0, s%d, %d" % (sT1, lds + 1088 * i - 1024 * (i & 3)))
            win()
            A("global_load_lds_dwordx4 %s, %s offset:%d%s" % (V(aD + (i >> 2)), sp(base), 1024 * (i & 3), NTKV))

    def kloads(aK, lo, hi):
        for T in range(2):
            if T == 1 and FEARLY:
                look()
            for hf in range(2):
                for sub in range(2):
                    if not lo <= 4 * T + 2 * hf + sub < hi:
                        continue
                    win()
                    A("global_load_dwordx4 %s, %s, %s offset:%d%s" % (
                        V(vK + 16 * T + 4 * (2 * hf + sub), 4), V(aK), sp(sK), (16 * T + 8 * sub) * 256 + hf * 128 - 4096, NTKV))

    def look():
        A("s_cmp_lg_u32 s%d, 0" % sWV)
        A("s_cbranch_scc1 Lnolook")
        A("v_lshlrev_b32 v250, 2, v1")
        A("global_load_dword %s, v250, %s sc1" % (V(vFL), sp(sDBG)))
        A.label("Lnolook")

    def vload(i, aV):
        win()
        A("global_load_dwordx4 %s, %s, %s offset:%d%s" % (
            V(vVR + 4 * i, 4), V(aV), sp(sV), (16 * (i >> 2) + (i & 3)) * 256 - 4096, NTKV))

    def spin_tail(name, count):
        A("s_cmp_ge_u32 s%d, %s" % (sT0, count))
        A("s_cbranch_scc1 %s_ok" % name)
        A("s_sub_u32 s%d, s%d, 1" % (sCNT, sCNT))
        A("s_cbranch_scc0 %s" % name)
        A("s_mov_b32 s%d, 0" % sCNT)
        A.label("%s_ok" % name)

    def arrive_wait(off, count, name):
        A("v_mov_b32 v252, %d" % (FLG + off))
        A("v_mov_b32 v253, 1")
        A("s_mov_b64 exec, 1")
        A("ds_add_u32 v252, v253")
        A("s_mov_b64 exec, -1")
        if name is None:
            return
        A.label(name)
        A("ds_read_b32 v253, v252")
        A("s_waitcnt lgkmcnt(0)")
        A("v_readfirstlane_b32 s%d, v253" % sT0)
        spin_tail(name, "%d" % count)

    def mark_v():
        A("s_lshl_b32 s%d, 1, s%d" % (sT0, sWV))
        A("v_mov_b32 v252, %d" % (FLG + 24))
        A("v_mov_b32 v253, s%d" % sT0)
        A("s_mov_b64 exec, 1")
        A("ds_or_b32 v252, v253")
        A("s_mov_b64 exec, -1")

    def spin(off, count, name):
        A("v_mov_b32 v252, %d" % (FLG + off))
        A.label(name)
        A("ds_read_b32 v253, v252")
        A("s_waitcnt lgkmcnt(0)")
        A("v_readfirstlane_b32 s%d, v253" % sT0)
        spin_tail(name, "%d" % count)

    A.label(NAME)
    A("s_cmp_ge_u32 s2, 0x100")
    A("s_cbranch_scc1 Lend")
    if DELAY:
        A("v_readfirstlane_b32 s4, v0")
        A("s_lshl_b32 s4, s4, 2")
        A("s_or_b32 s4, s4, s2")
        A("s_and_b32 s4, s4, %d" % DELAY[0])
        A("s_cmp_lg_u32 s4, %d" % DELAY[1])
        A("s_cbranch_scc1 Lnodelay")
        for i in range(DELAY[2]):
            A("s_sleep 127")
        A.label("Lnodelay")
    if DIAG:
        A("s_memrealtime s[98:99]")
    A("s_load_dwordx16 s[4:19], s[0:1], 0")
    A("s_load_dwordx8 s[20:27], s[0:1], 64")
    A("s_load_dwordx2 s[28:29], s[0:1], 96")
    A("v_lshrrev_b32 v24, 6, v0")
    A("v_and_b32 v1, 63, v0")
    A("v_readfirstlane_b32 s%d, v24" % sWV)
    if PREF:
        A("s_cmp_lg_u32 s%d, 3" % sWV)
        A("s_cbranch_scc1 Lnopref")
        A("s_getpc_b64 %s" % sp(sHQ))
        A.label("Lpc")
        A("v_lshlrev_b32 v24, 7, v1")
        A("v_add_u32 v25, 0x2000, v24")
        A("v_min_u32 v25, Lcode_end-Lpc-4, v25")
        A("global_load_dword v198, v24, %s" % sp(sHQ))
        A("global_load_dword v199, v25, %s" % sp(sHQ))
        A.label("Lnopref")
    A("s_and_b32 s%d, s2, 7" % sT0)
    A("s_lshr_b32 s%d, s2, 3" % sT1)
    A("s_lshr_b32 s%d, s%d, 4" % (sT2, sT1))
    A("s_lshl_b32 s%d, s%d, 1" % (sHKV, sT0))
    A("s_add_u32 s%d, s%d, s%d" % (sHKV, sHKV, sT2))
    A("s_bfe_u32 s%d, s%d, 0x10003" % (sB, sT1))
    A("s_and_b32 s%d, s%d, 7" % (sS, sT1))
    A("s_lshl_b32 s%d, s%d, 4" % (sGID, sB))
    A("s_add_u32 s%d, s%d, s%d" % (sGID, sGID, sHKV))
    A("s_lshr_b32 s%d, s%d, 1" % (sP, sS))
    A("v_lshlrev_b32 v28, 2, v1")
    A("v_lshlrev_b32 v29, 1, v1")
    A("v_mov_b32 %s, 0" % V(vB2))
    A("v_mov_b32 v248, 0")
    A("v_and_b32 v24, 15, v1")
    A("v_lshrrev_b32 v25, 4, v1")
    A("v_and_b32 v26, 7, v1")
    A("v_lshrrev_b32 v27, 3, v1")
    A("v_and_b32 v249, 1, v27")
    A("v_lshl_add_u32 v249, v249, 2, v25")
    A("v_lshlrev_b32 v249, 4, v249")
    A("v_lshl_add_u32 %s, v26, 8, v249" % V(aK))
    A("v_lshlrev_b32 v249, 4, v24")
    A("v_lshl_add_u32 %s, v25, 10, v249" % V(aV))
    oX, oKV, oWQ = sH, sH + 1, sH + 2
    A("s_mul_i32 s%d, s%d, 1152" % (oX, sB))
    A("s_lshl_b32 s%d, s%d, 21" % (oKV, sGID))
    A("s_lshl_b32 s%d, s%d, 16" % (sT1, sS))
    A("s_add_u32 s%d, s%d, s%d" % (oKV, oKV, sT1))
    A("s_lshl_b32 s%d, s%d, 13" % (sT1, sWV))
    A("s_add_u32 s%d, s%d, s%d" % (oKV, oKV, sT1))
    A("s_add_u32 s%d, s%d, %d" % (oKV, oKV, 6144 * 256 + 4096))

    def bases():
        for (r, base, mul, src) in ((sHQ, W_HQ, 2048, sGID), (sHO, W_HO, 8192, sGID), (sHX, W_HX, 18432, sB)):
            A("s_mul_i32 s%d, s%d, %d" % (sT0, src, mul))
            if base:
                A("s_add_u32 s%d, s%d, %d" % (sT0, sT0, base))
            A("s_add_u32 s%d, s%d, s%d" % (r, sWS, sT0))
            A("s_addc_u32 s%d, s%d, 0" % (r + 1, sWS + 1))

    A("s_cmp_gt_u32 s%d, 3" % sWV)
    A("s_cbranch_scc1 Lrole_b")
    A("s_mul_i32 s%d, s%d, %d" % (oWQ, sP, 144 * 8192))
    A("s_lshl_b32 s%d, s%d, 9" % (sT1, sHKV))
    A("s_add_u32 s%d, s%d, s%d" % (oWQ, oWQ, sT1))
    A("s_and_b32 s%d, s%d, 1" % (sT1, sS))
    A("s_lshl_b32 s%d, s%d, 8" % (sT1, sT1))
    A("s_add_u32 s%d, s%d, s%d" % (oWQ, oWQ, sT1))
    A("s_lshl_b32 s%d, s%d, 15" % (sT1, sWV))
    A("s_add_u32 s%d, s%d, s%d" % (oWQ, oWQ, sT1))
    A("v_lshlrev_b32 v249, 2, v25")
    A("v_xor_b32 v249, v249, v24")
    A("v_lshlrev_b32 v249, 4, v249")
    A("v_lshl_add_u32 %s, v25, 13, v249" % V(aW))
    A("v_mov_b32 v249, %d" % FLG)
    A("ds_write2_b32 v249, v248, v248 offset0:1 offset1:2")
    A("ds_write2_b32 v249, v248, v248 offset0:3 offset1:4")
    A("ds_write2_b32 v249, v248, v248 offset0:5 offset1:6")
    A("ds_write_b32 v249, v248 offset:28")
    A("v_lshlrev_b32 %s, 4, v1" % V(aD))
    A("v_add_u32 %s, %d, %s" % (V(aD), 32768 - 4096, V(aD)))
    A("v_add_u32 %s, 4096, %s" % (V(aD + 1), V(aD)))
    A("s_getreg_b32 s%d, hwreg(HW_REG_XCC_ID, 0, 4)" % sXCC)
    A("s_cmp_lg_u32 s%d, 2" % sWV)
    A("s_cbranch_scc1 Linit_a")
    for i in range(4):
        A("v_mov_b32 %s, -1" % V(244 + i))
    A("s_lshl_b32 s%d, s%d, 13" % (sT1, sGID))
    A("s_lshl_b32 s%d, s%d, 10" % (sT2, sS))
    A("s_add_u32 s%d, s%d, s%d" % (sT1, sT1, sT2))
    A("s_add_u32 s%d, s%d, %d" % (sT1, sT1, W_HO))
    A("v_lshl_add_u32 v251, v1, 4, s%d" % sT1)
    A("v_add_u32 v252, %d, v251" % L_HO)
    A("s_lshl_b32 s%d, s%d, 8" % (sT1, sS))
    A("s_lshl_b32 s%d, s%d, 11" % (sT2, sGID))
    A("s_add_u32 s%d, s%d, s%d" % (sT1, sT1, sT2))
    A("v_lshl_add_u32 v249, v1, 4, s%d" % sT1)

    def seg(first, sreg, const):
        A("v_cmp_le_u32 vcc, %d, v1" % first)
        A("s_add_u32 s%d, s%d, %d" % (sT0, sreg, const - 16 * first))
        A("v_lshl_add_u32 v250, v1, 4, s%d" % sT0)
        A("v_cndmask_b32 v249, v249, v250, vcc")

    seg(16, sT1, W_HQ + L_HQ)
    A("s_lshl_b32 s%d, s2, 5" % sT1)
    for r in range(TREP):
        seg(32 + 2 * r, sT1, W_HT + 8192 * r)
    per = (9 * (NREP + 1) + 7) // 8
    A("v_min_u32 v243, %d, v27" % (per - 1))
    A("s_mul_i32 s%d, s%d, %d" % (sT0, sS, per))
    A("v_add_u32 v243, s%d, v243" % sT0)
    A("v_min_u32 v243, %d, v243" % (9 * (NREP + 1) - 1))
    A("v_mul_u32_u24 v250, 7282, v243")
    A("v_lshrrev_b32 v250, 16, v250")
    A("v_mul_u32_u24 v250, %d, v250" % (L_HX - 1152))
    A("v_lshl_add_u32 v243, v243, 7, v250")
    A("v_lshl_add_u32 v243, v26, 4, v243")
    A("s_mul_i32 s%d, s%d, 1152" % (sT0, sGID))
    A("s_add_u32 s%d, s%d, %d" % (sT0, sT0, W_HX))
    A("v_add_u32 v243, s%d, v243" % sT0)
    A("s_waitcnt lgkmcnt(0)")
    A("global_store_dwordx4 v251, v[244:247], %s sc1" % sp(sWS))
    A("global_store_dwordx4 v252, v[244:247], %s sc1" % sp(sWS))
    A("global_store_dwordx4 v243, v[244:247], %s sc1" % sp(sWS))
    A("s_mov_b32 exec_hi, %d" % (4 ** TREP - 1))
    A("global_store_dwordx4 v249, v[244:247], %s sc1" % sp(sWS))
    A("s_mov_b32 exec_hi, -1")
    A.label("Linit_a")
    A("s_waitcnt lgkmcnt(0)")
    stamp("start")
    if DIAG:
        A("s_memtime s[100:101]")
        A("s_waitcnt lgkmcnt(0)")
    add64(sX, "s%d" % oX)
    add64(sWQ, "s%d" % oWQ)
    A("global_load_short_d16_hi %s, v248, %s" % (V(vB2), sp(sB2)))
    for i in range(4):
        A("global_load_dword %s, v28, %s offset:%d" % (V(vXR + i), sp(sX), 256 * i))
    A("global_load_ushort %s, v29, %s offset:1024" % (V(vXR + 4), sp(sX)))
    add64(sK, "s%d" % oKV)
    add64(sV, "s%d" % oKV)
    A("s_lshl_b32 s%d, s%d, 10" % (sT1, sWV))
    A("s_barrier")
    for i in range(9):
        A("s_add_u32 m0, s%d, %d" % (sT1, WQS + 4096 * i))
        if i:
            A("v_add_u32 %s, 0x20000, %s" % (V(aW), V(aW)))
        A("global_load_lds_dwordx4 %s, %s%s" % (V(aW), sp(sWQ), NTW))
    A("s_cmp_lg_u32 s%d, 2" % sWV)
    A("s_cbranch_scc1 Lnoflag")
    A("s_or_b32 s%d, s%d, 0x80" % (sT0, sXCC))
    A("s_and_b32 s%d, s2, 3" % sT1)
    A("s_lshl_b32 s%d, s%d, 3" % (sT1, sT1))
    A("s_lshl_b32 s%d, s%d, s%d" % (sT0, sT0, sT1))
    A("s_and_b32 s%d, s2, 0xfc" % sT1)
    A("v_mov_b32 v249, s%d" % sT1)
    A("v_mov_b32 v250, s%d" % sT0)
    A("s_waitcnt vmcnt(15)")
    A("s_mov_b64 exec, 1")
    A("global_atomic_or v249, v250, %s sc1" % sp(sDBG))
    A("s_mov_b64 exec, -1")
    A.label("Lnoflag")
    dma8(sK, KB)
    kloads(aK, 0, KQ)
    bases()
    A("s_call_b64 %s, Laddr" % sp(sRET))
    A("v_bfe_u32 v248, v1, 2, 2")
    A("v_xor_b32 v249, s%d, v248" % sWV)
    A("v_and_b32 v250, 3, v1")
    A("v_lshl_add_u32 v249, v249, 2, v250")
    A("v_lshlrev_b32 v249, 4, v249")
    A("v_lshl_add_u32 v249, v248, 8, v249")
    A("v_add_u32 v249, %d, v249" % WQS)
    A("v_lshrrev_b32 v250, 4, v1")
    A("v_lshl_add_u32 v248, v250, 10, v249")
    A("v_lshl_add_u32 v249, v250, 11, v249")
    for i in range(4):
        A("v_mov_b32 %s, 0x3f803f80" % V(244 + i))
    A("v_mov_b32 %s, %s" % (V(aV2), V(aV)))
    A("v_mov_b32 %s, %s" % (V(aK2), V(aK)))
    aV = aV2
    A("s_waitcnt vmcnt(%d)" % (8 + KQ))
    arrive_wait(4, 4, "Lsync_a")
    stamp("wq")
    for u in range(2):
        for ks in range(4):
            for hh in range(2):
                A("ds_read_b64_tr_b16 %s, v249 offset:%d" % (V(vWQ + 18 * u + 4 * ks + 2 * hh, 2), (32 * ks + 4 * hh) * 256 + 8 * u))
        A("ds_read_b64_tr_b16 %s, v248 offset:%d" % (V(vWQ + 18 * u + 16, 2), 128 * 256 + 8 * u))
    A("s_waitcnt lgkmcnt(0)")
    for ks in range(4):
        for u in range(2):
            A("v_mfma_f32_16x16x32_bf16 %s, %s, v[244:247], %s" % (
                V(vSQ + 4 * u, 4), V(vWQ + 18 * u + 4 * ks, 4), V(vSQ + 4 * u, 4) if ks else "0"))
    A("s_nop 5")
    for u in range(2):
        A("v_mfma_f32_16x16x16_bf16 %s, %s, v[244:245], %s" % (V(vSQ + 4 * u, 4), V(vWQ + 18 * u + 16, 2), V(vSQ + 4 * u, 4)))
    A("s_mov_b32 s%d, -1" % sYW)
    for r, m in ((sQM, 0x00110011), (sBM, 0x00010001), (sOM, 0x01010101)):
        A("s_mov_b32 s%d, %s" % (r, hx(m)))
        A("s_mov_b32 s%d, %s" % (r + 1, hx(m)))
    A("s_call_b64 %s, Lqstage" % sp(sRET))
    A("s_mov_b32 s%d, 0" % sYW)
    arrive_wait(4, 0, None)
    stamp("q0")
    if not FEARLY:
        look()
    kloads(aK2, KQ, 8)
    dma8(sV, VB)
    A("s_waitcnt vmcnt(16)")
    arrive_wait(12, 0, None)
    A("s_call_b64 %s, Lsel" % sp(sRET))
    A("s_cmp_eq_u32 s%d, 0" % sWV)
    A("s_cbranch_scc1 Lwave0")
    for i in range(8):
        vload(i, aV)
    stamp("iss")
    A("s_cmp_lg_u32 s%d, 3" % sWV)
    A("s_cbranch_scc1 Lnox0")
    for i in range(4):
        A("ds_write_b64 %s, %s offset:%d" % (V(lXP), V(vXA + 2 * i, 2), 512 * i))
    A("ds_write_b32 %s, %s" % (V(lXS), V(vXA + 8)))
    A.label("Lnox0")
    def woaddr(half):
        A("s_mul_i32 s%d, s%d, %d" % (sT0, sHKV, 256 * 1152))
        A("s_mul_i32 s%d, s%d, 144" % (sT1, sS))
        A("s_add_u32 s%d, s%d, s%d" % (sT0, sT0, sT1))
        if half:
            A("s_add_u32 s%d, s%d, %d" % (sT0, sT0, 128 * 1152))
        add64(sWO, "s%d" % sT0)
        A("s_mul_i32 s%d, s%d, 48" % (sT0, sWV))
        A("s_sub_u32 s%d, s%d, %d" % (sT0, sT0, 48 * (1 + 4 * half)))
        A("v_min_u32 v248, 47, v1")
        A("v_add_u32 v248, s%d, v248" % sT0)
        A("v_mul_u32_u24 v250, 7282, v248")
        A("v_lshrrev_b32 v250, 16, v250")
        A("v_mul_u32_u24 v250, %d, v250" % (9216 - 144))
        A("v_lshl_add_u32 v232, v248, 4, v250")

    woaddr(0)
    A("s_waitcnt vmcnt(16)")
    A("s_call_b64 %s, Lkshuf" % sp(sRET))
    spin(4, 9, "Lsync_wo")

    def woloads(lo, hi, window, first=1):
        A("s_mul_i32 s%d, s%d, 768" % (sT1, sWV))
        A("s_mov_b32 exec_hi, 0xffff")
        for i in range(lo, hi):
            A("s_add_u32 m0, s%d, %d" % (sT1, WOS - 768 * first + 2304 * i))
            if i and not (first == 5 and i == lo):
                add64(sWO, "%d" % (1152 * (121 if i == 8 else 1)))
            if window(i) < 63:
                A("s_waitcnt vmcnt(%d)" % (window(i) - 1))
            A("global_load_lds_dwordx4 v232, %s%s" % (sp(sWO), NTW))
        A("s_mov_b32 exec_hi, -1")

    if VPRE:
        woloads(0, 4, lambda i: WIN1)
        A("s_waitcnt vmcnt(12)")
        mark_v()
        woloads(4, WO1, lambda i: WIN1)
    else:
        woloads(0, WO1, lambda i: WIN1)
        A("s_waitcnt vmcnt(%d)" % (8 + WO1))
    stamp("wo")
    A("s_branch Lmeet")
    A.label("Lwave0")
    A("s_lshr_b32 s%d, s2, 6" % sT0)
    A("s_lshl_b32 s%d, s%d, 4" % (sT0, sT0))
    A("s_bfe_u32 s%d, s2, 0x10002" % sT1)
    A("s_add_u32 s%d, s%d, s%d" % (sT0, sT0, sT1))
    A("s_mov_b64 %s, 0x5555" % sp(sMSK))
    A("s_lshl_b64 %s, %s, s%d" % (sp(sMSK), sp(sMSK), sT0))
    A("s_and_b32 s%d, s2, 3" % sT2)
    A("s_lshl_b32 s%d, s%d, 3" % (sT2, sT2))
    A("v_lshlrev_b32 v250, 2, v1")
    A("s_waitcnt vmcnt(%d)" % (12 if FEARLY else FLW if FLW else 16 - KQ))
    A("s_branch Lflagchk")
    A.label("Lflagpoll")
    A("s_sleep 8")
    A("global_load_dword %s, v250, %s sc1" % (V(vFL), sp(sDBG)))
    A("s_waitcnt vmcnt(0)")
    A.label("Lflagchk")
    A("v_bfe_u32 v251, %s, s%d, 8" % (V(vFL), sT2))
    A("v_cmp_gt_u32 vcc, 0x80, v251")
    A("s_and_b64 vcc, vcc, %s" % sp(sMSK))
    A("s_cbranch_scc0 Lflagok")
    A("s_sub_u32 s%d, s%d, 1" % (sCNT, sCNT))
    A("s_cbranch_scc0 Lflagpoll")
    A("s_mov_b32 s%d, 0" % sCNT)
    A.label("Lflagok")
    stamp("fl")
    for i in range(QPOS):
        vload(i, aV)
    for h in range(2):
        A("global_load_dwordx4 %s, %s, %s offset:%d sc1" % (V(vQ + 4 * h, 4), V(aHQG), sp(sHQ), 256 * h))
    A("global_load_dword %s, v250, %s sc1" % (V(vA), sp(sDBG)))
    A("v_and_b32 v251, 15, v251")
    A("v_cmp_ne_u32 vcc, s%d, v251" % sXCC)
    A("v_mov_b32 v251, %d" % FLG)
    A("s_and_b64 vcc, vcc, %s" % sp(sMSK))
    A("s_cselect_b32 s%d, 0, %d" % (sT0, 0 if FORCE_SLOW else 1))
    A("v_mov_b32 v253, s%d" % sT0)
    A("ds_write_b32 v251, v253")
    arrive_wait(4, 0, None)
    for i in range(QPOS, 8):
        vload(i, aV)
    stamp("iss")
    A("s_call_b64 %s, Lkshuf" % sp(sRET))
    if VPRE:
        A("s_waitcnt vmcnt(11)")
        mark_v()
    A("s_waitcnt vmcnt(%d)" % (8 - QPOS))
    A("s_branch Lq0chk")
    A.label("Lq0poll")
    A("s_sleep 2")
    for h in range(2):
        A("global_load_dwordx4 %s, %s, %s offset:%d sc1" % (V(vQ + 4 * h, 4), V(aHQG), sp(sHQ), 256 * h))
    A("global_load_dword %s, v250, %s sc1" % (V(vA), sp(sDBG)))
    A("s_waitcnt vmcnt(0)")
    A.label("Lq0chk")
    for h in range(2):
        A("v_mfma_f32_16x16x32_bf16 %s, %s, %s, 0" % (V(vS + 4 * h, 4), V(vSEL, 4), V(vQ + 4 * h, 4)))
    maxtree(vM, range(vQ, vQ + 8))
    A("v_and_b32 %s, 0x80808080, %s" % (V(vA), V(vA)))
    A("v_cmp_ne_u32 vcc, 0x80808080, %s" % V(vA))
    A("v_cndmask_b32 %s, %s, -1, vcc" % (V(vM), V(vM)))
    poll_tail("Lq0poll", vM)
    for i in range(4):
        A("v_cvt_pk_bf16_f32 %s, %s, %s" % (V(vQ + i), V(vS + 2 * i), V(vS + 2 * i + 1)))
    A("s_mov_b32 exec_hi, 0")
    for h in range(2):
        A("ds_write_b64 %s, %s offset:%d" % (V(lQW), V(vQ + 2 * h, 2), 256 * h))
    A("s_mov_b32 exec_hi, -1")
    A("s_branch Lmeet")
    aK, aV = vA, vA + 1
    A.label("Lrole_b")
    if BPRIO:
        A("s_setprio %d" % BPRIO)
    A("v_subrev_u32 v31, 0x100, v0")
    A("v_lshlrev_b32 v30, 4, v31")
    A("v_add_u32 v249, 0x1000, v30")
    A("v_lshlrev_b32 v31, 2, v31")
    A("v_add_u32 v31, 0x2000, v31")
    A("s_waitcnt lgkmcnt(0)")
    stamp("start")
    if DIAG:
        A("s_memtime s[100:101]")
        A("s_waitcnt lgkmcnt(0)")
    for i in range(3):
        r, p = vRW + 10 * i, sp((sW1, sB1, sW2)[i])
        A("global_load_dwordx4 %s, v30, %s" % (V(r, 4), p))
        A("global_load_dwordx4 %s, v249, %s" % (V(r + 4, 4), p))
        A("global_load_dword %s, v31, %s" % (V(r + 8), p))
    A("global_load_short_d16_hi %s, v248, %s" % (V(vB2), sp(sB2)))
    A("s_barrier")
    stamp("iss")
    bases()
    A("s_call_b64 %s, Laddr" % sp(sRET))
    A("s_and_b32 s%d, s2, 127" % sT0)
    A("s_lshl_b32 s%d, s%d, 4" % (sT0, sT0))
    A("s_add_u32 s%d, s%d, %d" % (sT0, sT0, E0))
    A("s_lshr_b32 s%d, s2, 7" % sT1)
    A("s_lshl_b32 s%d, s%d, 15" % (sT1, sT1))
    A("s_add_u32 s%d, s%d, s%d" % (sT0, sT0, sT1))
    A("v_add_u32 v249, s%d, v1" % sT0)
    A("v_lshlrev_b32 v249, 16, v249")
    A("v_mul_f32 v249, %s, v249" % fl(SC))
    A("v_mov_b32 %s, %s" % (V(vKAP), fl(KAP)))
    A("v_mov_b32 %s, 1.0" % V(vONE))
    A("v_mov_b32 %s, %s" % (V(vSCL), fl(SC)))
    for i in range(16):
        A("v_readlane_b32 s%d, v249, %d" % (sH + i, i))
        A("v_mov_b32 %s, 0" % V(vACC + i))
    A("s_mov_b32 s%d, 0" % sT3)
    A("s_waitcnt vmcnt(0)")
    stamp("wq")
    A.label("Ltabloop")
    A("s_set_gpr_idx_on s%d, gpr_idx(SRC1)" % sT3)
    for i, d in enumerate((vCA, vCC, vCW)):
        A("v_lshlrev_b32 %s, 16, %s" % (V(d[0]), V(vRW + 10 * i)))
        A("v_and_b32 %s, 0xffff0000, %s" % (V(d[1]), V(vRW + 10 * i)))
    A("s_set_gpr_idx_off")
    for f in range(2):
        A("v_mul_f32 %s, %s, %s" % (V(vCC[f]), V(vCC[f]), V(vSCL)))
    for f in range(2):
        for k2 in range(0 if NOTAB else 4):
            seq = []
            for h in range(2):
                k = 2 * k2 + h
                u, t, e, uw = (V(vTT + 8 * h + 2 * i, 2) for i in range(4))
                e0, e1 = vTT + 8 * h + 4, vTT + 8 * h + 5
                t0, t1 = vTT + 8 * h + 2, vTT + 8 * h + 3
                seq.append([
                    "v_pk_fma_f32 %s, %s, %s, %s op_sel_hi:[0,1,0]" % (u, bc(vCA[f]), sp(sH + 2 * k), bc(vCC[f])),
                    "v_pk_fma_f32 %s, %s, %s, %s op_sel_hi:[1,1,0]" % (t, u, u, bc(vKAP)),
                    "v_pk_mul_f32 %s, %s, %s neg_lo:[1,0] neg_hi:[1,0]" % (t, t, u),
                    "v_exp_f32 %s, %s" % (V(e0), V(t0)),
                    "v_exp_f32 %s, %s" % (V(e1), V(t1)),
                    "v_pk_mul_f32 %s, %s, %s op_sel_hi:[1,0]" % (uw, u, bc(vCW[f])),
                    "v_pk_add_f32 %s, %s, %s op_sel_hi:[1,0]" % (e, e, bc(vONE)),
                    "v_rcp_f32 %s, %s" % (V(e0), V(e0)),
                    "v_rcp_f32 %s, %s" % (V(e1), V(e1)),
                    "v_pk_fma_f32 %s, %s, %s, %s" % (V(vACC + 2 * k, 2), uw, e, V(vACC + 2 * k, 2)),
                ])
            s0, s1 = seq
            for l in (s0[0], s1[0], s0[1], s1[1], s0[2], s1[2], s0[3], s0[4], s1[3], s1[4], s0[5], s0[6], s1[5], s1[6],
                      s0[7], s0[8], s1[7], s1[8], s0[9], s1[9]):
                A(l)
    A("s_add_u32 s%d, s%d, 1" % (sT3, sT3))
    A("s_cmp_lt_u32 s%d, 9" % sT3)
    A("s_cbranch_scc1 Ltabloop")
    stamp("q0")
    for k in range(8):
        A("v_permlane32_swap_b32 %s, %s" % (V(vACC + 2 * k), V(vACC + 2 * k + 1)))
    for k in range(8):
        A("v_add_f32 %s, %s, %s" % (V(vACC + 2 * k), V(vACC + 2 * k), V(vACC + 2 * k + 1)))
    for k in range(4):
        A("v_permlane16_swap_b32 %s, %s" % (V(vACC + 4 * k), V(vACC + 4 * k + 2)))
    for k in range(4):
        A("v_add_f32 %s, %s, %s" % (V(vACC + 4 * k), V(vACC + 4 * k), V(vACC + 4 * k + 2)))
    for ctl in ("quad_perm:[1,0,3,2]", "quad_perm:[2,3,0,1]", "row_half_mirror", "row_mirror"):
        for k in range(4):
            A("v_add_f32_dpp %s, %s, %s %s%s" % (V(vACC + 4 * k), V(vACC + 4 * k), V(vACC + 4 * k), ctl, DPP))
    A("v_lshrrev_b32 v251, 5, v1")
    A("v_bfe_u32 v250, v1, 4, 1")
    A("v_lshl_add_u32 v251, v250, 1, v251")
    A("s_lshl_b32 s%d, s%d, 6" % (sT0, sWV))
    A("s_add_u32 s%d, s%d, %d" % (sT0, sT0, TRED - 256))
    A("v_lshl_add_u32 v251, v251, 2, s%d" % sT0)
    A("s_mov_b32 exec_lo, 0x00010001")
    A("s_mov_b32 exec_hi, 0x00010001")
    A("ds_write2_b32 v251, %s, %s offset0:0 offset1:4" % (V(vACC), V(vACC + 4)))
    A("ds_write2_b32 v251, %s, %s offset0:8 offset1:12" % (V(vACC + 8), V(vACC + 12)))
    A("s_mov_b64 exec, -1")
    if BPRIO:
        A("s_setprio 0")
    arrive_wait(8, 0, None)
    spin(12, 4, "Lsync_kv")
    A("s_cmp_lg_u32 s%d, 7" % sWV)
    A("s_cbranch_scc1 Lnotab")
    spin(8, 4, "Lsync_b")
    A("v_and_b32 v250, 15, v1")
    A("v_lshlrev_b32 v250, 2, v250")
    A("v_add_u32 v251, %d, v250" % TRED)
    for i in range(2):
        A("ds_read2_b32 %s, v251 offset0:%d offset1:%d" % (V(vS + 2 * i, 2), 32 * i, 32 * i + 16))
    A("s_waitcnt lgkmcnt(0)")
    A("v_pk_add_f32 %s, %s, %s" % (V(vS, 2), V(vS, 2), V(vS + 2, 2)))
    A("v_add_f32 %s, %s, %s" % (V(vS), V(vS), V(vS + 1)))
    A("v_mul_f32 %s, %s, %s" % (V(vS), fl(1.0 / SC), V(vS)))
    A("v_cvt_pk_bf16_f32 %s, %s, %s" % (V(vS), V(vS), V(vS)))
    A("v_lshlrev_b32 %s, 16, %s" % (V(vS), V(vS)))
    A("v_add_f32 %s, %s, %s" % (V(vS), V(vS), V(vB2)))
    A("v_mov_b32_dpp %s, %s quad_perm:[1,1,3,3]%s" % (V(vS + 1), V(vS), DPP))
    A("v_cvt_pk_bf16_f32 %s, %s, %s" % (V(vS), V(vS), V(vS + 1)))
    A("v_lshrrev_b32 v250, 1, v250")
    A("s_lshl_b32 s%d, s2, 5" % sT0)
    A("s_add_u32 s%d, s%d, %d" % (sT0, sT0, W_HT))
    A("v_add_u32 v250, s%d, v250" % sT0)
    if TREP > 1:
        A("v_lshrrev_b32 v251, 4, v1")
        A("v_lshl_add_u32 v250, v251, 13, v250")
        A("s_mov_b32 exec_lo, 0x55555555")
        A("s_mov_b32 exec_hi, %s" % ("0x55555555" if TREP == 4 else "0"))
    else:
        A("s_mov_b64 exec, 0x5555")
    A("global_store_dword v250, %s, %s sc1" % (V(vS), sp(sWS)))
    A("s_mov_b64 exec, -1")
    A.label("Lnotab")
    A("v_bfe_u32 v249, v1, 2, 2")
    A("v_mul_u32_u24 v249, 1088, v249")
    A("v_and_b32 v250, 3, v1")
    A("v_lshl_add_u32 v249, v250, 8, v249")
    A("v_lshrrev_b32 v250, 4, v1")
    A("v_lshl_add_u32 v249, v250, 4, v249")
    A("v_mul_u32_u24 v250, 1088, v250")
    A("v_and_b32 v251, 15, v1")
    A("v_lshl_add_u32 v250, v251, 4, v250")
    A("s_mul_i32 s%d, s%d, 8704" % (sT1, sWV))
    A("s_add_u32 s%d, s%d, %d" % (sT2, sT1, KB - 4 * 8704))
    A("v_add_u32 v249, s%d, v249" % sT2)
    A("s_add_u32 s%d, s%d, %d" % (sT2, sT1, VB - 4 * 8704))
    A("v_add_u32 %s, s%d, v250" % (V(vA + 1), sT2))
    stamp("fl")
    for T in range(2):
        for ks in range(4):
            A("ds_read_b128 %s, v249 offset:%d" % (V(vK + 16 * T + 4 * ks, 4), T * 4352 + ks * 64))
    A("s_call_b64 %s, Lsel" % sp(sRET))
    if VPRE:
        A("s_sub_u32 s%d, s%d, 4" % (sT1, sWV))
        A("v_mov_b32 v252, %d" % (FLG + 24))
        A.label("Lsync_v")
        A("ds_read_b32 v253, v252")
        A("s_waitcnt lgkmcnt(0)")
        A("v_readfirstlane_b32 s%d, v253" % sT0)
        A("s_bitcmp1_b32 s%d, s%d" % (sT0, sT1))
        A("s_cbranch_scc1 Lsync_v_ok")
        A("s_sub_u32 s%d, s%d, 1" % (sCNT, sCNT))
        A("s_cbranch_scc0 Lsync_v")
        A("s_mov_b32 s%d, 0" % sCNT)
        A.label("Lsync_v_ok")
        for i in range(8):
            A("ds_read_b128 %s, %s offset:%d" % (V(vVR + 4 * i, 4), V(vA + 1), (i >> 2) * 4352 + (i & 3) * 256))
        A("s_waitcnt lgkmcnt(0)")
        A("s_branch Lv_perm")
        A.label("Lv_back")
    if WOB:
        assert WO1 == 8
        A("s_cmp_eq_u32 s%d, 4" % sWV)
        A("s_cbranch_scc1 Lmeet")
        woaddr(1)
        spin(4, 9, "Lsync_wo2")
        woloads(8, 16, lambda i: 63, 5)
    A.label("Lmeet")
    A("s_mov_b32 s%d, s%d" % (sSM2, sSMC))
    for r, m in ((sQM, 0x00110011), (sBM, 0x00010001), (sOM, 0x01010101)):
        A("s_mov_b32 s%d, %s" % (r, hx(m)))
        A("s_mov_b32 s%d, %s" % (r + 1, hx(m)))
    if NREP > 1:
        A("s_mov_b64 %s, %s" % (sp(sHXS), sp(sHX)))
        A("s_and_b32 s%d, s2, 7" % sT0)
        A("s_mul_i32 s%d, s%d, %d" % (sT0, sT0, NREP))
        A("s_lshr_b32 s%d, s%d, 3" % (sT0, sT0))
        A("s_mul_i32 s%d, s%d, %d" % (sT0, sT0, L_HX))
        A("s_add_u32 s%d, s%d, s%d" % (sHX, sHXS, sT0))
        A("s_addc_u32 s%d, s%d, 0" % (sHX + 1, sHXS + 1))
        A("s_sub_u32 s%d, %d, s%d" % (sXD, NREP * L_HX, sT0))
        A("s_mov_b32 s%d, -1" % sXM)
        A("s_mov_b32 s%d, 0x3fffff" % (sXM + 1))
    for i, r in enumerate((sHX1, sHX2, sHX3)):
        A("s_add_u32 s%d, s%d, %d" % (r, sHX, 4608 * (i + 1)))
        A("s_addc_u32 s%d, s%d, 0" % (r + 1, sHX + 1))
    A("s_mul_i32 s%d, s%d, 1280" % (sT0, sGID))
    A("s_add_u32 s%d, s%d, %d" % (sT0, sT0, W_HY))
    A("s_add_u32 s%d, s%d, s%d" % (sHY, sWS, sT0))
    A("s_addc_u32 s%d, s%d, 0" % (sHY + 1, sWS + 1))
    A("v_mov_b32 v251, %d" % FLG)
    A("s_waitcnt lgkmcnt(0)")
    A("s_barrier")
    stamp("tab")
    A("ds_read_b32 %s, v251" % V(vA + 1))
    A.label("Latt")
    if LM & 1:
        A("s_mov_b64 exec, %s" % sp(sQM))
    for ks in range(4):
        A("ds_read_b128 %s, %s offset:%d" % (V(vQ + 4 * ks, 4), V(aHQL), 64 * ks))
    if LM & 1:
        A("s_mov_b64 exec, -1")
    for ks in range(4):
        A("s_waitcnt lgkmcnt(%d)" % (3 - ks))
        for T in range(2):
            A("v_mfma_f32_16x16x32_bf16 %s, %s, %s, %s" % (
                V(vS + 4 * T, 4), V(vK + 16 * T + 4 * ks, 4), V(vQ + 4 * ks, 4), V(vS + 4 * T, 4) if ks else "0"))
    if not VPRE:
        A("s_cmp_eq_u32 s%d, 0" % sL)
        A("s_cbranch_scc1 Lv_read")
    A.label("Lv_read_done")
    stampL("qV")
    A("v_max3_f32 %s, %s, %s, %s" % (V(vM), V(vS), V(vS + 1), V(vS + 2)))
    A("v_max3_f32 %s, %s, %s, %s" % (V(vP), V(vS + 3), V(vS + 4), V(vS + 5)))
    A("v_max3_f32 %s, %s, %s, %s" % (V(vM), V(vM), V(vS + 6), V(vS + 7)))
    A("v_max_f32 %s, %s, %s" % (V(vP + 1), V(vM), V(vP)))
    A("v_max_f32 %s, %s, %s" % (V(vM), V(vM), V(vP)))
    A("v_permlane16_swap_b32 %s, %s" % (V(vM), V(vP + 1)))
    A("v_max_f32 %s, %s, %s" % (V(vP), V(vM), V(vP + 1)))
    A("v_max_f32 %s, %s, %s" % (V(vM), V(vM), V(vP + 1)))
    A("v_permlane32_swap_b32 %s, %s" % (V(vM), V(vP)))
    A("v_max_f32 %s, %s, %s" % (V(vM), V(vM), V(vP)))
    if PKS:
        A("v_mul_f32 %s, s%d, %s" % (V(vP), sSMC, V(vM)))
        A("v_mul_f32 %s, s%d, %s" % (V(vM), sSMC, V(vM)))
        for r in range(4):
            A("v_pk_fma_f32 %s, %s, %s, %s op_sel_hi:[1,0,0] neg_lo:[0,0,1] neg_hi:[0,0,1]" % (
                V(vS + 2 * r, 2), V(vS + 2 * r, 2), sp(sSM2), bc(vP)))
            if r:
                for h in range(2):
                    A("v_exp_f32 %s, %s" % (V(vS + 2 * r - 2 + h), V(vS + 2 * r - 2 + h)))
        for h in range(2):
            A("v_exp_f32 %s, %s" % (V(vS + 6 + h), V(vS + 6 + h)))
    else:
        A("v_mul_f32 %s, s%d, %s" % (V(vM), sSMC, V(vM)))
        for r in range(8):
            A("v_fma_f32 %s, %s, s%d, -%s" % (V(vS + r), V(vS + r), sSMC, V(vM)))
            if r:
                A("v_exp_f32 %s, %s" % (V(vS + r - 1), V(vS + r - 1)))
        A("v_exp_f32 %s, %s" % (V(vS + 7), V(vS + 7)))
    for r in range(4):
        A("v_cvt_pk_bf16_f32 %s, %s, %s" % (V(vP + r), V(vS + 2 * r), V(vS + 2 * r + 1)))
    A("s_cmp_eq_u32 s%d, 0" % sL)
    A("s_cbranch_scc1 Lv_wait")
    A.label("Lv_ready")
    stampL("sm")
    for j in range(8):
        A("v_mfma_f32_16x16x32_bf16 %s, %s, %s, 0" % (V(vA + 4 * j, 4), V(vP, 4), V(vVT + 4 * j, 4)))
    A("v_mfma_f32_16x16x32_bf16 %s, %s, %s, 0" % (V(vS, 4), V(vP, 4), V(vONES, 4)))
    A("s_mov_b32 exec_hi, 0")
    for j in range(0, 8, 2):
        A("ds_write2_b32 %s, %s, %s offset0:%d offset1:%d" % (V(lPW), V(vA + 4 * j), V(vA + 4 * j + 4), 16 * j, 16 * j + 16))
    A("s_mov_b32 exec_lo, 0x100001")
    A("ds_write2_b32 %s, %s, %s offset0:0 offset1:1" % (V(lMW), V(vM), V(vS)))
    A("s_mov_b64 exec, -1")
    if WOPOST:
        A("s_cmp_eq_u32 s%d, 0" % sL)
        A("s_cbranch_scc1 Lwo_rest")
        A.label("Lwo_back")
    A("s_waitcnt lgkmcnt(0)")
    stampL("pv")
    A("s_barrier")
    A("ds_read_b64 %s, %s" % (V(vA + 4, 2), V(lMR)))
    A("ds_read_b128 %s, %s" % (V(vA, 4), V(lPR)))
    A("s_waitcnt lgkmcnt(1)")
    reduce8(vA, vA + 4, vA + 7, vA + 6, False, "s_waitcnt lgkmcnt(0)")
    A("v_cvt_pk_bf16_f32 %s, %s, %s" % (V(vA + 3), V(vA + 2), V(vA + 3)))
    A("v_cvt_pk_bf16_f32 %s, %s, %s" % (V(vA + 2), V(vA), V(vA + 1)))
    A("s_mov_b64 exec, %s" % sp(sOM))
    store2(["global_store_dwordx4 %s, %s, %s" % (V(aHOS), V(vA + 2, 4), sp(sHO))])
    A("s_mov_b64 exec, -1")
    stampL("ho")
    A("s_cmp_eq_u32 s%d, 0" % sL)
    A("s_cbranch_scc1 Lstash")
    A.label("Lopoll")
    A("global_load_dwordx4 %s, %s, %s sc1" % (V(vA + 10, 4), V(aHOL), sp(sHO)))
    A.label("Lopoll_w")
    A("s_waitcnt vmcnt(0)")
    maxtree(vM, range(vA + 10, vA + 14))
    poll_tail("Lopoll", vM, far=True)
    if RESTORE:
        A("s_mov_b32 exec_lo, 0x01010101")
        A("s_mov_b32 exec_hi, 0x01010101")
        A("global_store_dwordx4 %s, %s, %s sc1" % (V(aHOS), V(vA + 2, 4), sp(sHO)))
        A("s_mov_b64 exec, -1")
    stampL("og")
    assert WOEARLY and VPRE and not TEARLY
    if TPOS == 0:
        A("s_cmp_lg_u32 s%d, 0" % sL)
        A("s_cbranch_scc1 Lnotg")
        A("global_load_dwordx4 %s, v248, %s sc1" % (V(vQ, 4), sp(sWS)))
        A.label("Lnotg")

    def woread():
        A("s_barrier")
        for t in range(5):
            for hh in range(2):
                A("ds_read_b64_tr_b16 %s, v233 offset:%d" % (V(vWO + 4 * t + 2 * hh, 2), 576 * hh + 32 * t))

    reduce8(vA + 16, vA + 12, vA + 15, vA + 14, True, fill=[
        "v_lshlrev_b32 %s, 16, %s" % (V(vA + 16), V(vA + 10)), "v_and_b32 %s, 0xffff0000, %s" % (V(vA + 17), V(vA + 10)),
        "v_lshlrev_b32 %s, 16, %s" % (V(vA + 18), V(vA + 11)), "v_and_b32 %s, 0xffff0000, %s" % (V(vA + 19), V(vA + 11))])
    A("v_cvt_pk_bf16_f32 %s, %s, %s" % (V(vA), V(vA + 16), V(vA + 17)))
    A("v_cvt_pk_bf16_f32 %s, %s, %s" % (V(vA + 1), V(vA + 18), V(vA + 19)))
    A("v_mov_b32_dpp %s, %s row_ror:8%s" % (V(vA + 2), V(vA), DPP))
    A("v_mov_b32_dpp %s, %s row_ror:8%s" % (V(vA + 3), V(vA + 1), DPP))
    A("s_waitcnt lgkmcnt(0)")
    for t in range(5):
        A("v_mfma_f32_16x16x32_bf16 %s, %s, %s, 0" % (V(vA + 4 + 4 * t, 4), V(vA, 4), V(vWO + 4 * t, 4)))
    if TPOS == 1:
        A("s_cmp_lg_u32 s%d, 0" % sL)
        A("s_cbranch_scc1 Lnotg")
        A("global_load_dwordx4 %s, v248, %s sc1" % (V(vQ, 4), sp(sWS)))
        A.label("Lnotg")
    A("s_mov_b64 exec, 0xffff")
    A("ds_write2_b32 %s, %s, %s offset0:0 offset1:16" % (V(lOW), V(vA + 4), V(vA + 8)))
    A("ds_write2_b32 %s, %s, %s offset0:32 offset1:48" % (V(lOW), V(vA + 12), V(vA + 16)))
    A("ds_write_b32 %s, %s offset:256" % (V(lOW), V(vA + 20)))
    A("s_mov_b64 exec, -1")
    A("s_waitcnt lgkmcnt(0)")
    A("s_barrier")
    stampL("ov")
    A("s_cmp_lg_u32 s%d, 0" % sWV)
    A("s_cbranch_scc1 Lwo_done")
    if LM & 2 and NREP > 1:
        A("s_mov_b64 exec, %s" % sp(sXM))
    for w in range(8):
        A("ds_read_b128 %s, %s offset:%d" % (V(vA + 4 * w, 4), V(lOR), RSTR * w))
    for w in range(1, 8, 2):
        A("s_waitcnt lgkmcnt(%d)" % (7 - w))
        for i in range(2):
            A("v_pk_add_f32 %s, %s, %s" % (V(vA + 4 * w - 4 + 2 * i, 2), V(vA + 4 * w - 4 + 2 * i, 2), V(vA + 4 * w + 2 * i, 2)))
        if w in (3, 7):
            for i in range(2):
                A("v_pk_add_f32 %s, %s, %s" % (V(vA + 4 * w - 12 + 2 * i, 2), V(vA + 4 * w - 12 + 2 * i, 2), V(vA + 4 * w - 4 + 2 * i, 2)))
    for i in range(2):
        A("v_pk_add_f32 %s, %s, %s" % (V(vA + 2 * i, 2), V(vA + 2 * i, 2), V(vA + 16 + 2 * i, 2)))
    A("v_cvt_pk_bf16_f32 %s, %s, %s" % (V(vA), V(vA), V(vA + 1)))
    A("v_cvt_pk_bf16_f32 %s, %s, %s" % (V(vA + 1), V(vA + 2), V(vA + 3)))
    if NREP > 1:
        if not LM & 2:
            A("s_mov_b64 exec, %s" % sp(sXM))
        A("global_store_dwordx2 %s, %s, %s sc1" % (V(aHXS), V(vA, 2), sp(sHXS)))
        if NREP > 3:
            A("s_cmp_lg_u32 s%d, 0" % sL)
            A("s_cbranch_scc1 Lonecopy")
            A("global_store_dwordx2 %s, %s, %s sc1" % (V(aHML), V(vA, 2), sp(sHXS)))
            A.label("Lonecopy")
    else:
        A("s_mov_b64 exec, 0x3ffff")
        A("global_store_dwordx2 %s, %s, %s sc1" % (V(aHXS), V(vA, 2), sp(sHX)))
    A("s_mov_b64 exec, -1")
    A.label("Lwo_done")
    stampL("hx")
    A("s_cmp_eq_u32 s%d, 0" % sL)
    A("s_cbranch_scc1 %s" % ("Lwho" if LEAD else "Ltabg"))
    A("s_or_b32 s%d, s%d, s%d" % (sT0, sHKV, sS))
    A("s_cbranch_scc1 %s" % ("Lwb" if WB else "Lexit"))
    A("s_branch Lxwait")
    A.label("Ltpoll")
    A("s_sleep 4")
    A("global_load_dwordx4 %s, v248, %s sc1" % (V(vQ, 4), sp(sWS)))
    A("s_waitcnt vmcnt(0)")
    A.label("Ltabg")
    A("s_cmp_gt_u32 s%d, 3" % sWV)
    A("s_cselect_b32 s%d, %d, %d" % (sT0, TABN - 4096, TABP))
    A("v_add_u32 v250, s%d, v249" % sT0)
    A("s_waitcnt vmcnt(%d)" % (2 if NREP > 3 else 1))
    A("s_cmp_eq_u32 s%d, 0" % sWV)
    A("s_cbranch_scc1 Ltabw")
    A("s_waitcnt vmcnt(0)")
    A.label("Ltabw")
    maxtree(vM, range(vQ, vQ + 4))
    poll_tail("Ltpoll", vM)
    A("ds_write_b128 v250, %s" % V(vQ, 4))
    if WARM & 1:
        A("s_cmp_lg_u32 s%d, 7" % sWV)
        A("s_cbranch_scc1 Lxwait")
        A("s_mov_b64 exec, 0")
        A("s_branch Lmlp")
        A.label("Lwarm1")
        A("s_mov_b64 exec, -1")
    A.label("Lxwait")
    A("ds_read_b128 %s, %s" % (V(vP, 4), V(lXC)))
    A("s_cmp_eq_u32 s%d, 4" % sWV)
    A("s_cselect_b32 s%d, 0x00ff00ff, -1" % sT2)
    A("s_mov_b32 exec_lo, s%d" % sT2)
    A("s_mov_b32 exec_hi, s%d" % sT2)
    if not DIAG:
        A("s_cmp_gt_u32 s%d, 4" % sWV)
    if XPACE == "ack":
        A("s_waitcnt vmcnt(0)")
    if XPACE != "none":
        A("s_barrier")
    stampL("xp")
    HXB = (sHX, sHX1, sHX2, sHX3)
    if DIAG:
        A("s_cmp_gt_u32 s%d, 4" % sWV)
    A("s_cbranch_scc1 Lxjoin")
    A.label("Lxpoll")
    for i in range(4):
        A("global_load_dwordx4 %s, %s, %s sc1" % (V(vA + 4 * i, 4), V(aHXL), sp(HXB[i])))
    A("s_mov_b64 exec, -1")
    A.label("Lxsum")
    for i in range(4):
        A("s_waitcnt vmcnt(%d)" % (3 - i))
        A("v_mfma_f32_16x16x32_bf16 %s, %s, %s, %s" % (V(vS, 4), V(vSEL, 4), V(vA + 4 * i, 4), V(vS, 4) if i else "0"))
    A("s_mov_b32 exec_lo, s%d" % sT2)
    A("s_mov_b32 exec_hi, 0")
    A("s_waitcnt lgkmcnt(0)")
    A("v_cmp_u_f32 vcc, %s, %s" % (V(vS), V(vS)))
    A("v_cvt_pk_bf16_f32 %s, %s, %s" % (V(vS + 4), V(vS), V(vS + 1)))
    A("v_cvt_pk_bf16_f32 %s, %s, %s" % (V(vS + 5), V(vS + 2), V(vS + 3)))
    A("s_cbranch_vccnz Lxchk")
    A.label("Lxok")
    for rnd in range(2):
        for i in range(2):
            A("v_lshlrev_b32 %s, 16, %s" % (V(vS + 2 * i), V(vS + 4 + i)))
            A("v_and_b32 %s, 0xffff0000, %s" % (V(vS + 2 * i + 1), V(vS + 4 + i)))
        if rnd == 0:
            for i in range(2):
                A("v_pk_add_f32 %s, %s, %s" % (V(vS + 2 * i, 2), V(vS + 2 * i, 2), V(vP + 2 * i, 2)))
            for i in range(2):
                A("v_cvt_pk_bf16_f32 %s, %s, %s" % (V(vS + 4 + i), V(vS + 2 * i), V(vS + 2 * i + 1)))
    A("ds_write_b128 %s, %s" % (V(lXC), V(vS, 4)))
    A("s_mov_b64 exec, -1")
    A.label("Lxjoin")
    A("s_waitcnt lgkmcnt(0)")
    A("s_barrier")
    stampL("xs")
    A("s_cmp_gt_u32 s%d, 3" % sWV)
    A("s_cbranch_scc1 Lmlp_skip")
    vH, vY, vHP, vHS, vAD, vST = vA, vA + 10, vXR, vA + 26, vA, vS
    if SPLIT:
        vXO, vFG = 244, 243
        sFIN = sH
        for i in range(4):
            A("ds_read_b64 %s, %s offset:%d" % (V(vXA + 2 * i, 2), V(lXP), 512 * i))
        A("ds_read_b32 %s, %s" % (V(vXA + 8), V(lXS)))
        A("s_lshl_b32 s%d, s%d, 9" % (sT0, sWV))
        A("v_add_u32 v246, s%d, %s" % (sT0, V(lXP)))
        A("ds_read_b64 %s, v246" % V(vXO, 2))
        for i in range(3):
            A("v_mov_b32 %s, 0" % V(vY + i))
        A("s_lshl_b32 s%d, s%d, 8" % (sT0, sWV))
        A("v_add_u32 v246, s%d, %s" % (sT0, V(lNW)))
        A("v_lshl_add_u32 v247, v1, 2, s%d" % sT0)
        A("v_lshlrev_b32 v248, 1, v1")
        A("v_mov_b32 v249, %d" % (FLG + 28))
        A("s_waitcnt lgkmcnt(1)")
        stats_lane(vST)
        for l in stats_wave(vST, True):
            A(l)
        A("s_mov_b32 s%d, %s" % (sT0, hx(E0 * 0x10001)))
        A("s_waitcnt lgkmcnt(0)")
        A("v_mul_f32 %s, %s, %s" % (V(vST + 4), V(vST), V(vST + 2)))
        A("v_pk_fma_f32 %s, %s, %s, %s op_sel_hi:[1,0,0] neg_lo:[0,0,1] neg_hi:[0,0,1]" % (V(vH, 2), V(vXO, 2), bc(vST + 2), bc(vST + 4)))
        A("v_fma_f32 %s, %s, %s, -%s" % (V(vH + 2), V(vXA + 8), V(vST + 2), V(vST + 4)))
        A("v_cvt_pk_bf16_f32 %s, %s, %s" % (V(vHS), V(vH), V(vH + 1)))
        A("v_cvt_pk_bf16_f32 %s, %s, %s" % (V(vHS + 1), V(vH + 2), V(vH + 2)))
        for i in range(2):
            A("v_pk_sub_u16 %s, %s, s%d" % (V(vHS + i), V(vHS + i), sT0))
        for i in range(3):
            A("v_lshlrev_b32_sdwa %s, 1, %s dst_sel:DWORD dst_unused:UNUSED_PAD src0_sel:DWORD src1_sel:WORD_%d" % (
                V(vAD + i), V(vHS + (i >> 1)), i & 1))
            A("ds_read_u16_d16_hi %s, %s offset:%d" % (V(vY + i), V(vAD + i), TABP))
        A("v_or_b32 %s, %s, %s" % (V(vM), V(vHS), V(vHS + 1)))
        A("v_and_b32 %s, 0x78007800, %s" % (V(vM), V(vM)))
        A("v_cmp_ne_u32 vcc, 0, %s" % V(vM))
        A("s_cmp_lg_u32 s%d, 0" % sL)
        A("s_waitcnt lgkmcnt(0)")
        A("v_pk_add_f32 %s, %s, %s" % (V(vXO, 2), V(vXO, 2), V(vY, 2)))
        A("v_add_f32 %s, %s, %s" % (V(vXA + 8), V(vXA + 8), V(vY + 2)))
        A("s_cbranch_vccnz Lmiss")
        A("v_cvt_pk_bf16_f32 %s, %s, %s" % (V(vHP), V(vXO), V(vXO + 1)))
        A("v_cvt_pk_bf16_f32 %s, %s, %s" % (V(vHP + 4), V(vXA + 8), V(vXA + 8)))
        A("s_cbranch_scc1 Lfin2")
        A("ds_write_b32 v246, %s" % V(vHP))
        A("ds_write_b16 %s, %s" % (V(lNH), V(vHP + 4)))
        A.label("Lshare")
        stampL("lk")
        A("s_waitcnt lgkmcnt(0)")
        A("s_barrier")
        A("ds_read_b32 %s, v249" % V(vFG))
        for i in range(4):
            A("ds_read_b32 %s, %s offset:%d" % (V(vXR + i), V(lNW), 256 * i))
        A("ds_read_u16 %s, %s" % (V(vXR + 4), V(lNH)))
        if LM & 4:
            A("s_mov_b64 exec, %s" % sp(sBM))
        for ks in range(4):
            A("ds_read_b128 %s, %s offset:%d" % (V(vA + 4 * ks, 4), V(lNR), 64 * ks))
        A("ds_read_b64 %s, %s" % (V(vA + 16, 2), V(lNR2)))
        if LM & 4:
            A("s_mov_b64 exec, -1")
        A("s_waitcnt lgkmcnt(10)")
        A("v_cmp_ne_u32 vcc, 0, %s" % V(vFG))
        A("s_cbranch_vccnz Lmlp")
        add64(sHQ, "%d" % L_HQ)
        A("s_waitcnt lgkmcnt(5)")
        A("s_call_b64 %s, Lq_unpack" % sp(sRET))
        A("s_branch Lq_done")
        A.label("Lmiss")
        A("v_lshlrev_b32 v250, s%d, 1" % sL)
        A("ds_or_b32 v249, v250")
        A("s_cbranch_scc0 Lshare")
        A("s_branch Lfin3")
        A.label("Lfin2")
        A("global_store_dword v247, %s, %s%s" % (V(vHP), sp(sOUT), OUTF))
        A("s_cmp_lg_u32 s%d, 0" % sWV)
        A("s_cbranch_scc1 Lfin3")
        A("global_store_short v248, %s, %s offset:1024%s" % (V(vHP + 4), sp(sOUT), OUTF))
        A.label("Lfin3")
        stamp("lk1")
        A("s_waitcnt lgkmcnt(0)")
        A("s_barrier")
        A("ds_read_b32 %s, v249" % V(vFG))
        A("s_waitcnt lgkmcnt(0)")
        A("v_cmp_lt_u32 vcc, 1, %s" % V(vFG))
        A("s_cbranch_vccz Lexit")
    else:
        A("s_mul_i32 s%d, s%d, s%d" % (sT0, sL, sWV))
        A("s_cmp_lg_u32 s%d, 0" % sT0)
        A("s_cbranch_scc1 Lhelper")
    A.label("Lmlp")
    if SPLIT:
        A("s_waitcnt lgkmcnt(0)")
    for i in range(4):
        A("ds_read_b64 %s, %s offset:%d" % (V(vXA + 2 * i, 2), V(lXP), 512 * i))
    A("ds_read_b32 %s, %s" % (V(vXA + 8), V(lXS)))
    for i in range(9):
        A("v_mov_b32 %s, 0" % V(vY + i))
    A("s_waitcnt lgkmcnt(0)")
    stats_lane(vST)
    for l in stats_wave(vST, True):
        A(l)
    normalize(vH, vST, vST + 2)
    A("s_mov_b32 s%d, %s" % (sT0, hx(E0 * 0x10001)))
    for i in range(5):
        A("v_cvt_pk_bf16_f32 %s, %s, %s" % (V(vHP + i), V(vH + 2 * i), V(vH + min(2 * i + 1, 8))))
    for i in range(5):
        A("v_pk_sub_u16 %s, %s, s%d" % (V(vHS + i), V(vHP + i), sT0))
    for i in range(9):
        A("v_lshlrev_b32_sdwa %s, 1, %s dst_sel:DWORD dst_unused:UNUSED_PAD src0_sel:DWORD src1_sel:WORD_%d" % (
            V(vAD + i), V(vHS + (i >> 1)), i & 1))
        A("ds_read_u16_d16_hi %s, %s offset:%d" % (V(vY + i), V(vAD + i), TABP))
    A("v_or3_b32 %s, %s, %s, %s" % (V(vM), V(vHS), V(vHS + 1), V(vHS + 2)))
    A("v_or3_b32 %s, %s, %s, %s" % (V(vM), V(vM), V(vHS + 3), V(vHS + 4)))
    A("v_and_b32 %s, 0x78007800, %s" % (V(vM), V(vM)))
    A("v_cmp_ne_u32 vcc, 0, %s" % V(vM))
    A("s_waitcnt lgkmcnt(0)")
    A("s_cbranch_vccnz Lfallback")
    A.label("Lfb_done")
    if not SPLIT:
        stampL("lk")
    for i in range(4):
        A("v_pk_add_f32 %s, %s, %s" % (V(vXA + 2 * i, 2), V(vXA + 2 * i, 2), V(vY + 2 * i, 2)))
    A("v_add_f32 %s, %s, %s" % (V(vXA + 8), V(vXA + 8), V(vY + 8)))
    for i in range(5):
        A("v_cvt_pk_bf16_f32 %s, %s, %s" % (V(vHP + i), V(vXA + 2 * i), V(vXA + min(2 * i + 1, 8))))
    A("s_cmp_lg_u32 s%d, 0" % sL)
    A("s_cbranch_scc1 Lfinal")
    if WARM & 1:
        A("s_cbranch_execz Lwarm1")
    if DUMP:
        A("s_lshl_b32 s%d, s2, 2" % sT0)
        A("s_add_u32 s%d, s%d, s%d" % (sT0, sT0, sWV))
        A("s_mul_i32 s%d, s%d, 8192" % (sT0, sT0))
        A("s_add_u32 s%d, s%d, %d" % (sT0, sT0, 2 << 20))
        A("v_lshl_add_u32 v252, v1, 2, s%d" % sT0)
        A("v_add_u32 v253, 4096, v252")
        for i, r in enumerate(list(range(vHS, vHS + 5)) + list(range(vY, vY + 9)) + list(range(vHP, vHP + 5)) + list(range(vAD, vAD + 9)) + [vS, vS + 2, vS + 6, vS + 7]):
            A("global_store_dword %s, %s, %s offset:%d" % ("v252" if i < 16 else "v253", V(r), sp(sWS), 256 * (i % 16)))
    if LEAD:
        A("s_cmp_lg_u32 s%d, 1" % sWV)
        A("s_cbranch_scc1 Lnoy")
        A("v_lshlrev_b32 v249, 2, v1")
        A("v_lshlrev_b32 v250, 1, v1")
        store2(["global_store_dword v249, %s, %s offset:%d" % (V(vHP + i), sp(sHY), 256 * i) for i in range(4)] +
               ["global_store_short v250, %s, %s offset:1024" % (V(vHP + 4), sp(sHY))])
        A.label("Lnoy")
    add64(sHQ, "%d" % L_HQ)
    A("s_call_b64 %s, Lqstage" % sp(sRET))
    A.label("Lq_done")
    A("s_cmp_lg_u32 s%d, 0" % sWV)
    A("s_cbranch_scc1 Lnext")
    for i in range(4):
        A("ds_write_b64 %s, %s offset:%d" % (V(lXP), V(vXA + 2 * i, 2), 512 * i + XSB - XSA))
    A("ds_write_b32 %s, %s offset:%d" % (V(lXS), V(vXA + 8), XSB - XSA))
    A("s_branch Lnext")
    if LEAD:
        A.label("Lwho")
        A("s_cmp_eq_u32 s%d, 0" % sS)
        A("s_cbranch_scc1 Ltabg")
        A("s_cmp_gt_u32 s%d, 3" % sWV)
        A("s_cbranch_scc1 Lqwait")
        A("s_mul_i32 s%d, s%d, 1152" % (sT0, sWV))
        A("s_add_u32 s%d, s%d, %d" % (sT0, sT0, XN))
        A("v_subrev_u32 v248, s%d, %s" % (sT0, V(lNR)))
        A("v_subrev_u32 v249, s%d, %s" % (sT0, V(lNR2)))
        A("v_mov_b32 v243, 0")
        add64(sHQ, "%d" % L_HQ)
        A.label("Lypoll")
        for ks in range(4):
            A("global_load_dwordx4 %s, v248, %s offset:%d sc1" % (V(vA + 4 * ks, 4), sp(sHY), 64 * ks))
        A("global_load_dwordx2 %s, v249, %s sc1" % (V(vA + 16, 2), sp(sHY)))
        A("global_load_dwordx3 %s, v243, %s offset:1152 sc1" % (V(vS + 2, 3), sp(sHY)))
        A("s_waitcnt vmcnt(1)")
        maxtree(vM, range(vA, vA + 18))
        A("s_waitcnt vmcnt(0)")
        A("v_max3_u32 %s, %s, %s, %s" % (V(vM), V(vM), V(vS + 2), V(vS + 4)))
        poll_tail("Lypoll", vM)
        stamp("yy")
        A("s_call_b64 %s, Lq_mm" % sp(sRET))
        A("s_branch Lnext")
    A.label("Lmlp_skip")
    A("s_cmp_lg_u32 s%d, 0" % sL)
    A("s_cbranch_scc1 Lexit")
    if SPLIT:
        A("s_barrier")
    A.label("Lqwait")
    add64(sHQ, "%d" % L_HQ)
    A("s_lshr_b32 s%d, s%d, 1" % (sT0, sWV))
    A("s_cmp_lg_u32 s%d, %d" % (sT0, QW // 2))
    A("s_cbranch_scc1 Lnext")
    A.label("Lqpoll")
    A("global_load_dwordx4 %s, %s, %s sc1" % (V(vQ, 4), V(aHQG), sp(sHQ)))
    A("s_waitcnt vmcnt(0)")
    if QSPEC:
        A("v_mfma_f32_16x16x32_bf16 %s, %s, %s, 0" % (V(QD, 4), V(vSEL, 4), V(vQ, 4)))
    maxtree(vM, range(vQ, vQ + 4))
    poll_tail("Lqpoll", vM, far=True)
    if not QSPEC:
        A("v_mfma_f32_16x16x32_bf16 %s, %s, %s, 0" % (V(QD, 4), V(vSEL, 4), V(vQ, 4)))
    for i in range(2):
        A("v_cvt_pk_bf16_f32 %s, %s, %s" % (V(vQ + i), V(QD + 2 * i), V(QD + 2 * i + 1)))
    A("s_mov_b32 exec_hi, 0")
    A("ds_write_b64 %s, %s" % (V(lQW), V(vQ, 2)))
    A("s_mov_b32 exec_hi, -1")
    A.label("Lnext")
    add64(sHO, "%d" % L_HO)
    if NREP > 1:
        for r in HXB:
            add64(r, "s%d" % sXD)
        A("s_mov_b64 %s, %s" % (sp(sHXS), sp(sHX)))
        A("s_mov_b64 %s, 0x3ffff" % sp(sXM))
    else:
        for r in HXB:
            add64(r, "%d" % L_HX)
    for r in (lXC, lXP, lXS):
        A("v_add_u32 %s, %d, %s" % (V(r), XSB - XSA, V(r)))
    A("s_mov_b32 s%d, 1" % sL)
    stamp("qs")
    A("s_waitcnt lgkmcnt(0)")
    A("s_barrier")
    stamp("q1")
    A("s_branch Latt")
    for label in retries:
        A.label("%s_again" % label)
        A("s_sub_u32 s%d, s%d, 1" % (sCNT, sCNT))
        A("s_cbranch_scc0 %s" % label)
        A("s_mov_b32 s%d, 0" % sCNT)
        A("s_branch %s_ok" % label)
    A.label("Lv_read")
    A("s_cmp_lt_u32 s%d, 4" % sWV)
    A("s_cbranch_scc1 Lv_read_done")
    for i in range(8):
        A("ds_read_b128 %s, %s offset:%d" % (V(vVR + 4 * i, 4), V(vA + 1), (i >> 2) * 4352 + (i & 3) * 256))
    A("s_branch Lv_read_done")
    A.label("Lv_wait")
    A("v_readfirstlane_b32 s%d, %s" % (sFAST, V(vA + 1)))
    A("v_lshlrev_b32 v249, 4, v0")
    A("s_and_b32 s%d, s2, %d" % (sT0, TREP - 1))
    A("s_lshl_b32 s%d, s%d, 13" % (sT0, sT0))
    A("s_add_u32 s%d, s%d, %d" % (sT0, sT0, W_HT))
    A("v_add_u32 v248, s%d, v249" % sT0)
    A("s_cmp_gt_u32 s%d, 3" % sWV)
    A("s_cbranch_scc1 Lv_tab")
    if WOB or WOPOST:
        A("s_waitcnt vmcnt(%d) lgkmcnt(0)" % WO1)
        A("s_cmp_lg_u32 s%d, 0" % sWV)
        A("s_cbranch_scc1 Lv_perm")
        A("s_waitcnt vmcnt(0)")
    else:
        A("s_sub_u32 s%d, s%d, 1" % (sT0, sWV))
        A("s_cmp_lt_u32 s%d, 3" % sT0)
        A("s_cbranch_scc1 Lv_wo")
        A("s_waitcnt vmcnt(0) lgkmcnt(0)")
        A("s_branch Lv_perm")
        A.label("Lv_wo")
        woloads(WO1, 16, WINO if callable(WINO) else lambda i: WINO)
        A("s_waitcnt vmcnt(16)")
    A.label("Lv_perm")
    stamp("kv")
    A("s_mov_b32 s%d, 0x05040100" % sT0)
    A("s_mov_b32 s%d, 0x07060302" % sT1)
    for j in range(8):
        for e in range(4):
            A("v_perm_b32 %s, %s, %s, s%d" % (
                V(vVT + 4 * j + e), V(vVR + 4 * (2 * e + 1) + (j >> 1)), V(vVR + 4 * (2 * e) + (j >> 1)), sT1 if j & 1 else sT0))
    for i in range(4):
        A("v_mov_b32 %s, 0x3f803f80" % V(vONES + i))
    if VPRE:
        A("s_cmp_gt_u32 s%d, 3" % sWV)
        A("s_cbranch_scc1 Lv_back")
    A.label("Lv_tab")
    if TEARLY:
        A("global_load_dwordx4 %s, v248, %s sc1" % (V(vQ, 4), sp(sWS)))
    A("s_branch Lv_ready")
    if WOPOST:
        A.label("Lwo_rest")
        A("s_sub_u32 s%d, s%d, 1" % (sT0, sWV))
        A("s_cmp_lt_u32 s%d, 3" % sT0)
        A("s_cbranch_scc0 Lwo_back")
        woloads(WO1, 16, lambda i: 63)
        A("s_branch Lwo_back")
    A.label("Lstash")
    A("s_cmp_lt_u32 s%d, 4" % sWV)
    A("s_cbranch_scc1 Lstashed")
    A("s_mul_i32 s%d, s%d, 8704" % (sT1, sWV))
    A("s_add_u32 s%d, s%d, %d" % (sT1, sT1, KB - 4 * 8704))
    A("v_lshl_add_u32 v250, v1, 4, s%d" % sT1)
    A("v_lshl_add_u32 v251, v1, 2, s%d" % sT1)
    for i in range(3):
        A("ds_write_b128 v250, %s offset:%d" % (V(vRW + 10 * i, 4), 2304 * i))
        A("ds_write_b128 v250, %s offset:%d" % (V(vRW + 10 * i + 4, 4), 2304 * i + 1024))
        A("ds_write_b32 v251, %s offset:%d" % (V(vRW + 10 * i + 8), 2304 * i + 2048))
    A.label("Lstashed")
    if OEARLY == 2:
        A("global_load_dwordx4 %s, %s, %s sc1" % (V(vA + 10, 4), V(aHOL), sp(sHO)))
    A("s_waitcnt vmcnt(%d)" % (2 if OEARLY == 2 else 0))
    if OEARLY == 1:
        A("global_load_dwordx4 %s, %s, %s sc1" % (V(vA + 10, 4), V(aHOL), sp(sHO)))
    woread()
    A("s_branch %s" % ("Lopoll_w" if OEARLY else "Lopoll"))
    A.label("Lhelper")
    spin(20, 1, "Lhelp_spin")
    A("s_cmp_eq_u32 s%d, 2" % sT0)
    A("s_cbranch_scc1 Lmlp")
    A("s_branch Lexit")
    A.label("Lxchk")
    A("s_mov_b32 exec_hi, s%d" % sT2)
    if XMASK:
        for i in range(4):
            maxtree(vS + i, range(vA + 4 * i, vA + 4 * i + 4))
        for i in range(4):
            A("v_cmp_eq_u32 %s, -1, %s" % (sp(sH + 2 * i), V(vS + i)))
        A("s_mov_b32 exec_hi, 0")
        A("s_or_b64 vcc, %s, %s" % (sp(sH), sp(sH + 2)))
        A("s_or_b64 vcc, vcc, %s" % sp(sH + 4))
        A("s_or_b64 vcc, vcc, %s" % sp(sH + 6))
        A("s_cbranch_scc0 Lxok")
        A("s_sub_u32 s%d, s%d, 1" % (sCNT, sCNT))
        A("s_cbranch_scc1 Lxgiveup")
        for i in range(4):
            A("s_mov_b64 exec, %s" % sp(sH + 2 * i))
            A("global_load_dwordx4 %s, %s, %s sc1" % (V(vA + 4 * i, 4), V(aHXL), sp(HXB[i])))
        A("s_mov_b64 exec, -1")
        A("s_waitcnt vmcnt(0)")
        A("s_branch Lxsum")
        A.label("Lxgiveup")
    else:
        maxtree(vM, range(vA, vA + 16))
        A("v_cmp_eq_u32 vcc, -1, %s" % V(vM))
        A("s_sub_u32 s%d, s%d, 1" % (sCNT, sCNT))
        A("s_cbranch_vccz Lxdone")
        A("s_cbranch_scc0 Lxpoll")
        A.label("Lxdone")
        A("s_mov_b32 exec_hi, 0")
        A("s_cbranch_scc0 Lxok")
    A("s_mov_b32 s%d, 0" % sCNT)
    A("s_branch Lxok")
    A.label("Lfinal")
    A("s_cmp_lg_u32 s%d, 0" % sWV)
    A("s_cbranch_scc1 Lexit")
    A("v_lshlrev_b32 v249, 2, v1")
    A("v_lshlrev_b32 v250, 1, v1")
    for i in range(4):
        A("global_store_dword v249, %s, %s offset:%d%s" % (V(vHP + i), sp(sOUT), 256 * i, OUTF))
    A("global_store_short v250, %s, %s offset:1024%s" % (V(vHP + 4), sp(sOUT), OUTF))
    A("v_mov_b32 v252, %d" % (FLG + 20))
    A("v_mov_b32 v253, 1")
    A("ds_max_u32 v252, v253")
    if ENDSTAMP:
        A("s_memrealtime s[70:71] ; ENDSTAMP")
        A("s_lshl_b32 s%d, s2, 2" % sT0)
        A("s_add_u32 s%d, s%d, %d" % (sT0, sT0, W_DIAG))
        A("v_mov_b32 v249, s%d" % sT0)
        A("s_waitcnt lgkmcnt(0)")
        A("v_mov_b32 v250, s70")
        A("global_store_dword v249, v250, %s" % sp(sWS))
    if WB:
        A("s_branch Lexit")
        A.label("Lwb")
        A("s_cmp_lg_u32 s%d, 0" % sWV)
        A("s_cbranch_scc1 Lexit")
        if WB == 2:
            A("s_cmp_lg_u32 s%d, 7" % sS)
            A("s_cbranch_scc1 Lexit")
        A("s_waitcnt vmcnt(0)")
        A("buffer_wbl2 sc1")
    A.label("Lexit")
    if DIAG:
        A("v_mov_b32 v251, s98")
        stamp("end")
        A("s_memtime %s" % sp(sMSK))
        A("s_waitcnt lgkmcnt(0)")
        A("s_sub_u32 s100, s%d, s100" % sMSK)
        A("s_lshl_b32 s%d, s2, 3" % sT0)
        A("s_add_u32 s%d, s%d, s%d" % (sT0, sT0, sWV))
        A("s_lshl_b32 s%d, s%d, 7" % (sT0, sT0))
        A("s_add_u32 s%d, s%d, %d" % (sT0, sT0, W_DIAG))
        A("v_mov_b32 v249, s%d" % sT0)
        A("s_mov_b64 exec, 1")
        for i in range(stamp_n[0]):
            A("v_mov_b32 v250, s%d" % (sSTAMP + 2 * i))
            A("global_store_dword v249, v250, %s offset:%d" % (sp(sWS), 4 * i))
        A("global_store_dword v249, v251, %s offset:112" % sp(sWS))
        A("v_mov_b32 v250, s100")
        A("global_store_dword v249, v250, %s offset:116" % sp(sWS))
        A("v_mov_b32 v250, s%d" % sCNT)
        A("global_store_dword v249, v250, %s offset:120" % sp(sWS))
        A("v_mov_b32 v250, s%d" % sFAST)
        A("global_store_dword v249, v250, %s offset:124" % sp(sWS))
        A("s_or_b32 s%d, s2, s%d" % (sT0, sWV))
        A("s_cbranch_scc1 Lend")
        A("v_mov_b32 v249, 0")
        for i in range(1, stamp_n[0]):
            A("s_sub_u32 s%d, s%d, s%d" % (sT0, sSTAMP + 2 * i, sSTAMP))
            A("v_mov_b32 v250, s%d" % sT0)
            A("global_store_dword v249, v250, %s offset:%d" % (sp(sDBG), 4 * i))
        A("v_mov_b32 v250, s100")
        A("global_store_dword v249, v250, %s offset:0" % sp(sDBG))
        A("v_mov_b32 v250, s%d" % sCNT)
        A("global_store_dword v249, v250, %s offset:60" % sp(sDBG))
    A.label("Lend")
    A("s_endpgm")

    A.label("Lqstage")
    for i in range(4):
        A("ds_write_b32 %s, %s offset:%d" % (V(lNW), V(vXR + i), 256 * i))
    A("ds_write_b16 %s, %s" % (V(lNH), V(vXR + 4)))
    for ks in range(4):
        A("ds_read_b128 %s, %s offset:%d" % (V(vA + 4 * ks, 4), V(lNR), 64 * ks))
    A("ds_read_b64 %s, %s" % (V(vA + 16, 2), V(lNR2)))
    A.label("Lq_unpack")
    for i in range(4):
        A("v_lshlrev_b32 %s, 16, %s" % (V(vXA + 2 * i), V(vXR + i)))
        A("v_and_b32 %s, 0xffff0000, %s" % (V(vXA + 2 * i + 1), V(vXR + i)))
    A("v_lshlrev_b32 %s, 16, %s" % (V(vXA + 8), V(vXR + 4)))
    stats_lane(vS)
    rest = stats_wave(vS, False)
    rest.append("v_mul_f32 %s, %s, %s" % (V(vS + 4), V(vS), V(vS + 2)))
    if LEAD:
        for l in rest:
            A(l)
        rest = []
        A("s_cmp_lg_u32 s%d, s%d" % (sWV, sYW))
        A("s_cbranch_scc1 Lq_mm")
        A("v_mov_b32 v243, 0")
        A("s_mov_b64 exec, 1")
        store2(["global_store_dwordx3 v243, %s, %s offset:1152" % (V(vS + 2, 3), sp(sHY))])
        A("s_mov_b64 exec, -1")
        A.label("Lq_mm")
    vQC = vA + 24
    for i in range(4):
        rest.append("v_pk_mul_f32 %s, %s, %s op_sel_hi:[1,0] neg_lo:[1,0] neg_hi:[1,0]" % (
            V(vQC + 2 * i, 2), V(vSQ + 2 * i, 2), bc(vS + 4)))
    acc = (vP, 244)
    per = [2, 2, 2, 2, 2, 2, 2, 2, 3, 100]
    if LEAD:
        per = [0, 0, 0, 0, 0, 0, 0, 5, 0, 0]
        rest.append("s_nop 1")
    for ks in range(5):
        A("s_waitcnt lgkmcnt(%d)" % (4 - ks))
        for u in range(2):
            if ks < 4:
                A("v_mfma_f32_16x16x32_bf16 %s, %s, %s, %s" % (
                    V(acc[u], 4), V(vWQ + 18 * u + 4 * ks, 4), V(vA + 4 * ks, 4), V(acc[u], 4) if ks else "0"))
            else:
                A("v_mfma_f32_16x16x16_bf16 %s, %s, %s, %s" % (V(acc[u], 4), V(vWQ + 18 * u + 16, 2), V(vA + 16, 2), V(acc[u], 4)))
            n = per[2 * ks + u]
            for l in rest[:n]:
                A(l)
            rest = rest[n:]
    for u in range(2):
        for i in range(2):
            A("v_pk_fma_f32 %s, %s, %s, %s op_sel_hi:[1,0,1]" % (
                V(acc[u] + 2 * i, 2), V(acc[u] + 2 * i, 2), bc(vS + 2), V(vQC + 4 * u + 2 * i, 2)))
        for i in range(2):
            A("v_cvt_pk_bf16_f32 %s, %s, %s" % (V(vA + 2 * u + i), V(acc[u] + 2 * i), V(acc[u] + 2 * i + 1)))
    A("s_mov_b64 exec, %s" % sp(sBM))
    store2(["global_store_dwordx4 %s, %s, %s" % (V(aHQS), V(vA, 4), sp(sHQ))])
    A("s_mov_b64 exec, -1")
    A("s_nop 0")
    A("s_setpc_b64 %s" % sp(sRET))

    A.label("Lkshuf")
    for pr in range(4):
        a, b = vK + 8 * pr, vK + 8 * pr + 4
        for d in range(4):
            A("v_mov_b32 %s, %s" % (V(vA + 16 + d), V(a + d)))
        for d in range(4):
            A("v_mov_b32_dpp %s, %s row_ror:8 row_mask:0xf bank_mask:0xc" % (V(a + d), V(b + d)))
        for d in range(4):
            A("v_mov_b32_dpp %s, %s row_ror:8 row_mask:0xf bank_mask:0x3" % (V(b + d), V(vA + 16 + d)))
    A("s_setpc_b64 %s" % sp(sRET))
    A.label("Lsel")
    A("v_mov_b32 %s, 0x3f803f80" % V(vS + 3))
    A("v_and_b32 %s, 1, v1" % V(vS))
    A("v_lshlrev_b32 %s, 4, %s" % (V(vS), V(vS)))
    A("v_lshlrev_b32 %s, %s, %s" % (V(vS), V(vS), V(vS + 3)))
    A("v_bfe_u32 %s, v1, 1, 3" % V(vS + 1))
    A("v_and_b32 %s, 1, v1" % V(vS + 2))
    A("v_cmp_eq_u32 vcc, 0, %s" % V(vS + 2))
    A("v_and_b32 %s, 0xffff, %s" % (V(vS + 2), V(vS)))
    A("v_cndmask_b32 %s, %s, %s, vcc" % (V(vS), V(vS), V(vS + 2)))
    for d in range(4):
        A("v_cmp_eq_u32 vcc, %d, %s" % (d, V(vS + 1)))
        A("v_cndmask_b32 %s, 0, %s, vcc" % (V(vSEL + d), V(vS)))
    A("s_setpc_b64 %s" % sp(sRET))
    A.label("Laddr")
    A("v_mov_b32 v232, 0")
    A("v_bfe_u32 v250, v24, 2, 1")
    A("v_lshlrev_b32 v249, 8, v250")
    A("v_lshl_add_u32 v249, v25, 4, v249")
    A("v_add_u32 %s, %d, v249" % (V(aHQL), QL))
    A("s_and_b32 s%d, s%d, 1" % (sT0, sWV))
    A("s_lshl_b32 s%d, s%d, 8" % (sT0, sT0))
    A("v_lshl_add_u32 v249, v24, 4, s%d" % sT0)
    A("v_lshl_add_u32 %s, v25, 9, v249" % V(aHQG))
    A("v_and_b32 v250, 1, v25")
    A("v_lshl_add_u32 v249, v250, 3, v249")
    A("v_add_u32 %s, %d, v249" % (V(lQW), QL))
    A("s_lshl_b32 s%d, s%d, 8" % (sT0, sS))
    A("s_lshl_b32 s%d, s%d, 6" % (sT1, sWV))
    A("s_add_u32 s%d, s%d, s%d" % (sT0, sT0, sT1))
    A("v_lshl_add_u32 %s, v25, 4, s%d" % (V(aHQS), sT0))
    A("s_lshl_b32 s%d, s%d, 7" % (sT0, sWV))
    A("v_lshl_add_u32 v249, v27, 4, s%d" % sT0)
    A("v_lshl_add_u32 %s, v26, 10, v249" % V(aHOL))
    A("s_lshl_b32 s%d, s%d, 10" % (sT1, sS))
    A("v_add_u32 %s, s%d, v249" % (V(aHOS), sT1))
    A("v_mul_u32_u24 v250, %d, v26" % PSTR)
    A("v_add_u32 v250, %d, v250" % PART)
    A("v_add_u32 %s, v249, v250" % V(lPR))
    A("s_mul_i32 s%d, s%d, %d" % (sT0, sWV, RSTR))
    A("s_add_u32 s%d, s%d, %d" % (sT0, sT0, RED))
    A("v_lshl_add_u32 %s, v24, 2, s%d" % (V(lOW), sT0))
    A("s_lshr_b32 s%d, s%d, 2" % (sT0, sWV))
    A("s_lshl_b32 s%d, s%d, 3" % (sT0, sT0))
    A("v_lshl_add_u32 %s, v26, 4, s%d" % (V(aHML), sT0))
    A("v_add_u32 %s, %d, %s" % (V(lMR), ML, V(aHML)))
    A("s_lshl_b32 s%d, s%d, 8" % (sT0, sWV))
    A("v_lshl_add_u32 v249, v24, 4, s%d" % sT0)
    A("v_mul_u32_u24 v250, 1152, v25")
    A("v_add_u32 %s, v249, v250" % V(aHXL))
    A("v_and_b32 v253, 1, v25")
    A("v_lshlrev_b32 v249, 1, v249")
    A("v_lshl_add_u32 v249, v253, 4, v249")
    A("v_add_u32 %s, %d, v249" % (V(lXC), XSA))
    A("s_mul_i32 s%d, s%d, 1152" % (sT0, sHKV))
    A("s_mul_i32 s%d, s%d, 144" % (sT1, sS))
    A("s_add_u32 s%d, s%d, s%d" % (sT0, sT0, sT1))
    A("v_mul_u32_u24 v250, 3641, v1")
    A("v_lshrrev_b32 v250, 16, v250")
    A("v_mul_u32_u24 v249, 18, v250")
    A("v_sub_u32 v249, v1, v249")
    A("v_lshlrev_b32 %s, 4, v249" % V(lOR))
    A("v_add_u32 %s, %d, %s" % (V(lOR), RED, V(lOR)))
    A("v_lshl_add_u32 %s, v249, 3, s%d" % (V(aHXS), sT0))
    A("v_mul_u32_u24 v250, %d, v250" % L_HX)
    A("v_add_u32 %s, v250, %s" % (V(aHXS), V(aHXS)))
    A("v_add_u32 %s, %d, %s" % (V(aHML), 3 * L_HX, V(aHXS)))
    A("s_mul_i32 s%d, s%d, %d" % (sT0, sWV, PSTR))
    A("s_add_u32 s%d, s%d, %d" % (sT0, sT0, PART))
    A("v_lshlrev_b32 v249, 9, v253")
    A("v_lshl_add_u32 v249, v24, 2, v249")
    A("v_add_u32 %s, s%d, v249" % (V(lPW), sT0))
    A("s_lshl_b32 s%d, s%d, 4" % (sT0, sWV))
    A("s_add_u32 s%d, s%d, %d" % (sT0, sT0, ML))
    A("v_lshl_add_u32 %s, v253, 3, s%d" % (V(lMW), sT0))
    A("v_lshlrev_b32 v249, 4, v25")
    A("v_lshlrev_b32 v250, 3, v1")
    A("v_add_u32 %s, %d, v250" % (V(lXP), XSA))
    A("v_add_u32 %s, %d, v28" % (V(lXS), XSA + 2048))
    A("s_mov_b32 s%d, %d" % (sT0, XN))
    A("v_add_u32 %s, s%d, v28" % (V(lNW), sT0))
    A("s_add_u32 s%d, s%d, 1024" % (sT1, sT0))
    A("v_add_u32 %s, s%d, v29" % (V(lNH), sT1))
    A("s_mul_i32 s%d, s%d, 288" % (sT1, sP))
    A("s_add_u32 s%d, s%d, s%d" % (sT0, sT0, sT1))
    A("v_add_u32 %s, s%d, v249" % (V(lNR), sT0))
    A("s_add_u32 s%d, s%d, 256" % (sT0, sT0))
    A("v_lshl_add_u32 %s, v25, 3, s%d" % (V(lNR2), sT0))
    A("v_bfe_u32 v250, v1, 2, 2")
    A("v_lshl_add_u32 v250, v25, 3, v250")
    A("v_mul_u32_u24 v233, 144, v250")
    A("v_and_b32 v250, 3, v1")
    A("v_lshl_add_u32 v233, v250, 3, v233")
    A("s_mul_i32 s%d, s%d, %d" % (sT0, sWV, 32 * 144))
    A("s_add_u32 s%d, s%d, %d" % (sT0, sT0, WOS))
    A("v_add_u32 v233, s%d, v233" % sT0)
    A("s_mov_b32 s%d, 0" % sFB)
    A("v_mov_b32 %s, %s" % (V(vINV), fl(1.0 / 576)))
    A("v_mov_b32 %s, %s" % (V(vC1), fl((1.0 + 1e-5) / 576)))
    A("v_mov_b32 %s, %s" % (V(vEPS), fl(1e-5)))
    A("v_mov_b32 %s, %s" % (V(vEPS2), fl(1e-10)))
    add64(sOUT, "s%d" % oX)
    A("s_mov_b32 s%d, 0" % sL)
    A("s_mov_b32 s%d, 0" % sFAST)
    A("s_mov_b32 s%d, %d" % (sCNT, POLL_LIMIT))
    A("s_mov_b32 s%d, %s" % (sSMC, fl(SMC)))
    A("s_setpc_b64 %s" % sp(sRET))

    A.label("Lfallback")
    A("v_mov_b32 v252, %d" % (FLG + 20))
    A("v_lshlrev_b32 v253, 1, s%d" % sL)
    A("ds_max_u32 v252, v253")
    fw, ft = vMA, 244
    A("s_mul_i32 s%d, s%d, 8704" % (sT1, sWV))
    A("s_add_u32 s%d, s%d, %d" % (sT1, sT1, KB))
    A("v_lshl_add_u32 v250, v1, 4, s%d" % sT1)
    A("v_lshl_add_u32 v251, v1, 2, s%d" % sT1)
    for i in range(3):
        A("ds_read_b128 %s, v250 offset:%d" % (V(fw + 10 * i, 4), 2304 * i))
        A("ds_read_b128 %s, v250 offset:%d" % (V(fw + 10 * i + 4, 4), 2304 * i + 1024))
        A("ds_read_b32 %s, v251 offset:%d" % (V(fw + 10 * i + 8), 2304 * i + 2048))
    for i in range(9):
        A("v_bfe_u32 %s, %s, %d, 4" % (V(vM), V(vHS + (i >> 1)), 11 + 16 * (i & 1)))
        A("v_cmp_ne_u32 %s, 0, %s" % (sp(sMSK), V(vM)))
        A("v_%s %s, %s, %s" % (("and_b32" if i & 1 else "lshlrev_b32"), V(vM), ("0xffff0000" if i & 1 else "16"), V(vHP + (i >> 1))))
        A.label("Lfb_l%d" % i)
        A("s_cmp_eq_u64 %s, 0" % sp(sMSK))
        A("s_cbranch_scc1 Lfb_n%d" % i)
        A("s_ff1_i32_b64 s%d, %s" % (sT3, sp(sMSK)))
        A("s_bitset0_b64 %s, s%d" % (sp(sMSK), sT3))
        A("v_readlane_b32 s%d, %s, s%d" % (sFH, V(vM), sT3))
        A("s_call_b64 %s, Lfb_eval" % sp(sRET))
        A("s_mov_b32 m0, s%d" % sT3)
        A("v_writelane_b32 %s, s%d, m0" % (V(vY + i), sT0))
        A("s_branch Lfb_l%d" % i)
        A.label("Lfb_n%d" % i)
    A("s_branch Lfb_done")
    A.label("Lfb_eval")
    A("v_mov_b32 %s, 0" % V(ft))
    A("v_mov_b32 %s, 0" % V(ft + 1))
    A("v_mov_b32 %s, %s" % (V(ft + 2), fl(-K1)))
    A("v_mov_b32 %s, %s" % (V(ft + 6), fl(-K0)))
    A("v_mov_b32 %s, 1.0" % V(ft + 4))
    A("s_waitcnt lgkmcnt(0)")
    seqs = []
    for j in range(9):
        b = vS if j & 1 else vA
        a, c, w, t = (V(b + 2 * i, 2) for i in range(4))
        q = []
        for i in range(3):
            q.append("v_lshlrev_b32 %s, 16, %s" % (V(b + 2 * i), V(fw + 10 * i + j)))
            q.append("v_and_b32 %s, 0xffff0000, %s" % (V(b + 2 * i + 1), V(fw + 10 * i + j)))
        q += ["v_pk_fma_f32 %s, %s, %s, %s op_sel_hi:[1,0,1]" % (a, a, sp(sFH), c),
              "v_pk_mul_f32 %s, %s, %s" % (t, a, a),
              "v_pk_mul_f32 %s, %s, %s" % (w, w, a),
              "v_pk_fma_f32 %s, %s, %s, %s op_sel_hi:[1,0,0]" % (t, t, bc(ft + 2), bc(ft + 6)),
              "v_pk_mul_f32 %s, %s, %s" % (t, t, a),
              "v_exp_f32 %s, %s" % (V(b + 6), V(b + 6)),
              "v_exp_f32 %s, %s" % (V(b + 7), V(b + 7)),
              "v_pk_add_f32 %s, %s, %s op_sel_hi:[1,0]" % (t, t, V(ft + 4, 2)),
              "v_rcp_f32 %s, %s" % (V(b + 6), V(b + 6)),
              "v_rcp_f32 %s, %s" % (V(b + 7), V(b + 7)),
              "v_pk_fma_f32 %s, %s, %s, %s" % (V(ft, 2), w, t, V(ft, 2))]
        seqs.append(q)
    for j in range(0, 8, 2):
        for l0, l1 in zip(seqs[j], seqs[j + 1]):
            A(l0)
            A(l1)
    for l in seqs[8]:
        A(l)
    A("v_add_f32 %s, %s, %s" % (V(ft), V(ft), V(ft + 1)))
    for ctl in WAVE6:
        A("v_add_f32_dpp %s, %s, %s %s" % (V(ft), V(ft), V(ft), ctl))
    A("s_and_b32 s%d, s%d, 4" % (sT0, sFB))
    A("s_lshl_b32 s%d, s%d, 2" % (sT0, sT0))
    A("s_add_u32 s%d, s%d, %d" % (sT0, sT0, FB))
    A("s_lshl_b32 s%d, s%d, 2" % (sT1, sWV))
    A("s_add_u32 s%d, s%d, s%d" % (sT1, sT1, sT0))
    A("v_mov_b32 %s, s%d" % (V(ft + 5), sT1))
    A("v_mov_b32 %s, s%d" % (V(ft + 6), sT0))
    A("s_add_u32 s%d, s%d, 4" % (sFB, sFB))
    A("s_mov_b32 exec_lo, 0")
    A("s_mov_b32 exec_hi, 0x80000000")
    A("ds_write_b32 %s, %s" % (V(ft + 5), V(ft)))
    A("s_mov_b64 exec, -1")
    arrive_wait(16, 0, None)
    A.label("Lfb_spin")
    A("ds_read_b32 v253, v252")
    A("s_waitcnt lgkmcnt(0)")
    A("v_readfirstlane_b32 s%d, v253" % sT0)
    spin_tail("Lfb_spin", "s%d" % sFB)
    A("ds_read_b128 %s, %s" % (V(ft, 4), V(ft + 6)))
    A("s_waitcnt lgkmcnt(0)")
    A("v_pk_add_f32 %s, %s, %s" % (V(ft, 2), V(ft, 2), V(ft + 2, 2)))
    A("v_add_f32 %s, %s, %s" % (V(ft), V(ft), V(ft + 1)))
    A("v_cvt_pk_bf16_f32 %s, %s, %s" % (V(ft), V(ft), V(ft)))
    A("v_lshlrev_b32 %s, 16, %s" % (V(ft), V(ft)))
    A("v_add_f32 %s, %s, %s" % (V(ft), V(ft), V(vB2)))
    A("v_cvt_pk_bf16_f32 %s, %s, %s" % (V(ft), V(ft), V(ft)))
    A("v_lshlrev_b32 %s, 16, %s" % (V(ft), V(ft)))
    A("v_readfirstlane_b32 s%d, %s" % (sT0, V(ft)))
    A("s_nop 3")
    A("s_setpc_b64 %s" % sp(sRET))

    A.label("Lcode_end")
    body = A.finish()
    head = open("interleave_layers__sliding_block_cached__mixer_token_mlp__decode.s.ref").read().split(
        "; Override launch geometry")[0]
    head += "; @launch grid=(256,1,1) block=(512,1,1) lds=%d\n" % LDS
    head += """;
;    directly from the weights with the same formula (Lfallback), so every input gets the exact entry.
;
"""
    if DIAG:
        head += "; STAMPS: " + " ".join(STAMPS) + "\n"
    head += '.amdgcn_target "amdgcn-amd-amdhsa--gfx950"\n.text\n.globl %s\n.p2align 8\n.type %s,@function\n' % (NAME, NAME)
    tail = """.section .rodata,"a"
.p2align 6
.amdhsa_kernel %s
  .amdhsa_next_free_vgpr 256
  .amdhsa_next_free_sgpr 102
  .amdhsa_accum_offset 256
  .amdhsa_group_segment_fixed_size 0
  .amdhsa_kernarg_size 104
  .amdhsa_user_sgpr_count 2
  .amdhsa_user_sgpr_kernarg_segment_ptr 1
  .amdhsa_system_sgpr_workgroup_id_x 1
.end_amdhsa_kernel
""" % NAME
    return head + body + tail


if __name__ == "__main__":
    out = sys.argv[1]
    kw = {}
    for a in sys.argv[2:]:
        k, v = a.split("=")
        kw[k] = eval(v)
    open(out, "w").write(gen(**kw))
```

```python
import math, struct, sys
from asmlib import Asm

NAME = "interleave_layers__sliding_block_cached__mixer_token_mlp__decode_kernel"


def f2u(x):
    return struct.unpack("<I", struct.pack("<f", x))[0]


def hx(x):
    return "0x%08x" % (x & 0xFFFFFFFF)


def fl(x):
    return hx(f2u(x))


def gen(DIAG=False, NTKV=" nt", NTW=" nt", E_LO=114, FORCE_SLOW=False, POLL_LIMIT=1 << 20,
        STAMPS="start wq q0 wo fl kv tab ho0 og0 hx0 xs0 q1 ho1 hx1 end",
        VSCHED={1: 1, 2: 1, 3: 1, 4: 1}, VBEARLY=False, WOGATE=8, WIN=14, WINO=63, QSPEC=False, DUMP=False, QW=4, QD=24, WO1=10, LEAD=False, FEARLY=False, XMASK=False, QPOS=0, NREP=6, WOB=False, WOEARLY=True, VPRE=True, WOPOST=False, KQ=8, RESTORE=False, WARM=0, SPLIT=True, LM=7, OEARLY=1, TEARLY=False, TPOS=0, PREB=0, TAB2=False, APRIO=0, PSTAT=True, TREP=1, DELAY=None, OUTF="", FLW=0, PKS=True, WIN1=12, ENDSTAMP=False, WB=0, XNWAIT=False, XPACE="ack", NOTAB=False, PREF=True, BPRIO=0):
    assert not LEAD and NREP in (1, 3, 6)
    A = Asm()
    LOG2E = math.log2(math.e)
    K0 = 2 * math.sqrt(2 / math.pi) * LOG2E
    K1 = K0 * 0.044715
    SC = K1 ** (1.0 / 3.0)
    KAP = K0 / SC
    SMC = 128 ** -0.5 * LOG2E
    E0 = E_LO << 7
    TABP, WQS, PART, PSTR = 0, 4096, 40960, 1040
    ML, OV, XSA, XSB, XN, TRED = 49280, 49408, 49920, 52224, 54528, 59136
    TABN, WOS, FLG = 65536, WQS, 59648
    QL, KB, VB = 60416, 69632, 104448
    RED, RSTR, FB = QL + 512, 320, FLG + 32
    LDS = 139264
    W_HQ, W_HO, W_HT, W_HX, W_DIAG = 0, 131072, 655360 if TREP == 1 else 950272, 663552, 1 << 20
    W_HY = W_HT + 8192
    L_HQ, L_HO, L_HM, L_HX = 65536, 262144, 4096, 36864
    sX, sK, sV, sWQ, sWO, sW1, sB1, sW2, sB2, sOUT, sDBG, sWS = 4, 6, 8, 10, 12, 16, 18, 20, 22, 24, 26, 28
    sWV, sHKV, sB, sS, sGID, sL, sFAST, sXCC, sCNT, sP = 30, 31, 32, 33, 34, 35, 36, 37, 38, 39
    sH, sRET, sHQ, sHO, sHM, sHX = 40, 56, 58, 60, 62, 64
    sT0, sT1, sT2, sSMC, sT3 = 66, 67, 68, 69, 3
    sMSK = 14
    sQM, sBM, sOM = 50, 52, 54
    sSM2 = 48
    sXM = 22
    sHXS, sXD = 20, 19
    sHY, sYW = 16, 18
    sFB, sFH = 10, 12
    sSTAMP = 70

    def sp(r):
        return "s[%d:%d]" % (r, r + 1)

    def V(a, n=1):
        return "v%d" % a if n == 1 else "v[%d:%d]" % (a, a + n - 1)

    vT, vL = 0, 1
    aHQL, aHQS, aHOL, aHOS, aHML, aHXL, aHXS = 2, 3, 4, 5, 6, 7, 11
    vC1, vEPS2, vEPS = 8, 9, 10
    vSQ = 188
    aHQG, lQW = 98, 99
    lNR2, vSEL = 96, 196
    sHX1, sHX2, sHX3 = 4, 6, 8
    lPW, lPR, lMR, lMW, lOW, lOR, lXC, lXP, lXS, lNW, lNH, lNR = 12, 13, 14, 15, 16, 17, 18, 19, 20, 21, 22, 23
    vS = 24
    vK = 32
    vA = 64
    vVT = 100
    vWQ = 132
    vWO = 168
    vVR = 200
    vONES, vMA, vB2 = 200, 204, 97
    vRW, vCA, vCC, vCW, vKAP, vONE, vSCL = 132, (162, 32), (164, 34), (166, 36), 250, 38, 252
    vQ = 234
    vXA = 234
    vP = 250
    vINV, vM = 254, 255
    vACC, vTT = 168, 184
    STAMPS = STAMPS.split()
    stamp_n = [len(STAMPS)]

    def stamp(name):
        if DIAG and "#" + name in STAMPS:
            A("s_mov_b32 s%d, s%d" % (sSTAMP + 2 * STAMPS.index("#" + name), sCNT))
        if DIAG and name in STAMPS:
            A("s_memrealtime %s" % sp(sSTAMP + 2 * STAMPS.index(name)))
            A("s_waitcnt lgkmcnt(0)")

    def stampL(name):
        if DIAG and any(p + name + l in STAMPS for p in ("", "#") for l in "01"):
            A("s_cmp_eq_u32 s%d, 0" % sL)
            A("s_cbranch_scc0 Lst_%s" % name)
            stamp(name + "0")
            A("s_branch Lste_%s" % name)
            A.label("Lst_%s" % name)
            stamp(name + "1")
            A.label("Lste_%s" % name)

    def bc(r):
        assert r % 2 == 0
        return V(r, 2)

    def add64(base, off_reg):
        A("s_add_u32 s%d, s%d, %s" % (base, base, off_reg))
        A("s_addc_u32 s%d, s%d, 0" % (base + 1, base + 1))

    def store2(text):
        n = len(A.lines)
        A("s_cmp_eq_u32 s%d, 0" % sFAST)
        A("s_cbranch_scc1 Lsl%d" % n)
        for t in text:
            A(t)
        A("s_branch Lsd%d" % n)
        A.label("Lsl%d" % n)
        for t in text:
            A(t + " sc1")
        A.label("Lsd%d" % n)

    def maxtree(dst, regs):
        regs = list(regs)
        A("v_max3_u32 %s, %s, %s, %s" % (V(dst), V(regs[0]), V(regs[1]), V(regs[2])))
        regs = regs[3:]
        while len(regs) >= 2:
            A("v_max3_u32 %s, %s, %s, %s" % (V(dst), V(dst), V(regs[0]), V(regs[1])))
            regs = regs[2:]
        if regs:
            A("v_max_u32 %s, %s, %s" % (V(dst), V(dst), V(regs[0])))

    retries = []

    def poll_tail(label, tmp, mask=None, far=False):
        A("v_cmp_eq_u32 vcc, -1, %s" % V(tmp))
        if mask:
            A("s_or_b32 vcc_lo, vcc_lo, vcc_hi")
            A("s_and_b32 vcc_lo, vcc_lo, %s" % mask)
            A("s_cbranch_scc0 %s_ok" % label)
        elif far:
            A("s_cbranch_vccnz %s_again" % label)
            A.label("%s_ok" % label)
            retries.append(label)
            return
        else:
            A("s_cbranch_vccz %s_ok" % label)
        A("s_sub_u32 s%d, s%d, 1" % (sCNT, sCNT))
        A("s_cbranch_scc0 %s" % label)
        A("s_mov_b32 s%d, 0" % sCNT)
        A.label("%s_ok" % label)

    DPP = " row_mask:0xf bank_mask:0xf"

    def stats_lane(t):
        x = lambda i: V(vXA + 2 * i, 2)
        a, b, q = V(t, 2), V(t + 2, 2), V(t + 4, 2)
        S, Q = t + 6, t + 7
        A("v_pk_add_f32 %s, %s, %s" % (a, x(0), x(1)))
        A("v_pk_mul_f32 %s, %s, %s" % (q, x(0), x(0)))
        A("v_pk_add_f32 %s, %s, %s" % (b, x(2), x(3)))
        A("v_pk_fma_f32 %s, %s, %s, %s" % (q, x(1), x(1), q))
        A("v_pk_add_f32 %s, %s, %s" % (a, a, b))
        A("v_pk_fma_f32 %s, %s, %s, %s" % (q, x(2), x(2), q))
        A("v_add_f32 %s, %s, %s" % (V(S), V(t), V(vXA + 8)))
        A("v_pk_fma_f32 %s, %s, %s, %s" % (q, x(3), x(3), q))
        A("v_add_f32 %s, %s, %s" % (V(S), V(S), V(t + 1)))
        A("v_fma_f32 %s, %s, %s, %s" % (V(Q), V(vXA + 8), V(vXA + 8), V(t + 4)))
        A("v_add_f32 %s, %s, %s" % (V(Q), V(Q), V(t + 5)))

    WAVE6 = ("quad_perm:[1,0,3,2]" + DPP, "quad_perm:[2,3,0,1]" + DPP, "row_half_mirror" + DPP,
             "row_mirror" + DPP, "row_bcast:15 row_mask:0xa bank_mask:0xf", "row_bcast:31 row_mask:0xc bank_mask:0xf")

    def stats_wave(t, twice):
        S, Q = t + 6, t + 7
        o = []
        for ctl in WAVE6:
            o.append("v_add_f32_dpp %s, %s, %s %s" % (V(S), V(S), V(S), ctl))
            o.append("v_add_f32_dpp %s, %s, %s %s" % (V(Q), V(Q), V(Q), ctl))
        o.append("v_readlane_b32 s%d, %s, 63" % (sT0, V(S)))
        o.append("v_readlane_b32 s%d, %s, 63" % (sT1, V(Q)))
        c, e = (vC1, vEPS2) if twice else (vINV, vEPS)
        o.append("v_mul_f32 %s, s%d, %s" % (V(t), sT0, V(vINV)))
        if twice:
            o.append("v_mul_f32 %s, s%d, %s" % (V(t + 2), sT0, V(vC1)))
        o.append("v_fma_f32 %s, s%d, %s, %s" % (V(t + 1), sT1, V(c), V(e)))
        o.append("v_fma_f32 %s, -%s, %s, %s" % (V(t + 1), V(t + 2 if twice else t), V(t), V(t + 1)))
        o.append("v_max_f32 %s, %s, %s" % (V(t + 1), V(e), V(t + 1)))
        o.append("v_rsq_f32 %s, %s" % (V(t + 2), V(t + 1)))
        return o

    def normalize(dst, t, r):
        A("v_mul_f32 %s, %s, %s" % (V(t + 4), V(t), V(r)))
        for i in range(4):
            A("v_pk_fma_f32 %s, %s, %s, %s op_sel_hi:[1,0,0] neg_lo:[0,0,1] neg_hi:[0,0,1]" % (
                V(dst + 2 * i, 2), V(vXA + 2 * i, 2), bc(r), bc(t + 4)))
        A("v_fma_f32 %s, %s, %s, -%s" % (V(dst + 8), V(vXA + 8), V(r), V(t + 4)))

    def reduce8(o, ml, M, e, norm, mid=None, fill=()):
        A("v_max_f32_dpp %s, %s, %s quad_perm:[1,0,3,2]%s" % (V(M), V(ml), V(ml), DPP))
        for l in fill[:2]:
            A(l)
        A("v_max_f32_dpp %s, %s, %s quad_perm:[2,3,0,1]%s" % (V(M), V(M), V(M), DPP))
        for l in fill[2:]:
            A(l)
        A("v_max_f32_dpp %s, %s, %s row_half_mirror%s" % (V(M), V(M), V(M), DPP))
        A("v_sub_f32 %s, %s, %s" % (V(e), V(ml), V(M)))
        A("v_exp_f32 %s, %s" % (V(e), V(e)))
        A("v_mov_b32 %s, %s" % (V(ml), V(M)))
        if mid:
            A(mid)
        A("v_mul_f32 %s, %s, %s" % (V(ml + 1), V(ml + 1), V(e)))
        for i in range(2):
            A("v_pk_mul_f32 %s, %s, %s op_sel_hi:[1,0]" % (V(o + 2 * i, 2), V(o + 2 * i, 2), bc(e)))
        for ctl in ("quad_perm:[1,0,3,2]", "quad_perm:[2,3,0,1]", "row_half_mirror"):
            for r in (ml + 1, o, o + 1, o + 2, o + 3):
                A("v_add_f32_dpp %s, %s, %s %s%s" % (V(r), V(r), V(r), ctl, DPP))
        if norm:
            A("v_rcp_f32 %s, %s" % (V(e), V(ml + 1)))
            for i in range(2):
                A("v_pk_mul_f32 %s, %s, %s op_sel_hi:[1,0]" % (V(o + 2 * i, 2), V(o + 2 * i, 2), bc(e)))

    vXR = vA + 20
    aK, aV, aW = vA, vA + 1, vA + 2

    aK2, aV2, aD, vFL = vWO, vWO + 1, vWO + 2, vWO + 4

    def win():
        if WIN < 63:
            A("s_waitcnt vmcnt(%d)" % (WIN - 1))

    def dma8(base, lds):
        A("s_mul_i32 s%d, s%d, 8704" % (sT1, sWV))
        for i in range(8):
            A("s_add_u32 m0, s%d, %d" % (sT1, lds + 1088 * i - 1024 * (i & 3)))
            win()
            A("global_load_lds_dwordx4 %s, %s offset:%d%s" % (V(aD + (i >> 2)), sp(base), 1024 * (i & 3), NTKV))

    def kloads(aK, lo, hi):
        for T in range(2):
            if T == 1 and FEARLY:
                look()
            for hf in range(2):
                for sub in range(2):
                    if not lo <= 4 * T + 2 * hf + sub < hi:
                        continue
                    win()
                    A("global_load_dwordx4 %s, %s, %s offset:%d%s" % (
                        V(vK + 16 * T + 4 * (2 * hf + sub), 4), V(aK), sp(sK), (16 * T + 8 * sub) * 256 + hf * 128 - 4096, NTKV))

    def look():
        A("s_cmp_lg_u32 s%d, 0" % sWV)
        A("s_cbranch_scc1 Lnolook")
        A("v_lshlrev_b32 v250, 2, v1")
        A("global_load_dword %s, v250, %s sc1" % (V(vFL), sp(sDBG)))
        A.label("Lnolook")

    def vload(i, aV):
        win()
        A("global_load_dwordx4 %s, %s, %s offset:%d%s" % (
            V(vVR + 4 * i, 4), V(aV), sp(sV), (16 * (i >> 2) + (i & 3)) * 256 - 4096, NTKV))

    def spin_tail(name, count):
        A("s_cmp_ge_u32 s%d, %s" % (sT0, count))
        A("s_cbranch_scc1 %s_ok" % name)
        A("s_sub_u32 s%d, s%d, 1" % (sCNT, sCNT))
        A("s_cbranch_scc0 %s" % name)
        A("s_mov_b32 s%d, 0" % sCNT)
        A.label("%s_ok" % name)

    def arrive_wait(off, count, name):
        A("v_mov_b32 v252, %d" % (FLG + off))
        A("v_mov_b32 v253, 1")
        A("s_mov_b64 exec, 1")
        A("ds_add_u32 v252, v253")
        A("s_mov_b64 exec, -1")
        if name is None:
            return
        A.label(name)
        A("ds_read_b32 v253, v252")
        A("s_waitcnt lgkmcnt(0)")
        A("v_readfirstlane_b32 s%d, v253" % sT0)
        spin_tail(name, "%d" % count)

    def mark_v():
        A("s_lshl_b32 s%d, 1, s%d" % (sT0, sWV))
        A("v_mov_b32 v252, %d" % (FLG + 24))
        A("v_mov_b32 v253, s%d" % sT0)
        A("s_mov_b64 exec, 1")
        A("ds_or_b32 v252, v253")
        A("s_mov_b64 exec, -1")

    def spin(off, count, name):
        A("v_mov_b32 v252, %d" % (FLG + off))
        A.label(name)
        A("ds_read_b32 v253, v252")
        A("s_waitcnt lgkmcnt(0)")
        A("v_readfirstlane_b32 s%d, v253" % sT0)
        spin_tail(name, "%d" % count)

    A.label(NAME)
    A("s_cmp_ge_u32 s2, 0x100")
    A("s_cbranch_scc1 Lend")
    if DELAY:
        A("v_readfirstlane_b32 s4, v0")
        A("s_lshl_b32 s4, s4, 2")
        A("s_or_b32 s4, s4, s2")
        A("s_and_b32 s4, s4, %d" % DELAY[0])
        A("s_cmp_lg_u32 s4, %d" % DELAY[1])
        A("s_cbranch_scc1 Lnodelay")
        for i in range(DELAY[2]):
            A("s_sleep 127")
        A.label("Lnodelay")
    if DIAG:
        A("s_memrealtime s[98:99]")
    A("s_load_dwordx16 s[4:19], s[0:1], 0")
    A("s_load_dwordx8 s[20:27], s[0:1], 64")
    A("s_load_dwordx2 s[28:29], s[0:1], 96")
    A("v_lshrrev_b32 v24, 6, v0")
    A("v_and_b32 v1, 63, v0")
    A("v_readfirstlane_b32 s%d, v24" % sWV)
    if PREF:
        A("s_cmp_lg_u32 s%d, 3" % sWV)
        A("s_cbranch_scc1 Lnopref")
        A("s_getpc_b64 %s" % sp(sHQ))
        A.label("Lpc")
        A("v_lshlrev_b32 v24, 7, v1")
        A("v_add_u32 v25, 0x2000, v24")
        A("v_min_u32 v25, Lcode_end-Lpc-4, v25")
        A("global_load_dword v198, v24, %s" % sp(sHQ))
        A("global_load_dword v199, v25, %s" % sp(sHQ))
        A.label("Lnopref")
    A("s_and_b32 s%d, s2, 7" % sT0)
    A("s_lshr_b32 s%d, s2, 3" % sT1)
    A("s_lshr_b32 s%d, s%d, 4" % (sT2, sT1))
    A("s_lshl_b32 s%d, s%d, 1" % (sHKV, sT0))
    A("s_add_u32 s%d, s%d, s%d" % (sHKV, sHKV, sT2))
    A("s_bfe_u32 s%d, s%d, 0x10003" % (sB, sT1))
    A("s_and_b32 s%d, s%d, 7" % (sS, sT1))
    A("s_lshl_b32 s%d, s%d, 4" % (sGID, sB))
    A("s_add_u32 s%d, s%d, s%d" % (sGID, sGID, sHKV))
    A("s_lshr_b32 s%d, s%d, 1" % (sP, sS))
    A("v_lshlrev_b32 v28, 2, v1")
    A("v_lshlrev_b32 v29, 1, v1")
    A("v_mov_b32 %s, 0" % V(vB2))
    A("v_mov_b32 v248, 0")
    A("v_and_b32 v24, 15, v1")
    A("v_lshrrev_b32 v25, 4, v1")
    A("v_and_b32 v26, 7, v1")
    A("v_lshrrev_b32 v27, 3, v1")
    A("v_and_b32 v249, 1, v27")
    A("v_lshl_add_u32 v249, v249, 2, v25")
    A("v_lshlrev_b32 v249, 4, v249")
    A("v_lshl_add_u32 %s, v26, 8, v249" % V(aK))
    A("v_lshlrev_b32 v249, 4, v24")
    A("v_lshl_add_u32 %s, v25, 10, v249" % V(aV))
    oX, oKV, oWQ = sH, sH + 1, sH + 2
    A("s_mul_i32 s%d, s%d, 1152" % (oX, sB))
    A("s_lshl_b32 s%d, s%d, 21" % (oKV, sGID))
    A("s_lshl_b32 s%d, s%d, 16" % (sT1, sS))
    A("s_add_u32 s%d, s%d, s%d" % (oKV, oKV, sT1))
    A("s_lshl_b32 s%d, s%d, 13" % (sT1, sWV))
    A("s_add_u32 s%d, s%d, s%d" % (oKV, oKV, sT1))
    A("s_add_u32 s%d, s%d, %d" % (oKV, oKV, 6144 * 256 + 4096))

    def bases():
        for (r, base, mul, src) in ((sHQ, W_HQ, 2048, sGID), (sHO, W_HO, 8192, sGID), (sHX, W_HX, 18432, sB)):
            A("s_mul_i32 s%d, s%d, %d" % (sT0, src, mul))
            if base:
                A("s_add_u32 s%d, s%d, %d" % (sT0, sT0, base))
            A("s_add_u32 s%d, s%d, s%d" % (r, sWS, sT0))
            A("s_addc_u32 s%d, s%d, 0" % (r + 1, sWS + 1))

    A("s_cmp_gt_u32 s%d, 3" % sWV)
    A("s_cbranch_scc1 Lrole_b")
    if APRIO:
        A("s_setprio %d" % APRIO)
    A("s_mul_i32 s%d, s%d, %d" % (oWQ, sP, 144 * 8192))
    A("s_lshl_b32 s%d, s%d, 9" % (sT1, sHKV))
    A("s_add_u32 s%d, s%d, s%d" % (oWQ, oWQ, sT1))
    A("s_and_b32 s%d, s%d, 1" % (sT1, sS))
    A("s_lshl_b32 s%d, s%d, 8" % (sT1, sT1))
    A("s_add_u32 s%d, s%d, s%d" % (oWQ, oWQ, sT1))
    A("s_lshl_b32 s%d, s%d, 15" % (sT1, sWV))
    A("s_add_u32 s%d, s%d, s%d" % (oWQ, oWQ, sT1))
    A("v_lshlrev_b32 v249, 2, v25")
    A("v_xor_b32 v249, v249, v24")
    A("v_lshlrev_b32 v249, 4, v249")
    A("v_lshl_add_u32 %s, v25, 13, v249" % V(aW))
    A("v_mov_b32 v249, %d" % FLG)
    A("ds_write2_b32 v249, v248, v248 offset0:1 offset1:2")
    A("ds_write2_b32 v249, v248, v248 offset0:3 offset1:4")
    A("ds_write2_b32 v249, v248, v248 offset0:5 offset1:6")
    A("ds_write_b32 v249, v248 offset:28")
    A("v_lshlrev_b32 %s, 4, v1" % V(aD))
    A("v_add_u32 %s, %d, %s" % (V(aD), 32768 - 4096, V(aD)))
    A("v_add_u32 %s, 4096, %s" % (V(aD + 1), V(aD)))
    A("s_getreg_b32 s%d, hwreg(HW_REG_XCC_ID, 0, 4)" % sXCC)
    A("s_cmp_lg_u32 s%d, 2" % sWV)
    A("s_cbranch_scc1 Linit_a")
    for i in range(4):
        A("v_mov_b32 %s, -1" % V(244 + i))
    A("s_lshl_b32 s%d, s%d, 13" % (sT1, sGID))
    A("s_lshl_b32 s%d, s%d, 10" % (sT2, sS))
    A("s_add_u32 s%d, s%d, s%d" % (sT1, sT1, sT2))
    A("s_add_u32 s%d, s%d, %d" % (sT1, sT1, W_HO))
    A("v_lshl_add_u32 v251, v1, 4, s%d" % sT1)
    A("v_add_u32 v252, %d, v251" % L_HO)
    A("s_lshl_b32 s%d, s%d, 8" % (sT1, sS))
    A("s_lshl_b32 s%d, s%d, 11" % (sT2, sGID))
    A("s_add_u32 s%d, s%d, s%d" % (sT1, sT1, sT2))
    A("v_lshl_add_u32 v249, v1, 4, s%d" % sT1)

    def seg(first, sreg, const):
        A("v_cmp_le_u32 vcc, %d, v1" % first)
        A("s_add_u32 s%d, s%d, %d" % (sT0, sreg, const - 16 * first))
        A("v_lshl_add_u32 v250, v1, 4, s%d" % sT0)
        A("v_cndmask_b32 v249, v249, v250, vcc")

    seg(16, sT1, W_HQ + L_HQ)
    A("s_lshl_b32 s%d, s2, 5" % sT1)
    for r in range(TREP):
        seg(32 + 2 * r, sT1, W_HT + 8192 * r)
    per = (9 * (NREP + 1) + 7) // 8
    A("v_min_u32 v243, %d, v27" % (per - 1))
    A("s_mul_i32 s%d, s%d, %d" % (sT0, sS, per))
    A("v_add_u32 v243, s%d, v243" % sT0)
    A("v_min_u32 v243, %d, v243" % (9 * (NREP + 1) - 1))
    A("v_mul_u32_u24 v250, 7282, v243")
    A("v_lshrrev_b32 v250, 16, v250")
    A("v_mul_u32_u24 v250, %d, v250" % (L_HX - 1152))
    A("v_lshl_add_u32 v243, v243, 7, v250")
    A("v_lshl_add_u32 v243, v26, 4, v243")
    A("s_mul_i32 s%d, s%d, 1152" % (sT0, sGID))
    A("s_add_u32 s%d, s%d, %d" % (sT0, sT0, W_HX))
    A("v_add_u32 v243, s%d, v243" % sT0)
    A("s_waitcnt lgkmcnt(0)")
    A("global_store_dwordx4 v251, v[244:247], %s sc1" % sp(sWS))
    A("global_store_dwordx4 v252, v[244:247], %s sc1" % sp(sWS))
    A("global_store_dwordx4 v243, v[244:247], %s sc1" % sp(sWS))
    A("s_mov_b32 exec_hi, %d" % (4 ** TREP - 1))
    A("global_store_dwordx4 v249, v[244:247], %s sc1" % sp(sWS))
    A("s_mov_b32 exec_hi, -1")
    A.label("Linit_a")
    A("s_waitcnt lgkmcnt(0)")
    stamp("start")
    if DIAG:
        A("s_memtime s[100:101]")
        A("s_waitcnt lgkmcnt(0)")
    add64(sX, "s%d" % oX)
    add64(sWQ, "s%d" % oWQ)
    A("global_load_short_d16_hi %s, v248, %s" % (V(vB2), sp(sB2)))
    for i in range(4):
        A("global_load_dword %s, v28, %s offset:%d" % (V(vXR + i), sp(sX), 256 * i))
    A("global_load_ushort %s, v29, %s offset:1024" % (V(vXR + 4), sp(sX)))
    add64(sK, "s%d" % oKV)
    add64(sV, "s%d" % oKV)
    A("s_lshl_b32 s%d, s%d, 10" % (sT1, sWV))
    for i in range(9):
        if i == PREB:
            A("s_barrier")
        A("s_add_u32 m0, s%d, %d" % (sT1, WQS + 4096 * i))
        if i:
            A("v_add_u32 %s, 0x20000, %s" % (V(aW), V(aW)))
        A("global_load_lds_dwordx4 %s, %s%s" % (V(aW), sp(sWQ), NTW))
    A("s_cmp_lg_u32 s%d, 2" % sWV)
    A("s_cbranch_scc1 Lnoflag")
    A("s_or_b32 s%d, s%d, 0x80" % (sT0, sXCC))
    A("s_and_b32 s%d, s2, 3" % sT1)
    A("s_lshl_b32 s%d, s%d, 3" % (sT1, sT1))
    A("s_lshl_b32 s%d, s%d, s%d" % (sT0, sT0, sT1))
    A("s_and_b32 s%d, s2, 0xfc" % sT1)
    A("v_mov_b32 v249, s%d" % sT1)
    A("v_mov_b32 v250, s%d" % sT0)
    A("s_waitcnt vmcnt(15)")
    A("s_mov_b64 exec, 1")
    A("global_atomic_or v249, v250, %s sc1" % sp(sDBG))
    A("s_mov_b64 exec, -1")
    A.label("Lnoflag")
    dma8(sK, KB)
    kloads(aK, 0, KQ)
    bases()
    A("s_call_b64 %s, Laddr" % sp(sRET))
    A("v_bfe_u32 v248, v1, 2, 2")
    A("v_xor_b32 v249, s%d, v248" % sWV)
    A("v_and_b32 v250, 3, v1")
    A("v_lshl_add_u32 v249, v249, 2, v250")
    A("v_lshlrev_b32 v249, 4, v249")
    A("v_lshl_add_u32 v249, v248, 8, v249")
    A("v_add_u32 v249, %d, v249" % WQS)
    A("v_lshrrev_b32 v250, 4, v1")
    A("v_lshl_add_u32 v248, v250, 10, v249")
    A("v_lshl_add_u32 v249, v250, 11, v249")
    for i in range(4):
        A("v_mov_b32 %s, 0x3f803f80" % V(244 + i))
    A("v_mov_b32 %s, %s" % (V(aV2), V(aV)))
    A("v_mov_b32 %s, %s" % (V(aK2), V(aK)))
    aV = aV2
    A("s_waitcnt vmcnt(%d)" % (8 + KQ))
    arrive_wait(4, 4, "Lsync_a")
    stamp("wq")
    for u in range(2):
        for ks in range(4):
            for hh in range(2):
                A("ds_read_b64_tr_b16 %s, v249 offset:%d" % (V(vWQ + 18 * u + 4 * ks + 2 * hh, 2), (32 * ks + 4 * hh) * 256 + 8 * u))
        A("ds_read_b64_tr_b16 %s, v248 offset:%d" % (V(vWQ + 18 * u + 16, 2), 128 * 256 + 8 * u))
    A("s_waitcnt lgkmcnt(0)")
    for ks in range(4):
        for u in range(2):
            A("v_mfma_f32_16x16x32_bf16 %s, %s, v[244:247], %s" % (
                V(vSQ + 4 * u, 4), V(vWQ + 18 * u + 4 * ks, 4), V(vSQ + 4 * u, 4) if ks else "0"))
    A("s_nop 5")
    for u in range(2):
        A("v_mfma_f32_16x16x16_bf16 %s, %s, v[244:245], %s" % (V(vSQ + 4 * u, 4), V(vWQ + 18 * u + 16, 2), V(vSQ + 4 * u, 4)))
    A("s_mov_b32 s%d, -1" % sYW)
    for r, m in ((sQM, 0x00110011), (sBM, 0x00010001), (sOM, 0x01010101)):
        A("s_mov_b32 s%d, %s" % (r, hx(m)))
        A("s_mov_b32 s%d, %s" % (r + 1, hx(m)))
    A("s_call_b64 %s, Lqstage" % sp(sRET))
    A("s_mov_b32 s%d, 0" % sYW)
    arrive_wait(4, 0, None)
    stamp("q0")
    if not FEARLY:
        look()
    kloads(aK2, KQ, 8)
    dma8(sV, VB)
    A("s_waitcnt vmcnt(16)")
    arrive_wait(12, 0, None)
    A("s_call_b64 %s, Lsel" % sp(sRET))
    A("s_cmp_eq_u32 s%d, 0" % sWV)
    A("s_cbranch_scc1 Lwave0")
    for i in range(8):
        vload(i, aV)
    stamp("iss")
    A("s_cmp_lg_u32 s%d, 3" % sWV)
    A("s_cbranch_scc1 Lnox0")
    for i in range(4):
        A("ds_write_b64 %s, %s offset:%d" % (V(lXP), V(vXA + 2 * i, 2), 512 * i))
    A("ds_write_b32 %s, %s" % (V(lXS), V(vXA + 8)))
    A.label("Lnox0")
    def woaddr(half):
        A("s_mul_i32 s%d, s%d, %d" % (sT0, sHKV, 256 * 1152))
        A("s_mul_i32 s%d, s%d, 144" % (sT1, sS))
        A("s_add_u32 s%d, s%d, s%d" % (sT0, sT0, sT1))
        if half:
            A("s_add_u32 s%d, s%d, %d" % (sT0, sT0, 128 * 1152))
        add64(sWO, "s%d" % sT0)
        A("s_mul_i32 s%d, s%d, 48" % (sT0, sWV))
        A("s_sub_u32 s%d, s%d, %d" % (sT0, sT0, 48 * (1 + 4 * half)))
        A("v_min_u32 v248, 47, v1")
        A("v_add_u32 v248, s%d, v248" % sT0)
        A("v_mul_u32_u24 v250, 7282, v248")
        A("v_lshrrev_b32 v250, 16, v250")
        A("v_mul_u32_u24 v250, %d, v250" % (9216 - 144))
        A("v_lshl_add_u32 v232, v248, 4, v250")

    woaddr(0)
    A("s_waitcnt vmcnt(16)")
    A("s_call_b64 %s, Lkshuf" % sp(sRET))
    spin(4, 9, "Lsync_wo")

    def woloads(lo, hi, window, first=1):
        A("s_mul_i32 s%d, s%d, 768" % (sT1, sWV))
        A("s_mov_b32 exec_hi, 0xffff")
        for i in range(lo, hi):
            A("s_add_u32 m0, s%d, %d" % (sT1, WOS - 768 * first + 2304 * i))
            if i and not (first == 5 and i == lo):
                add64(sWO, "%d" % (1152 * (121 if i == 8 else 1)))
            if window(i) < 63:
                A("s_waitcnt vmcnt(%d)" % (window(i) - 1))
            A("global_load_lds_dwordx4 v232, %s%s" % (sp(sWO), NTW))
        A("s_mov_b32 exec_hi, -1")

    if VPRE:
        woloads(0, 4, lambda i: WIN1)
        A("s_waitcnt vmcnt(12)")
        mark_v()
        woloads(4, WO1, lambda i: WIN1)
    else:
        woloads(0, WO1, lambda i: WIN1)
        A("s_waitcnt vmcnt(%d)" % (8 + WO1))
    stamp("wo")
    A("s_branch Lmeet")
    A.label("Lwave0")
    A("s_lshr_b32 s%d, s2, 6" % sT0)
    A("s_lshl_b32 s%d, s%d, 4" % (sT0, sT0))
    A("s_bfe_u32 s%d, s2, 0x10002" % sT1)
    A("s_add_u32 s%d, s%d, s%d" % (sT0, sT0, sT1))
    A("s_mov_b64 %s, 0x5555" % sp(sMSK))
    A("s_lshl_b64 %s, %s, s%d" % (sp(sMSK), sp(sMSK), sT0))
    A("s_and_b32 s%d, s2, 3" % sT2)
    A("s_lshl_b32 s%d, s%d, 3" % (sT2, sT2))
    A("v_lshlrev_b32 v250, 2, v1")
    A("s_waitcnt vmcnt(%d)" % (12 if FEARLY else FLW if FLW else 16 - KQ))
    A("s_branch Lflagchk")
    A.label("Lflagpoll")
    A("s_sleep 8")
    A("global_load_dword %s, v250, %s sc1" % (V(vFL), sp(sDBG)))
    A("s_waitcnt vmcnt(0)")
    A.label("Lflagchk")
    A("v_bfe_u32 v251, %s, s%d, 8" % (V(vFL), sT2))
    A("v_cmp_gt_u32 vcc, 0x80, v251")
    A("s_and_b64 vcc, vcc, %s" % sp(sMSK))
    A("s_cbranch_scc0 Lflagok")
    A("s_sub_u32 s%d, s%d, 1" % (sCNT, sCNT))
    A("s_cbranch_scc0 Lflagpoll")
    A("s_mov_b32 s%d, 0" % sCNT)
    A.label("Lflagok")
    stamp("fl")
    for i in range(QPOS):
        vload(i, aV)
    for h in range(2):
        A("global_load_dwordx4 %s, %s, %s offset:%d sc1" % (V(vQ + 4 * h, 4), V(aHQG), sp(sHQ), 256 * h))
    A("global_load_dword %s, v250, %s sc1" % (V(vA), sp(sDBG)))
    A("v_and_b32 v251, 15, v251")
    A("v_cmp_ne_u32 vcc, s%d, v251" % sXCC)
    A("v_mov_b32 v251, %d" % FLG)
    A("s_and_b64 vcc, vcc, %s" % sp(sMSK))
    A("s_cselect_b32 s%d, 0, %d" % (sT0, 0 if FORCE_SLOW else 1))
    A("v_mov_b32 v253, s%d" % sT0)
    A("ds_write_b32 v251, v253")
    arrive_wait(4, 0, None)
    for i in range(QPOS, 8):
        vload(i, aV)
    stamp("iss")
    A("s_call_b64 %s, Lkshuf" % sp(sRET))
    if VPRE:
        A("s_waitcnt vmcnt(11)")
        mark_v()
    A("s_waitcnt vmcnt(%d)" % (8 - QPOS))
    A("s_branch Lq0chk")
    A.label("Lq0poll")
    A("s_sleep 2")
    for h in range(2):
        A("global_load_dwordx4 %s, %s, %s offset:%d sc1" % (V(vQ + 4 * h, 4), V(aHQG), sp(sHQ), 256 * h))
    A("global_load_dword %s, v250, %s sc1" % (V(vA), sp(sDBG)))
    A("s_waitcnt vmcnt(0)")
    A.label("Lq0chk")
    for h in range(2):
        A("v_mfma_f32_16x16x32_bf16 %s, %s, %s, 0" % (V(vS + 4 * h, 4), V(vSEL, 4), V(vQ + 4 * h, 4)))
    maxtree(vM, range(vQ, vQ + 8))
    A("v_and_b32 %s, 0x80808080, %s" % (V(vA), V(vA)))
    A("v_cmp_ne_u32 vcc, 0x80808080, %s" % V(vA))
    A("v_cndmask_b32 %s, %s, -1, vcc" % (V(vM), V(vM)))
    poll_tail("Lq0poll", vM)
    for i in range(4):
        A("v_cvt_pk_bf16_f32 %s, %s, %s" % (V(vQ + i), V(vS + 2 * i), V(vS + 2 * i + 1)))
    A("s_mov_b32 exec_hi, 0")
    for h in range(2):
        A("ds_write_b64 %s, %s offset:%d" % (V(lQW), V(vQ + 2 * h, 2), 256 * h))
    A("s_mov_b32 exec_hi, -1")
    A("s_branch Lmeet")
    aK, aV = vA, vA + 1
    A.label("Lrole_b")
    if BPRIO:
        A("s_setprio %d" % BPRIO)
    A("v_subrev_u32 v31, 0x100, v0")
    A("v_lshlrev_b32 v30, 4, v31")
    A("v_add_u32 v249, 0x1000, v30")
    A("v_lshlrev_b32 v31, 2, v31")
    A("v_add_u32 v31, 0x2000, v31")
    A("s_waitcnt lgkmcnt(0)")
    stamp("start")
    if DIAG:
        A("s_memtime s[100:101]")
        A("s_waitcnt lgkmcnt(0)")
    for i in range(3):
        r, p = vRW + 10 * i, sp((sW1, sB1, sW2)[i])
        A("global_load_dwordx4 %s, v30, %s" % (V(r, 4), p))
        A("global_load_dwordx4 %s, v249, %s" % (V(r + 4, 4), p))
        A("global_load_dword %s, v31, %s" % (V(r + 8), p))
    A("global_load_short_d16_hi %s, v248, %s" % (V(vB2), sp(sB2)))
    A("s_barrier")
    stamp("iss")
    bases()
    A("s_call_b64 %s, Laddr" % sp(sRET))
    A("s_and_b32 s%d, s2, 127" % sT0)
    A("s_lshl_b32 s%d, s%d, 4" % (sT0, sT0))
    A("s_add_u32 s%d, s%d, %d" % (sT0, sT0, E0))
    A("s_lshr_b32 s%d, s2, 7" % sT1)
    A("s_lshl_b32 s%d, s%d, 15" % (sT1, sT1))
    A("s_add_u32 s%d, s%d, s%d" % (sT0, sT0, sT1))
    A("v_add_u32 v249, s%d, v1" % sT0)
    A("v_lshlrev_b32 v249, 16, v249")
    A("v_mul_f32 v249, %s, v249" % fl(SC))
    A("v_mov_b32 %s, %s" % (V(vKAP), fl(KAP)))
    A("v_mov_b32 %s, %s" % (V(vONE), fl(2.0 ** -60) if TAB2 else "1.0"))
    A("v_mov_b32 %s, %s" % (V(vONE + 2), fl(-60.0)))
    A("v_mov_b32 %s, %s" % (V(vSCL), fl(SC)))
    for i in range(16):
        A("v_readlane_b32 s%d, v249, %d" % (sH + i, i))
        A("v_mov_b32 %s, 0" % V(vACC + i))
    A("s_mov_b32 s%d, 0" % sT3)
    A("s_waitcnt vmcnt(0)")
    stamp("wq")
    A.label("Ltabloop")
    A("s_set_gpr_idx_on s%d, gpr_idx(SRC1)" % sT3)
    for i, d in enumerate((vCA, vCC, vCW)):
        A("v_lshlrev_b32 %s, 16, %s" % (V(d[0]), V(vRW + 10 * i)))
        A("v_and_b32 %s, 0xffff0000, %s" % (V(d[1]), V(vRW + 10 * i)))
    A("s_set_gpr_idx_off")
    for f in range(2):
        A("v_mul_f32 %s, %s, %s" % (V(vCC[f]), V(vCC[f]), V(vSCL)))
    if TAB2:
        def regs(k):
            b = 200 + 10 * (k % 3)
            return [b + 2 * i for i in range(5)]

        def stA(k):
            U0, U1, E0, E1, D = regs(k)
            o = ["v_pk_fma_f32 %s, %s, %s, %s op_sel_hi:[0,1,0]" % (V(U, 2), bc(vCA[f]), sp(sH + 2 * k), bc(vCC[f])) for f, U in enumerate((U0, U1))]
            o += ["v_pk_fma_f32 %s, %s, %s, %s op_sel_hi:[1,1,0]" % (V(E, 2), V(U, 2), V(U, 2), bc(vKAP)) for U, E in ((U0, E0), (U1, E1))]
            o += ["v_pk_fma_f32 %s, %s, %s, %s op_sel_hi:[1,1,0] neg_lo:[1,0,0] neg_hi:[1,0,0]" % (V(E, 2), V(E, 2), V(U, 2), bc(vONE + 2)) for U, E in ((U0, E0), (U1, E1))]
            return o

        def stX(k):
            U0, U1, E0, E1, D = regs(k)
            return ["v_exp_f32_e64 %s, %s clamp" % (V(r), V(r)) for r in (E0, E0 + 1, E1, E1 + 1)]

        def stW(k):
            U0, U1, E0, E1, D = regs(k)
            return ["v_pk_mul_f32 %s, %s, %s op_sel_hi:[1,0]" % (V(U, 2), V(U, 2), bc(vCW[f])) for f, U in enumerate((U0, U1))]

        def stC(k):
            U0, U1, E0, E1, D = regs(k)
            return ["v_pk_add_f32 %s, %s, %s op_sel_hi:[1,0]" % (V(E0, 2), V(E0, 2), bc(vONE)),
                    "v_pk_add_f32 %s, %s, %s op_sel_hi:[1,0]" % (V(E1, 2), V(E1, 2), bc(vONE)),
                    "v_pk_mul_f32 %s, %s, %s" % (V(D, 2), V(E0, 2), V(E1, 2)),
                    "v_pk_mul_f32 %s, %s, %s" % (V(U0, 2), V(U0, 2), V(E1, 2)),
                    "v_pk_fma_f32 %s, %s, %s, %s" % (V(U0, 2), V(U1, 2), V(E0, 2), V(U0, 2))]

        def stR(k):
            D = regs(k)[4]
            return ["v_rcp_f32 %s, %s" % (V(D + i), V(D + i)) for i in range(2)]

        def stF(k):
            U0, U1, E0, E1, D = regs(k)
            return ["v_pk_fma_f32 %s, %s, %s, %s" % (V(vACC + 2 * k, 2), V(U0, 2), V(D, 2), V(vACC + 2 * k, 2))]

        def pick(f, k, n):
            return f(k) if 0 <= k < 8 else [None] * n

        for l in stA(0):
            A(l)
        for i in range(10):
            X, C, F, W, R, P = pick(stX, i, 4), pick(stC, i - 1, 5), pick(stF, i - 2, 1), pick(stW, i, 2), pick(stR, i - 1, 2), pick(stA, i + 1, 6)
            for l in (X[0], C[0], C[1], X[1], C[2], C[3], X[2], C[4], F[0], X[3], W[0], W[1], R[0], P[0], P[1], P[2], R[1], P[3], P[4], P[5]):
                if l:
                    A(l)
    for f in range(0 if TAB2 else 2):
        for k2 in range(0 if NOTAB else 4):
            seq = []
            for h in range(2):
                k = 2 * k2 + h
                u, t, e, uw = (V(vTT + 8 * h + 2 * i, 2) for i in range(4))
                e0, e1 = vTT + 8 * h + 4, vTT + 8 * h + 5
                t0, t1 = vTT + 8 * h + 2, vTT + 8 * h + 3
                seq.append([
                    "v_pk_fma_f32 %s, %s, %s, %s op_sel_hi:[0,1,0]" % (u, bc(vCA[f]), sp(sH + 2 * k), bc(vCC[f])),
                    "v_pk_fma_f32 %s, %s, %s, %s op_sel_hi:[1,1,0]" % (t, u, u, bc(vKAP)),
                    "v_pk_mul_f32 %s, %s, %s neg_lo:[1,0] neg_hi:[1,0]" % (t, t, u),
                    "v_exp_f32 %s, %s" % (V(e0), V(t0)),
                    "v_exp_f32 %s, %s" % (V(e1), V(t1)),
                    "v_pk_mul_f32 %s, %s, %s op_sel_hi:[1,0]" % (uw, u, bc(vCW[f])),
                    "v_pk_add_f32 %s, %s, %s op_sel_hi:[1,0]" % (e, e, bc(vONE)),
                    "v_rcp_f32 %s, %s" % (V(e0), V(e0)),
                    "v_rcp_f32 %s, %s" % (V(e1), V(e1)),
                    "v_pk_fma_f32 %s, %s, %s, %s" % (V(vACC + 2 * k, 2), uw, e, V(vACC + 2 * k, 2)),
                ])
            s0, s1 = seq
            for l in (s0[0], s1[0], s0[1], s1[1], s0[2], s1[2], s0[3], s0[4], s1[3], s1[4], s0[5], s0[6], s1[5], s1[6],
                      s0[7], s0[8], s1[7], s1[8], s0[9], s1[9]):
                A(l)
    A("s_add_u32 s%d, s%d, 1" % (sT3, sT3))
    A("s_cmp_lt_u32 s%d, 9" % sT3)
    A("s_cbranch_scc1 Ltabloop")
    stamp("q0")
    for k in range(8):
        A("v_permlane32_swap_b32 %s, %s" % (V(vACC + 2 * k), V(vACC + 2 * k + 1)))
    for k in range(8):
        A("v_add_f32 %s, %s, %s" % (V(vACC + 2 * k), V(vACC + 2 * k), V(vACC + 2 * k + 1)))
    for k in range(4):
        A("v_permlane16_swap_b32 %s, %s" % (V(vACC + 4 * k), V(vACC + 4 * k + 2)))
    for k in range(4):
        A("v_add_f32 %s, %s, %s" % (V(vACC + 4 * k), V(vACC + 4 * k), V(vACC + 4 * k + 2)))
    for ctl in ("quad_perm:[1,0,3,2]", "quad_perm:[2,3,0,1]", "row_half_mirror", "row_mirror"):
        for k in range(4):
            A("v_add_f32_dpp %s, %s, %s %s%s" % (V(vACC + 4 * k), V(vACC + 4 * k), V(vACC + 4 * k), ctl, DPP))
    A("v_lshrrev_b32 v251, 5, v1")
    A("v_bfe_u32 v250, v1, 4, 1")
    A("v_lshl_add_u32 v251, v250, 1, v251")
    A("s_lshl_b32 s%d, s%d, 6" % (sT0, sWV))
    A("s_add_u32 s%d, s%d, %d" % (sT0, sT0, TRED - 256))
    A("v_lshl_add_u32 v251, v251, 2, s%d" % sT0)
    A("s_mov_b32 exec_lo, 0x00010001")
    A("s_mov_b32 exec_hi, 0x00010001")
    A("ds_write2_b32 v251, %s, %s offset0:0 offset1:4" % (V(vACC), V(vACC + 4)))
    A("ds_write2_b32 v251, %s, %s offset0:8 offset1:12" % (V(vACC + 8), V(vACC + 12)))
    A("s_mov_b64 exec, -1")
    if BPRIO:
        A("s_setprio 0")
    arrive_wait(8, 0, None)
    spin(12, 4, "Lsync_kv")
    A("s_cmp_lg_u32 s%d, 7" % sWV)
    A("s_cbranch_scc1 Lnotab")
    spin(8, 4, "Lsync_b")
    A("v_and_b32 v250, 15, v1")
    A("v_lshlrev_b32 v250, 2, v250")
    A("v_add_u32 v251, %d, v250" % TRED)
    for i in range(2):
        A("ds_read2_b32 %s, v251 offset0:%d offset1:%d" % (V(vS + 2 * i, 2), 32 * i, 32 * i + 16))
    A("s_waitcnt lgkmcnt(0)")
    A("v_pk_add_f32 %s, %s, %s" % (V(vS, 2), V(vS, 2), V(vS + 2, 2)))
    A("v_add_f32 %s, %s, %s" % (V(vS), V(vS), V(vS + 1)))
    A("v_mul_f32 %s, %s, %s" % (V(vS), fl((2.0 ** -60 if TAB2 else 1.0) / SC), V(vS)))
    A("v_cvt_pk_bf16_f32 %s, %s, %s" % (V(vS), V(vS), V(vS)))
    A("v_lshlrev_b32 %s, 16, %s" % (V(vS), V(vS)))
    A("v_add_f32 %s, %s, %s" % (V(vS), V(vS), V(vB2)))
    A("v_mov_b32_dpp %s, %s quad_perm:[1,1,3,3]%s" % (V(vS + 1), V(vS), DPP))
    A("v_cvt_pk_bf16_f32 %s, %s, %s" % (V(vS), V(vS), V(vS + 1)))
    A("v_lshrrev_b32 v250, 1, v250")
    A("s_lshl_b32 s%d, s2, 5" % sT0)
    A("s_add_u32 s%d, s%d, %d" % (sT0, sT0, W_HT))
    A("v_add_u32 v250, s%d, v250" % sT0)
    if TREP > 1:
        A("v_lshrrev_b32 v251, 4, v1")
        A("v_lshl_add_u32 v250, v251, 13, v250")
        A("s_mov_b32 exec_lo, 0x55555555")
        A("s_mov_b32 exec_hi, %s" % ("0x55555555" if TREP == 4 else "0"))
    else:
        A("s_mov_b64 exec, 0x5555")
    A("global_store_dword v250, %s, %s sc1" % (V(vS), sp(sWS)))
    A("s_mov_b64 exec, -1")
    A.label("Lnotab")
    A("v_bfe_u32 v249, v1, 2, 2")
    A("v_mul_u32_u24 v249, 1088, v249")
    A("v_and_b32 v250, 3, v1")
    A("v_lshl_add_u32 v249, v250, 8, v249")
    A("v_lshrrev_b32 v250, 4, v1")
    A("v_lshl_add_u32 v249, v250, 4, v249")
    A("v_mul_u32_u24 v250, 1088, v250")
    A("v_and_b32 v251, 15, v1")
    A("v_lshl_add_u32 v250, v251, 4, v250")
    A("s_mul_i32 s%d, s%d, 8704" % (sT1, sWV))
    A("s_add_u32 s%d, s%d, %d" % (sT2, sT1, KB - 4 * 8704))
    A("v_add_u32 v249, s%d, v249" % sT2)
    A("s_add_u32 s%d, s%d, %d" % (sT2, sT1, VB - 4 * 8704))
    A("v_add_u32 %s, s%d, v250" % (V(vA + 1), sT2))
    stamp("fl")
    for T in range(2):
        for ks in range(4):
            A("ds_read_b128 %s, v249 offset:%d" % (V(vK + 16 * T + 4 * ks, 4), T * 4352 + ks * 64))
    A("s_call_b64 %s, Lsel" % sp(sRET))
    if VPRE:
        A("s_sub_u32 s%d, s%d, 4" % (sT1, sWV))
        A("v_mov_b32 v252, %d" % (FLG + 24))
        A.label("Lsync_v")
        A("ds_read_b32 v253, v252")
        A("s_waitcnt lgkmcnt(0)")
        A("v_readfirstlane_b32 s%d, v253" % sT0)
        A("s_bitcmp1_b32 s%d, s%d" % (sT0, sT1))
        A("s_cbranch_scc1 Lsync_v_ok")
        A("s_sub_u32 s%d, s%d, 1" % (sCNT, sCNT))
        A("s_cbranch_scc0 Lsync_v")
        A("s_mov_b32 s%d, 0" % sCNT)
        A.label("Lsync_v_ok")
        for i in range(8):
            A("ds_read_b128 %s, %s offset:%d" % (V(vVR + 4 * i, 4), V(vA + 1), (i >> 2) * 4352 + (i & 3) * 256))
        A("s_waitcnt lgkmcnt(0)")
        A("s_branch Lv_perm")
        A.label("Lv_back")
    if WOB:
        assert WO1 == 8
        A("s_cmp_eq_u32 s%d, 4" % sWV)
        A("s_cbranch_scc1 Lmeet")
        woaddr(1)
        spin(4, 9, "Lsync_wo2")
        woloads(8, 16, lambda i: 63, 5)
    A.label("Lmeet")
    if APRIO:
        A("s_setprio 0")
    A("s_mov_b32 s%d, s%d" % (sSM2, sSMC))
    for r, m in ((sQM, 0x00110011), (sBM, 0x00010001), (sOM, 0x01010101)):
        A("s_mov_b32 s%d, %s" % (r, hx(m)))
        A("s_mov_b32 s%d, %s" % (r + 1, hx(m)))
    if NREP > 1:
        A("s_mov_b64 %s, %s" % (sp(sHXS), sp(sHX)))
        A("s_and_b32 s%d, s2, 7" % sT0)
        A("s_mul_i32 s%d, s%d, %d" % (sT0, sT0, NREP))
        A("s_lshr_b32 s%d, s%d, 3" % (sT0, sT0))
        A("s_mul_i32 s%d, s%d, %d" % (sT0, sT0, L_HX))
        A("s_add_u32 s%d, s%d, s%d" % (sHX, sHXS, sT0))
        A("s_addc_u32 s%d, s%d, 0" % (sHX + 1, sHXS + 1))
        A("s_sub_u32 s%d, %d, s%d" % (sXD, NREP * L_HX, sT0))
        A("s_mov_b32 s%d, -1" % sXM)
        A("s_mov_b32 s%d, 0x3fffff" % (sXM + 1))
    for i, r in enumerate((sHX1, sHX2, sHX3)):
        A("s_add_u32 s%d, s%d, %d" % (r, sHX, 4608 * (i + 1)))
        A("s_addc_u32 s%d, s%d, 0" % (r + 1, sHX + 1))
    A("s_mul_i32 s%d, s%d, 1280" % (sT0, sGID))
    A("s_add_u32 s%d, s%d, %d" % (sT0, sT0, W_HY))
    A("s_add_u32 s%d, s%d, s%d" % (sHY, sWS, sT0))
    A("s_addc_u32 s%d, s%d, 0" % (sHY + 1, sWS + 1))
    A("v_mov_b32 v251, %d" % FLG)
    A("s_waitcnt lgkmcnt(0)")
    A("s_barrier")
    stamp("tab")
    A("ds_read_b32 %s, v251" % V(vA + 1))
    A.label("Latt")
    if LM & 1:
        A("s_mov_b64 exec, %s" % sp(sQM))
    for ks in range(4):
        A("ds_read_b128 %s, %s offset:%d" % (V(vQ + 4 * ks, 4), V(aHQL), 64 * ks))
    if LM & 1:
        A("s_mov_b64 exec, -1")
    for ks in range(4):
        A("s_waitcnt lgkmcnt(%d)" % (3 - ks))
        for T in range(2):
            A("v_mfma_f32_16x16x32_bf16 %s, %s, %s, %s" % (
                V(vS + 4 * T, 4), V(vK + 16 * T + 4 * ks, 4), V(vQ + 4 * ks, 4), V(vS + 4 * T, 4) if ks else "0"))
    if not VPRE:
        A("s_cmp_eq_u32 s%d, 0" % sL)
        A("s_cbranch_scc1 Lv_read")
    A.label("Lv_read_done")
    stampL("qV")
    A("v_max3_f32 %s, %s, %s, %s" % (V(vM), V(vS), V(vS + 1), V(vS + 2)))
    A("v_max3_f32 %s, %s, %s, %s" % (V(vP), V(vS + 3), V(vS + 4), V(vS + 5)))
    A("v_max3_f32 %s, %s, %s, %s" % (V(vM), V(vM), V(vS + 6), V(vS + 7)))
    A("v_max_f32 %s, %s, %s" % (V(vP + 1), V(vM), V(vP)))
    A("v_max_f32 %s, %s, %s" % (V(vM), V(vM), V(vP)))
    A("v_permlane16_swap_b32 %s, %s" % (V(vM), V(vP + 1)))
    A("v_max_f32 %s, %s, %s" % (V(vP), V(vM), V(vP + 1)))
    A("v_max_f32 %s, %s, %s" % (V(vM), V(vM), V(vP + 1)))
    A("v_permlane32_swap_b32 %s, %s" % (V(vM), V(vP)))
    A("v_max_f32 %s, %s, %s" % (V(vM), V(vM), V(vP)))
    if PKS:
        A("v_mul_f32 %s, s%d, %s" % (V(vP), sSMC, V(vM)))
        A("v_mul_f32 %s, s%d, %s" % (V(vM), sSMC, V(vM)))
        for r in range(4):
            A("v_pk_fma_f32 %s, %s, %s, %s op_sel_hi:[1,0,0] neg_lo:[0,0,1] neg_hi:[0,0,1]" % (
                V(vS + 2 * r, 2), V(vS + 2 * r, 2), sp(sSM2), bc(vP)))
            if r:
                for h in range(2):
                    A("v_exp_f32 %s, %s" % (V(vS + 2 * r - 2 + h), V(vS + 2 * r - 2 + h)))
        for h in range(2):
            A("v_exp_f32 %s, %s" % (V(vS + 6 + h), V(vS + 6 + h)))
    else:
        A("v_mul_f32 %s, s%d, %s" % (V(vM), sSMC, V(vM)))
        for r in range(8):
            A("v_fma_f32 %s, %s, s%d, -%s" % (V(vS + r), V(vS + r), sSMC, V(vM)))
            if r:
                A("v_exp_f32 %s, %s" % (V(vS + r - 1), V(vS + r - 1)))
        A("v_exp_f32 %s, %s" % (V(vS + 7), V(vS + 7)))
    for r in range(4):
        A("v_cvt_pk_bf16_f32 %s, %s, %s" % (V(vP + r), V(vS + 2 * r), V(vS + 2 * r + 1)))
    A("s_cmp_eq_u32 s%d, 0" % sL)
    A("s_cbranch_scc1 Lv_wait")
    A.label("Lv_ready")
    stampL("sm")
    for j in range(8):
        A("v_mfma_f32_16x16x32_bf16 %s, %s, %s, 0" % (V(vA + 4 * j, 4), V(vP, 4), V(vVT + 4 * j, 4)))
    A("v_mfma_f32_16x16x32_bf16 %s, %s, %s, 0" % (V(vS, 4), V(vP, 4), V(vONES, 4)))
    A("s_mov_b32 exec_hi, 0")
    for j in range(0, 8, 2):
        A("ds_write2_b32 %s, %s, %s offset0:%d offset1:%d" % (V(lPW), V(vA + 4 * j), V(vA + 4 * j + 4), 16 * j, 16 * j + 16))
    A("s_mov_b32 exec_lo, 0x100001")
    A("ds_write2_b32 %s, %s, %s offset0:0 offset1:1" % (V(lMW), V(vM), V(vS)))
    A("s_mov_b64 exec, -1")
    if WOPOST:
        A("s_cmp_eq_u32 s%d, 0" % sL)
        A("s_cbranch_scc1 Lwo_rest")
        A.label("Lwo_back")
    A("s_waitcnt lgkmcnt(0)")
    stampL("pv")
    A("s_barrier")
    A("ds_read_b64 %s, %s" % (V(vA + 4, 2), V(lMR)))
    A("ds_read_b128 %s, %s" % (V(vA, 4), V(lPR)))
    A("s_waitcnt lgkmcnt(1)")
    reduce8(vA, vA + 4, vA + 7, vA + 6, False, "s_waitcnt lgkmcnt(0)")
    A("v_cvt_pk_bf16_f32 %s, %s, %s" % (V(vA + 3), V(vA + 2), V(vA + 3)))
    A("v_cvt_pk_bf16_f32 %s, %s, %s" % (V(vA + 2), V(vA), V(vA + 1)))
    A("s_mov_b64 exec, %s" % sp(sOM))
    store2(["global_store_dwordx4 %s, %s, %s" % (V(aHOS), V(vA + 2, 4), sp(sHO))])
    A("s_mov_b64 exec, -1")
    stampL("ho")
    A("s_cmp_eq_u32 s%d, 0" % sL)
    A("s_cbranch_scc1 Lstash")
    A.label("Lopoll")
    A("global_load_dwordx4 %s, %s, %s sc1" % (V(vA + 10, 4), V(aHOL), sp(sHO)))
    A.label("Lopoll_w")
    A("s_waitcnt vmcnt(0)")
    maxtree(vM, range(vA + 10, vA + 14))
    poll_tail("Lopoll", vM, far=True)
    if RESTORE:
        A("s_mov_b32 exec_lo, 0x01010101")
        A("s_mov_b32 exec_hi, 0x01010101")
        A("global_store_dwordx4 %s, %s, %s sc1" % (V(aHOS), V(vA + 2, 4), sp(sHO)))
        A("s_mov_b64 exec, -1")
    stampL("og")
    assert WOEARLY and VPRE and not TEARLY
    if TPOS == 0:
        A("s_cmp_lg_u32 s%d, 0" % sL)
        A("s_cbranch_scc1 Lnotg")
        A("global_load_dwordx4 %s, v248, %s sc1" % (V(vQ, 4), sp(sWS)))
        A.label("Lnotg")

    def woread():
        A("s_barrier")
        for t in range(5):
            for hh in range(2):
                A("ds_read_b64_tr_b16 %s, v233 offset:%d" % (V(vWO + 4 * t + 2 * hh, 2), 576 * hh + 32 * t))

    reduce8(vA + 16, vA + 12, vA + 15, vA + 14, True, fill=[
        "v_lshlrev_b32 %s, 16, %s" % (V(vA + 16), V(vA + 10)), "v_and_b32 %s, 0xffff0000, %s" % (V(vA + 17), V(vA + 10)),
        "v_lshlrev_b32 %s, 16, %s" % (V(vA + 18), V(vA + 11)), "v_and_b32 %s, 0xffff0000, %s" % (V(vA + 19), V(vA + 11))])
    A("v_cvt_pk_bf16_f32 %s, %s, %s" % (V(vA), V(vA + 16), V(vA + 17)))
    A("v_cvt_pk_bf16_f32 %s, %s, %s" % (V(vA + 1), V(vA + 18), V(vA + 19)))
    A("v_mov_b32_dpp %s, %s row_ror:8%s" % (V(vA + 2), V(vA), DPP))
    A("v_mov_b32_dpp %s, %s row_ror:8%s" % (V(vA + 3), V(vA + 1), DPP))
    A("s_waitcnt lgkmcnt(0)")
    for t in range(5):
        A("v_mfma_f32_16x16x32_bf16 %s, %s, %s, 0" % (V(vA + 4 + 4 * t, 4), V(vA, 4), V(vWO + 4 * t, 4)))
    if TPOS == 1:
        A("s_cmp_lg_u32 s%d, 0" % sL)
        A("s_cbranch_scc1 Lnotg")
        A("global_load_dwordx4 %s, v248, %s sc1" % (V(vQ, 4), sp(sWS)))
        A.label("Lnotg")
    A("s_mov_b64 exec, 0xffff")
    A("ds_write2_b32 %s, %s, %s offset0:0 offset1:16" % (V(lOW), V(vA + 4), V(vA + 8)))
    A("ds_write2_b32 %s, %s, %s offset0:32 offset1:48" % (V(lOW), V(vA + 12), V(vA + 16)))
    A("ds_write_b32 %s, %s offset:256" % (V(lOW), V(vA + 20)))
    A("s_mov_b64 exec, -1")
    A("s_waitcnt lgkmcnt(0)")
    A("s_barrier")
    stampL("ov")
    A("s_cmp_lg_u32 s%d, 0" % sWV)
    A("s_cbranch_scc1 Lwo_done")
    if LM & 2 and NREP > 1:
        A("s_mov_b64 exec, %s" % sp(sXM))
    for w in range(8):
        A("ds_read_b128 %s, %s offset:%d" % (V(vA + 4 * w, 4), V(lOR), RSTR * w))
    for w in range(1, 8, 2):
        A("s_waitcnt lgkmcnt(%d)" % (7 - w))
        for i in range(2):
            A("v_pk_add_f32 %s, %s, %s" % (V(vA + 4 * w - 4 + 2 * i, 2), V(vA + 4 * w - 4 + 2 * i, 2), V(vA + 4 * w + 2 * i, 2)))
        if w in (3, 7):
            for i in range(2):
                A("v_pk_add_f32 %s, %s, %s" % (V(vA + 4 * w - 12 + 2 * i, 2), V(vA + 4 * w - 12 + 2 * i, 2), V(vA + 4 * w - 4 + 2 * i, 2)))
    for i in range(2):
        A("v_pk_add_f32 %s, %s, %s" % (V(vA + 2 * i, 2), V(vA + 2 * i, 2), V(vA + 16 + 2 * i, 2)))
    A("v_cvt_pk_bf16_f32 %s, %s, %s" % (V(vA), V(vA), V(vA + 1)))
    A("v_cvt_pk_bf16_f32 %s, %s, %s" % (V(vA + 1), V(vA + 2), V(vA + 3)))
    if NREP > 1:
        if not LM & 2:
            A("s_mov_b64 exec, %s" % sp(sXM))
        A("global_store_dwordx2 %s, %s, %s sc1" % (V(aHXS), V(vA, 2), sp(sHXS)))
        if NREP > 3:
            A("s_cmp_lg_u32 s%d, 0" % sL)
            A("s_cbranch_scc1 Lonecopy")
            A("global_store_dwordx2 %s, %s, %s sc1" % (V(aHML), V(vA, 2), sp(sHXS)))
            A.label("Lonecopy")
    else:
        A("s_mov_b64 exec, 0x3ffff")
        A("global_store_dwordx2 %s, %s, %s sc1" % (V(aHXS), V(vA, 2), sp(sHX)))
    A("s_mov_b64 exec, -1")
    A.label("Lwo_done")
    stampL("hx")
    A("s_cmp_eq_u32 s%d, 0" % sL)
    A("s_cbranch_scc1 %s" % ("Lwho" if LEAD else "Ltabg"))
    A("s_or_b32 s%d, s%d, s%d" % (sT0, sHKV, sS))
    A("s_cbranch_scc1 %s" % ("Lwb" if WB else "Lexit"))
    A("s_branch Lxwait")
    A.label("Ltpoll")
    A("s_sleep 4")
    A("global_load_dwordx4 %s, v248, %s sc1" % (V(vQ, 4), sp(sWS)))
    A("s_waitcnt vmcnt(0)")
    A.label("Ltabg")
    A("s_cmp_gt_u32 s%d, 3" % sWV)
    A("s_cselect_b32 s%d, %d, %d" % (sT0, TABN - 4096, TABP))
    A("v_add_u32 v250, s%d, v249" % sT0)
    A("s_waitcnt vmcnt(%d)" % (2 if NREP > 3 else 1))
    A("s_cmp_eq_u32 s%d, 0" % sWV)
    A("s_cbranch_scc1 Ltabw")
    A("s_waitcnt vmcnt(0)")
    A.label("Ltabw")
    maxtree(vM, range(vQ, vQ + 4))
    poll_tail("Ltpoll", vM)
    A("ds_write_b128 v250, %s" % V(vQ, 4))
    if WARM & 1:
        A("s_cmp_lg_u32 s%d, 7" % sWV)
        A("s_cbranch_scc1 Lxwait")
        A("s_mov_b64 exec, 0")
        A("s_branch Lmlp")
        A.label("Lwarm1")
        A("s_mov_b64 exec, -1")
    A.label("Lxwait")
    A("ds_read_b128 %s, %s" % (V(vP, 4), V(lXC)))
    A("s_cmp_eq_u32 s%d, 4" % sWV)
    A("s_cselect_b32 s%d, 0x00ff00ff, -1" % sT2)
    A("s_mov_b32 exec_lo, s%d" % sT2)
    A("s_mov_b32 exec_hi, s%d" % sT2)
    if not DIAG:
        A("s_cmp_gt_u32 s%d, 4" % sWV)
    if XPACE == "ack":
        A("s_waitcnt vmcnt(0)")
    if XPACE != "none":
        A("s_barrier")
    stampL("xp")
    HXB = (sHX, sHX1, sHX2, sHX3)
    if DIAG:
        A("s_cmp_gt_u32 s%d, 4" % sWV)
    A("s_cbranch_scc1 Lxjoin")
    A.label("Lxpoll")
    for i in range(4):
        A("global_load_dwordx4 %s, %s, %s sc1" % (V(vA + 4 * i, 4), V(aHXL), sp(HXB[i])))
    A("s_mov_b64 exec, -1")
    if PSTAT:
        A("v_mov_b32 %s, 0" % V(vS + 6))
        A("v_mov_b32 %s, 0" % V(vS + 7))
        A("s_lshl_b32 s%d, s%d, 3" % (sT0, sWV))
        A("s_add_u32 s%d, s%d, %d" % (sT0, sT0, TRED))
        A("v_mov_b32 v249, s%d" % sT0)
    A.label("Lxsum")
    for i in range(4):
        A("s_waitcnt vmcnt(%d)" % (3 - i))
        A("v_mfma_f32_16x16x32_bf16 %s, %s, %s, %s" % (V(vS, 4), V(vSEL, 4), V(vA + 4 * i, 4), V(vS, 4) if i else "0"))
    A("s_mov_b32 exec_lo, s%d" % sT2)
    A("s_mov_b32 exec_hi, 0")
    A("s_waitcnt lgkmcnt(0)")
    A("v_cmp_u_f32 vcc, %s, %s" % (V(vS), V(vS)))
    A("v_cvt_pk_bf16_f32 %s, %s, %s" % (V(vS + 4), V(vS), V(vS + 1)))
    A("v_cvt_pk_bf16_f32 %s, %s, %s" % (V(vS + 5), V(vS + 2), V(vS + 3)))
    A("s_cbranch_vccnz Lxchk")
    A.label("Lxok")
    for rnd in range(2):
        for i in range(2):
            A("v_lshlrev_b32 %s, 16, %s" % (V(vS + 2 * i), V(vS + 4 + i)))
            A("v_and_b32 %s, 0xffff0000, %s" % (V(vS + 2 * i + 1), V(vS + 4 + i)))
        if rnd == 0:
            for i in range(2):
                A("v_pk_add_f32 %s, %s, %s" % (V(vS + 2 * i, 2), V(vS + 2 * i, 2), V(vP + 2 * i, 2)))
            for i in range(2):
                A("v_cvt_pk_bf16_f32 %s, %s, %s" % (V(vS + 4 + i), V(vS + 2 * i), V(vS + 2 * i + 1)))
    A("ds_write_b128 %s, %s" % (V(lXC), V(vS, 4)))
    if PSTAT:
        A("v_pk_mul_f32 %s, %s, %s" % (V(vP, 2), V(vS, 2), V(vS, 2)))
        A("v_pk_add_f32 %s, %s, %s" % (V(vS + 4, 2), V(vS, 2), V(vS + 2, 2)))
        A("v_pk_fma_f32 %s, %s, %s, %s" % (V(vP, 2), V(vS + 2, 2), V(vS + 2, 2), V(vP, 2)))
        A("v_add_f32 %s, %s, %s" % (V(vS + 6), V(vS + 4), V(vS + 5)))
        A("v_add_f32 %s, %s, %s" % (V(vS + 7), V(vP), V(vP + 1)))
        A("s_mov_b32 exec_lo, -1")
        for ctl in WAVE6[:5]:
            for r in (vS + 6, vS + 7):
                A("v_add_f32_dpp %s, %s, %s %s" % (V(r), V(r), V(r), ctl))
        A("s_mov_b32 exec_lo, 0x80000000")
        A("ds_write_b64 v249, %s" % V(vS + 6, 2))
    A("s_mov_b64 exec, -1")
    A.label("Lxjoin")
    if PSTAT:
        A("s_lshl_b32 s%d, s%d, 9" % (sT0, sWV))
        A("v_add_u32 v246, s%d, %s" % (sT0, V(lXP)))
        A("v_mov_b32 v247, %d" % TRED)
    A("s_waitcnt lgkmcnt(0)")
    A("s_barrier")
    stampL("xs")
    A("s_cmp_gt_u32 s%d, 3" % sWV)
    A("s_cbranch_scc1 Lmlp_skip")
    vH, vY, vHP, vHS, vAD, vST = vA, vA + 10, vXR, vA + 26, vA, vS
    if SPLIT:
        vXO, vFG = 244, 243
        sFIN = sH
        if PSTAT:
            A("ds_read_b128 %s, v247" % V(vXA, 4))
            A("ds_read_b128 %s, v247 offset:16" % V(vXA + 4, 4))
            A("ds_read_b64 %s, v247 offset:32" % V(vST + 6, 2))
            A("ds_read_b32 %s, %s" % (V(vXA + 8), V(lXS)))
        else:
            for i in range(4):
                A("ds_read_b64 %s, %s offset:%d" % (V(vXA + 2 * i, 2), V(lXP), 512 * i))
            A("ds_read_b32 %s, %s" % (V(vXA + 8), V(lXS)))
            A("s_lshl_b32 s%d, s%d, 9" % (sT0, sWV))
            A("v_add_u32 v246, s%d, %s" % (sT0, V(lXP)))
        A("ds_read_b64 %s, v246" % V(vXO, 2))
        for i in range(3):
            A("v_mov_b32 %s, 0" % V(vY + i))
        A("s_lshl_b32 s%d, s%d, 8" % (sT0, sWV))
        A("v_add_u32 v246, s%d, %s" % (sT0, V(lNW)))
        A("v_lshl_add_u32 v247, v1, 2, s%d" % sT0)
        A("v_lshlrev_b32 v248, 1, v1")
        A("v_mov_b32 v249, %d" % (FLG + 28))
        if PSTAT:
            t = vST
            A("s_waitcnt lgkmcnt(3)")
            A("v_pk_add_f32 %s, %s, %s" % (V(vXA, 2), V(vXA, 2), V(vXA + 2, 2)))
            A("v_pk_add_f32 %s, %s, %s" % (V(vXA + 4, 2), V(vXA + 4, 2), V(vXA + 6, 2)))
            A("s_waitcnt lgkmcnt(2)")
            A("v_pk_add_f32 %s, %s, %s" % (V(t + 6, 2), V(t + 6, 2), V(vXA, 2)))
            A("v_pk_add_f32 %s, %s, %s" % (V(t + 6, 2), V(t + 6, 2), V(vXA + 4, 2)))
            A("v_mul_f32 %s, %s, %s" % (V(t), V(t + 6), V(vINV)))
            A("v_mul_f32 %s, %s, %s" % (V(t + 2), V(t + 6), V(vC1)))
            A("v_fma_f32 %s, %s, %s, %s" % (V(t + 1), V(t + 7), V(vC1), V(vEPS2)))
            A("v_fma_f32 %s, -%s, %s, %s" % (V(t + 1), V(t + 2), V(t), V(t + 1)))
            A("v_max_f32 %s, %s, %s" % (V(t + 1), V(vEPS2), V(t + 1)))
            A("v_rsq_f32 %s, %s" % (V(t + 2), V(t + 1)))
        else:
            A("s_waitcnt lgkmcnt(1)")
            stats_lane(vST)
            for l in stats_wave(vST, True):
                A(l)
        A("s_mov_b32 s%d, %s" % (sT0, hx(E0 * 0x10001)))
        A("s_waitcnt lgkmcnt(0)")
        A("v_mul_f32 %s, %s, %s" % (V(vST + 4), V(vST), V(vST + 2)))
        A("v_pk_fma_f32 %s, %s, %s, %s op_sel_hi:[1,0,0] neg_lo:[0,0,1] neg_hi:[0,0,1]" % (V(vH, 2), V(vXO, 2), bc(vST + 2), bc(vST + 4)))
        A("v_fma_f32 %s, %s, %s, -%s" % (V(vH + 2), V(vXA + 8), V(vST + 2), V(vST + 4)))
        A("v_cvt_pk_bf16_f32 %s, %s, %s" % (V(vHS), V(vH), V(vH + 1)))
        A("v_cvt_pk_bf16_f32 %s, %s, %s" % (V(vHS + 1), V(vH + 2), V(vH + 2)))
        for i in range(2):
            A("v_pk_sub_u16 %s, %s, s%d" % (V(vHS + i), V(vHS + i), sT0))
        for i in range(3):
            A("v_lshlrev_b32_sdwa %s, 1, %s dst_sel:DWORD dst_unused:UNUSED_PAD src0_sel:DWORD src1_sel:WORD_%d" % (
                V(vAD + i), V(vHS + (i >> 1)), i & 1))
            A("ds_read_u16_d16_hi %s, %s offset:%d" % (V(vY + i), V(vAD + i), TABP))
        A("v_or_b32 %s, %s, %s" % (V(vM), V(vHS), V(vHS + 1)))
        A("v_and_b32 %s, 0x78007800, %s" % (V(vM), V(vM)))
        A("v_cmp_ne_u32 vcc, 0, %s" % V(vM))
        A("s_cmp_lg_u32 s%d, 0" % sL)
        A("s_waitcnt lgkmcnt(0)")
        A("v_pk_add_f32 %s, %s, %s" % (V(vXO, 2), V(vXO, 2), V(vY, 2)))
        A("v_add_f32 %s, %s, %s" % (V(vXA + 8), V(vXA + 8), V(vY + 2)))
        A("s_cbranch_vccnz Lmiss")
        A("v_cvt_pk_bf16_f32 %s, %s, %s" % (V(vHP), V(vXO), V(vXO + 1)))
        A("v_cvt_pk_bf16_f32 %s, %s, %s" % (V(vHP + 4), V(vXA + 8), V(vXA + 8)))
        A("s_cbranch_scc1 Lfin2")
        A("ds_write_b32 v246, %s" % V(vHP))
        A("ds_write_b16 %s, %s" % (V(lNH), V(vHP + 4)))
        A.label("Lshare")
        stampL("lk")
        A("s_waitcnt lgkmcnt(0)")
        A("s_barrier")
        A("ds_read_b32 %s, v249" % V(vFG))
        for i in range(4):
            A("ds_read_b32 %s, %s offset:%d" % (V(vXR + i), V(lNW), 256 * i))
        A("ds_read_u16 %s, %s" % (V(vXR + 4), V(lNH)))
        if LM & 4:
            A("s_mov_b64 exec, %s" % sp(sBM))
        for ks in range(4):
            A("ds_read_b128 %s, %s offset:%d" % (V(vA + 4 * ks, 4), V(lNR), 64 * ks))
        A("ds_read_b64 %s, %s" % (V(vA + 16, 2), V(lNR2)))
        if LM & 4:
            A("s_mov_b64 exec, -1")
        A("s_waitcnt lgkmcnt(10)")
        A("v_cmp_ne_u32 vcc, 0, %s" % V(vFG))
        A("s_cbranch_vccnz Lmlp")
        add64(sHQ, "%d" % L_HQ)
        A("s_waitcnt lgkmcnt(5)")
        A("s_call_b64 %s, Lq_unpack" % sp(sRET))
        A("s_branch Lq_done")
        A.label("Lmiss")
        A("v_lshlrev_b32 v250, s%d, 1" % sL)
        A("ds_or_b32 v249, v250")
        A("s_cbranch_scc0 Lshare")
        A("s_branch Lfin3")
        A.label("Lfin2")
        A("global_store_dword v247, %s, %s%s" % (V(vHP), sp(sOUT), OUTF))
        A("s_cmp_lg_u32 s%d, 0" % sWV)
        A("s_cbranch_scc1 Lfin3")
        A("global_store_short v248, %s, %s offset:1024%s" % (V(vHP + 4), sp(sOUT), OUTF))
        A.label("Lfin3")
        stamp("lk1")
        A("s_waitcnt lgkmcnt(0)")
        A("s_barrier")
        A("ds_read_b32 %s, v249" % V(vFG))
        A("s_waitcnt lgkmcnt(0)")
        A("v_cmp_lt_u32 vcc, 1, %s" % V(vFG))
        A("s_cbranch_vccz Lexit")
    else:
        A("s_mul_i32 s%d, s%d, s%d" % (sT0, sL, sWV))
        A("s_cmp_lg_u32 s%d, 0" % sT0)
        A("s_cbranch_scc1 Lhelper")
    A.label("Lmlp")
    if SPLIT:
        A("s_waitcnt lgkmcnt(0)")
    for i in range(4):
        A("ds_read_b64 %s, %s offset:%d" % (V(vXA + 2 * i, 2), V(lXP), 512 * i))
    A("ds_read_b32 %s, %s" % (V(vXA + 8), V(lXS)))
    for i in range(9):
        A("v_mov_b32 %s, 0" % V(vY + i))
    A("s_waitcnt lgkmcnt(0)")
    stats_lane(vST)
    for l in stats_wave(vST, True):
        A(l)
    normalize(vH, vST, vST + 2)
    A("s_mov_b32 s%d, %s" % (sT0, hx(E0 * 0x10001)))
    for i in range(5):
        A("v_cvt_pk_bf16_f32 %s, %s, %s" % (V(vHP + i), V(vH + 2 * i), V(vH + min(2 * i + 1, 8))))
    for i in range(5):
        A("v_pk_sub_u16 %s, %s, s%d" % (V(vHS + i), V(vHP + i), sT0))
    for i in range(9):
        A("v_lshlrev_b32_sdwa %s, 1, %s dst_sel:DWORD dst_unused:UNUSED_PAD src0_sel:DWORD src1_sel:WORD_%d" % (
            V(vAD + i), V(vHS + (i >> 1)), i & 1))
        A("ds_read_u16_d16_hi %s, %s offset:%d" % (V(vY + i), V(vAD + i), TABP))
    A("v_or3_b32 %s, %s, %s, %s" % (V(vM), V(vHS), V(vHS + 1), V(vHS + 2)))
    A("v_or3_b32 %s, %s, %s, %s" % (V(vM), V(vM), V(vHS + 3), V(vHS + 4)))
    A("v_and_b32 %s, 0x78007800, %s" % (V(vM), V(vM)))
    A("v_cmp_ne_u32 vcc, 0, %s" % V(vM))
    A("s_waitcnt lgkmcnt(0)")
    A("s_cbranch_vccnz Lfallback")
    A.label("Lfb_done")
    if not SPLIT:
        stampL("lk")
    for i in range(4):
        A("v_pk_add_f32 %s, %s, %s" % (V(vXA + 2 * i, 2), V(vXA + 2 * i, 2), V(vY + 2 * i, 2)))
    A("v_add_f32 %s, %s, %s" % (V(vXA + 8), V(vXA + 8), V(vY + 8)))
    for i in range(5):
        A("v_cvt_pk_bf16_f32 %s, %s, %s" % (V(vHP + i), V(vXA + 2 * i), V(vXA + min(2 * i + 1, 8))))
    A("s_cmp_lg_u32 s%d, 0" % sL)
    A("s_cbranch_scc1 Lfinal")
    if WARM & 1:
        A("s_cbranch_execz Lwarm1")
    if DUMP:
        A("s_lshl_b32 s%d, s2, 2" % sT0)
        A("s_add_u32 s%d, s%d, s%d" % (sT0, sT0, sWV))
        A("s_mul_i32 s%d, s%d, 8192" % (sT0, sT0))
        A("s_add_u32 s%d, s%d, %d" % (sT0, sT0, 2 << 20))
        A("v_lshl_add_u32 v252, v1, 2, s%d" % sT0)
        A("v_add_u32 v253, 4096, v252")
        for i, r in enumerate(list(range(vHS, vHS + 5)) + list(range(vY, vY + 9)) + list(range(vHP, vHP + 5)) + list(range(vAD, vAD + 9)) + [vS, vS + 2, vS + 6, vS + 7]):
            A("global_store_dword %s, %s, %s offset:%d" % ("v252" if i < 16 else "v253", V(r), sp(sWS), 256 * (i % 16)))
    if LEAD:
        A("s_cmp_lg_u32 s%d, 1" % sWV)
        A("s_cbranch_scc1 Lnoy")
        A("v_lshlrev_b32 v249, 2, v1")
        A("v_lshlrev_b32 v250, 1, v1")
        store2(["global_store_dword v249, %s, %s offset:%d" % (V(vHP + i), sp(sHY), 256 * i) for i in range(4)] +
               ["global_store_short v250, %s, %s offset:1024" % (V(vHP + 4), sp(sHY))])
        A.label("Lnoy")
    add64(sHQ, "%d" % L_HQ)
    A("s_call_b64 %s, Lqstage" % sp(sRET))
    A.label("Lq_done")
    A("s_cmp_lg_u32 s%d, 0" % sWV)
    A("s_cbranch_scc1 Lnext")
    for i in range(4):
        A("ds_write_b64 %s, %s offset:%d" % (V(lXP), V(vXA + 2 * i, 2), 512 * i + XSB - XSA))
    A("ds_write_b32 %s, %s offset:%d" % (V(lXS), V(vXA + 8), XSB - XSA))
    A("s_branch Lnext")
    if LEAD:
        A.label("Lwho")
        A("s_cmp_eq_u32 s%d, 0" % sS)
        A("s_cbranch_scc1 Ltabg")
        A("s_cmp_gt_u32 s%d, 3" % sWV)
        A("s_cbranch_scc1 Lqwait")
        A("s_mul_i32 s%d, s%d, 1152" % (sT0, sWV))
        A("s_add_u32 s%d, s%d, %d" % (sT0, sT0, XN))
        A("v_subrev_u32 v248, s%d, %s" % (sT0, V(lNR)))
        A("v_subrev_u32 v249, s%d, %s" % (sT0, V(lNR2)))
        A("v_mov_b32 v243, 0")
        add64(sHQ, "%d" % L_HQ)
        A.label("Lypoll")
        for ks in range(4):
            A("global_load_dwordx4 %s, v248, %s offset:%d sc1" % (V(vA + 4 * ks, 4), sp(sHY), 64 * ks))
        A("global_load_dwordx2 %s, v249, %s sc1" % (V(vA + 16, 2), sp(sHY)))
        A("global_load_dwordx3 %s, v243, %s offset:1152 sc1" % (V(vS + 2, 3), sp(sHY)))
        A("s_waitcnt vmcnt(1)")
        maxtree(vM, range(vA, vA + 18))
        A("s_waitcnt vmcnt(0)")
        A("v_max3_u32 %s, %s, %s, %s" % (V(vM), V(vM), V(vS + 2), V(vS + 4)))
        poll_tail("Lypoll", vM)
        stamp("yy")
        A("s_call_b64 %s, Lq_mm" % sp(sRET))
        A("s_branch Lnext")
    A.label("Lmlp_skip")
    A("s_cmp_lg_u32 s%d, 0" % sL)
    A("s_cbranch_scc1 Lexit")
    if SPLIT:
        A("s_barrier")
    A.label("Lqwait")
    add64(sHQ, "%d" % L_HQ)
    A("s_lshr_b32 s%d, s%d, 1" % (sT0, sWV))
    A("s_cmp_lg_u32 s%d, %d" % (sT0, QW // 2))
    A("s_cbranch_scc1 Lnext")
    A.label("Lqpoll")
    A("global_load_dwordx4 %s, %s, %s sc1" % (V(vQ, 4), V(aHQG), sp(sHQ)))
    A("s_waitcnt vmcnt(0)")
    if QSPEC:
        A("v_mfma_f32_16x16x32_bf16 %s, %s, %s, 0" % (V(QD, 4), V(vSEL, 4), V(vQ, 4)))
    maxtree(vM, range(vQ, vQ + 4))
    poll_tail("Lqpoll", vM, far=True)
    if not QSPEC:
        A("v_mfma_f32_16x16x32_bf16 %s, %s, %s, 0" % (V(QD, 4), V(vSEL, 4), V(vQ, 4)))
    for i in range(2):
        A("v_cvt_pk_bf16_f32 %s, %s, %s" % (V(vQ + i), V(QD + 2 * i), V(QD + 2 * i + 1)))
    A("s_mov_b32 exec_hi, 0")
    A("ds_write_b64 %s, %s" % (V(lQW), V(vQ, 2)))
    A("s_mov_b32 exec_hi, -1")
    A.label("Lnext")
    add64(sHO, "%d" % L_HO)
    if NREP > 1:
        for r in HXB:
            add64(r, "s%d" % sXD)
        A("s_mov_b64 %s, %s" % (sp(sHXS), sp(sHX)))
        A("s_mov_b64 %s, 0x3ffff" % sp(sXM))
    else:
        for r in HXB:
            add64(r, "%d" % L_HX)
    for r in (lXC, lXP, lXS):
        A("v_add_u32 %s, %d, %s" % (V(r), XSB - XSA, V(r)))
    A("s_mov_b32 s%d, 1" % sL)
    stamp("qs")
    A("s_waitcnt lgkmcnt(0)")
    A("s_barrier")
    stamp("q1")
    A("s_branch Latt")
    for label in retries:
        A.label("%s_again" % label)
        A("s_sub_u32 s%d, s%d, 1" % (sCNT, sCNT))
        A("s_cbranch_scc0 %s" % label)
        A("s_mov_b32 s%d, 0" % sCNT)
        A("s_branch %s_ok" % label)
    A.label("Lv_read")
    A("s_cmp_lt_u32 s%d, 4" % sWV)
    A("s_cbranch_scc1 Lv_read_done")
    for i in range(8):
        A("ds_read_b128 %s, %s offset:%d" % (V(vVR + 4 * i, 4), V(vA + 1), (i >> 2) * 4352 + (i & 3) * 256))
    A("s_branch Lv_read_done")
    A.label("Lv_wait")
    A("v_readfirstlane_b32 s%d, %s" % (sFAST, V(vA + 1)))
    A("v_lshlrev_b32 v249, 4, v0")
    A("s_and_b32 s%d, s2, %d" % (sT0, TREP - 1))
    A("s_lshl_b32 s%d, s%d, 13" % (sT0, sT0))
    A("s_add_u32 s%d, s%d, %d" % (sT0, sT0, W_HT))
    A("v_add_u32 v248, s%d, v249" % sT0)
    A("s_cmp_gt_u32 s%d, 3" % sWV)
    A("s_cbranch_scc1 Lv_tab")
    if WOB or WOPOST:
        A("s_waitcnt vmcnt(%d) lgkmcnt(0)" % WO1)
        A("s_cmp_lg_u32 s%d, 0" % sWV)
        A("s_cbranch_scc1 Lv_perm")
        A("s_waitcnt vmcnt(0)")
    else:
        A("s_sub_u32 s%d, s%d, 1" % (sT0, sWV))
        A("s_cmp_lt_u32 s%d, 3" % sT0)
        A("s_cbranch_scc1 Lv_wo")
        A("s_waitcnt vmcnt(0) lgkmcnt(0)")
        A("s_branch Lv_perm")
        A.label("Lv_wo")
        woloads(WO1, 16, WINO if callable(WINO) else lambda i: WINO)
        A("s_waitcnt vmcnt(16)")
    A.label("Lv_perm")
    stamp("kv")
    A("s_mov_b32 s%d, 0x05040100" % sT0)
    A("s_mov_b32 s%d, 0x07060302" % sT1)
    for j in range(8):
        for e in range(4):
            A("v_perm_b32 %s, %s, %s, s%d" % (
                V(vVT + 4 * j + e), V(vVR + 4 * (2 * e + 1) + (j >> 1)), V(vVR + 4 * (2 * e) + (j >> 1)), sT1 if j & 1 else sT0))
    for i in range(4):
        A("v_mov_b32 %s, 0x3f803f80" % V(vONES + i))
    if VPRE:
        A("s_cmp_gt_u32 s%d, 3" % sWV)
        A("s_cbranch_scc1 Lv_back")
    A.label("Lv_tab")
    if TEARLY:
        A("global_load_dwordx4 %s, v248, %s sc1" % (V(vQ, 4), sp(sWS)))
    A("s_branch Lv_ready")
    if WOPOST:
        A.label("Lwo_rest")
        A("s_sub_u32 s%d, s%d, 1" % (sT0, sWV))
        A("s_cmp_lt_u32 s%d, 3" % sT0)
        A("s_cbranch_scc0 Lwo_back")
        woloads(WO1, 16, lambda i: 63)
        A("s_branch Lwo_back")
    A.label("Lstash")
    A("s_cmp_lt_u32 s%d, 4" % sWV)
    A("s_cbranch_scc1 Lstashed")
    A("s_mul_i32 s%d, s%d, 8704" % (sT1, sWV))
    A("s_add_u32 s%d, s%d, %d" % (sT1, sT1, KB - 4 * 8704))
    A("v_lshl_add_u32 v250, v1, 4, s%d" % sT1)
    A("v_lshl_add_u32 v251, v1, 2, s%d" % sT1)
    for i in range(3):
        A("ds_write_b128 v250, %s offset:%d" % (V(vRW + 10 * i, 4), 2304 * i))
        A("ds_write_b128 v250, %s offset:%d" % (V(vRW + 10 * i + 4, 4), 2304 * i + 1024))
        A("ds_write_b32 v251, %s offset:%d" % (V(vRW + 10 * i + 8), 2304 * i + 2048))
    A.label("Lstashed")
    if OEARLY == 2:
        A("global_load_dwordx4 %s, %s, %s sc1" % (V(vA + 10, 4), V(aHOL), sp(sHO)))
    A("s_waitcnt vmcnt(%d)" % (2 if OEARLY == 2 else 0))
    if OEARLY == 1:
        A("global_load_dwordx4 %s, %s, %s sc1" % (V(vA + 10, 4), V(aHOL), sp(sHO)))
    woread()
    A("s_branch %s" % ("Lopoll_w" if OEARLY else "Lopoll"))
    A.label("Lhelper")
    spin(20, 1, "Lhelp_spin")
    A("s_cmp_eq_u32 s%d, 2" % sT0)
    A("s_cbranch_scc1 Lmlp")
    A("s_branch Lexit")
    A.label("Lxchk")
    A("s_mov_b32 exec_hi, s%d" % sT2)
    if XMASK:
        for i in range(4):
            maxtree(vS + i, range(vA + 4 * i, vA + 4 * i + 4))
        for i in range(4):
            A("v_cmp_eq_u32 %s, -1, %s" % (sp(sH + 2 * i), V(vS + i)))
        A("s_mov_b32 exec_hi, 0")
        A("s_or_b64 vcc, %s, %s" % (sp(sH), sp(sH + 2)))
        A("s_or_b64 vcc, vcc, %s" % sp(sH + 4))
        A("s_or_b64 vcc, vcc, %s" % sp(sH + 6))
        A("s_cbranch_scc0 Lxok")
        A("s_sub_u32 s%d, s%d, 1" % (sCNT, sCNT))
        A("s_cbranch_scc1 Lxgiveup")
        for i in range(4):
            A("s_mov_b64 exec, %s" % sp(sH + 2 * i))
            A("global_load_dwordx4 %s, %s, %s sc1" % (V(vA + 4 * i, 4), V(aHXL), sp(HXB[i])))
        A("s_mov_b64 exec, -1")
        A("s_waitcnt vmcnt(0)")
        A("s_branch Lxsum")
        A.label("Lxgiveup")
    else:
        maxtree(vM, range(vA, vA + 16))
        A("v_cmp_eq_u32 vcc, -1, %s" % V(vM))
        A("s_sub_u32 s%d, s%d, 1" % (sCNT, sCNT))
        A("s_cbranch_vccz Lxdone")
        A("s_cbranch_scc0 Lxpoll")
        A.label("Lxdone")
        A("s_mov_b32 exec_hi, 0")
        A("s_cbranch_scc0 Lxok")
    A("s_mov_b32 s%d, 0" % sCNT)
    A("s_branch Lxok")
    A.label("Lfinal")
    A("s_cmp_lg_u32 s%d, 0" % sWV)
    A("s_cbranch_scc1 Lexit")
    A("v_lshlrev_b32 v249, 2, v1")
    A("v_lshlrev_b32 v250, 1, v1")
    for i in range(4):
        A("global_store_dword v249, %s, %s offset:%d%s" % (V(vHP + i), sp(sOUT), 256 * i, OUTF))
    A("global_store_short v250, %s, %s offset:1024%s" % (V(vHP + 4), sp(sOUT), OUTF))
    A("v_mov_b32 v252, %d" % (FLG + 20))
    A("v_mov_b32 v253, 1")
    A("ds_max_u32 v252, v253")
    if ENDSTAMP:
        A("s_memrealtime s[70:71] ; ENDSTAMP")
        A("s_lshl_b32 s%d, s2, 2" % sT0)
        A("s_add_u32 s%d, s%d, %d" % (sT0, sT0, W_DIAG))
        A("v_mov_b32 v249, s%d" % sT0)
        A("s_waitcnt lgkmcnt(0)")
        A("v_mov_b32 v250, s70")
        A("global_store_dword v249, v250, %s" % sp(sWS))
    if WB:
        A("s_branch Lexit")
        A.label("Lwb")
        A("s_cmp_lg_u32 s%d, 0" % sWV)
        A("s_cbranch_scc1 Lexit")
        if WB == 2:
            A("s_cmp_lg_u32 s%d, 7" % sS)
            A("s_cbranch_scc1 Lexit")
        A("s_waitcnt vmcnt(0)")
        A("buffer_wbl2 sc1")
    A.label("Lexit")
    if DIAG:
        A("v_mov_b32 v251, s98")
        stamp("end")
        A("s_memtime %s" % sp(sMSK))
        A("s_waitcnt lgkmcnt(0)")
        A("s_sub_u32 s100, s%d, s100" % sMSK)
        A("s_lshl_b32 s%d, s2, 3" % sT0)
        A("s_add_u32 s%d, s%d, s%d" % (sT0, sT0, sWV))
        A("s_lshl_b32 s%d, s%d, 7" % (sT0, sT0))
        A("s_add_u32 s%d, s%d, %d" % (sT0, sT0, W_DIAG))
        A("v_mov_b32 v249, s%d" % sT0)
        A("s_mov_b64 exec, 1")
        for i in range(stamp_n[0]):
            A("v_mov_b32 v250, s%d" % (sSTAMP + 2 * i))
            A("global_store_dword v249, v250, %s offset:%d" % (sp(sWS), 4 * i))
        A("global_store_dword v249, v251, %s offset:112" % sp(sWS))
        A("v_mov_b32 v250, s100")
        A("global_store_dword v249, v250, %s offset:116" % sp(sWS))
        A("v_mov_b32 v250, s%d" % sCNT)
        A("global_store_dword v249, v250, %s offset:120" % sp(sWS))
        A("v_mov_b32 v250, s%d" % sFAST)
        A("global_store_dword v249, v250, %s offset:124" % sp(sWS))
        A("s_or_b32 s%d, s2, s%d" % (sT0, sWV))
        A("s_cbranch_scc1 Lend")
        A("v_mov_b32 v249, 0")
        for i in range(1, stamp_n[0]):
            A("s_sub_u32 s%d, s%d, s%d" % (sT0, sSTAMP + 2 * i, sSTAMP))
            A("v_mov_b32 v250, s%d" % sT0)
            A("global_store_dword v249, v250, %s offset:%d" % (sp(sDBG), 4 * i))
        A("v_mov_b32 v250, s100")
        A("global_store_dword v249, v250, %s offset:0" % sp(sDBG))
        A("v_mov_b32 v250, s%d" % sCNT)
        A("global_store_dword v249, v250, %s offset:60" % sp(sDBG))
    A.label("Lend")
    A("s_endpgm")

    A.label("Lqstage")
    for i in range(4):
        A("ds_write_b32 %s, %s offset:%d" % (V(lNW), V(vXR + i), 256 * i))
    A("ds_write_b16 %s, %s" % (V(lNH), V(vXR + 4)))
    for ks in range(4):
        A("ds_read_b128 %s, %s offset:%d" % (V(vA + 4 * ks, 4), V(lNR), 64 * ks))
    A("ds_read_b64 %s, %s" % (V(vA + 16, 2), V(lNR2)))
    A.label("Lq_unpack")
    for i in range(4):
        A("v_lshlrev_b32 %s, 16, %s" % (V(vXA + 2 * i), V(vXR + i)))
        A("v_and_b32 %s, 0xffff0000, %s" % (V(vXA + 2 * i + 1), V(vXR + i)))
    A("v_lshlrev_b32 %s, 16, %s" % (V(vXA + 8), V(vXR + 4)))
    stats_lane(vS)
    rest = stats_wave(vS, False)
    rest.append("v_mul_f32 %s, %s, %s" % (V(vS + 4), V(vS), V(vS + 2)))
    if LEAD:
        for l in rest:
            A(l)
        rest = []
        A("s_cmp_lg_u32 s%d, s%d" % (sWV, sYW))
        A("s_cbranch_scc1 Lq_mm")
        A("v_mov_b32 v243, 0")
        A("s_mov_b64 exec, 1")
        store2(["global_store_dwordx3 v243, %s, %s offset:1152" % (V(vS + 2, 3), sp(sHY))])
        A("s_mov_b64 exec, -1")
        A.label("Lq_mm")
    vQC = vA + 24
    for i in range(4):
        rest.append("v_pk_mul_f32 %s, %s, %s op_sel_hi:[1,0] neg_lo:[1,0] neg_hi:[1,0]" % (
            V(vQC + 2 * i, 2), V(vSQ + 2 * i, 2), bc(vS + 4)))
    acc = (vP, 244)
    per = [2, 2, 2, 2, 2, 2, 2, 2, 3, 100]
    if LEAD:
        per = [0, 0, 0, 0, 0, 0, 0, 5, 0, 0]
        rest.append("s_nop 1")
    for ks in range(5):
        A("s_waitcnt lgkmcnt(%d)" % (4 - ks))
        for u in range(2):
            if ks < 4:
                A("v_mfma_f32_16x16x32_bf16 %s, %s, %s, %s" % (
                    V(acc[u], 4), V(vWQ + 18 * u + 4 * ks, 4), V(vA + 4 * ks, 4), V(acc[u], 4) if ks else "0"))
            else:
                A("v_mfma_f32_16x16x16_bf16 %s, %s, %s, %s" % (V(acc[u], 4), V(vWQ + 18 * u + 16, 2), V(vA + 16, 2), V(acc[u], 4)))
            n = per[2 * ks + u]
            for l in rest[:n]:
                A(l)
            rest = rest[n:]
    for u in range(2):
        for i in range(2):
            A("v_pk_fma_f32 %s, %s, %s, %s op_sel_hi:[1,0,1]" % (
                V(acc[u] + 2 * i, 2), V(acc[u] + 2 * i, 2), bc(vS + 2), V(vQC + 4 * u + 2 * i, 2)))
        for i in range(2):
            A("v_cvt_pk_bf16_f32 %s, %s, %s" % (V(vA + 2 * u + i), V(acc[u] + 2 * i), V(acc[u] + 2 * i + 1)))
    A("s_mov_b64 exec, %s" % sp(sBM))
    store2(["global_store_dwordx4 %s, %s, %s" % (V(aHQS), V(vA, 4), sp(sHQ))])
    A("s_mov_b64 exec, -1")
    A("s_nop 0")
    A("s_setpc_b64 %s" % sp(sRET))

    A.label("Lkshuf")
    for pr in range(4):
        a, b = vK + 8 * pr, vK + 8 * pr + 4
        for d in range(4):
            A("v_mov_b32 %s, %s" % (V(vA + 16 + d), V(a + d)))
        for d in range(4):
            A("v_mov_b32_dpp %s, %s row_ror:8 row_mask:0xf bank_mask:0xc" % (V(a + d), V(b + d)))
        for d in range(4):
            A("v_mov_b32_dpp %s, %s row_ror:8 row_mask:0xf bank_mask:0x3" % (V(b + d), V(vA + 16 + d)))
    A("s_setpc_b64 %s" % sp(sRET))
    A.label("Lsel")
    A("v_mov_b32 %s, 0x3f803f80" % V(vS + 3))
    A("v_and_b32 %s, 1, v1" % V(vS))
    A("v_lshlrev_b32 %s, 4, %s" % (V(vS), V(vS)))
    A("v_lshlrev_b32 %s, %s, %s" % (V(vS), V(vS), V(vS + 3)))
    A("v_bfe_u32 %s, v1, 1, 3" % V(vS + 1))
    A("v_and_b32 %s, 1, v1" % V(vS + 2))
    A("v_cmp_eq_u32 vcc, 0, %s" % V(vS + 2))
    A("v_and_b32 %s, 0xffff, %s" % (V(vS + 2), V(vS)))
    A("v_cndmask_b32 %s, %s, %s, vcc" % (V(vS), V(vS), V(vS + 2)))
    for d in range(4):
        A("v_cmp_eq_u32 vcc, %d, %s" % (d, V(vS + 1)))
        A("v_cndmask_b32 %s, 0, %s, vcc" % (V(vSEL + d), V(vS)))
    A("s_setpc_b64 %s" % sp(sRET))
    A.label("Laddr")
    A("v_mov_b32 v232, 0")
    A("v_bfe_u32 v250, v24, 2, 1")
    A("v_lshlrev_b32 v249, 8, v250")
    A("v_lshl_add_u32 v249, v25, 4, v249")
    A("v_add_u32 %s, %d, v249" % (V(aHQL), QL))
    A("s_and_b32 s%d, s%d, 1" % (sT0, sWV))
    A("s_lshl_b32 s%d, s%d, 8" % (sT0, sT0))
    A("v_lshl_add_u32 v249, v24, 4, s%d" % sT0)
    A("v_lshl_add_u32 %s, v25, 9, v249" % V(aHQG))
    A("v_and_b32 v250, 1, v25")
    A("v_lshl_add_u32 v249, v250, 3, v249")
    A("v_add_u32 %s, %d, v249" % (V(lQW), QL))
    A("s_lshl_b32 s%d, s%d, 8" % (sT0, sS))
    A("s_lshl_b32 s%d, s%d, 6" % (sT1, sWV))
    A("s_add_u32 s%d, s%d, s%d" % (sT0, sT0, sT1))
    A("v_lshl_add_u32 %s, v25, 4, s%d" % (V(aHQS), sT0))
    A("s_lshl_b32 s%d, s%d, 7" % (sT0, sWV))
    A("v_lshl_add_u32 v249, v27, 4, s%d" % sT0)
    A("v_lshl_add_u32 %s, v26, 10, v249" % V(aHOL))
    A("s_lshl_b32 s%d, s%d, 10" % (sT1, sS))
    A("v_add_u32 %s, s%d, v249" % (V(aHOS), sT1))
    A("v_mul_u32_u24 v250, %d, v26" % PSTR)
    A("v_add_u32 v250, %d, v250" % PART)
    A("v_add_u32 %s, v249, v250" % V(lPR))
    A("s_mul_i32 s%d, s%d, %d" % (sT0, sWV, RSTR))
    A("s_add_u32 s%d, s%d, %d" % (sT0, sT0, RED))
    A("v_lshl_add_u32 %s, v24, 2, s%d" % (V(lOW), sT0))
    A("s_lshr_b32 s%d, s%d, 2" % (sT0, sWV))
    A("s_lshl_b32 s%d, s%d, 3" % (sT0, sT0))
    A("v_lshl_add_u32 %s, v26, 4, s%d" % (V(aHML), sT0))
    A("v_add_u32 %s, %d, %s" % (V(lMR), ML, V(aHML)))
    A("s_lshl_b32 s%d, s%d, 8" % (sT0, sWV))
    A("v_lshl_add_u32 v249, v24, 4, s%d" % sT0)
    A("v_mul_u32_u24 v250, 1152, v25")
    A("v_add_u32 %s, v249, v250" % V(aHXL))
    A("v_and_b32 v253, 1, v25")
    A("v_lshlrev_b32 v249, 1, v249")
    A("v_lshl_add_u32 v249, v253, 4, v249")
    A("v_add_u32 %s, %d, v249" % (V(lXC), XSA))
    A("s_mul_i32 s%d, s%d, 1152" % (sT0, sHKV))
    A("s_mul_i32 s%d, s%d, 144" % (sT1, sS))
    A("s_add_u32 s%d, s%d, s%d" % (sT0, sT0, sT1))
    A("v_mul_u32_u24 v250, 3641, v1")
    A("v_lshrrev_b32 v250, 16, v250")
    A("v_mul_u32_u24 v249, 18, v250")
    A("v_sub_u32 v249, v1, v249")
    A("v_lshlrev_b32 %s, 4, v249" % V(lOR))
    A("v_add_u32 %s, %d, %s" % (V(lOR), RED, V(lOR)))
    A("v_lshl_add_u32 %s, v249, 3, s%d" % (V(aHXS), sT0))
    A("v_mul_u32_u24 v250, %d, v250" % L_HX)
    A("v_add_u32 %s, v250, %s" % (V(aHXS), V(aHXS)))
    A("v_add_u32 %s, %d, %s" % (V(aHML), 3 * L_HX, V(aHXS)))
    A("s_mul_i32 s%d, s%d, %d" % (sT0, sWV, PSTR))
    A("s_add_u32 s%d, s%d, %d" % (sT0, sT0, PART))
    A("v_lshlrev_b32 v249, 9, v253")
    A("v_lshl_add_u32 v249, v24, 2, v249")
    A("v_add_u32 %s, s%d, v249" % (V(lPW), sT0))
    A("s_lshl_b32 s%d, s%d, 4" % (sT0, sWV))
    A("s_add_u32 s%d, s%d, %d" % (sT0, sT0, ML))
    A("v_lshl_add_u32 %s, v253, 3, s%d" % (V(lMW), sT0))
    A("v_lshlrev_b32 v249, 4, v25")
    A("v_lshlrev_b32 v250, 3, v1")
    A("v_add_u32 %s, %d, v250" % (V(lXP), XSA))
    A("v_add_u32 %s, %d, v28" % (V(lXS), XSA + 2048))
    A("s_mov_b32 s%d, %d" % (sT0, XN))
    A("v_add_u32 %s, s%d, v28" % (V(lNW), sT0))
    A("s_add_u32 s%d, s%d, 1024" % (sT1, sT0))
    A("v_add_u32 %s, s%d, v29" % (V(lNH), sT1))
    A("s_mul_i32 s%d, s%d, 288" % (sT1, sP))
    A("s_add_u32 s%d, s%d, s%d" % (sT0, sT0, sT1))
    A("v_add_u32 %s, s%d, v249" % (V(lNR), sT0))
    A("s_add_u32 s%d, s%d, 256" % (sT0, sT0))
    A("v_lshl_add_u32 %s, v25, 3, s%d" % (V(lNR2), sT0))
    A("v_bfe_u32 v250, v1, 2, 2")
    A("v_lshl_add_u32 v250, v25, 3, v250")
    A("v_mul_u32_u24 v233, 144, v250")
    A("v_and_b32 v250, 3, v1")
    A("v_lshl_add_u32 v233, v250, 3, v233")
    A("s_mul_i32 s%d, s%d, %d" % (sT0, sWV, 32 * 144))
    A("s_add_u32 s%d, s%d, %d" % (sT0, sT0, WOS))
    A("v_add_u32 v233, s%d, v233" % sT0)
    A("s_mov_b32 s%d, 0" % sFB)
    A("v_mov_b32 %s, %s" % (V(vINV), fl(1.0 / 576)))
    A("v_mov_b32 %s, %s" % (V(vC1), fl((1.0 + 1e-5) / 576)))
    A("v_mov_b32 %s, %s" % (V(vEPS), fl(1e-5)))
    A("v_mov_b32 %s, %s" % (V(vEPS2), fl(1e-10)))
    add64(sOUT, "s%d" % oX)
    A("s_mov_b32 s%d, 0" % sL)
    A("s_mov_b32 s%d, 0" % sFAST)
    A("s_mov_b32 s%d, %d" % (sCNT, POLL_LIMIT))
    A("s_mov_b32 s%d, %s" % (sSMC, fl(SMC)))
    A("s_setpc_b64 %s" % sp(sRET))

    A.label("Lfallback")
    A("v_mov_b32 v252, %d" % (FLG + 20))
    A("v_lshlrev_b32 v253, 1, s%d" % sL)
    A("ds_max_u32 v252, v253")
    fw, ft = vMA, 244
    A("s_mul_i32 s%d, s%d, 8704" % (sT1, sWV))
    A("s_add_u32 s%d, s%d, %d" % (sT1, sT1, KB))
    A("v_lshl_add_u32 v250, v1, 4, s%d" % sT1)
    A("v_lshl_add_u32 v251, v1, 2, s%d" % sT1)
    for i in range(3):
        A("ds_read_b128 %s, v250 offset:%d" % (V(fw + 10 * i, 4), 2304 * i))
        A("ds_read_b128 %s, v250 offset:%d" % (V(fw + 10 * i + 4, 4), 2304 * i + 1024))
        A("ds_read_b32 %s, v251 offset:%d" % (V(fw + 10 * i + 8), 2304 * i + 2048))
    for i in range(9):
        A("v_bfe_u32 %s, %s, %d, 4" % (V(vM), V(vHS + (i >> 1)), 11 + 16 * (i & 1)))
        A("v_cmp_ne_u32 %s, 0, %s" % (sp(sMSK), V(vM)))
        A("v_%s %s, %s, %s" % (("and_b32" if i & 1 else "lshlrev_b32"), V(vM), ("0xffff0000" if i & 1 else "16"), V(vHP + (i >> 1))))
        A.label("Lfb_l%d" % i)
        A("s_cmp_eq_u64 %s, 0" % sp(sMSK))
        A("s_cbranch_scc1 Lfb_n%d" % i)
        A("s_ff1_i32_b64 s%d, %s" % (sT3, sp(sMSK)))
        A("s_bitset0_b64 %s, s%d" % (sp(sMSK), sT3))
        A("v_readlane_b32 s%d, %s, s%d" % (sFH, V(vM), sT3))
        A("s_call_b64 %s, Lfb_eval" % sp(sRET))
        A("s_mov_b32 m0, s%d" % sT3)
        A("v_writelane_b32 %s, s%d, m0" % (V(vY + i), sT0))
        A("s_branch Lfb_l%d" % i)
        A.label("Lfb_n%d" % i)
    A("s_branch Lfb_done")
    A.label("Lfb_eval")
    A("v_mov_b32 %s, 0" % V(ft))
    A("v_mov_b32 %s, 0" % V(ft + 1))
    A("v_mov_b32 %s, %s" % (V(ft + 2), fl(-K1)))
    A("v_mov_b32 %s, %s" % (V(ft + 6), fl(-K0)))
    A("v_mov_b32 %s, 1.0" % V(ft + 4))
    A("s_waitcnt lgkmcnt(0)")
    seqs = []
    for j in range(9):
        b = vS if j & 1 else vA
        a, c, w, t = (V(b + 2 * i, 2) for i in range(4))
        q = []
        for i in range(3):
            q.append("v_lshlrev_b32 %s, 16, %s" % (V(b + 2 * i), V(fw + 10 * i + j)))
            q.append("v_and_b32 %s, 0xffff0000, %s" % (V(b + 2 * i + 1), V(fw + 10 * i + j)))
        q += ["v_pk_fma_f32 %s, %s, %s, %s op_sel_hi:[1,0,1]" % (a, a, sp(sFH), c),
              "v_pk_mul_f32 %s, %s, %s" % (t, a, a),
              "v_pk_mul_f32 %s, %s, %s" % (w, w, a),
              "v_pk_fma_f32 %s, %s, %s, %s op_sel_hi:[1,0,0]" % (t, t, bc(ft + 2), bc(ft + 6)),
              "v_pk_mul_f32 %s, %s, %s" % (t, t, a),
              "v_exp_f32 %s, %s" % (V(b + 6), V(b + 6)),
              "v_exp_f32 %s, %s" % (V(b + 7), V(b + 7)),
              "v_pk_add_f32 %s, %s, %s op_sel_hi:[1,0]" % (t, t, V(ft + 4, 2)),
              "v_rcp_f32 %s, %s" % (V(b + 6), V(b + 6)),
              "v_rcp_f32 %s, %s" % (V(b + 7), V(b + 7)),
              "v_pk_fma_f32 %s, %s, %s, %s" % (V(ft, 2), w, t, V(ft, 2))]
        seqs.append(q)
    for j in range(0, 8, 2):
        for l0, l1 in zip(seqs[j], seqs[j + 1]):
            A(l0)
            A(l1)
    for l in seqs[8]:
        A(l)
    A("v_add_f32 %s, %s, %s" % (V(ft), V(ft), V(ft + 1)))
    for ctl in WAVE6:
        A("v_add_f32_dpp %s, %s, %s %s" % (V(ft), V(ft), V(ft), ctl))
    A("s_and_b32 s%d, s%d, 4" % (sT0, sFB))
    A("s_lshl_b32 s%d, s%d, 2" % (sT0, sT0))
    A("s_add_u32 s%d, s%d, %d" % (sT0, sT0, FB))
    A("s_lshl_b32 s%d, s%d, 2" % (sT1, sWV))
    A("s_add_u32 s%d, s%d, s%d" % (sT1, sT1, sT0))
    A("v_mov_b32 %s, s%d" % (V(ft + 5), sT1))
    A("v_mov_b32 %s, s%d" % (V(ft + 6), sT0))
    A("s_add_u32 s%d, s%d, 4" % (sFB, sFB))
    A("s_mov_b32 exec_lo, 0")
    A("s_mov_b32 exec_hi, 0x80000000")
    A("ds_write_b32 %s, %s" % (V(ft + 5), V(ft)))
    A("s_mov_b64 exec, -1")
    arrive_wait(16, 0, None)
    A.label("Lfb_spin")
    A("ds_read_b32 v253, v252")
    A("s_waitcnt lgkmcnt(0)")
    A("v_readfirstlane_b32 s%d, v253" % sT0)
    spin_tail("Lfb_spin", "s%d" % sFB)
    A("ds_read_b128 %s, %s" % (V(ft, 4), V(ft + 6)))
    A("s_waitcnt lgkmcnt(0)")
    A("v_pk_add_f32 %s, %s, %s" % (V(ft, 2), V(ft, 2), V(ft + 2, 2)))
    A("v_add_f32 %s, %s, %s" % (V(ft), V(ft), V(ft + 1)))
    A("v_cvt_pk_bf16_f32 %s, %s, %s" % (V(ft), V(ft), V(ft)))
    A("v_lshlrev_b32 %s, 16, %s" % (V(ft), V(ft)))
    A("v_add_f32 %s, %s, %s" % (V(ft), V(ft), V(vB2)))
    A("v_cvt_pk_bf16_f32 %s, %s, %s" % (V(ft), V(ft), V(ft)))
    A("v_lshlrev_b32 %s, 16, %s" % (V(ft), V(ft)))
    A("v_readfirstlane_b32 s%d, %s" % (sT0, V(ft)))
    A("s_nop 3")
    A("s_setpc_b64 %s" % sp(sRET))

    A.label("Lcode_end")
    body = A.finish()
    head = open("interleave_layers__sliding_block_cached__mixer_token_mlp__decode.s.ref").read().split(
        "; Override launch geometry")[0]
    head += "; @launch grid=(256,1,1) block=(512,1,1) lds=%d\n" % LDS
    head += """;
;    directly from the weights with the same formula (Lfallback), so every input gets the exact entry.
;
"""
    if DIAG:
        head += "; STAMPS: " + " ".join(STAMPS) + "\n"
    head += '.amdgcn_target "amdgcn-amd-amdhsa--gfx950"\n.text\n.globl %s\n.p2align 8\n.type %s,@function\n' % (NAME, NAME)
    tail = """.section .rodata,"a"
.p2align 6
.amdhsa_kernel %s
  .amdhsa_next_free_vgpr 256
  .amdhsa_next_free_sgpr 102
  .amdhsa_accum_offset 256
  .amdhsa_group_segment_fixed_size 0
  .amdhsa_kernarg_size 104
  .amdhsa_user_sgpr_count 2
  .amdhsa_user_sgpr_kernarg_segment_ptr 1
  .amdhsa_system_sgpr_workgroup_id_x 1
.end_amdhsa_kernel
""" % NAME
    return head + body + tail


if __name__ == "__main__":
    out = sys.argv[1]
    kw = {}
    for a in sys.argv[2:]:
        k, v = a.split("=")
        kw[k] = eval(v)
    open(out, "w").write(gen(**kw))
```

```python
import math, struct, sys
from asmlib import Asm

NAME = "interleave_layers__sliding_block_cached__mixer_token_mlp__decode_kernel"


def f2u(x):
    return struct.unpack("<I", struct.pack("<f", x))[0]


def hx(x):
    return "0x%08x" % (x & 0xFFFFFFFF)


def fl(x):
    return hx(f2u(x))


def gen(DIAG=False, NTKV=" nt", NTW=" nt", E_LO=114, FORCE_SLOW=False, POLL_LIMIT=1 << 20,
        STAMPS="start wq q0 wo fl kv tab ho0 og0 hx0 xs0 q1 ho1 hx1 end",
        VSCHED={1: 1, 2: 1, 3: 1, 4: 1}, VBEARLY=False, WOGATE=8, WIN=14, WINO=63, QSPEC=False, DUMP=False, QW=4, QD=24, WO1=10, LEAD=False, FEARLY=False, XMASK=False, QPOS=0, NREP=6, WOB=False, WOEARLY=True, VPRE=True, WOPOST=False, KQ=8, RESTORE=False, WARM=0, SPLIT=True, LM=7, OEARLY=1, TEARLY=False, TPOS=0, PREB=0, TAB2=False, APRIO=0, PSTAT=True, OACK=True, QBAR=0, XSL=0, TREP=1, DELAY=None, OUTF="", FLW=0, PKS=True, WIN1=12, ENDSTAMP=False, WB=0, XNWAIT=False, XPACE="ack", NOTAB=False, PREF=True, BPRIO=0):
    assert not LEAD and NREP in (1, 3, 6)
    A = Asm()
    LOG2E = math.log2(math.e)
    K0 = 2 * math.sqrt(2 / math.pi) * LOG2E
    K1 = K0 * 0.044715
    SC = K1 ** (1.0 / 3.0)
    KAP = K0 / SC
    SMC = 128 ** -0.5 * LOG2E
    E0 = E_LO << 7
    TABP, WQS, PART, PSTR = 0, 4096, 40960, 1040
    ML, OV, XSA, XSB, XN, TRED = 49280, 49408, 49920, 52224, 54528, 59136
    TABN, WOS, FLG = 65536, WQS, 59648
    QL, KB, VB = 60416, 69632, 104448
    RED, RSTR, FB = QL + 512, 320, FLG + 32
    LDS = 139264
    W_HQ, W_HO, W_HT, W_HX, W_DIAG = 0, 131072, 655360 if TREP == 1 else 950272, 663552, 1 << 20
    W_HY = W_HT + 8192
    L_HQ, L_HO, L_HM, L_HX = 65536, 262144, 4096, 36864
    sX, sK, sV, sWQ, sWO, sW1, sB1, sW2, sB2, sOUT, sDBG, sWS = 4, 6, 8, 10, 12, 16, 18, 20, 22, 24, 26, 28
    sWV, sHKV, sB, sS, sGID, sL, sFAST, sXCC, sCNT, sP = 30, 31, 32, 33, 34, 35, 36, 37, 38, 39
    sH, sRET, sHQ, sHO, sHM, sHX = 40, 56, 58, 60, 62, 64
    sT0, sT1, sT2, sSMC, sT3 = 66, 67, 68, 69, 3
    sMSK = 14
    sQM, sBM, sOM = 50, 52, 54
    sSM2 = 48
    sXM = 22
    sHXS, sXD = 20, 19
    sHY, sYW = 16, 18
    sFB, sFH = 10, 12
    sSTAMP = 70

    def sp(r):
        return "s[%d:%d]" % (r, r + 1)

    def V(a, n=1):
        return "v%d" % a if n == 1 else "v[%d:%d]" % (a, a + n - 1)

    vT, vL = 0, 1
    aHQL, aHQS, aHOL, aHOS, aHML, aHXL, aHXS = 2, 3, 4, 5, 6, 7, 11
    vC1, vEPS2, vEPS = 8, 9, 10
    vSQ = 188
    aHQG, lQW = 98, 99
    lNR2, vSEL = 96, 196
    sHX1, sHX2, sHX3 = 4, 6, 8
    lPW, lPR, lMR, lMW, lOW, lOR, lXC, lXP, lXS, lNW, lNH, lNR = 12, 13, 14, 15, 16, 17, 18, 19, 20, 21, 22, 23
    vS = 24
    vK = 32
    vA = 64
    vVT = 100
    vWQ = 132
    vWO = 168
    vVR = 200
    vONES, vMA, vB2 = 200, 204, 97
    vRW, vCA, vCC, vCW, vKAP, vONE, vSCL = 132, (162, 32), (164, 34), (166, 36), 250, 38, 252
    vQ = 234
    vXA = 234
    vP = 250
    vINV, vM = 254, 255
    vACC, vTT = 168, 184
    STAMPS = STAMPS.split()
    stamp_n = [len(STAMPS)]

    def stamp(name):
        if DIAG and "#" + name in STAMPS:
            A("s_mov_b32 s%d, s%d" % (sSTAMP + 2 * STAMPS.index("#" + name), sCNT))
        if DIAG and name in STAMPS:
            A("s_memrealtime %s" % sp(sSTAMP + 2 * STAMPS.index(name)))
            A("s_waitcnt lgkmcnt(0)")

    def stampL(name):
        if DIAG and any(p + name + l in STAMPS for p in ("", "#") for l in "01"):
            A("s_cmp_eq_u32 s%d, 0" % sL)
            A("s_cbranch_scc0 Lst_%s" % name)
            stamp(name + "0")
            A("s_branch Lste_%s" % name)
            A.label("Lst_%s" % name)
            stamp(name + "1")
            A.label("Lste_%s" % name)

    def bc(r):
        assert r % 2 == 0
        return V(r, 2)

    def add64(base, off_reg):
        A("s_add_u32 s%d, s%d, %s" % (base, base, off_reg))
        A("s_addc_u32 s%d, s%d, 0" % (base + 1, base + 1))

    def store2(text):
        n = len(A.lines)
        A("s_cmp_eq_u32 s%d, 0" % sFAST)
        A("s_cbranch_scc1 Lsl%d" % n)
        for t in text:
            A(t)
        A("s_branch Lsd%d" % n)
        A.label("Lsl%d" % n)
        for t in text:
            A(t + " sc1")
        A.label("Lsd%d" % n)

    def maxtree(dst, regs):
        regs = list(regs)
        A("v_max3_u32 %s, %s, %s, %s" % (V(dst), V(regs[0]), V(regs[1]), V(regs[2])))
        regs = regs[3:]
        while len(regs) >= 2:
            A("v_max3_u32 %s, %s, %s, %s" % (V(dst), V(dst), V(regs[0]), V(regs[1])))
            regs = regs[2:]
        if regs:
            A("v_max_u32 %s, %s, %s" % (V(dst), V(dst), V(regs[0])))

    retries = []

    def poll_tail(label, tmp, mask=None, far=False):
        A("v_cmp_eq_u32 vcc, -1, %s" % V(tmp))
        if mask:
            A("s_or_b32 vcc_lo, vcc_lo, vcc_hi")
            A("s_and_b32 vcc_lo, vcc_lo, %s" % mask)
            A("s_cbranch_scc0 %s_ok" % label)
        elif far:
            A("s_cbranch_vccnz %s_again" % label)
            A.label("%s_ok" % label)
            retries.append(label)
            return
        else:
            A("s_cbranch_vccz %s_ok" % label)
        A("s_sub_u32 s%d, s%d, 1" % (sCNT, sCNT))
        A("s_cbranch_scc0 %s" % label)
        A("s_mov_b32 s%d, 0" % sCNT)
        A.label("%s_ok" % label)

    DPP = " row_mask:0xf bank_mask:0xf"

    def stats_lane(t):
        x = lambda i: V(vXA + 2 * i, 2)
        a, b, q = V(t, 2), V(t + 2, 2), V(t + 4, 2)
        S, Q = t + 6, t + 7
        A("v_pk_add_f32 %s, %s, %s" % (a, x(0), x(1)))
        A("v_pk_mul_f32 %s, %s, %s" % (q, x(0), x(0)))
        A("v_pk_add_f32 %s, %s, %s" % (b, x(2), x(3)))
        A("v_pk_fma_f32 %s, %s, %s, %s" % (q, x(1), x(1), q))
        A("v_pk_add_f32 %s, %s, %s" % (a, a, b))
        A("v_pk_fma_f32 %s, %s, %s, %s" % (q, x(2), x(2), q))
        A("v_add_f32 %s, %s, %s" % (V(S), V(t), V(vXA + 8)))
        A("v_pk_fma_f32 %s, %s, %s, %s" % (q, x(3), x(3), q))
        A("v_add_f32 %s, %s, %s" % (V(S), V(S), V(t + 1)))
        A("v_fma_f32 %s, %s, %s, %s" % (V(Q), V(vXA + 8), V(vXA + 8), V(t + 4)))
        A("v_add_f32 %s, %s, %s" % (V(Q), V(Q), V(t + 5)))

    WAVE6 = ("quad_perm:[1,0,3,2]" + DPP, "quad_perm:[2,3,0,1]" + DPP, "row_half_mirror" + DPP,
             "row_mirror" + DPP, "row_bcast:15 row_mask:0xa bank_mask:0xf", "row_bcast:31 row_mask:0xc bank_mask:0xf")

    def stats_wave(t, twice):
        S, Q = t + 6, t + 7
        o = []
        for ctl in WAVE6:
            o.append("v_add_f32_dpp %s, %s, %s %s" % (V(S), V(S), V(S), ctl))
            o.append("v_add_f32_dpp %s, %s, %s %s" % (V(Q), V(Q), V(Q), ctl))
        o.append("v_readlane_b32 s%d, %s, 63" % (sT0, V(S)))
        o.append("v_readlane_b32 s%d, %s, 63" % (sT1, V(Q)))
        c, e = (vC1, vEPS2) if twice else (vINV, vEPS)
        o.append("v_mul_f32 %s, s%d, %s" % (V(t), sT0, V(vINV)))
        if twice:
            o.append("v_mul_f32 %s, s%d, %s" % (V(t + 2), sT0, V(vC1)))
        o.append("v_fma_f32 %s, s%d, %s, %s" % (V(t + 1), sT1, V(c), V(e)))
        o.append("v_fma_f32 %s, -%s, %s, %s" % (V(t + 1), V(t + 2 if twice else t), V(t), V(t + 1)))
        o.append("v_max_f32 %s, %s, %s" % (V(t + 1), V(e), V(t + 1)))
        o.append("v_rsq_f32 %s, %s" % (V(t + 2), V(t + 1)))
        return o

    def normalize(dst, t, r):
        A("v_mul_f32 %s, %s, %s" % (V(t + 4), V(t), V(r)))
        for i in range(4):
            A("v_pk_fma_f32 %s, %s, %s, %s op_sel_hi:[1,0,0] neg_lo:[0,0,1] neg_hi:[0,0,1]" % (
                V(dst + 2 * i, 2), V(vXA + 2 * i, 2), bc(r), bc(t + 4)))
        A("v_fma_f32 %s, %s, %s, -%s" % (V(dst + 8), V(vXA + 8), V(r), V(t + 4)))

    def reduce8(o, ml, M, e, norm, mid=None, fill=()):
        A("v_max_f32_dpp %s, %s, %s quad_perm:[1,0,3,2]%s" % (V(M), V(ml), V(ml), DPP))
        for l in fill[:2]:
            A(l)
        A("v_max_f32_dpp %s, %s, %s quad_perm:[2,3,0,1]%s" % (V(M), V(M), V(M), DPP))
        for l in fill[2:]:
            A(l)
        A("v_max_f32_dpp %s, %s, %s row_half_mirror%s" % (V(M), V(M), V(M), DPP))
        A("v_sub_f32 %s, %s, %s" % (V(e), V(ml), V(M)))
        A("v_exp_f32 %s, %s" % (V(e), V(e)))
        A("v_mov_b32 %s, %s" % (V(ml), V(M)))
        if mid:
            A(mid)
        A("v_mul_f32 %s, %s, %s" % (V(ml + 1), V(ml + 1), V(e)))
        for i in range(2):
            A("v_pk_mul_f32 %s, %s, %s op_sel_hi:[1,0]" % (V(o + 2 * i, 2), V(o + 2 * i, 2), bc(e)))
        for ctl in ("quad_perm:[1,0,3,2]", "quad_perm:[2,3,0,1]", "row_half_mirror"):
            for r in (ml + 1, o, o + 1, o + 2, o + 3):
                A("v_add_f32_dpp %s, %s, %s %s%s" % (V(r), V(r), V(r), ctl, DPP))
        if norm:
            A("v_rcp_f32 %s, %s" % (V(e), V(ml + 1)))
            for i in range(2):
                A("v_pk_mul_f32 %s, %s, %s op_sel_hi:[1,0]" % (V(o + 2 * i, 2), V(o + 2 * i, 2), bc(e)))

    vXR = vA + 20
    aK, aV, aW = vA, vA + 1, vA + 2

    aK2, aV2, aD, vFL = vWO, vWO + 1, vWO + 2, vWO + 4

    def win():
        if WIN < 63:
            A("s_waitcnt vmcnt(%d)" % (WIN - 1))

    def dma8(base, lds):
        A("s_mul_i32 s%d, s%d, 8704" % (sT1, sWV))
        for i in range(8):
            A("s_add_u32 m0, s%d, %d" % (sT1, lds + 1088 * i - 1024 * (i & 3)))
            win()
            A("global_load_lds_dwordx4 %s, %s offset:%d%s" % (V(aD + (i >> 2)), sp(base), 1024 * (i & 3), NTKV))

    def kloads(aK, lo, hi):
        for T in range(2):
            if T == 1 and FEARLY:
                look()
            for hf in range(2):
                for sub in range(2):
                    if not lo <= 4 * T + 2 * hf + sub < hi:
                        continue
                    win()
                    A("global_load_dwordx4 %s, %s, %s offset:%d%s" % (
                        V(vK + 16 * T + 4 * (2 * hf + sub), 4), V(aK), sp(sK), (16 * T + 8 * sub) * 256 + hf * 128 - 4096, NTKV))

    def look():
        A("s_cmp_lg_u32 s%d, 0" % sWV)
        A("s_cbranch_scc1 Lnolook")
        A("v_lshlrev_b32 v250, 2, v1")
        A("global_load_dword %s, v250, %s sc1" % (V(vFL), sp(sDBG)))
        A.label("Lnolook")

    def vload(i, aV):
        win()
        A("global_load_dwordx4 %s, %s, %s offset:%d%s" % (
            V(vVR + 4 * i, 4), V(aV), sp(sV), (16 * (i >> 2) + (i & 3)) * 256 - 4096, NTKV))

    def spin_tail(name, count):
        A("s_cmp_ge_u32 s%d, %s" % (sT0, count))
        A("s_cbranch_scc1 %s_ok" % name)
        A("s_sub_u32 s%d, s%d, 1" % (sCNT, sCNT))
        A("s_cbranch_scc0 %s" % name)
        A("s_mov_b32 s%d, 0" % sCNT)
        A.label("%s_ok" % name)

    def arrive_wait(off, count, name):
        A("v_mov_b32 v252, %d" % (FLG + off))
        A("v_mov_b32 v253, 1")
        A("s_mov_b64 exec, 1")
        A("ds_add_u32 v252, v253")
        A("s_mov_b64 exec, -1")
        if name is None:
            return
        A.label(name)
        A("ds_read_b32 v253, v252")
        A("s_waitcnt lgkmcnt(0)")
        A("v_readfirstlane_b32 s%d, v253" % sT0)
        spin_tail(name, "%d" % count)

    def mark_v():
        A("s_lshl_b32 s%d, 1, s%d" % (sT0, sWV))
        A("v_mov_b32 v252, %d" % (FLG + 24))
        A("v_mov_b32 v253, s%d" % sT0)
        A("s_mov_b64 exec, 1")
        A("ds_or_b32 v252, v253")
        A("s_mov_b64 exec, -1")

    def spin(off, count, name):
        A("v_mov_b32 v252, %d" % (FLG + off))
        A.label(name)
        A("ds_read_b32 v253, v252")
        A("s_waitcnt lgkmcnt(0)")
        A("v_readfirstlane_b32 s%d, v253" % sT0)
        spin_tail(name, "%d" % count)

    A.label(NAME)
    A("s_cmp_ge_u32 s2, 0x100")
    A("s_cbranch_scc1 Lend")
    if DELAY:
        A("v_readfirstlane_b32 s4, v0")
        A("s_lshl_b32 s4, s4, 2")
        A("s_or_b32 s4, s4, s2")
        A("s_and_b32 s4, s4, %d" % DELAY[0])
        A("s_cmp_lg_u32 s4, %d" % DELAY[1])
        A("s_cbranch_scc1 Lnodelay")
        for i in range(DELAY[2]):
            A("s_sleep 127")
        A.label("Lnodelay")
    if DIAG:
        A("s_memrealtime s[98:99]")
    A("s_load_dwordx16 s[4:19], s[0:1], 0")
    A("s_load_dwordx8 s[20:27], s[0:1], 64")
    A("s_load_dwordx2 s[28:29], s[0:1], 96")
    A("v_lshrrev_b32 v24, 6, v0")
    A("v_and_b32 v1, 63, v0")
    A("v_readfirstlane_b32 s%d, v24" % sWV)
    if PREF:
        A("s_cmp_lg_u32 s%d, 3" % sWV)
        A("s_cbranch_scc1 Lnopref")
        A("s_getpc_b64 %s" % sp(sHQ))
        A.label("Lpc")
        A("v_lshlrev_b32 v24, 7, v1")
        A("v_add_u32 v25, 0x2000, v24")
        A("v_min_u32 v25, Lcode_end-Lpc-4, v25")
        A("global_load_dword v198, v24, %s" % sp(sHQ))
        A("global_load_dword v199, v25, %s" % sp(sHQ))
        A.label("Lnopref")
    A("s_and_b32 s%d, s2, 7" % sT0)
    A("s_lshr_b32 s%d, s2, 3" % sT1)
    A("s_lshr_b32 s%d, s%d, 4" % (sT2, sT1))
    A("s_lshl_b32 s%d, s%d, 1" % (sHKV, sT0))
    A("s_add_u32 s%d, s%d, s%d" % (sHKV, sHKV, sT2))
    A("s_bfe_u32 s%d, s%d, 0x10003" % (sB, sT1))
    A("s_and_b32 s%d, s%d, 7" % (sS, sT1))
    A("s_lshl_b32 s%d, s%d, 4" % (sGID, sB))
    A("s_add_u32 s%d, s%d, s%d" % (sGID, sGID, sHKV))
    A("s_lshr_b32 s%d, s%d, 1" % (sP, sS))
    A("v_lshlrev_b32 v28, 2, v1")
    A("v_lshlrev_b32 v29, 1, v1")
    A("v_mov_b32 %s, 0" % V(vB2))
    A("v_mov_b32 v248, 0")
    A("v_and_b32 v24, 15, v1")
    A("v_lshrrev_b32 v25, 4, v1")
    A("v_and_b32 v26, 7, v1")
    A("v_lshrrev_b32 v27, 3, v1")
    A("v_and_b32 v249, 1, v27")
    A("v_lshl_add_u32 v249, v249, 2, v25")
    A("v_lshlrev_b32 v249, 4, v249")
    A("v_lshl_add_u32 %s, v26, 8, v249" % V(aK))
    A("v_lshlrev_b32 v249, 4, v24")
    A("v_lshl_add_u32 %s, v25, 10, v249" % V(aV))
    oX, oKV, oWQ = sH, sH + 1, sH + 2
    A("s_mul_i32 s%d, s%d, 1152" % (oX, sB))
    A("s_lshl_b32 s%d, s%d, 21" % (oKV, sGID))
    A("s_lshl_b32 s%d, s%d, 16" % (sT1, sS))
    A("s_add_u32 s%d, s%d, s%d" % (oKV, oKV, sT1))
    A("s_lshl_b32 s%d, s%d, 13" % (sT1, sWV))
    A("s_add_u32 s%d, s%d, s%d" % (oKV, oKV, sT1))
    A("s_add_u32 s%d, s%d, %d" % (oKV, oKV, 6144 * 256 + 4096))

    def bases():
        for (r, base, mul, src) in ((sHQ, W_HQ, 2048, sGID), (sHO, W_HO, 8192, sGID), (sHX, W_HX, 18432, sB)):
            A("s_mul_i32 s%d, s%d, %d" % (sT0, src, mul))
            if base:
                A("s_add_u32 s%d, s%d, %d" % (sT0, sT0, base))
            A("s_add_u32 s%d, s%d, s%d" % (r, sWS, sT0))
            A("s_addc_u32 s%d, s%d, 0" % (r + 1, sWS + 1))

    A("s_cmp_gt_u32 s%d, 3" % sWV)
    A("s_cbranch_scc1 Lrole_b")
    if APRIO:
        A("s_setprio %d" % APRIO)
    A("s_mul_i32 s%d, s%d, %d" % (oWQ, sP, 144 * 8192))
    A("s_lshl_b32 s%d, s%d, 9" % (sT1, sHKV))
    A("s_add_u32 s%d, s%d, s%d" % (oWQ, oWQ, sT1))
    A("s_and_b32 s%d, s%d, 1" % (sT1, sS))
    A("s_lshl_b32 s%d, s%d, 8" % (sT1, sT1))
    A("s_add_u32 s%d, s%d, s%d" % (oWQ, oWQ, sT1))
    A("s_lshl_b32 s%d, s%d, 15" % (sT1, sWV))
    A("s_add_u32 s%d, s%d, s%d" % (oWQ, oWQ, sT1))
    A("v_lshlrev_b32 v249, 2, v25")
    A("v_xor_b32 v249, v249, v24")
    A("v_lshlrev_b32 v249, 4, v249")
    A("v_lshl_add_u32 %s, v25, 13, v249" % V(aW))
    A("v_mov_b32 v249, %d" % FLG)
    A("ds_write2_b32 v249, v248, v248 offset0:1 offset1:2")
    A("ds_write2_b32 v249, v248, v248 offset0:3 offset1:4")
    A("ds_write2_b32 v249, v248, v248 offset0:5 offset1:6")
    A("ds_write_b32 v249, v248 offset:28")
    A("v_lshlrev_b32 %s, 4, v1" % V(aD))
    A("v_add_u32 %s, %d, %s" % (V(aD), 32768 - 4096, V(aD)))
    A("v_add_u32 %s, 4096, %s" % (V(aD + 1), V(aD)))
    A("s_getreg_b32 s%d, hwreg(HW_REG_XCC_ID, 0, 4)" % sXCC)
    A("s_cmp_lg_u32 s%d, 2" % sWV)
    A("s_cbranch_scc1 Linit_a")
    for i in range(4):
        A("v_mov_b32 %s, -1" % V(244 + i))
    A("s_lshl_b32 s%d, s%d, 13" % (sT1, sGID))
    A("s_lshl_b32 s%d, s%d, 10" % (sT2, sS))
    A("s_add_u32 s%d, s%d, s%d" % (sT1, sT1, sT2))
    A("s_add_u32 s%d, s%d, %d" % (sT1, sT1, W_HO))
    A("v_lshl_add_u32 v251, v1, 4, s%d" % sT1)
    A("v_add_u32 v252, %d, v251" % L_HO)
    A("s_lshl_b32 s%d, s%d, 8" % (sT1, sS))
    A("s_lshl_b32 s%d, s%d, 11" % (sT2, sGID))
    A("s_add_u32 s%d, s%d, s%d" % (sT1, sT1, sT2))
    A("v_lshl_add_u32 v249, v1, 4, s%d" % sT1)

    def seg(first, sreg, const):
        A("v_cmp_le_u32 vcc, %d, v1" % first)
        A("s_add_u32 s%d, s%d, %d" % (sT0, sreg, const - 16 * first))
        A("v_lshl_add_u32 v250, v1, 4, s%d" % sT0)
        A("v_cndmask_b32 v249, v249, v250, vcc")

    seg(16, sT1, W_HQ + L_HQ)
    A("s_lshl_b32 s%d, s2, 5" % sT1)
    for r in range(TREP):
        seg(32 + 2 * r, sT1, W_HT + 8192 * r)
    per = (9 * (NREP + 1) + 7) // 8
    A("v_min_u32 v243, %d, v27" % (per - 1))
    A("s_mul_i32 s%d, s%d, %d" % (sT0, sS, per))
    A("v_add_u32 v243, s%d, v243" % sT0)
    A("v_min_u32 v243, %d, v243" % (9 * (NREP + 1) - 1))
    A("v_mul_u32_u24 v250, 7282, v243")
    A("v_lshrrev_b32 v250, 16, v250")
    A("v_mul_u32_u24 v250, %d, v250" % (L_HX - 1152))
    A("v_lshl_add_u32 v243, v243, 7, v250")
    A("v_lshl_add_u32 v243, v26, 4, v243")
    A("s_mul_i32 s%d, s%d, 1152" % (sT0, sGID))
    A("s_add_u32 s%d, s%d, %d" % (sT0, sT0, W_HX))
    A("v_add_u32 v243, s%d, v243" % sT0)
    A("s_waitcnt lgkmcnt(0)")
    A("global_store_dwordx4 v251, v[244:247], %s sc1" % sp(sWS))
    A("global_store_dwordx4 v252, v[244:247], %s sc1" % sp(sWS))
    A("global_store_dwordx4 v243, v[244:247], %s sc1" % sp(sWS))
    A("s_mov_b32 exec_hi, %d" % (4 ** TREP - 1))
    A("global_store_dwordx4 v249, v[244:247], %s sc1" % sp(sWS))
    A("s_mov_b32 exec_hi, -1")
    A.label("Linit_a")
    A("s_waitcnt lgkmcnt(0)")
    stamp("start")
    if DIAG:
        A("s_memtime s[100:101]")
        A("s_waitcnt lgkmcnt(0)")
    add64(sX, "s%d" % oX)
    add64(sWQ, "s%d" % oWQ)
    A("global_load_short_d16_hi %s, v248, %s" % (V(vB2), sp(sB2)))
    for i in range(4):
        A("global_load_dword %s, v28, %s offset:%d" % (V(vXR + i), sp(sX), 256 * i))
    A("global_load_ushort %s, v29, %s offset:1024" % (V(vXR + 4), sp(sX)))
    add64(sK, "s%d" % oKV)
    add64(sV, "s%d" % oKV)
    A("s_lshl_b32 s%d, s%d, 10" % (sT1, sWV))
    for i in range(9):
        if i == PREB:
            A("s_barrier")
        A("s_add_u32 m0, s%d, %d" % (sT1, WQS + 4096 * i))
        if i:
            A("v_add_u32 %s, 0x20000, %s" % (V(aW), V(aW)))
        A("global_load_lds_dwordx4 %s, %s%s" % (V(aW), sp(sWQ), NTW))
    A("s_cmp_lg_u32 s%d, 2" % sWV)
    A("s_cbranch_scc1 Lnoflag")
    A("s_or_b32 s%d, s%d, 0x80" % (sT0, sXCC))
    A("s_and_b32 s%d, s2, 3" % sT1)
    A("s_lshl_b32 s%d, s%d, 3" % (sT1, sT1))
    A("s_lshl_b32 s%d, s%d, s%d" % (sT0, sT0, sT1))
    A("s_and_b32 s%d, s2, 0xfc" % sT1)
    A("v_mov_b32 v249, s%d" % sT1)
    A("v_mov_b32 v250, s%d" % sT0)
    A("s_waitcnt vmcnt(15)")
    A("s_mov_b64 exec, 1")
    A("global_atomic_or v249, v250, %s sc1" % sp(sDBG))
    A("s_mov_b64 exec, -1")
    A.label("Lnoflag")
    dma8(sK, KB)
    kloads(aK, 0, KQ)
    bases()
    A("s_call_b64 %s, Laddr" % sp(sRET))
    A("v_bfe_u32 v248, v1, 2, 2")
    A("v_xor_b32 v249, s%d, v248" % sWV)
    A("v_and_b32 v250, 3, v1")
    A("v_lshl_add_u32 v249, v249, 2, v250")
    A("v_lshlrev_b32 v249, 4, v249")
    A("v_lshl_add_u32 v249, v248, 8, v249")
    A("v_add_u32 v249, %d, v249" % WQS)
    A("v_lshrrev_b32 v250, 4, v1")
    A("v_lshl_add_u32 v248, v250, 10, v249")
    A("v_lshl_add_u32 v249, v250, 11, v249")
    for i in range(4):
        A("v_mov_b32 %s, 0x3f803f80" % V(244 + i))
    A("v_mov_b32 %s, %s" % (V(aV2), V(aV)))
    A("v_mov_b32 %s, %s" % (V(aK2), V(aK)))
    aV = aV2
    A("s_waitcnt vmcnt(%d)" % (8 + KQ))
    arrive_wait(4, 4, "Lsync_a")
    stamp("wq")
    for u in range(2):
        for ks in range(4):
            for hh in range(2):
                A("ds_read_b64_tr_b16 %s, v249 offset:%d" % (V(vWQ + 18 * u + 4 * ks + 2 * hh, 2), (32 * ks + 4 * hh) * 256 + 8 * u))
        A("ds_read_b64_tr_b16 %s, v248 offset:%d" % (V(vWQ + 18 * u + 16, 2), 128 * 256 + 8 * u))
    A("s_waitcnt lgkmcnt(0)")
    for ks in range(4):
        for u in range(2):
            A("v_mfma_f32_16x16x32_bf16 %s, %s, v[244:247], %s" % (
                V(vSQ + 4 * u, 4), V(vWQ + 18 * u + 4 * ks, 4), V(vSQ + 4 * u, 4) if ks else "0"))
    A("s_nop 5")
    for u in range(2):
        A("v_mfma_f32_16x16x16_bf16 %s, %s, v[244:245], %s" % (V(vSQ + 4 * u, 4), V(vWQ + 18 * u + 16, 2), V(vSQ + 4 * u, 4)))
    A("s_mov_b32 s%d, -1" % sYW)
    for r, m in ((sQM, 0x00110011), (sBM, 0x00010001), (sOM, 0x01010101)):
        A("s_mov_b32 s%d, %s" % (r, hx(m)))
        A("s_mov_b32 s%d, %s" % (r + 1, hx(m)))
    A("s_call_b64 %s, Lqstage" % sp(sRET))
    A("s_mov_b32 s%d, 0" % sYW)
    arrive_wait(4, 0, None)
    stamp("q0")
    if not FEARLY:
        look()
    kloads(aK2, KQ, 8)
    dma8(sV, VB)
    A("s_waitcnt vmcnt(16)")
    arrive_wait(12, 0, None)
    A("s_call_b64 %s, Lsel" % sp(sRET))
    A("s_cmp_eq_u32 s%d, 0" % sWV)
    A("s_cbranch_scc1 Lwave0")
    for i in range(8):
        vload(i, aV)
    stamp("iss")
    A("s_cmp_lg_u32 s%d, 3" % sWV)
    A("s_cbranch_scc1 Lnox0")
    for i in range(4):
        A("ds_write_b64 %s, %s offset:%d" % (V(lXP), V(vXA + 2 * i, 2), 512 * i))
    A("ds_write_b32 %s, %s" % (V(lXS), V(vXA + 8)))
    A.label("Lnox0")
    def woaddr(half):
        A("s_mul_i32 s%d, s%d, %d" % (sT0, sHKV, 256 * 1152))
        A("s_mul_i32 s%d, s%d, 144" % (sT1, sS))
        A("s_add_u32 s%d, s%d, s%d" % (sT0, sT0, sT1))
        if half:
            A("s_add_u32 s%d, s%d, %d" % (sT0, sT0, 128 * 1152))
        add64(sWO, "s%d" % sT0)
        A("s_mul_i32 s%d, s%d, 48" % (sT0, sWV))
        A("s_sub_u32 s%d, s%d, %d" % (sT0, sT0, 48 * (1 + 4 * half)))
        A("v_min_u32 v248, 47, v1")
        A("v_add_u32 v248, s%d, v248" % sT0)
        A("v_mul_u32_u24 v250, 7282, v248")
        A("v_lshrrev_b32 v250, 16, v250")
        A("v_mul_u32_u24 v250, %d, v250" % (9216 - 144))
        A("v_lshl_add_u32 v232, v248, 4, v250")

    woaddr(0)
    A("s_waitcnt vmcnt(16)")
    A("s_call_b64 %s, Lkshuf" % sp(sRET))
    spin(4, 9, "Lsync_wo")

    def woloads(lo, hi, window, first=1):
        A("s_mul_i32 s%d, s%d, 768" % (sT1, sWV))
        A("s_mov_b32 exec_hi, 0xffff")
        for i in range(lo, hi):
            A("s_add_u32 m0, s%d, %d" % (sT1, WOS - 768 * first + 2304 * i))
            if i and not (first == 5 and i == lo):
                add64(sWO, "%d" % (1152 * (121 if i == 8 else 1)))
            if window(i) < 63:
                A("s_waitcnt vmcnt(%d)" % (window(i) - 1))
            A("global_load_lds_dwordx4 v232, %s%s" % (sp(sWO), NTW))
        A("s_mov_b32 exec_hi, -1")

    if VPRE:
        woloads(0, 4, lambda i: WIN1)
        A("s_waitcnt vmcnt(12)")
        mark_v()
        woloads(4, WO1, lambda i: WIN1)
    else:
        woloads(0, WO1, lambda i: WIN1)
        A("s_waitcnt vmcnt(%d)" % (8 + WO1))
    stamp("wo")
    A("s_branch Lmeet")
    A.label("Lwave0")
    A("s_lshr_b32 s%d, s2, 6" % sT0)
    A("s_lshl_b32 s%d, s%d, 4" % (sT0, sT0))
    A("s_bfe_u32 s%d, s2, 0x10002" % sT1)
    A("s_add_u32 s%d, s%d, s%d" % (sT0, sT0, sT1))
    A("s_mov_b64 %s, 0x5555" % sp(sMSK))
    A("s_lshl_b64 %s, %s, s%d" % (sp(sMSK), sp(sMSK), sT0))
    A("s_and_b32 s%d, s2, 3" % sT2)
    A("s_lshl_b32 s%d, s%d, 3" % (sT2, sT2))
    A("v_lshlrev_b32 v250, 2, v1")
    A("s_waitcnt vmcnt(%d)" % (12 if FEARLY else FLW if FLW else 16 - KQ))
    A("s_branch Lflagchk")
    A.label("Lflagpoll")
    A("s_sleep 8")
    A("global_load_dword %s, v250, %s sc1" % (V(vFL), sp(sDBG)))
    A("s_waitcnt vmcnt(0)")
    A.label("Lflagchk")
    A("v_bfe_u32 v251, %s, s%d, 8" % (V(vFL), sT2))
    A("v_cmp_gt_u32 vcc, 0x80, v251")
    A("s_and_b64 vcc, vcc, %s" % sp(sMSK))
    A("s_cbranch_scc0 Lflagok")
    A("s_sub_u32 s%d, s%d, 1" % (sCNT, sCNT))
    A("s_cbranch_scc0 Lflagpoll")
    A("s_mov_b32 s%d, 0" % sCNT)
    A.label("Lflagok")
    stamp("fl")
    for i in range(QPOS):
        vload(i, aV)
    for h in range(2):
        A("global_load_dwordx4 %s, %s, %s offset:%d sc1" % (V(vQ + 4 * h, 4), V(aHQG), sp(sHQ), 256 * h))
    A("global_load_dword %s, v250, %s sc1" % (V(vA), sp(sDBG)))
    A("v_and_b32 v251, 15, v251")
    A("v_cmp_ne_u32 vcc, s%d, v251" % sXCC)
    A("v_mov_b32 v251, %d" % FLG)
    A("s_and_b64 vcc, vcc, %s" % sp(sMSK))
    A("s_cselect_b32 s%d, 0, %d" % (sT0, 0 if FORCE_SLOW else 1))
    A("v_mov_b32 v253, s%d" % sT0)
    A("ds_write_b32 v251, v253")
    arrive_wait(4, 0, None)
    for i in range(QPOS, 8):
        vload(i, aV)
    stamp("iss")
    A("s_call_b64 %s, Lkshuf" % sp(sRET))
    if VPRE:
        A("s_waitcnt vmcnt(11)")
        mark_v()
    A("s_waitcnt vmcnt(%d)" % (8 - QPOS))
    A("s_branch Lq0chk")
    A.label("Lq0poll")
    A("s_sleep 2")
    for h in range(2):
        A("global_load_dwordx4 %s, %s, %s offset:%d sc1" % (V(vQ + 4 * h, 4), V(aHQG), sp(sHQ), 256 * h))
    A("global_load_dword %s, v250, %s sc1" % (V(vA), sp(sDBG)))
    A("s_waitcnt vmcnt(0)")
    A.label("Lq0chk")
    for h in range(2):
        A("v_mfma_f32_16x16x32_bf16 %s, %s, %s, 0" % (V(vS + 4 * h, 4), V(vSEL, 4), V(vQ + 4 * h, 4)))
    maxtree(vM, range(vQ, vQ + 8))
    A("v_and_b32 %s, 0x80808080, %s" % (V(vA), V(vA)))
    A("v_cmp_ne_u32 vcc, 0x80808080, %s" % V(vA))
    A("v_cndmask_b32 %s, %s, -1, vcc" % (V(vM), V(vM)))
    poll_tail("Lq0poll", vM)
    for i in range(4):
        A("v_cvt_pk_bf16_f32 %s, %s, %s" % (V(vQ + i), V(vS + 2 * i), V(vS + 2 * i + 1)))
    A("s_mov_b32 exec_hi, 0")
    for h in range(2):
        A("ds_write_b64 %s, %s offset:%d" % (V(lQW), V(vQ + 2 * h, 2), 256 * h))
    A("s_mov_b32 exec_hi, -1")
    A("s_branch Lmeet")
    aK, aV = vA, vA + 1
    A.label("Lrole_b")
    if BPRIO:
        A("s_setprio %d" % BPRIO)
    A("v_subrev_u32 v31, 0x100, v0")
    A("v_lshlrev_b32 v30, 4, v31")
    A("v_add_u32 v249, 0x1000, v30")
    A("v_lshlrev_b32 v31, 2, v31")
    A("v_add_u32 v31, 0x2000, v31")
    A("s_waitcnt lgkmcnt(0)")
    stamp("start")
    if DIAG:
        A("s_memtime s[100:101]")
        A("s_waitcnt lgkmcnt(0)")
    for i in range(3):
        r, p = vRW + 10 * i, sp((sW1, sB1, sW2)[i])
        A("global_load_dwordx4 %s, v30, %s" % (V(r, 4), p))
        A("global_load_dwordx4 %s, v249, %s" % (V(r + 4, 4), p))
        A("global_load_dword %s, v31, %s" % (V(r + 8), p))
    A("global_load_short_d16_hi %s, v248, %s" % (V(vB2), sp(sB2)))
    A("s_barrier")
    stamp("iss")
    bases()
    A("s_call_b64 %s, Laddr" % sp(sRET))
    A("s_and_b32 s%d, s2, 127" % sT0)
    A("s_lshl_b32 s%d, s%d, 4" % (sT0, sT0))
    A("s_add_u32 s%d, s%d, %d" % (sT0, sT0, E0))
    A("s_lshr_b32 s%d, s2, 7" % sT1)
    A("s_lshl_b32 s%d, s%d, 15" % (sT1, sT1))
    A("s_add_u32 s%d, s%d, s%d" % (sT0, sT0, sT1))
    A("v_add_u32 v249, s%d, v1" % sT0)
    A("v_lshlrev_b32 v249, 16, v249")
    A("v_mul_f32 v249, %s, v249" % fl(SC))
    A("v_mov_b32 %s, %s" % (V(vKAP), fl(KAP)))
    A("v_mov_b32 %s, %s" % (V(vONE), fl(2.0 ** -60) if TAB2 else "1.0"))
    A("v_mov_b32 %s, %s" % (V(vONE + 2), fl(-60.0)))
    A("v_mov_b32 %s, %s" % (V(vSCL), fl(SC)))
    for i in range(16):
        A("v_readlane_b32 s%d, v249, %d" % (sH + i, i))
        A("v_mov_b32 %s, 0" % V(vACC + i))
    A("s_mov_b32 s%d, 0" % sT3)
    A("s_waitcnt vmcnt(0)")
    stamp("wq")
    A.label("Ltabloop")
    A("s_set_gpr_idx_on s%d, gpr_idx(SRC1)" % sT3)
    for i, d in enumerate((vCA, vCC, vCW)):
        A("v_lshlrev_b32 %s, 16, %s" % (V(d[0]), V(vRW + 10 * i)))
        A("v_and_b32 %s, 0xffff0000, %s" % (V(d[1]), V(vRW + 10 * i)))
    A("s_set_gpr_idx_off")
    for f in range(2):
        A("v_mul_f32 %s, %s, %s" % (V(vCC[f]), V(vCC[f]), V(vSCL)))
    if TAB2:
        def regs(k):
            b = 200 + 10 * (k % 3)
            return [b + 2 * i for i in range(5)]

        def stA(k):
            U0, U1, E0, E1, D = regs(k)
            o = ["v_pk_fma_f32 %s, %s, %s, %s op_sel_hi:[0,1,0]" % (V(U, 2), bc(vCA[f]), sp(sH + 2 * k), bc(vCC[f])) for f, U in enumerate((U0, U1))]
            o += ["v_pk_fma_f32 %s, %s, %s, %s op_sel_hi:[1,1,0]" % (V(E, 2), V(U, 2), V(U, 2), bc(vKAP)) for U, E in ((U0, E0), (U1, E1))]
            o += ["v_pk_fma_f32 %s, %s, %s, %s op_sel_hi:[1,1,0] neg_lo:[1,0,0] neg_hi:[1,0,0]" % (V(E, 2), V(E, 2), V(U, 2), bc(vONE + 2)) for U, E in ((U0, E0), (U1, E1))]
            return o

        def stX(k):
            U0, U1, E0, E1, D = regs(k)
            return ["v_exp_f32_e64 %s, %s clamp" % (V(r), V(r)) for r in (E0, E0 + 1, E1, E1 + 1)]

        def stW(k):
            U0, U1, E0, E1, D = regs(k)
            return ["v_pk_mul_f32 %s, %s, %s op_sel_hi:[1,0]" % (V(U, 2), V(U, 2), bc(vCW[f])) for f, U in enumerate((U0, U1))]

        def stC(k):
            U0, U1, E0, E1, D = regs(k)
            return ["v_pk_add_f32 %s, %s, %s op_sel_hi:[1,0]" % (V(E0, 2), V(E0, 2), bc(vONE)),
                    "v_pk_add_f32 %s, %s, %s op_sel_hi:[1,0]" % (V(E1, 2), V(E1, 2), bc(vONE)),
                    "v_pk_mul_f32 %s, %s, %s" % (V(D, 2), V(E0, 2), V(E1, 2)),
                    "v_pk_mul_f32 %s, %s, %s" % (V(U0, 2), V(U0, 2), V(E1, 2)),
                    "v_pk_fma_f32 %s, %s, %s, %s" % (V(U0, 2), V(U1, 2), V(E0, 2), V(U0, 2))]

        def stR(k):
            D = regs(k)[4]
            return ["v_rcp_f32 %s, %s" % (V(D + i), V(D + i)) for i in range(2)]

        def stF(k):
            U0, U1, E0, E1, D = regs(k)
            return ["v_pk_fma_f32 %s, %s, %s, %s" % (V(vACC + 2 * k, 2), V(U0, 2), V(D, 2), V(vACC + 2 * k, 2))]

        def pick(f, k, n):
            return f(k) if 0 <= k < 8 else [None] * n

        for l in stA(0):
            A(l)
        for i in range(10):
            X, C, F, W, R, P = pick(stX, i, 4), pick(stC, i - 1, 5), pick(stF, i - 2, 1), pick(stW, i, 2), pick(stR, i - 1, 2), pick(stA, i + 1, 6)
            for l in (X[0], C[0], C[1], X[1], C[2], C[3], X[2], C[4], F[0], X[3], W[0], W[1], R[0], P[0], P[1], P[2], R[1], P[3], P[4], P[5]):
                if l:
                    A(l)
    for f in range(0 if TAB2 else 2):
        for k2 in range(0 if NOTAB else 4):
            seq = []
            for h in range(2):
                k = 2 * k2 + h
                u, t, e, uw = (V(vTT + 8 * h + 2 * i, 2) for i in range(4))
                e0, e1 = vTT + 8 * h + 4, vTT + 8 * h + 5
                t0, t1 = vTT + 8 * h + 2, vTT + 8 * h + 3
                seq.append([
                    "v_pk_fma_f32 %s, %s, %s, %s op_sel_hi:[0,1,0]" % (u, bc(vCA[f]), sp(sH + 2 * k), bc(vCC[f])),
                    "v_pk_fma_f32 %s, %s, %s, %s op_sel_hi:[1,1,0]" % (t, u, u, bc(vKAP)),
                    "v_pk_mul_f32 %s, %s, %s neg_lo:[1,0] neg_hi:[1,0]" % (t, t, u),
                    "v_exp_f32 %s, %s" % (V(e0), V(t0)),
                    "v_exp_f32 %s, %s" % (V(e1), V(t1)),
                    "v_pk_mul_f32 %s, %s, %s op_sel_hi:[1,0]" % (uw, u, bc(vCW[f])),
                    "v_pk_add_f32 %s, %s, %s op_sel_hi:[1,0]" % (e, e, bc(vONE)),
                    "v_rcp_f32 %s, %s" % (V(e0), V(e0)),
                    "v_rcp_f32 %s, %s" % (V(e1), V(e1)),
                    "v_pk_fma_f32 %s, %s, %s, %s" % (V(vACC + 2 * k, 2), uw, e, V(vACC + 2 * k, 2)),
                ])
            s0, s1 = seq
            for l in (s0[0], s1[0], s0[1], s1[1], s0[2], s1[2], s0[3], s0[4], s1[3], s1[4], s0[5], s0[6], s1[5], s1[6],
                      s0[7], s0[8], s1[7], s1[8], s0[9], s1[9]):
                A(l)
    A("s_add_u32 s%d, s%d, 1" % (sT3, sT3))
    A("s_cmp_lt_u32 s%d, 9" % sT3)
    A("s_cbranch_scc1 Ltabloop")
    stamp("q0")
    for k in range(8):
        A("v_permlane32_swap_b32 %s, %s" % (V(vACC + 2 * k), V(vACC + 2 * k + 1)))
    for k in range(8):
        A("v_add_f32 %s, %s, %s" % (V(vACC + 2 * k), V(vACC + 2 * k), V(vACC + 2 * k + 1)))
    for k in range(4):
        A("v_permlane16_swap_b32 %s, %s" % (V(vACC + 4 * k), V(vACC + 4 * k + 2)))
    for k in range(4):
        A("v_add_f32 %s, %s, %s" % (V(vACC + 4 * k), V(vACC + 4 * k), V(vACC + 4 * k + 2)))
    for ctl in ("quad_perm:[1,0,3,2]", "quad_perm:[2,3,0,1]", "row_half_mirror", "row_mirror"):
        for k in range(4):
            A("v_add_f32_dpp %s, %s, %s %s%s" % (V(vACC + 4 * k), V(vACC + 4 * k), V(vACC + 4 * k), ctl, DPP))
    A("v_lshrrev_b32 v251, 5, v1")
    A("v_bfe_u32 v250, v1, 4, 1")
    A("v_lshl_add_u32 v251, v250, 1, v251")
    A("s_lshl_b32 s%d, s%d, 6" % (sT0, sWV))
    A("s_add_u32 s%d, s%d, %d" % (sT0, sT0, TRED - 256))
    A("v_lshl_add_u32 v251, v251, 2, s%d" % sT0)
    A("s_mov_b32 exec_lo, 0x00010001")
    A("s_mov_b32 exec_hi, 0x00010001")
    A("ds_write2_b32 v251, %s, %s offset0:0 offset1:4" % (V(vACC), V(vACC + 4)))
    A("ds_write2_b32 v251, %s, %s offset0:8 offset1:12" % (V(vACC + 8), V(vACC + 12)))
    A("s_mov_b64 exec, -1")
    if BPRIO:
        A("s_setprio 0")
    arrive_wait(8, 0, None)
    spin(12, 4, "Lsync_kv")
    A("s_cmp_lg_u32 s%d, 7" % sWV)
    A("s_cbranch_scc1 Lnotab")
    spin(8, 4, "Lsync_b")
    A("v_and_b32 v250, 15, v1")
    A("v_lshlrev_b32 v250, 2, v250")
    A("v_add_u32 v251, %d, v250" % TRED)
    for i in range(2):
        A("ds_read2_b32 %s, v251 offset0:%d offset1:%d" % (V(vS + 2 * i, 2), 32 * i, 32 * i + 16))
    A("s_waitcnt lgkmcnt(0)")
    A("v_pk_add_f32 %s, %s, %s" % (V(vS, 2), V(vS, 2), V(vS + 2, 2)))
    A("v_add_f32 %s, %s, %s" % (V(vS), V(vS), V(vS + 1)))
    A("v_mul_f32 %s, %s, %s" % (V(vS), fl((2.0 ** -60 if TAB2 else 1.0) / SC), V(vS)))
    A("v_cvt_pk_bf16_f32 %s, %s, %s" % (V(vS), V(vS), V(vS)))
    A("v_lshlrev_b32 %s, 16, %s" % (V(vS), V(vS)))
    A("v_add_f32 %s, %s, %s" % (V(vS), V(vS), V(vB2)))
    A("v_mov_b32_dpp %s, %s quad_perm:[1,1,3,3]%s" % (V(vS + 1), V(vS), DPP))
    A("v_cvt_pk_bf16_f32 %s, %s, %s" % (V(vS), V(vS), V(vS + 1)))
    A("v_lshrrev_b32 v250, 1, v250")
    A("s_lshl_b32 s%d, s2, 5" % sT0)
    A("s_add_u32 s%d, s%d, %d" % (sT0, sT0, W_HT))
    A("v_add_u32 v250, s%d, v250" % sT0)
    if TREP > 1:
        A("v_lshrrev_b32 v251, 4, v1")
        A("v_lshl_add_u32 v250, v251, 13, v250")
        A("s_mov_b32 exec_lo, 0x55555555")
        A("s_mov_b32 exec_hi, %s" % ("0x55555555" if TREP == 4 else "0"))
    else:
        A("s_mov_b64 exec, 0x5555")
    A("global_store_dword v250, %s, %s sc1" % (V(vS), sp(sWS)))
    A("s_mov_b64 exec, -1")
    A.label("Lnotab")
    A("v_bfe_u32 v249, v1, 2, 2")
    A("v_mul_u32_u24 v249, 1088, v249")
    A("v_and_b32 v250, 3, v1")
    A("v_lshl_add_u32 v249, v250, 8, v249")
    A("v_lshrrev_b32 v250, 4, v1")
    A("v_lshl_add_u32 v249, v250, 4, v249")
    A("v_mul_u32_u24 v250, 1088, v250")
    A("v_and_b32 v251, 15, v1")
    A("v_lshl_add_u32 v250, v251, 4, v250")
    A("s_mul_i32 s%d, s%d, 8704" % (sT1, sWV))
    A("s_add_u32 s%d, s%d, %d" % (sT2, sT1, KB - 4 * 8704))
    A("v_add_u32 v249, s%d, v249" % sT2)
    A("s_add_u32 s%d, s%d, %d" % (sT2, sT1, VB - 4 * 8704))
    A("v_add_u32 %s, s%d, v250" % (V(vA + 1), sT2))
    stamp("fl")
    for T in range(2):
        for ks in range(4):
            A("ds_read_b128 %s, v249 offset:%d" % (V(vK + 16 * T + 4 * ks, 4), T * 4352 + ks * 64))
    A("s_call_b64 %s, Lsel" % sp(sRET))
    if VPRE:
        A("s_sub_u32 s%d, s%d, 4" % (sT1, sWV))
        A("v_mov_b32 v252, %d" % (FLG + 24))
        A.label("Lsync_v")
        A("ds_read_b32 v253, v252")
        A("s_waitcnt lgkmcnt(0)")
        A("v_readfirstlane_b32 s%d, v253" % sT0)
        A("s_bitcmp1_b32 s%d, s%d" % (sT0, sT1))
        A("s_cbranch_scc1 Lsync_v_ok")
        A("s_sub_u32 s%d, s%d, 1" % (sCNT, sCNT))
        A("s_cbranch_scc0 Lsync_v")
        A("s_mov_b32 s%d, 0" % sCNT)
        A.label("Lsync_v_ok")
        for i in range(8):
            A("ds_read_b128 %s, %s offset:%d" % (V(vVR + 4 * i, 4), V(vA + 1), (i >> 2) * 4352 + (i & 3) * 256))
        A("s_waitcnt lgkmcnt(0)")
        A("s_branch Lv_perm")
        A.label("Lv_back")
    if WOB:
        assert WO1 == 8
        A("s_cmp_eq_u32 s%d, 4" % sWV)
        A("s_cbranch_scc1 Lmeet")
        woaddr(1)
        spin(4, 9, "Lsync_wo2")
        woloads(8, 16, lambda i: 63, 5)
    A.label("Lmeet")
    if APRIO:
        A("s_setprio 0")
    A("s_mov_b32 s%d, s%d" % (sSM2, sSMC))
    for r, m in ((sQM, 0x00110011), (sBM, 0x00010001), (sOM, 0x01010101)):
        A("s_mov_b32 s%d, %s" % (r, hx(m)))
        A("s_mov_b32 s%d, %s" % (r + 1, hx(m)))
    if NREP > 1:
        A("s_mov_b64 %s, %s" % (sp(sHXS), sp(sHX)))
        A("s_and_b32 s%d, s2, 7" % sT0)
        A("s_mul_i32 s%d, s%d, %d" % (sT0, sT0, NREP))
        A("s_lshr_b32 s%d, s%d, 3" % (sT0, sT0))
        A("s_mul_i32 s%d, s%d, %d" % (sT0, sT0, L_HX))
        A("s_add_u32 s%d, s%d, s%d" % (sHX, sHXS, sT0))
        A("s_addc_u32 s%d, s%d, 0" % (sHX + 1, sHXS + 1))
        A("s_sub_u32 s%d, %d, s%d" % (sXD, NREP * L_HX, sT0))
        A("s_mov_b32 s%d, -1" % sXM)
        A("s_mov_b32 s%d, 0x3fffff" % (sXM + 1))
    for i, r in enumerate((sHX1, sHX2, sHX3)):
        A("s_add_u32 s%d, s%d, %d" % (r, sHX, 4608 * (i + 1)))
        A("s_addc_u32 s%d, s%d, 0" % (r + 1, sHX + 1))
    A("s_mul_i32 s%d, s%d, 1280" % (sT0, sGID))
    A("s_add_u32 s%d, s%d, %d" % (sT0, sT0, W_HY))
    A("s_add_u32 s%d, s%d, s%d" % (sHY, sWS, sT0))
    A("s_addc_u32 s%d, s%d, 0" % (sHY + 1, sWS + 1))
    A("v_mov_b32 v251, %d" % FLG)
    A("s_waitcnt lgkmcnt(0)")
    A("s_barrier")
    stamp("tab")
    A("ds_read_b32 %s, v251" % V(vA + 1))
    A.label("Latt")
    if LM & 1:
        A("s_mov_b64 exec, %s" % sp(sQM))
    for ks in range(4):
        A("ds_read_b128 %s, %s offset:%d" % (V(vQ + 4 * ks, 4), V(aHQL), 64 * ks))
    if LM & 1:
        A("s_mov_b64 exec, -1")
    for ks in range(4):
        A("s_waitcnt lgkmcnt(%d)" % (3 - ks))
        for T in range(2):
            A("v_mfma_f32_16x16x32_bf16 %s, %s, %s, %s" % (
                V(vS + 4 * T, 4), V(vK + 16 * T + 4 * ks, 4), V(vQ + 4 * ks, 4), V(vS + 4 * T, 4) if ks else "0"))
    if not VPRE:
        A("s_cmp_eq_u32 s%d, 0" % sL)
        A("s_cbranch_scc1 Lv_read")
    A.label("Lv_read_done")
    stampL("qV")
    A("v_max3_f32 %s, %s, %s, %s" % (V(vM), V(vS), V(vS + 1), V(vS + 2)))
    A("v_max3_f32 %s, %s, %s, %s" % (V(vP), V(vS + 3), V(vS + 4), V(vS + 5)))
    A("v_max3_f32 %s, %s, %s, %s" % (V(vM), V(vM), V(vS + 6), V(vS + 7)))
    A("v_max_f32 %s, %s, %s" % (V(vP + 1), V(vM), V(vP)))
    A("v_max_f32 %s, %s, %s" % (V(vM), V(vM), V(vP)))
    A("v_permlane16_swap_b32 %s, %s" % (V(vM), V(vP + 1)))
    A("v_max_f32 %s, %s, %s" % (V(vP), V(vM), V(vP + 1)))
    A("v_max_f32 %s, %s, %s" % (V(vM), V(vM), V(vP + 1)))
    A("v_permlane32_swap_b32 %s, %s" % (V(vM), V(vP)))
    A("v_max_f32 %s, %s, %s" % (V(vM), V(vM), V(vP)))
    if PKS:
        A("v_mul_f32 %s, s%d, %s" % (V(vP), sSMC, V(vM)))
        A("v_mul_f32 %s, s%d, %s" % (V(vM), sSMC, V(vM)))
        for r in range(4):
            A("v_pk_fma_f32 %s, %s, %s, %s op_sel_hi:[1,0,0] neg_lo:[0,0,1] neg_hi:[0,0,1]" % (
                V(vS + 2 * r, 2), V(vS + 2 * r, 2), sp(sSM2), bc(vP)))
            if r:
                for h in range(2):
                    A("v_exp_f32 %s, %s" % (V(vS + 2 * r - 2 + h), V(vS + 2 * r - 2 + h)))
        for h in range(2):
            A("v_exp_f32 %s, %s" % (V(vS + 6 + h), V(vS + 6 + h)))
    else:
        A("v_mul_f32 %s, s%d, %s" % (V(vM), sSMC, V(vM)))
        for r in range(8):
            A("v_fma_f32 %s, %s, s%d, -%s" % (V(vS + r), V(vS + r), sSMC, V(vM)))
            if r:
                A("v_exp_f32 %s, %s" % (V(vS + r - 1), V(vS + r - 1)))
        A("v_exp_f32 %s, %s" % (V(vS + 7), V(vS + 7)))
    for r in range(4):
        A("v_cvt_pk_bf16_f32 %s, %s, %s" % (V(vP + r), V(vS + 2 * r), V(vS + 2 * r + 1)))
    A("s_cmp_eq_u32 s%d, 0" % sL)
    A("s_cbranch_scc1 Lv_wait")
    A.label("Lv_ready")
    stampL("sm")
    for j in range(8):
        A("v_mfma_f32_16x16x32_bf16 %s, %s, %s, 0" % (V(vA + 4 * j, 4), V(vP, 4), V(vVT + 4 * j, 4)))
    A("v_mfma_f32_16x16x32_bf16 %s, %s, %s, 0" % (V(vS, 4), V(vP, 4), V(vONES, 4)))
    A("s_mov_b32 exec_hi, 0")
    for j in range(0, 8, 2):
        A("ds_write2_b32 %s, %s, %s offset0:%d offset1:%d" % (V(lPW), V(vA + 4 * j), V(vA + 4 * j + 4), 16 * j, 16 * j + 16))
    A("s_mov_b32 exec_lo, 0x100001")
    A("ds_write2_b32 %s, %s, %s offset0:0 offset1:1" % (V(lMW), V(vM), V(vS)))
    A("s_mov_b64 exec, -1")
    if WOPOST:
        A("s_cmp_eq_u32 s%d, 0" % sL)
        A("s_cbranch_scc1 Lwo_rest")
        A.label("Lwo_back")
    A("s_waitcnt lgkmcnt(0)")
    stampL("pv")
    A("s_barrier")
    A("ds_read_b64 %s, %s" % (V(vA + 4, 2), V(lMR)))
    A("ds_read_b128 %s, %s" % (V(vA, 4), V(lPR)))
    A("s_waitcnt lgkmcnt(1)")
    reduce8(vA, vA + 4, vA + 7, vA + 6, False, "s_waitcnt lgkmcnt(0)")
    A("v_cvt_pk_bf16_f32 %s, %s, %s" % (V(vA + 3), V(vA + 2), V(vA + 3)))
    A("v_cvt_pk_bf16_f32 %s, %s, %s" % (V(vA + 2), V(vA), V(vA + 1)))
    A("s_mov_b64 exec, %s" % sp(sOM))
    store2(["global_store_dwordx4 %s, %s, %s" % (V(aHOS), V(vA + 2, 4), sp(sHO))])
    A("s_mov_b64 exec, -1")
    stampL("ho")
    A("s_cmp_eq_u32 s%d, 0" % sL)
    A("s_cbranch_scc1 Lstash")
    if OACK:
        A("s_waitcnt vmcnt(0)")
    A.label("Lopoll")
    A("global_load_dwordx4 %s, %s, %s sc1" % (V(vA + 10, 4), V(aHOL), sp(sHO)))
    A.label("Lopoll_w")
    A("s_waitcnt vmcnt(0)")
    maxtree(vM, range(vA + 10, vA + 14))
    poll_tail("Lopoll", vM, far=True)
    if RESTORE:
        A("s_mov_b32 exec_lo, 0x01010101")
        A("s_mov_b32 exec_hi, 0x01010101")
        A("global_store_dwordx4 %s, %s, %s sc1" % (V(aHOS), V(vA + 2, 4), sp(sHO)))
        A("s_mov_b64 exec, -1")
    stampL("og")
    assert WOEARLY and VPRE and not TEARLY
    if TPOS == 0:
        A("s_cmp_lg_u32 s%d, 0" % sL)
        A("s_cbranch_scc1 Lnotg")
        A("global_load_dwordx4 %s, v248, %s sc1" % (V(vQ, 4), sp(sWS)))
        A.label("Lnotg")

    def woread():
        A("s_barrier")
        for t in range(5):
            for hh in range(2):
                A("ds_read_b64_tr_b16 %s, v233 offset:%d" % (V(vWO + 4 * t + 2 * hh, 2), 576 * hh + 32 * t))

    reduce8(vA + 16, vA + 12, vA + 15, vA + 14, True, fill=[
        "v_lshlrev_b32 %s, 16, %s" % (V(vA + 16), V(vA + 10)), "v_and_b32 %s, 0xffff0000, %s" % (V(vA + 17), V(vA + 10)),
        "v_lshlrev_b32 %s, 16, %s" % (V(vA + 18), V(vA + 11)), "v_and_b32 %s, 0xffff0000, %s" % (V(vA + 19), V(vA + 11))])
    A("v_cvt_pk_bf16_f32 %s, %s, %s" % (V(vA), V(vA + 16), V(vA + 17)))
    A("v_cvt_pk_bf16_f32 %s, %s, %s" % (V(vA + 1), V(vA + 18), V(vA + 19)))
    A("v_mov_b32_dpp %s, %s row_ror:8%s" % (V(vA + 2), V(vA), DPP))
    A("v_mov_b32_dpp %s, %s row_ror:8%s" % (V(vA + 3), V(vA + 1), DPP))
    A("s_waitcnt lgkmcnt(0)")
    for t in range(5):
        A("v_mfma_f32_16x16x32_bf16 %s, %s, %s, 0" % (V(vA + 4 + 4 * t, 4), V(vA, 4), V(vWO + 4 * t, 4)))
    if TPOS == 1:
        A("s_cmp_lg_u32 s%d, 0" % sL)
        A("s_cbranch_scc1 Lnotg")
        A("global_load_dwordx4 %s, v248, %s sc1" % (V(vQ, 4), sp(sWS)))
        A.label("Lnotg")
    A("s_mov_b64 exec, 0xffff")
    A("ds_write2_b32 %s, %s, %s offset0:0 offset1:16" % (V(lOW), V(vA + 4), V(vA + 8)))
    A("ds_write2_b32 %s, %s, %s offset0:32 offset1:48" % (V(lOW), V(vA + 12), V(vA + 16)))
    A("ds_write_b32 %s, %s offset:256" % (V(lOW), V(vA + 20)))
    A("s_mov_b64 exec, -1")
    A("s_waitcnt lgkmcnt(0)")
    A("s_barrier")
    stampL("ov")
    A("s_cmp_lg_u32 s%d, 0" % sWV)
    A("s_cbranch_scc1 Lwo_done")
    if LM & 2 and NREP > 1:
        A("s_mov_b64 exec, %s" % sp(sXM))
    for w in range(8):
        A("ds_read_b128 %s, %s offset:%d" % (V(vA + 4 * w, 4), V(lOR), RSTR * w))
    for w in range(1, 8, 2):
        A("s_waitcnt lgkmcnt(%d)" % (7 - w))
        for i in range(2):
            A("v_pk_add_f32 %s, %s, %s" % (V(vA + 4 * w - 4 + 2 * i, 2), V(vA + 4 * w - 4 + 2 * i, 2), V(vA + 4 * w + 2 * i, 2)))
        if w in (3, 7):
            for i in range(2):
                A("v_pk_add_f32 %s, %s, %s" % (V(vA + 4 * w - 12 + 2 * i, 2), V(vA + 4 * w - 12 + 2 * i, 2), V(vA + 4 * w - 4 + 2 * i, 2)))
    for i in range(2):
        A("v_pk_add_f32 %s, %s, %s" % (V(vA + 2 * i, 2), V(vA + 2 * i, 2), V(vA + 16 + 2 * i, 2)))
    A("v_cvt_pk_bf16_f32 %s, %s, %s" % (V(vA), V(vA), V(vA + 1)))
    A("v_cvt_pk_bf16_f32 %s, %s, %s" % (V(vA + 1), V(vA + 2), V(vA + 3)))
    if NREP > 1:
        if not LM & 2:
            A("s_mov_b64 exec, %s" % sp(sXM))
        A("global_store_dwordx2 %s, %s, %s sc1" % (V(aHXS), V(vA, 2), sp(sHXS)))
        if NREP > 3:
            A("s_cmp_lg_u32 s%d, 0" % sL)
            A("s_cbranch_scc1 Lonecopy")
            A("global_store_dwordx2 %s, %s, %s sc1" % (V(aHML), V(vA, 2), sp(sHXS)))
            A.label("Lonecopy")
    else:
        A("s_mov_b64 exec, 0x3ffff")
        A("global_store_dwordx2 %s, %s, %s sc1" % (V(aHXS), V(vA, 2), sp(sHX)))
    A("s_mov_b64 exec, -1")
    A.label("Lwo_done")
    stampL("hx")
    A("s_cmp_eq_u32 s%d, 0" % sL)
    A("s_cbranch_scc1 %s" % ("Lwho" if LEAD else "Ltabg"))
    A("s_or_b32 s%d, s%d, s%d" % (sT0, sHKV, sS))
    A("s_cbranch_scc1 %s" % ("Lwb" if WB else "Lexit"))
    A("s_branch Lxwait")
    A.label("Ltpoll")
    A("s_sleep 4")
    A("global_load_dwordx4 %s, v248, %s sc1" % (V(vQ, 4), sp(sWS)))
    A("s_waitcnt vmcnt(0)")
    A.label("Ltabg")
    A("s_cmp_gt_u32 s%d, 3" % sWV)
    A("s_cselect_b32 s%d, %d, %d" % (sT0, TABN - 4096, TABP))
    A("v_add_u32 v250, s%d, v249" % sT0)
    A("s_waitcnt vmcnt(%d)" % (2 if NREP > 3 else 1))
    A("s_cmp_eq_u32 s%d, 0" % sWV)
    A("s_cbranch_scc1 Ltabw")
    A("s_waitcnt vmcnt(0)")
    A.label("Ltabw")
    maxtree(vM, range(vQ, vQ + 4))
    poll_tail("Ltpoll", vM)
    A("ds_write_b128 v250, %s" % V(vQ, 4))
    if WARM & 1:
        A("s_cmp_lg_u32 s%d, 7" % sWV)
        A("s_cbranch_scc1 Lxwait")
        A("s_mov_b64 exec, 0")
        A("s_branch Lmlp")
        A.label("Lwarm1")
        A("s_mov_b64 exec, -1")
    A.label("Lxwait")
    A("ds_read_b128 %s, %s" % (V(vP, 4), V(lXC)))
    A("s_cmp_eq_u32 s%d, 4" % sWV)
    A("s_cselect_b32 s%d, 0x00ff00ff, -1" % sT2)
    A("s_mov_b32 exec_lo, s%d" % sT2)
    A("s_mov_b32 exec_hi, s%d" % sT2)
    if not DIAG:
        A("s_cmp_gt_u32 s%d, 4" % sWV)
    if XPACE == "ack":
        A("s_waitcnt vmcnt(0)")
    if XPACE != "none":
        A("s_barrier")
    stampL("xp")
    HXB = (sHX, sHX1, sHX2, sHX3)
    if DIAG:
        A("s_cmp_gt_u32 s%d, 4" % sWV)
    A("s_cbranch_scc1 Lxjoin")
    A.label("Lxpoll")
    for i in range(4):
        A("global_load_dwordx4 %s, %s, %s sc1" % (V(vA + 4 * i, 4), V(aHXL), sp(HXB[i])))
    A("s_mov_b64 exec, -1")
    if PSTAT:
        A("v_mov_b32 %s, 0" % V(vS + 6))
        A("v_mov_b32 %s, 0" % V(vS + 7))
        A("s_lshl_b32 s%d, s%d, 3" % (sT0, sWV))
        A("s_add_u32 s%d, s%d, %d" % (sT0, sT0, TRED))
        A("v_mov_b32 v249, s%d" % sT0)
    A.label("Lxsum")
    for i in range(4):
        A("s_waitcnt vmcnt(%d)" % (3 - i))
        A("v_mfma_f32_16x16x32_bf16 %s, %s, %s, %s" % (V(vS, 4), V(vSEL, 4), V(vA + 4 * i, 4), V(vS, 4) if i else "0"))
    A("s_mov_b32 exec_lo, s%d" % sT2)
    A("s_mov_b32 exec_hi, 0")
    A("s_waitcnt lgkmcnt(0)")
    A("v_cmp_u_f32 vcc, %s, %s" % (V(vS), V(vS)))
    A("v_cvt_pk_bf16_f32 %s, %s, %s" % (V(vS + 4), V(vS), V(vS + 1)))
    A("v_cvt_pk_bf16_f32 %s, %s, %s" % (V(vS + 5), V(vS + 2), V(vS + 3)))
    A("s_cbranch_vccnz Lxchk")
    A.label("Lxok")
    for rnd in range(2):
        for i in range(2):
            A("v_lshlrev_b32 %s, 16, %s" % (V(vS + 2 * i), V(vS + 4 + i)))
            A("v_and_b32 %s, 0xffff0000, %s" % (V(vS + 2 * i + 1), V(vS + 4 + i)))
        if rnd == 0:
            for i in range(2):
                A("v_pk_add_f32 %s, %s, %s" % (V(vS + 2 * i, 2), V(vS + 2 * i, 2), V(vP + 2 * i, 2)))
            for i in range(2):
                A("v_cvt_pk_bf16_f32 %s, %s, %s" % (V(vS + 4 + i), V(vS + 2 * i), V(vS + 2 * i + 1)))
    A("ds_write_b128 %s, %s" % (V(lXC), V(vS, 4)))
    if PSTAT:
        A("v_pk_mul_f32 %s, %s, %s" % (V(vP, 2), V(vS, 2), V(vS, 2)))
        A("v_pk_add_f32 %s, %s, %s" % (V(vS + 4, 2), V(vS, 2), V(vS + 2, 2)))
        A("v_pk_fma_f32 %s, %s, %s, %s" % (V(vP, 2), V(vS + 2, 2), V(vS + 2, 2), V(vP, 2)))
        A("v_add_f32 %s, %s, %s" % (V(vS + 6), V(vS + 4), V(vS + 5)))
        A("v_add_f32 %s, %s, %s" % (V(vS + 7), V(vP), V(vP + 1)))
        A("s_mov_b32 exec_lo, -1")
        for ctl in WAVE6[:5]:
            for r in (vS + 6, vS + 7):
                A("v_add_f32_dpp %s, %s, %s %s" % (V(r), V(r), V(r), ctl))
        A("s_mov_b32 exec_lo, 0x80000000")
        A("ds_write_b64 v249, %s" % V(vS + 6, 2))
    A("s_mov_b64 exec, -1")
    A.label("Lxjoin")
    if PSTAT:
        A("s_lshl_b32 s%d, s%d, 9" % (sT0, sWV))
        A("v_add_u32 v246, s%d, %s" % (sT0, V(lXP)))
        A("v_mov_b32 v247, %d" % TRED)
    A("s_waitcnt lgkmcnt(0)")
    A("s_barrier")
    stampL("xs")
    A("s_cmp_gt_u32 s%d, 3" % sWV)
    A("s_cbranch_scc1 Lmlp_skip")
    vH, vY, vHP, vHS, vAD, vST = vA, vA + 10, vXR, vA + 26, vA, vS
    if SPLIT:
        vXO, vFG = 244, 243
        sFIN = sH
        if PSTAT:
            A("ds_read_b128 %s, v247" % V(vXA, 4))
            A("ds_read_b128 %s, v247 offset:16" % V(vXA + 4, 4))
            A("ds_read_b64 %s, v247 offset:32" % V(vST + 6, 2))
            A("ds_read_b32 %s, %s" % (V(vXA + 8), V(lXS)))
        else:
            for i in range(4):
                A("ds_read_b64 %s, %s offset:%d" % (V(vXA + 2 * i, 2), V(lXP), 512 * i))
            A("ds_read_b32 %s, %s" % (V(vXA + 8), V(lXS)))
            A("s_lshl_b32 s%d, s%d, 9" % (sT0, sWV))
            A("v_add_u32 v246, s%d, %s" % (sT0, V(lXP)))
        A("ds_read_b64 %s, v246" % V(vXO, 2))
        for i in range(3):
            A("v_mov_b32 %s, 0" % V(vY + i))
        A("s_lshl_b32 s%d, s%d, 8" % (sT0, sWV))
        A("v_add_u32 v246, s%d, %s" % (sT0, V(lNW)))
        A("v_lshl_add_u32 v247, v1, 2, s%d" % sT0)
        A("v_lshlrev_b32 v248, 1, v1")
        A("v_mov_b32 v249, %d" % (FLG + 28))
        if PSTAT:
            t = vST
            A("s_waitcnt lgkmcnt(3)")
            A("v_pk_add_f32 %s, %s, %s" % (V(vXA, 2), V(vXA, 2), V(vXA + 2, 2)))
            A("v_pk_add_f32 %s, %s, %s" % (V(vXA + 4, 2), V(vXA + 4, 2), V(vXA + 6, 2)))
            A("s_waitcnt lgkmcnt(2)")
            A("v_pk_add_f32 %s, %s, %s" % (V(t + 6, 2), V(t + 6, 2), V(vXA, 2)))
            A("v_pk_add_f32 %s, %s, %s" % (V(t + 6, 2), V(t + 6, 2), V(vXA + 4, 2)))
            A("v_mul_f32 %s, %s, %s" % (V(t), V(t + 6), V(vINV)))
            A("v_mul_f32 %s, %s, %s" % (V(t + 2), V(t + 6), V(vC1)))
            A("v_fma_f32 %s, %s, %s, %s" % (V(t + 1), V(t + 7), V(vC1), V(vEPS2)))
            A("v_fma_f32 %s, -%s, %s, %s" % (V(t + 1), V(t + 2), V(t), V(t + 1)))
            A("v_max_f32 %s, %s, %s" % (V(t + 1), V(vEPS2), V(t + 1)))
            A("v_rsq_f32 %s, %s" % (V(t + 2), V(t + 1)))
        else:
            A("s_waitcnt lgkmcnt(1)")
            stats_lane(vST)
            for l in stats_wave(vST, True):
                A(l)
        A("s_mov_b32 s%d, %s" % (sT0, hx(E0 * 0x10001)))
        A("s_waitcnt lgkmcnt(0)")
        A("v_mul_f32 %s, %s, %s" % (V(vST + 4), V(vST), V(vST + 2)))
        A("v_pk_fma_f32 %s, %s, %s, %s op_sel_hi:[1,0,0] neg_lo:[0,0,1] neg_hi:[0,0,1]" % (V(vH, 2), V(vXO, 2), bc(vST + 2), bc(vST + 4)))
        A("v_fma_f32 %s, %s, %s, -%s" % (V(vH + 2), V(vXA + 8), V(vST + 2), V(vST + 4)))
        A("v_cvt_pk_bf16_f32 %s, %s, %s" % (V(vHS), V(vH), V(vH + 1)))
        A("v_cvt_pk_bf16_f32 %s, %s, %s" % (V(vHS + 1), V(vH + 2), V(vH + 2)))
        for i in range(2):
            A("v_pk_sub_u16 %s, %s, s%d" % (V(vHS + i), V(vHS + i), sT0))
        for i in range(3):
            A("v_lshlrev_b32_sdwa %s, 1, %s dst_sel:DWORD dst_unused:UNUSED_PAD src0_sel:DWORD src1_sel:WORD_%d" % (
                V(vAD + i), V(vHS + (i >> 1)), i & 1))
            A("ds_read_u16_d16_hi %s, %s offset:%d" % (V(vY + i), V(vAD + i), TABP))
        A("v_or_b32 %s, %s, %s" % (V(vM), V(vHS), V(vHS + 1)))
        A("v_and_b32 %s, 0x78007800, %s" % (V(vM), V(vM)))
        A("v_cmp_ne_u32 vcc, 0, %s" % V(vM))
        A("s_cmp_lg_u32 s%d, 0" % sL)
        A("s_waitcnt lgkmcnt(0)")
        A("v_pk_add_f32 %s, %s, %s" % (V(vXO, 2), V(vXO, 2), V(vY, 2)))
        A("v_add_f32 %s, %s, %s" % (V(vXA + 8), V(vXA + 8), V(vY + 2)))
        A("s_cbranch_vccnz Lmiss")
        A("v_cvt_pk_bf16_f32 %s, %s, %s" % (V(vHP), V(vXO), V(vXO + 1)))
        A("v_cvt_pk_bf16_f32 %s, %s, %s" % (V(vHP + 4), V(vXA + 8), V(vXA + 8)))
        A("s_cbranch_scc1 Lfin2")
        A("ds_write_b32 v246, %s" % V(vHP))
        A("ds_write_b16 %s, %s" % (V(lNH), V(vHP + 4)))
        A.label("Lshare")
        stampL("lk")
        A("s_waitcnt lgkmcnt(0)")
        A("s_barrier")
        A("ds_read_b32 %s, v249" % V(vFG))
        for i in range(4):
            A("ds_read_b32 %s, %s offset:%d" % (V(vXR + i), V(lNW), 256 * i))
        A("ds_read_u16 %s, %s" % (V(vXR + 4), V(lNH)))
        if LM & 4:
            A("s_mov_b64 exec, %s" % sp(sBM))
        for ks in range(4):
            A("ds_read_b128 %s, %s offset:%d" % (V(vA + 4 * ks, 4), V(lNR), 64 * ks))
        A("ds_read_b64 %s, %s" % (V(vA + 16, 2), V(lNR2)))
        if LM & 4:
            A("s_mov_b64 exec, -1")
        A("s_waitcnt lgkmcnt(10)")
        A("v_cmp_ne_u32 vcc, 0, %s" % V(vFG))
        A("s_cbranch_vccnz Lmlp")
        add64(sHQ, "%d" % L_HQ)
        A("s_waitcnt lgkmcnt(5)")
        A("s_call_b64 %s, Lq_unpack" % sp(sRET))
        A("s_branch Lq_done")
        A.label("Lmiss")
        A("v_lshlrev_b32 v250, s%d, 1" % sL)
        A("ds_or_b32 v249, v250")
        A("s_cbranch_scc0 Lshare")
        A("s_branch Lfin3")
        A.label("Lfin2")
        A("global_store_dword v247, %s, %s%s" % (V(vHP), sp(sOUT), OUTF))
        A("s_cmp_lg_u32 s%d, 0" % sWV)
        A("s_cbranch_scc1 Lfin3")
        A("global_store_short v248, %s, %s offset:1024%s" % (V(vHP + 4), sp(sOUT), OUTF))
        A.label("Lfin3")
        stamp("lk1")
        A("s_waitcnt lgkmcnt(0)")
        A("s_barrier")
        A("ds_read_b32 %s, v249" % V(vFG))
        A("s_waitcnt lgkmcnt(0)")
        A("v_cmp_lt_u32 vcc, 1, %s" % V(vFG))
        A("s_cbranch_vccz Lexit")
    else:
        A("s_mul_i32 s%d, s%d, s%d" % (sT0, sL, sWV))
        A("s_cmp_lg_u32 s%d, 0" % sT0)
        A("s_cbranch_scc1 Lhelper")
    A.label("Lmlp")
    if SPLIT:
        A("s_waitcnt lgkmcnt(0)")
    for i in range(4):
        A("ds_read_b64 %s, %s offset:%d" % (V(vXA + 2 * i, 2), V(lXP), 512 * i))
    A("ds_read_b32 %s, %s" % (V(vXA + 8), V(lXS)))
    for i in range(9):
        A("v_mov_b32 %s, 0" % V(vY + i))
    A("s_waitcnt lgkmcnt(0)")
    stats_lane(vST)
    for l in stats_wave(vST, True):
        A(l)
    normalize(vH, vST, vST + 2)
    A("s_mov_b32 s%d, %s" % (sT0, hx(E0 * 0x10001)))
    for i in range(5):
        A("v_cvt_pk_bf16_f32 %s, %s, %s" % (V(vHP + i), V(vH + 2 * i), V(vH + min(2 * i + 1, 8))))
    for i in range(5):
        A("v_pk_sub_u16 %s, %s, s%d" % (V(vHS + i), V(vHP + i), sT0))
    for i in range(9):
        A("v_lshlrev_b32_sdwa %s, 1, %s dst_sel:DWORD dst_unused:UNUSED_PAD src0_sel:DWORD src1_sel:WORD_%d" % (
            V(vAD + i), V(vHS + (i >> 1)), i & 1))
        A("ds_read_u16_d16_hi %s, %s offset:%d" % (V(vY + i), V(vAD + i), TABP))
    A("v_or3_b32 %s, %s, %s, %s" % (V(vM), V(vHS), V(vHS + 1), V(vHS + 2)))
    A("v_or3_b32 %s, %s, %s, %s" % (V(vM), V(vM), V(vHS + 3), V(vHS + 4)))
    A("v_and_b32 %s, 0x78007800, %s" % (V(vM), V(vM)))
    A("v_cmp_ne_u32 vcc, 0, %s" % V(vM))
    A("s_waitcnt lgkmcnt(0)")
    A("s_cbranch_vccnz Lfallback")
    A.label("Lfb_done")
    if not SPLIT:
        stampL("lk")
    for i in range(4):
        A("v_pk_add_f32 %s, %s, %s" % (V(vXA + 2 * i, 2), V(vXA + 2 * i, 2), V(vY + 2 * i, 2)))
    A("v_add_f32 %s, %s, %s" % (V(vXA + 8), V(vXA + 8), V(vY + 8)))
    for i in range(5):
        A("v_cvt_pk_bf16_f32 %s, %s, %s" % (V(vHP + i), V(vXA + 2 * i), V(vXA + min(2 * i + 1, 8))))
    A("s_cmp_lg_u32 s%d, 0" % sL)
    A("s_cbranch_scc1 Lfinal")
    if WARM & 1:
        A("s_cbranch_execz Lwarm1")
    if DUMP:
        A("s_lshl_b32 s%d, s2, 2" % sT0)
        A("s_add_u32 s%d, s%d, s%d" % (sT0, sT0, sWV))
        A("s_mul_i32 s%d, s%d, 8192" % (sT0, sT0))
        A("s_add_u32 s%d, s%d, %d" % (sT0, sT0, 2 << 20))
        A("v_lshl_add_u32 v252, v1, 2, s%d" % sT0)
        A("v_add_u32 v253, 4096, v252")
        for i, r in enumerate(list(range(vHS, vHS + 5)) + list(range(vY, vY + 9)) + list(range(vHP, vHP + 5)) + list(range(vAD, vAD + 9)) + [vS, vS + 2, vS + 6, vS + 7]):
            A("global_store_dword %s, %s, %s offset:%d" % ("v252" if i < 16 else "v253", V(r), sp(sWS), 256 * (i % 16)))
    if LEAD:
        A("s_cmp_lg_u32 s%d, 1" % sWV)
        A("s_cbranch_scc1 Lnoy")
        A("v_lshlrev_b32 v249, 2, v1")
        A("v_lshlrev_b32 v250, 1, v1")
        store2(["global_store_dword v249, %s, %s offset:%d" % (V(vHP + i), sp(sHY), 256 * i) for i in range(4)] +
               ["global_store_short v250, %s, %s offset:1024" % (V(vHP + 4), sp(sHY))])
        A.label("Lnoy")
    add64(sHQ, "%d" % L_HQ)
    A("s_call_b64 %s, Lqstage" % sp(sRET))
    A.label("Lq_done")
    if QBAR == 2:
        A("s_waitcnt vmcnt(0)")
    if QBAR:
        A("s_barrier")
    A("s_cmp_lg_u32 s%d, 0" % sWV)
    A("s_cbranch_scc1 Lnext")
    for i in range(4):
        A("ds_write_b64 %s, %s offset:%d" % (V(lXP), V(vXA + 2 * i, 2), 512 * i + XSB - XSA))
    A("ds_write_b32 %s, %s offset:%d" % (V(lXS), V(vXA + 8), XSB - XSA))
    A("s_branch Lnext")
    if LEAD:
        A.label("Lwho")
        A("s_cmp_eq_u32 s%d, 0" % sS)
        A("s_cbranch_scc1 Ltabg")
        A("s_cmp_gt_u32 s%d, 3" % sWV)
        A("s_cbranch_scc1 Lqwait")
        A("s_mul_i32 s%d, s%d, 1152" % (sT0, sWV))
        A("s_add_u32 s%d, s%d, %d" % (sT0, sT0, XN))
        A("v_subrev_u32 v248, s%d, %s" % (sT0, V(lNR)))
        A("v_subrev_u32 v249, s%d, %s" % (sT0, V(lNR2)))
        A("v_mov_b32 v243, 0")
        add64(sHQ, "%d" % L_HQ)
        A.label("Lypoll")
        for ks in range(4):
            A("global_load_dwordx4 %s, v248, %s offset:%d sc1" % (V(vA + 4 * ks, 4), sp(sHY), 64 * ks))
        A("global_load_dwordx2 %s, v249, %s sc1" % (V(vA + 16, 2), sp(sHY)))
        A("global_load_dwordx3 %s, v243, %s offset:1152 sc1" % (V(vS + 2, 3), sp(sHY)))
        A("s_waitcnt vmcnt(1)")
        maxtree(vM, range(vA, vA + 18))
        A("s_waitcnt vmcnt(0)")
        A("v_max3_u32 %s, %s, %s, %s" % (V(vM), V(vM), V(vS + 2), V(vS + 4)))
        poll_tail("Lypoll", vM)
        stamp("yy")
        A("s_call_b64 %s, Lq_mm" % sp(sRET))
        A("s_branch Lnext")
    A.label("Lmlp_skip")
    A("s_cmp_lg_u32 s%d, 0" % sL)
    A("s_cbranch_scc1 Lexit")
    if SPLIT:
        A("s_barrier")
    if QBAR:
        A("s_barrier")
    A.label("Lqwait")
    add64(sHQ, "%d" % L_HQ)
    A("s_lshr_b32 s%d, s%d, 1" % (sT0, sWV))
    A("s_cmp_lg_u32 s%d, %d" % (sT0, QW // 2))
    A("s_cbranch_scc1 Lnext")
    A.label("Lqpoll")
    A("global_load_dwordx4 %s, %s, %s sc1" % (V(vQ, 4), V(aHQG), sp(sHQ)))
    A("s_waitcnt vmcnt(0)")
    if QSPEC:
        A("v_mfma_f32_16x16x32_bf16 %s, %s, %s, 0" % (V(QD, 4), V(vSEL, 4), V(vQ, 4)))
    maxtree(vM, range(vQ, vQ + 4))
    poll_tail("Lqpoll", vM, far=True)
    if not QSPEC:
        A("v_mfma_f32_16x16x32_bf16 %s, %s, %s, 0" % (V(QD, 4), V(vSEL, 4), V(vQ, 4)))
    for i in range(2):
        A("v_cvt_pk_bf16_f32 %s, %s, %s" % (V(vQ + i), V(QD + 2 * i), V(QD + 2 * i + 1)))
    A("s_mov_b32 exec_hi, 0")
    A("ds_write_b64 %s, %s" % (V(lQW), V(vQ, 2)))
    A("s_mov_b32 exec_hi, -1")
    A.label("Lnext")
    add64(sHO, "%d" % L_HO)
    if NREP > 1:
        for r in HXB:
            add64(r, "s%d" % sXD)
        A("s_mov_b64 %s, %s" % (sp(sHXS), sp(sHX)))
        A("s_mov_b64 %s, 0x3ffff" % sp(sXM))
    else:
        for r in HXB:
            add64(r, "%d" % L_HX)
    for r in (lXC, lXP, lXS):
        A("v_add_u32 %s, %d, %s" % (V(r), XSB - XSA, V(r)))
    A("s_mov_b32 s%d, 1" % sL)
    stamp("qs")
    A("s_waitcnt lgkmcnt(0)")
    A("s_barrier")
    stamp("q1")
    A("s_branch Latt")
    for label in retries:
        A.label("%s_again" % label)
        A("s_sub_u32 s%d, s%d, 1" % (sCNT, sCNT))
        A("s_cbranch_scc0 %s" % label)
        A("s_mov_b32 s%d, 0" % sCNT)
        A("s_branch %s_ok" % label)
    A.label("Lv_read")
    A("s_cmp_lt_u32 s%d, 4" % sWV)
    A("s_cbranch_scc1 Lv_read_done")
    for i in range(8):
        A("ds_read_b128 %s, %s offset:%d" % (V(vVR + 4 * i, 4), V(vA + 1), (i >> 2) * 4352 + (i & 3) * 256))
    A("s_branch Lv_read_done")
    A.label("Lv_wait")
    A("v_readfirstlane_b32 s%d, %s" % (sFAST, V(vA + 1)))
    A("v_lshlrev_b32 v249, 4, v0")
    A("s_and_b32 s%d, s2, %d" % (sT0, TREP - 1))
    A("s_lshl_b32 s%d, s%d, 13" % (sT0, sT0))
    A("s_add_u32 s%d, s%d, %d" % (sT0, sT0, W_HT))
    A("v_add_u32 v248, s%d, v249" % sT0)
    A("s_cmp_gt_u32 s%d, 3" % sWV)
    A("s_cbranch_scc1 Lv_tab")
    if WOB or WOPOST:
        A("s_waitcnt vmcnt(%d) lgkmcnt(0)" % WO1)
        A("s_cmp_lg_u32 s%d, 0" % sWV)
        A("s_cbranch_scc1 Lv_perm")
        A("s_waitcnt vmcnt(0)")
    else:
        A("s_sub_u32 s%d, s%d, 1" % (sT0, sWV))
        A("s_cmp_lt_u32 s%d, 3" % sT0)
        A("s_cbranch_scc1 Lv_wo")
        A("s_waitcnt vmcnt(0) lgkmcnt(0)")
        A("s_branch Lv_perm")
        A.label("Lv_wo")
        woloads(WO1, 16, WINO if callable(WINO) else lambda i: WINO)
        A("s_waitcnt vmcnt(16)")
    A.label("Lv_perm")
    stamp("kv")
    A("s_mov_b32 s%d, 0x05040100" % sT0)
    A("s_mov_b32 s%d, 0x07060302" % sT1)
    for j in range(8):
        for e in range(4):
            A("v_perm_b32 %s, %s, %s, s%d" % (
                V(vVT + 4 * j + e), V(vVR + 4 * (2 * e + 1) + (j >> 1)), V(vVR + 4 * (2 * e) + (j >> 1)), sT1 if j & 1 else sT0))
    for i in range(4):
        A("v_mov_b32 %s, 0x3f803f80" % V(vONES + i))
    if VPRE:
        A("s_cmp_gt_u32 s%d, 3" % sWV)
        A("s_cbranch_scc1 Lv_back")
    A.label("Lv_tab")
    if TEARLY:
        A("global_load_dwordx4 %s, v248, %s sc1" % (V(vQ, 4), sp(sWS)))
    A("s_branch Lv_ready")
    if WOPOST:
        A.label("Lwo_rest")
        A("s_sub_u32 s%d, s%d, 1" % (sT0, sWV))
        A("s_cmp_lt_u32 s%d, 3" % sT0)
        A("s_cbranch_scc0 Lwo_back")
        woloads(WO1, 16, lambda i: 63)
        A("s_branch Lwo_back")
    A.label("Lstash")
    A("s_cmp_lt_u32 s%d, 4" % sWV)
    A("s_cbranch_scc1 Lstashed")
    A("s_mul_i32 s%d, s%d, 8704" % (sT1, sWV))
    A("s_add_u32 s%d, s%d, %d" % (sT1, sT1, KB - 4 * 8704))
    A("v_lshl_add_u32 v250, v1, 4, s%d" % sT1)
    A("v_lshl_add_u32 v251, v1, 2, s%d" % sT1)
    for i in range(3):
        A("ds_write_b128 v250, %s offset:%d" % (V(vRW + 10 * i, 4), 2304 * i))
        A("ds_write_b128 v250, %s offset:%d" % (V(vRW + 10 * i + 4, 4), 2304 * i + 1024))
        A("ds_write_b32 v251, %s offset:%d" % (V(vRW + 10 * i + 8), 2304 * i + 2048))
    A.label("Lstashed")
    if OEARLY == 2:
        A("global_load_dwordx4 %s, %s, %s sc1" % (V(vA + 10, 4), V(aHOL), sp(sHO)))
    A("s_waitcnt vmcnt(%d)" % (2 if OEARLY == 2 else 0))
    if OEARLY == 1:
        A("global_load_dwordx4 %s, %s, %s sc1" % (V(vA + 10, 4), V(aHOL), sp(sHO)))
    woread()
    A("s_branch %s" % ("Lopoll_w" if OEARLY else "Lopoll"))
    A.label("Lhelper")
    spin(20, 1, "Lhelp_spin")
    A("s_cmp_eq_u32 s%d, 2" % sT0)
    A("s_cbranch_scc1 Lmlp")
    A("s_branch Lexit")
    A.label("Lxchk")
    A("s_mov_b32 exec_hi, s%d" % sT2)
    if XMASK:
        for i in range(4):
            maxtree(vS + i, range(vA + 4 * i, vA + 4 * i + 4))
        for i in range(4):
            A("v_cmp_eq_u32 %s, -1, %s" % (sp(sH + 2 * i), V(vS + i)))
        A("s_mov_b32 exec_hi, 0")
        A("s_or_b64 vcc, %s, %s" % (sp(sH), sp(sH + 2)))
        A("s_or_b64 vcc, vcc, %s" % sp(sH + 4))
        A("s_or_b64 vcc, vcc, %s" % sp(sH + 6))
        A("s_cbranch_scc0 Lxok")
        A("s_sub_u32 s%d, s%d, 1" % (sCNT, sCNT))
        A("s_cbranch_scc1 Lxgiveup")
        if XSL:
            A("s_sleep %d" % XSL)
        for i in range(4):
            A("s_mov_b64 exec, %s" % sp(sH + 2 * i))
            A("global_load_dwordx4 %s, %s, %s sc1" % (V(vA + 4 * i, 4), V(aHXL), sp(HXB[i])))
        A("s_mov_b64 exec, -1")
        A("s_waitcnt vmcnt(0)")
        A("s_branch Lxsum")
        A.label("Lxgiveup")
    else:
        maxtree(vM, range(vA, vA + 16))
        A("v_cmp_eq_u32 vcc, -1, %s" % V(vM))
        A("s_sub_u32 s%d, s%d, 1" % (sCNT, sCNT))
        A("s_cbranch_vccz Lxdone")
        if XSL:
            A("s_sleep %d" % XSL)
        A("s_cbranch_scc0 Lxpoll")
        A.label("Lxdone")
        A("s_mov_b32 exec_hi, 0")
        A("s_cbranch_scc0 Lxok")
    A("s_mov_b32 s%d, 0" % sCNT)
    A("s_branch Lxok")
    A.label("Lfinal")
    A("s_cmp_lg_u32 s%d, 0" % sWV)
    A("s_cbranch_scc1 Lexit")
    A("v_lshlrev_b32 v249, 2, v1")
    A("v_lshlrev_b32 v250, 1, v1")
    for i in range(4):
        A("global_store_dword v249, %s, %s offset:%d%s" % (V(vHP + i), sp(sOUT), 256 * i, OUTF))
    A("global_store_short v250, %s, %s offset:1024%s" % (V(vHP + 4), sp(sOUT), OUTF))
    A("v_mov_b32 v252, %d" % (FLG + 20))
    A("v_mov_b32 v253, 1")
    A("ds_max_u32 v252, v253")
    if ENDSTAMP:
        A("s_memrealtime s[70:71] ; ENDSTAMP")
        A("s_lshl_b32 s%d, s2, 2" % sT0)
        A("s_add_u32 s%d, s%d, %d" % (sT0, sT0, W_DIAG))
        A("v_mov_b32 v249, s%d" % sT0)
        A("s_waitcnt lgkmcnt(0)")
        A("v_mov_b32 v250, s70")
        A("global_store_dword v249, v250, %s" % sp(sWS))
    if WB:
        A("s_branch Lexit")
        A.label("Lwb")
        A("s_cmp_lg_u32 s%d, 0" % sWV)
        A("s_cbranch_scc1 Lexit")
        if WB == 2:
            A("s_cmp_lg_u32 s%d, 7" % sS)
            A("s_cbranch_scc1 Lexit")
        A("s_waitcnt vmcnt(0)")
        A("buffer_wbl2 sc1")
    A.label("Lexit")
    if DIAG:
        A("v_mov_b32 v251, s98")
        stamp("end")
        A("s_memtime %s" % sp(sMSK))
        A("s_waitcnt lgkmcnt(0)")
        A("s_sub_u32 s100, s%d, s100" % sMSK)
        A("s_lshl_b32 s%d, s2, 3" % sT0)
        A("s_add_u32 s%d, s%d, s%d" % (sT0, sT0, sWV))
        A("s_lshl_b32 s%d, s%d, 7" % (sT0, sT0))
        A("s_add_u32 s%d, s%d, %d" % (sT0, sT0, W_DIAG))
        A("v_mov_b32 v249, s%d" % sT0)
        A("s_mov_b64 exec, 1")
        for i in range(stamp_n[0]):
            A("v_mov_b32 v250, s%d" % (sSTAMP + 2 * i))
            A("global_store_dword v249, v250, %s offset:%d" % (sp(sWS), 4 * i))
        A("global_store_dword v249, v251, %s offset:112" % sp(sWS))
        A("v_mov_b32 v250, s100")
        A("global_store_dword v249, v250, %s offset:116" % sp(sWS))
        A("v_mov_b32 v250, s%d" % sCNT)
        A("global_store_dword v249, v250, %s offset:120" % sp(sWS))
        A("v_mov_b32 v250, s%d" % sFAST)
        A("global_store_dword v249, v250, %s offset:124" % sp(sWS))
        A("s_or_b32 s%d, s2, s%d" % (sT0, sWV))
        A("s_cbranch_scc1 Lend")
        A("v_mov_b32 v249, 0")
        for i in range(1, stamp_n[0]):
            A("s_sub_u32 s%d, s%d, s%d" % (sT0, sSTAMP + 2 * i, sSTAMP))
            A("v_mov_b32 v250, s%d" % sT0)
            A("global_store_dword v249, v250, %s offset:%d" % (sp(sDBG), 4 * i))
        A("v_mov_b32 v250, s100")
        A("global_store_dword v249, v250, %s offset:0" % sp(sDBG))
        A("v_mov_b32 v250, s%d" % sCNT)
        A("global_store_dword v249, v250, %s offset:60" % sp(sDBG))
    A.label("Lend")
    A("s_endpgm")

    A.label("Lqstage")
    for i in range(4):
        A("ds_write_b32 %s, %s offset:%d" % (V(lNW), V(vXR + i), 256 * i))
    A("ds_write_b16 %s, %s" % (V(lNH), V(vXR + 4)))
    for ks in range(4):
        A("ds_read_b128 %s, %s offset:%d" % (V(vA + 4 * ks, 4), V(lNR), 64 * ks))
    A("ds_read_b64 %s, %s" % (V(vA + 16, 2), V(lNR2)))
    A.label("Lq_unpack")
    for i in range(4):
        A("v_lshlrev_b32 %s, 16, %s" % (V(vXA + 2 * i), V(vXR + i)))
        A("v_and_b32 %s, 0xffff0000, %s" % (V(vXA + 2 * i + 1), V(vXR + i)))
    A("v_lshlrev_b32 %s, 16, %s" % (V(vXA + 8), V(vXR + 4)))
    stats_lane(vS)
    rest = stats_wave(vS, False)
    rest.append("v_mul_f32 %s, %s, %s" % (V(vS + 4), V(vS), V(vS + 2)))
    if LEAD:
        for l in rest:
            A(l)
        rest = []
        A("s_cmp_lg_u32 s%d, s%d" % (sWV, sYW))
        A("s_cbranch_scc1 Lq_mm")
        A("v_mov_b32 v243, 0")
        A("s_mov_b64 exec, 1")
        store2(["global_store_dwordx3 v243, %s, %s offset:1152" % (V(vS + 2, 3), sp(sHY))])
        A("s_mov_b64 exec, -1")
        A.label("Lq_mm")
    vQC = vA + 24
    for i in range(4):
        rest.append("v_pk_mul_f32 %s, %s, %s op_sel_hi:[1,0] neg_lo:[1,0] neg_hi:[1,0]" % (
            V(vQC + 2 * i, 2), V(vSQ + 2 * i, 2), bc(vS + 4)))
    acc = (vP, 244)
    per = [2, 2, 2, 2, 2, 2, 2, 2, 3, 100]
    if LEAD:
        per = [0, 0, 0, 0, 0, 0, 0, 5, 0, 0]
        rest.append("s_nop 1")
    for ks in range(5):
        A("s_waitcnt lgkmcnt(%d)" % (4 - ks))
        for u in range(2):
            if ks < 4:
                A("v_mfma_f32_16x16x32_bf16 %s, %s, %s, %s" % (
                    V(acc[u], 4), V(vWQ + 18 * u + 4 * ks, 4), V(vA + 4 * ks, 4), V(acc[u], 4) if ks else "0"))
            else:
                A("v_mfma_f32_16x16x16_bf16 %s, %s, %s, %s" % (V(acc[u], 4), V(vWQ + 18 * u + 16, 2), V(vA + 16, 2), V(acc[u], 4)))
            n = per[2 * ks + u]
            for l in rest[:n]:
                A(l)
            rest = rest[n:]
    for u in range(2):
        for i in range(2):
            A("v_pk_fma_f32 %s, %s, %s, %s op_sel_hi:[1,0,1]" % (
                V(acc[u] + 2 * i, 2), V(acc[u] + 2 * i, 2), bc(vS + 2), V(vQC + 4 * u + 2 * i, 2)))
        for i in range(2):
            A("v_cvt_pk_bf16_f32 %s, %s, %s" % (V(vA + 2 * u + i), V(acc[u] + 2 * i), V(acc[u] + 2 * i + 1)))
    A("s_mov_b64 exec, %s" % sp(sBM))
    store2(["global_store_dwordx4 %s, %s, %s" % (V(aHQS), V(vA, 4), sp(sHQ))])
    A("s_mov_b64 exec, -1")
    A("s_nop 0")
    A("s_setpc_b64 %s" % sp(sRET))

    A.label("Lkshuf")
    for pr in range(4):
        a, b = vK + 8 * pr, vK + 8 * pr + 4
        for d in range(4):
            A("v_mov_b32 %s, %s" % (V(vA + 16 + d), V(a + d)))
        for d in range(4):
            A("v_mov_b32_dpp %s, %s row_ror:8 row_mask:0xf bank_mask:0xc" % (V(a + d), V(b + d)))
        for d in range(4):
            A("v_mov_b32_dpp %s, %s row_ror:8 row_mask:0xf bank_mask:0x3" % (V(b + d), V(vA + 16 + d)))
    A("s_setpc_b64 %s" % sp(sRET))
    A.label("Lsel")
    A("v_mov_b32 %s, 0x3f803f80" % V(vS + 3))
    A("v_and_b32 %s, 1, v1" % V(vS))
    A("v_lshlrev_b32 %s, 4, %s" % (V(vS), V(vS)))
    A("v_lshlrev_b32 %s, %s, %s" % (V(vS), V(vS), V(vS + 3)))
    A("v_bfe_u32 %s, v1, 1, 3" % V(vS + 1))
    A("v_and_b32 %s, 1, v1" % V(vS + 2))
    A("v_cmp_eq_u32 vcc, 0, %s" % V(vS + 2))
    A("v_and_b32 %s, 0xffff, %s" % (V(vS + 2), V(vS)))
    A("v_cndmask_b32 %s, %s, %s, vcc" % (V(vS), V(vS), V(vS + 2)))
    for d in range(4):
        A("v_cmp_eq_u32 vcc, %d, %s" % (d, V(vS + 1)))
        A("v_cndmask_b32 %s, 0, %s, vcc" % (V(vSEL + d), V(vS)))
    A("s_setpc_b64 %s" % sp(sRET))
    A.label("Laddr")
    A("v_mov_b32 v232, 0")
    A("v_bfe_u32 v250, v24, 2, 1")
    A("v_lshlrev_b32 v249, 8, v250")
    A("v_lshl_add_u32 v249, v25, 4, v249")
    A("v_add_u32 %s, %d, v249" % (V(aHQL), QL))
    A("s_and_b32 s%d, s%d, 1" % (sT0, sWV))
    A("s_lshl_b32 s%d, s%d, 8" % (sT0, sT0))
    A("v_lshl_add_u32 v249, v24, 4, s%d" % sT0)
    A("v_lshl_add_u32 %s, v25, 9, v249" % V(aHQG))
    A("v_and_b32 v250, 1, v25")
    A("v_lshl_add_u32 v249, v250, 3, v249")
    A("v_add_u32 %s, %d, v249" % (V(lQW), QL))
    A("s_lshl_b32 s%d, s%d, 8" % (sT0, sS))
    A("s_lshl_b32 s%d, s%d, 6" % (sT1, sWV))
    A("s_add_u32 s%d, s%d, s%d" % (sT0, sT0, sT1))
    A("v_lshl_add_u32 %s, v25, 4, s%d" % (V(aHQS), sT0))
    A("s_lshl_b32 s%d, s%d, 7" % (sT0, sWV))
    A("v_lshl_add_u32 v249, v27, 4, s%d" % sT0)
    A("v_lshl_add_u32 %s, v26, 10, v249" % V(aHOL))
    A("s_lshl_b32 s%d, s%d, 10" % (sT1, sS))
    A("v_add_u32 %s, s%d, v249" % (V(aHOS), sT1))
    A("v_mul_u32_u24 v250, %d, v26" % PSTR)
    A("v_add_u32 v250, %d, v250" % PART)
    A("v_add_u32 %s, v249, v250" % V(lPR))
    A("s_mul_i32 s%d, s%d, %d" % (sT0, sWV, RSTR))
    A("s_add_u32 s%d, s%d, %d" % (sT0, sT0, RED))
    A("v_lshl_add_u32 %s, v24, 2, s%d" % (V(lOW), sT0))
    A("s_lshr_b32 s%d, s%d, 2" % (sT0, sWV))
    A("s_lshl_b32 s%d, s%d, 3" % (sT0, sT0))
    A("v_lshl_add_u32 %s, v26, 4, s%d" % (V(aHML), sT0))
    A("v_add_u32 %s, %d, %s" % (V(lMR), ML, V(aHML)))
    A("s_lshl_b32 s%d, s%d, 8" % (sT0, sWV))
    A("v_lshl_add_u32 v249, v24, 4, s%d" % sT0)
    A("v_mul_u32_u24 v250, 1152, v25")
    A("v_add_u32 %s, v249, v250" % V(aHXL))
    A("v_and_b32 v253, 1, v25")
    A("v_lshlrev_b32 v249, 1, v249")
    A("v_lshl_add_u32 v249, v253, 4, v249")
    A("v_add_u32 %s, %d, v249" % (V(lXC), XSA))
    A("s_mul_i32 s%d, s%d, 1152" % (sT0, sHKV))
    A("s_mul_i32 s%d, s%d, 144" % (sT1, sS))
    A("s_add_u32 s%d, s%d, s%d" % (sT0, sT0, sT1))
    A("v_mul_u32_u24 v250, 3641, v1")
    A("v_lshrrev_b32 v250, 16, v250")
    A("v_mul_u32_u24 v249, 18, v250")
    A("v_sub_u32 v249, v1, v249")
    A("v_lshlrev_b32 %s, 4, v249" % V(lOR))
    A("v_add_u32 %s, %d, %s" % (V(lOR), RED, V(lOR)))
    A("v_lshl_add_u32 %s, v249, 3, s%d" % (V(aHXS), sT0))
    A("v_mul_u32_u24 v250, %d, v250" % L_HX)
    A("v_add_u32 %s, v250, %s" % (V(aHXS), V(aHXS)))
    A("v_add_u32 %s, %d, %s" % (V(aHML), 3 * L_HX, V(aHXS)))
    A("s_mul_i32 s%d, s%d, %d" % (sT0, sWV, PSTR))
    A("s_add_u32 s%d, s%d, %d" % (sT0, sT0, PART))
    A("v_lshlrev_b32 v249, 9, v253")
    A("v_lshl_add_u32 v249, v24, 2, v249")
    A("v_add_u32 %s, s%d, v249" % (V(lPW), sT0))
    A("s_lshl_b32 s%d, s%d, 4" % (sT0, sWV))
    A("s_add_u32 s%d, s%d, %d" % (sT0, sT0, ML))
    A("v_lshl_add_u32 %s, v253, 3, s%d" % (V(lMW), sT0))
    A("v_lshlrev_b32 v249, 4, v25")
    A("v_lshlrev_b32 v250, 3, v1")
    A("v_add_u32 %s, %d, v250" % (V(lXP), XSA))
    A("v_add_u32 %s, %d, v28" % (V(lXS), XSA + 2048))
    A("s_mov_b32 s%d, %d" % (sT0, XN))
    A("v_add_u32 %s, s%d, v28" % (V(lNW), sT0))
    A("s_add_u32 s%d, s%d, 1024" % (sT1, sT0))
    A("v_add_u32 %s, s%d, v29" % (V(lNH), sT1))
    A("s_mul_i32 s%d, s%d, 288" % (sT1, sP))
    A("s_add_u32 s%d, s%d, s%d" % (sT0, sT0, sT1))
    A("v_add_u32 %s, s%d, v249" % (V(lNR), sT0))
    A("s_add_u32 s%d, s%d, 256" % (sT0, sT0))
    A("v_lshl_add_u32 %s, v25, 3, s%d" % (V(lNR2), sT0))
    A("v_bfe_u32 v250, v1, 2, 2")
    A("v_lshl_add_u32 v250, v25, 3, v250")
    A("v_mul_u32_u24 v233, 144, v250")
    A("v_and_b32 v250, 3, v1")
    A("v_lshl_add_u32 v233, v250, 3, v233")
    A("s_mul_i32 s%d, s%d, %d" % (sT0, sWV, 32 * 144))
    A("s_add_u32 s%d, s%d, %d" % (sT0, sT0, WOS))
    A("v_add_u32 v233, s%d, v233" % sT0)
    A("s_mov_b32 s%d, 0" % sFB)
    A("v_mov_b32 %s, %s" % (V(vINV), fl(1.0 / 576)))
    A("v_mov_b32 %s, %s" % (V(vC1), fl((1.0 + 1e-5) / 576)))
    A("v_mov_b32 %s, %s" % (V(vEPS), fl(1e-5)))
    A("v_mov_b32 %s, %s" % (V(vEPS2), fl(1e-10)))
    add64(sOUT, "s%d" % oX)
    A("s_mov_b32 s%d, 0" % sL)
    A("s_mov_b32 s%d, 0" % sFAST)
    A("s_mov_b32 s%d, %d" % (sCNT, POLL_LIMIT))
    A("s_mov_b32 s%d, %s" % (sSMC, fl(SMC)))
    A("s_setpc_b64 %s" % sp(sRET))

    A.label("Lfallback")
    A("v_mov_b32 v252, %d" % (FLG + 20))
    A("v_lshlrev_b32 v253, 1, s%d" % sL)
    A("ds_max_u32 v252, v253")
    fw, ft = vMA, 244
    A("s_mul_i32 s%d, s%d, 8704" % (sT1, sWV))
    A("s_add_u32 s%d, s%d, %d" % (sT1, sT1, KB))
    A("v_lshl_add_u32 v250, v1, 4, s%d" % sT1)
    A("v_lshl_add_u32 v251, v1, 2, s%d" % sT1)
    for i in range(3):
        A("ds_read_b128 %s, v250 offset:%d" % (V(fw + 10 * i, 4), 2304 * i))
        A("ds_read_b128 %s, v250 offset:%d" % (V(fw + 10 * i + 4, 4), 2304 * i + 1024))
        A("ds_read_b32 %s, v251 offset:%d" % (V(fw + 10 * i + 8), 2304 * i + 2048))
    for i in range(9):
        A("v_bfe_u32 %s, %s, %d, 4" % (V(vM), V(vHS + (i >> 1)), 11 + 16 * (i & 1)))
        A("v_cmp_ne_u32 %s, 0, %s" % (sp(sMSK), V(vM)))
        A("v_%s %s, %s, %s" % (("and_b32" if i & 1 else "lshlrev_b32"), V(vM), ("0xffff0000" if i & 1 else "16"), V(vHP + (i >> 1))))
        A.label("Lfb_l%d" % i)
        A("s_cmp_eq_u64 %s, 0" % sp(sMSK))
        A("s_cbranch_scc1 Lfb_n%d" % i)
        A("s_ff1_i32_b64 s%d, %s" % (sT3, sp(sMSK)))
        A("s_bitset0_b64 %s, s%d" % (sp(sMSK), sT3))
        A("v_readlane_b32 s%d, %s, s%d" % (sFH, V(vM), sT3))
        A("s_call_b64 %s, Lfb_eval" % sp(sRET))
        A("s_mov_b32 m0, s%d" % sT3)
        A("v_writelane_b32 %s, s%d, m0" % (V(vY + i), sT0))
        A("s_branch Lfb_l%d" % i)
        A.label("Lfb_n%d" % i)
    A("s_branch Lfb_done")
    A.label("Lfb_eval")
    A("v_mov_b32 %s, 0" % V(ft))
    A("v_mov_b32 %s, 0" % V(ft + 1))
    A("v_mov_b32 %s, %s" % (V(ft + 2), fl(-K1)))
    A("v_mov_b32 %s, %s" % (V(ft + 6), fl(-K0)))
    A("v_mov_b32 %s, 1.0" % V(ft + 4))
    A("s_waitcnt lgkmcnt(0)")
    seqs = []
    for j in range(9):
        b = vS if j & 1 else vA
        a, c, w, t = (V(b + 2 * i, 2) for i in range(4))
        q = []
        for i in range(3):
            q.append("v_lshlrev_b32 %s, 16, %s" % (V(b + 2 * i), V(fw + 10 * i + j)))
            q.append("v_and_b32 %s, 0xffff0000, %s" % (V(b + 2 * i + 1), V(fw + 10 * i + j)))
        q += ["v_pk_fma_f32 %s, %s, %s, %s op_sel_hi:[1,0,1]" % (a, a, sp(sFH), c),
              "v_pk_mul_f32 %s, %s, %s" % (t, a, a),
              "v_pk_mul_f32 %s, %s, %s" % (w, w, a),
              "v_pk_fma_f32 %s, %s, %s, %s op_sel_hi:[1,0,0]" % (t, t, bc(ft + 2), bc(ft + 6)),
              "v_pk_mul_f32 %s, %s, %s" % (t, t, a),
              "v_exp_f32 %s, %s" % (V(b + 6), V(b + 6)),
              "v_exp_f32 %s, %s" % (V(b + 7), V(b + 7)),
              "v_pk_add_f32 %s, %s, %s op_sel_hi:[1,0]" % (t, t, V(ft + 4, 2)),
              "v_rcp_f32 %s, %s" % (V(b + 6), V(b + 6)),
              "v_rcp_f32 %s, %s" % (V(b + 7), V(b + 7)),
              "v_pk_fma_f32 %s, %s, %s, %s" % (V(ft, 2), w, t, V(ft, 2))]
        seqs.append(q)
    for j in range(0, 8, 2):
        for l0, l1 in zip(seqs[j], seqs[j + 1]):
            A(l0)
            A(l1)
    for l in seqs[8]:
        A(l)
    A("v_add_f32 %s, %s, %s" % (V(ft), V(ft), V(ft + 1)))
    for ctl in WAVE6:
        A("v_add_f32_dpp %s, %s, %s %s" % (V(ft), V(ft), V(ft), ctl))
    A("s_and_b32 s%d, s%d, 4" % (sT0, sFB))
    A("s_lshl_b32 s%d, s%d, 2" % (sT0, sT0))
    A("s_add_u32 s%d, s%d, %d" % (sT0, sT0, FB))
    A("s_lshl_b32 s%d, s%d, 2" % (sT1, sWV))
    A("s_add_u32 s%d, s%d, s%d" % (sT1, sT1, sT0))
    A("v_mov_b32 %s, s%d" % (V(ft + 5), sT1))
    A("v_mov_b32 %s, s%d" % (V(ft + 6), sT0))
    A("s_add_u32 s%d, s%d, 4" % (sFB, sFB))
    A("s_mov_b32 exec_lo, 0")
    A("s_mov_b32 exec_hi, 0x80000000")
    A("ds_write_b32 %s, %s" % (V(ft + 5), V(ft)))
    A("s_mov_b64 exec, -1")
    arrive_wait(16, 0, None)
    A.label("Lfb_spin")
    A("ds_read_b32 v253, v252")
    A("s_waitcnt lgkmcnt(0)")
    A("v_readfirstlane_b32 s%d, v253" % sT0)
    spin_tail("Lfb_spin", "s%d" % sFB)
    A("ds_read_b128 %s, %s" % (V(ft, 4), V(ft + 6)))
    A("s_waitcnt lgkmcnt(0)")
    A("v_pk_add_f32 %s, %s, %s" % (V(ft, 2), V(ft, 2), V(ft + 2, 2)))
    A("v_add_f32 %s, %s, %s" % (V(ft), V(ft), V(ft + 1)))
    A("v_cvt_pk_bf16_f32 %s, %s, %s" % (V(ft), V(ft), V(ft)))
    A("v_lshlrev_b32 %s, 16, %s" % (V(ft), V(ft)))
    A("v_add_f32 %s, %s, %s" % (V(ft), V(ft), V(vB2)))
    A("v_cvt_pk_bf16_f32 %s, %s, %s" % (V(ft), V(ft), V(ft)))
    A("v_lshlrev_b32 %s, 16, %s" % (V(ft), V(ft)))
    A("v_readfirstlane_b32 s%d, %s" % (sT0, V(ft)))
    A("s_nop 3")
    A("s_setpc_b64 %s" % sp(sRET))

    A.label("Lcode_end")
    body = A.finish()
    head = open("interleave_layers__sliding_block_cached__mixer_token_mlp__decode.s.ref").read().split(
        "; Override launch geometry")[0]
    head += "; @launch grid=(256,1,1) block=(512,1,1) lds=%d\n" % LDS
    head += """;
;    directly from the weights with the same formula (Lfallback), so every input gets the exact entry.
;
"""
    if DIAG:
        head += "; STAMPS: " + " ".join(STAMPS) + "\n"
    head += '.amdgcn_target "amdgcn-amd-amdhsa--gfx950"\n.text\n.globl %s\n.p2align 8\n.type %s,@function\n' % (NAME, NAME)
    tail = """.section .rodata,"a"
.p2align 6
.amdhsa_kernel %s
  .amdhsa_next_free_vgpr 256
  .amdhsa_next_free_sgpr 102
  .amdhsa_accum_offset 256
  .amdhsa_group_segment_fixed_size 0
  .amdhsa_kernarg_size 104
  .amdhsa_user_sgpr_count 2
  .amdhsa_user_sgpr_kernarg_segment_ptr 1
  .amdhsa_system_sgpr_workgroup_id_x 1
.end_amdhsa_kernel
""" % NAME
    return head + body + tail


if __name__ == "__main__":
    out = sys.argv[1]
    kw = {}
    for a in sys.argv[2:]:
        k, v = a.split("=")
        kw[k] = eval(v)
    open(out, "w").write(gen(**kw))
```

```python
import math, struct, sys
from asmlib import Asm

NAME = "interleave_layers__sliding_block_cached__mixer_token_mlp__decode_kernel"


def f2u(x):
    return struct.unpack("<I", struct.pack("<f", x))[0]


def hx(x):
    return "0x%08x" % (x & 0xFFFFFFFF)


def fl(x):
    return hx(f2u(x))


def gen(DIAG=False, NTKV=" nt", NTW=" nt", E_LO=114, FORCE_SLOW=False, POLL_LIMIT=1 << 20,
        STAMPS="start wq q0 wo fl kv tab ho0 og0 hx0 xs0 q1 ho1 hx1 end",
        VSCHED={1: 1, 2: 1, 3: 1, 4: 1}, VBEARLY=False, WOGATE=8, WIN=14, WINO=63, QSPEC=False, DUMP=False, QW=4, QD=24, WO1=10, LEAD=False, FEARLY=False, XMASK=False, QPOS=0, NREP=6, WOB=False, WOEARLY=True, VPRE=True, WOPOST=False, KQ=8, RESTORE=False, WARM=0, SPLIT=True, LM=7, OEARLY=1, TEARLY=False, TPOS=0, PREB=0, TAB2=False, APRIO=0, PSTAT=True, OACK=True, QBAR=0, XSL=0, TREP=1, DELAY=None, OUTF="", FLW=0, PKS=True, WIN1=12, ENDSTAMP=False, WB=0, XNWAIT=False, XPACE="ack", NOTAB=False, PREF=True, BPRIO=0):
    assert not LEAD and NREP in (1, 3, 6)
    A = Asm()
    LOG2E = math.log2(math.e)
    K0 = 2 * math.sqrt(2 / math.pi) * LOG2E
    K1 = K0 * 0.044715
    SC = K1 ** (1.0 / 3.0)
    KAP = K0 / SC
    SMC = 128 ** -0.5 * LOG2E
    E0 = E_LO << 7
    TABP, WQS, PART, PSTR = 0, 4096, 40960, 1040
    ML, OV, XSA, XSB, XN, TRED = 49280, 49408, 49920, 52224, 54528, 59136
    TABN, WOS, FLG = 65536, WQS, 59648
    QL, KB, VB = 60416, 69632, 104448
    RED, RSTR, FB = QL + 512, 320, FLG + 32
    LDS = 139264
    W_HQ, W_HO, W_HT, W_HX, W_DIAG = 0, 131072, 655360 if TREP == 1 else 950272, 663552, 1 << 20
    W_HY = W_HT + 8192
    L_HQ, L_HO, L_HM, L_HX = 65536, 262144, 4096, 36864
    sX, sK, sV, sWQ, sWO, sW1, sB1, sW2, sB2, sOUT, sDBG, sWS = 4, 6, 8, 10, 12, 16, 18, 20, 22, 24, 26, 28
    sWV, sHKV, sB, sS, sGID, sL, sFAST, sXCC, sCNT, sP = 30, 31, 32, 33, 34, 35, 36, 37, 38, 39
    sH, sRET, sHQ, sHO, sHM, sHX = 40, 56, 58, 60, 62, 64
    sT0, sT1, sT2, sSMC, sT3 = 66, 67, 68, 69, 3
    sMSK = 14
    sQM, sBM, sOM = 50, 52, 54
    sSM2 = 48
    sXM = 22
    sHXS, sXD = 20, 19
    sHY, sYW = 16, 18
    sFB, sFH = 10, 12
    sSTAMP = 70

    def sp(r):
        return "s[%d:%d]" % (r, r + 1)

    def V(a, n=1):
        return "v%d" % a if n == 1 else "v[%d:%d]" % (a, a + n - 1)

    vT, vL = 0, 1
    aHQL, aHQS, aHOL, aHOS, aHML, aHXL, aHXS = 2, 3, 4, 5, 6, 7, 11
    vC1, vEPS2, vEPS = 8, 9, 10
    vSQ = 188
    aHQG, lQW = 98, 99
    lNR2, vSEL = 96, 196
    sHX1, sHX2, sHX3 = 4, 6, 8
    lPW, lPR, lMR, lMW, lOW, lOR, lXC, lXP, lXS, lNW, lNH, lNR = 12, 13, 14, 15, 16, 17, 18, 19, 20, 21, 22, 23
    vS = 24
    vK = 32
    vA = 64
    vVT = 100
    vWQ = 132
    vWO = 168
    vVR = 200
    vONES, vMA, vB2 = 200, 204, 97
    vRW, vCA, vCC, vCW, vKAP, vONE, vSCL = 132, (162, 32), (164, 34), (166, 36), 250, 38, 252
    vQ = 234
    vXA = 234
    vP = 250
    vINV, vM = 254, 255
    vACC, vTT = 168, 184
    STAMPS = STAMPS.split()
    stamp_n = [len(STAMPS)]

    def stamp(name):
        if DIAG and "#" + name in STAMPS:
            A("s_mov_b32 s%d, s%d" % (sSTAMP + 2 * STAMPS.index("#" + name), sCNT))
        if DIAG and name in STAMPS:
            A("s_memrealtime %s" % sp(sSTAMP + 2 * STAMPS.index(name)))
            A("s_waitcnt lgkmcnt(0)")

    def stampL(name):
        if DIAG and any(p + name + l in STAMPS for p in ("", "#") for l in "01"):
            A("s_cmp_eq_u32 s%d, 0" % sL)
            A("s_cbranch_scc0 Lst_%s" % name)
            stamp(name + "0")
            A("s_branch Lste_%s" % name)
            A.label("Lst_%s" % name)
            stamp(name + "1")
            A.label("Lste_%s" % name)

    def bc(r):
        assert r % 2 == 0
        return V(r, 2)

    def add64(base, off_reg):
        A("s_add_u32 s%d, s%d, %s" % (base, base, off_reg))
        A("s_addc_u32 s%d, s%d, 0" % (base + 1, base + 1))

    def store2(text):
        n = len(A.lines)
        A("s_cmp_eq_u32 s%d, 0" % sFAST)
        A("s_cbranch_scc1 Lsl%d" % n)
        for t in text:
            A(t)
        A("s_branch Lsd%d" % n)
        A.label("Lsl%d" % n)
        for t in text:
            A(t + " sc1")
        A.label("Lsd%d" % n)

    def maxtree(dst, regs):
        regs = list(regs)
        A("v_max3_u32 %s, %s, %s, %s" % (V(dst), V(regs[0]), V(regs[1]), V(regs[2])))
        regs = regs[3:]
        while len(regs) >= 2:
            A("v_max3_u32 %s, %s, %s, %s" % (V(dst), V(dst), V(regs[0]), V(regs[1])))
            regs = regs[2:]
        if regs:
            A("v_max_u32 %s, %s, %s" % (V(dst), V(dst), V(regs[0])))

    retries = []

    def poll_tail(label, tmp, mask=None, far=False):
        A("v_cmp_eq_u32 vcc, -1, %s" % V(tmp))
        if mask:
            A("s_or_b32 vcc_lo, vcc_lo, vcc_hi")
            A("s_and_b32 vcc_lo, vcc_lo, %s" % mask)
            A("s_cbranch_scc0 %s_ok" % label)
        elif far:
            A("s_cbranch_vccnz %s_again" % label)
            A.label("%s_ok" % label)
            retries.append(label)
            return
        else:
            A("s_cbranch_vccz %s_ok" % label)
        A("s_sub_u32 s%d, s%d, 1" % (sCNT, sCNT))
        A("s_cbranch_scc0 %s" % label)
        A("s_mov_b32 s%d, 0" % sCNT)
        A.label("%s_ok" % label)

    DPP = " row_mask:0xf bank_mask:0xf"

    def stats_lane(t):
        x = lambda i: V(vXA + 2 * i, 2)
        a, b, q = V(t, 2), V(t + 2, 2), V(t + 4, 2)
        S, Q = t + 6, t + 7
        A("v_pk_add_f32 %s, %s, %s" % (a, x(0), x(1)))
        A("v_pk_mul_f32 %s, %s, %s" % (q, x(0), x(0)))
        A("v_pk_add_f32 %s, %s, %s" % (b, x(2), x(3)))
        A("v_pk_fma_f32 %s, %s, %s, %s" % (q, x(1), x(1), q))
        A("v_pk_add_f32 %s, %s, %s" % (a, a, b))
        A("v_pk_fma_f32 %s, %s, %s, %s" % (q, x(2), x(2), q))
        A("v_add_f32 %s, %s, %s" % (V(S), V(t), V(vXA + 8)))
        A("v_pk_fma_f32 %s, %s, %s, %s" % (q, x(3), x(3), q))
        A("v_add_f32 %s, %s, %s" % (V(S), V(S), V(t + 1)))
        A("v_fma_f32 %s, %s, %s, %s" % (V(Q), V(vXA + 8), V(vXA + 8), V(t + 4)))
        A("v_add_f32 %s, %s, %s" % (V(Q), V(Q), V(t + 5)))

    WAVE6 = ("quad_perm:[1,0,3,2]" + DPP, "quad_perm:[2,3,0,1]" + DPP, "row_half_mirror" + DPP,
             "row_mirror" + DPP, "row_bcast:15 row_mask:0xa bank_mask:0xf", "row_bcast:31 row_mask:0xc bank_mask:0xf")

    def stats_wave(t, twice):
        S, Q = t + 6, t + 7
        o = []
        for ctl in WAVE6:
            o.append("v_add_f32_dpp %s, %s, %s %s" % (V(S), V(S), V(S), ctl))
            o.append("v_add_f32_dpp %s, %s, %s %s" % (V(Q), V(Q), V(Q), ctl))
        o.append("v_readlane_b32 s%d, %s, 63" % (sT0, V(S)))
        o.append("v_readlane_b32 s%d, %s, 63" % (sT1, V(Q)))
        c, e = (vC1, vEPS2) if twice else (vINV, vEPS)
        o.append("v_mul_f32 %s, s%d, %s" % (V(t), sT0, V(vINV)))
        if twice:
            o.append("v_mul_f32 %s, s%d, %s" % (V(t + 2), sT0, V(vC1)))
        o.append("v_fma_f32 %s, s%d, %s, %s" % (V(t + 1), sT1, V(c), V(e)))
        o.append("v_fma_f32 %s, -%s, %s, %s" % (V(t + 1), V(t + 2 if twice else t), V(t), V(t + 1)))
        o.append("v_max_f32 %s, %s, %s" % (V(t + 1), V(e), V(t + 1)))
        o.append("v_rsq_f32 %s, %s" % (V(t + 2), V(t + 1)))
        return o

    def normalize(dst, t, r):
        A("v_mul_f32 %s, %s, %s" % (V(t + 4), V(t), V(r)))
        for i in range(4):
            A("v_pk_fma_f32 %s, %s, %s, %s op_sel_hi:[1,0,0] neg_lo:[0,0,1] neg_hi:[0,0,1]" % (
                V(dst + 2 * i, 2), V(vXA + 2 * i, 2), bc(r), bc(t + 4)))
        A("v_fma_f32 %s, %s, %s, -%s" % (V(dst + 8), V(vXA + 8), V(r), V(t + 4)))

    def reduce8(o, ml, M, e, norm, mid=None, fill=()):
        A("v_max_f32_dpp %s, %s, %s quad_perm:[1,0,3,2]%s" % (V(M), V(ml), V(ml), DPP))
        for l in fill[:2]:
            A(l)
        A("v_max_f32_dpp %s, %s, %s quad_perm:[2,3,0,1]%s" % (V(M), V(M), V(M), DPP))
        for l in fill[2:]:
            A(l)
        A("v_max_f32_dpp %s, %s, %s row_half_mirror%s" % (V(M), V(M), V(M), DPP))
        A("v_sub_f32 %s, %s, %s" % (V(e), V(ml), V(M)))
        A("v_exp_f32 %s, %s" % (V(e), V(e)))
        A("v_mov_b32 %s, %s" % (V(ml), V(M)))
        if mid:
            A(mid)
        A("v_mul_f32 %s, %s, %s" % (V(ml + 1), V(ml + 1), V(e)))
        for i in range(2):
            A("v_pk_mul_f32 %s, %s, %s op_sel_hi:[1,0]" % (V(o + 2 * i, 2), V(o + 2 * i, 2), bc(e)))
        for ctl in ("quad_perm:[1,0,3,2]", "quad_perm:[2,3,0,1]", "row_half_mirror"):
            for r in (ml + 1, o, o + 1, o + 2, o + 3):
                A("v_add_f32_dpp %s, %s, %s %s%s" % (V(r), V(r), V(r), ctl, DPP))
        if norm:
            A("v_rcp_f32 %s, %s" % (V(e), V(ml + 1)))
            for i in range(2):
                A("v_pk_mul_f32 %s, %s, %s op_sel_hi:[1,0]" % (V(o + 2 * i, 2), V(o + 2 * i, 2), bc(e)))

    vXR = vA + 20
    aK, aV, aW = vA, vA + 1, vA + 2

    aK2, aV2, aD, vFL = vWO, vWO + 1, vWO + 2, vWO + 4

    def win():
        if WIN < 63:
            A("s_waitcnt vmcnt(%d)" % (WIN - 1))

    def dma8(base, lds):
        A("s_mul_i32 s%d, s%d, 8704" % (sT1, sWV))
        for i in range(8):
            A("s_add_u32 m0, s%d, %d" % (sT1, lds + 1088 * i - 1024 * (i & 3)))
            win()
            A("global_load_lds_dwordx4 %s, %s offset:%d%s" % (V(aD + (i >> 2)), sp(base), 1024 * (i & 3), NTKV))

    def kloads(aK, lo, hi):
        for T in range(2):
            if T == 1 and FEARLY:
                look()
            for hf in range(2):
                for sub in range(2):
                    if not lo <= 4 * T + 2 * hf + sub < hi:
                        continue
                    win()
                    A("global_load_dwordx4 %s, %s, %s offset:%d%s" % (
                        V(vK + 16 * T + 4 * (2 * hf + sub), 4), V(aK), sp(sK), (16 * T + 8 * sub) * 256 + hf * 128 - 4096, NTKV))

    def look():
        A("s_cmp_lg_u32 s%d, 0" % sWV)
        A("s_cbranch_scc1 Lnolook")
        A("v_lshlrev_b32 v250, 2, v1")
        A("global_load_dword %s, v250, %s sc1" % (V(vFL), sp(sDBG)))
        A.label("Lnolook")

    def vload(i, aV):
        win()
        A("global_load_dwordx4 %s, %s, %s offset:%d%s" % (
            V(vVR + 4 * i, 4), V(aV), sp(sV), (16 * (i >> 2) + (i & 3)) * 256 - 4096, NTKV))

    def spin_tail(name, count):
        A("s_cmp_ge_u32 s%d, %s" % (sT0, count))
        A("s_cbranch_scc1 %s_ok" % name)
        A("s_sub_u32 s%d, s%d, 1" % (sCNT, sCNT))
        A("s_cbranch_scc0 %s" % name)
        A("s_mov_b32 s%d, 0" % sCNT)
        A.label("%s_ok" % name)

    def arrive_wait(off, count, name):
        A("v_mov_b32 v252, %d" % (FLG + off))
        A("v_mov_b32 v253, 1")
        A("s_mov_b64 exec, 1")
        A("ds_add_u32 v252, v253")
        A("s_mov_b64 exec, -1")
        if name is None:
            return
        A.label(name)
        A("ds_read_b32 v253, v252")
        A("s_waitcnt lgkmcnt(0)")
        A("v_readfirstlane_b32 s%d, v253" % sT0)
        spin_tail(name, "%d" % count)

    def mark_v():
        A("s_lshl_b32 s%d, 1, s%d" % (sT0, sWV))
        A("v_mov_b32 v252, %d" % (FLG + 24))
        A("v_mov_b32 v253, s%d" % sT0)
        A("s_mov_b64 exec, 1")
        A("ds_or_b32 v252, v253")
        A("s_mov_b64 exec, -1")

    def spin(off, count, name):
        A("v_mov_b32 v252, %d" % (FLG + off))
        A.label(name)
        A("ds_read_b32 v253, v252")
        A("s_waitcnt lgkmcnt(0)")
        A("v_readfirstlane_b32 s%d, v253" % sT0)
        spin_tail(name, "%d" % count)

    A.label(NAME)
    A("s_cmp_ge_u32 s2, 0x100")
    A("s_cbranch_scc1 Lend")
    if DELAY:
        A("v_readfirstlane_b32 s4, v0")
        A("s_lshl_b32 s4, s4, 2")
        A("s_or_b32 s4, s4, s2")
        A("s_and_b32 s4, s4, %d" % DELAY[0])
        A("s_cmp_lg_u32 s4, %d" % DELAY[1])
        A("s_cbranch_scc1 Lnodelay")
        for i in range(DELAY[2]):
            A("s_sleep 127")
        A.label("Lnodelay")
    if DIAG:
        A("s_memrealtime s[98:99]")
    A("s_load_dwordx16 s[4:19], s[0:1], 0")
    A("s_load_dwordx8 s[20:27], s[0:1], 64")
    A("s_load_dwordx2 s[28:29], s[0:1], 96")
    A("v_lshrrev_b32 v24, 6, v0")
    A("v_and_b32 v1, 63, v0")
    A("v_readfirstlane_b32 s%d, v24" % sWV)
    if PREF:
        A("s_cmp_lg_u32 s%d, 3" % sWV)
        A("s_cbranch_scc1 Lnopref")
        A("s_getpc_b64 %s" % sp(sHQ))
        A.label("Lpc")
        A("v_lshlrev_b32 v24, 7, v1")
        A("v_add_u32 v25, 0x2000, v24")
        A("v_min_u32 v25, Lcode_end-Lpc-4, v25")
        A("global_load_dword v198, v24, %s" % sp(sHQ))
        A("global_load_dword v199, v25, %s" % sp(sHQ))
        A.label("Lnopref")
    A("s_and_b32 s%d, s2, 7" % sT0)
    A("s_lshr_b32 s%d, s2, 3" % sT1)
    A("s_lshr_b32 s%d, s%d, 4" % (sT2, sT1))
    A("s_lshl_b32 s%d, s%d, 1" % (sHKV, sT0))
    A("s_add_u32 s%d, s%d, s%d" % (sHKV, sHKV, sT2))
    A("s_bfe_u32 s%d, s%d, 0x10003" % (sB, sT1))
    A("s_and_b32 s%d, s%d, 7" % (sS, sT1))
    A("s_lshl_b32 s%d, s%d, 4" % (sGID, sB))
    A("s_add_u32 s%d, s%d, s%d" % (sGID, sGID, sHKV))
    A("s_lshr_b32 s%d, s%d, 1" % (sP, sS))
    A("v_lshlrev_b32 v28, 2, v1")
    A("v_lshlrev_b32 v29, 1, v1")
    A("v_mov_b32 %s, 0" % V(vB2))
    A("v_mov_b32 v248, 0")
    A("v_and_b32 v24, 15, v1")
    A("v_lshrrev_b32 v25, 4, v1")
    A("v_and_b32 v26, 7, v1")
    A("v_lshrrev_b32 v27, 3, v1")
    A("v_and_b32 v249, 1, v27")
    A("v_lshl_add_u32 v249, v249, 2, v25")
    A("v_lshlrev_b32 v249, 4, v249")
    A("v_lshl_add_u32 %s, v26, 8, v249" % V(aK))
    A("v_lshlrev_b32 v249, 4, v24")
    A("v_lshl_add_u32 %s, v25, 10, v249" % V(aV))
    oX, oKV, oWQ = sH, sH + 1, sH + 2
    A("s_mul_i32 s%d, s%d, 1152" % (oX, sB))
    A("s_lshl_b32 s%d, s%d, 21" % (oKV, sGID))
    A("s_lshl_b32 s%d, s%d, 16" % (sT1, sS))
    A("s_add_u32 s%d, s%d, s%d" % (oKV, oKV, sT1))
    A("s_lshl_b32 s%d, s%d, 13" % (sT1, sWV))
    A("s_add_u32 s%d, s%d, s%d" % (oKV, oKV, sT1))
    A("s_add_u32 s%d, s%d, %d" % (oKV, oKV, 6144 * 256 + 4096))

    def bases():
        for (r, base, mul, src) in ((sHQ, W_HQ, 2048, sGID), (sHO, W_HO, 8192, sGID), (sHX, W_HX, 18432, sB)):
            A("s_mul_i32 s%d, s%d, %d" % (sT0, src, mul))
            if base:
                A("s_add_u32 s%d, s%d, %d" % (sT0, sT0, base))
            A("s_add_u32 s%d, s%d, s%d" % (r, sWS, sT0))
            A("s_addc_u32 s%d, s%d, 0" % (r + 1, sWS + 1))

    A("s_cmp_gt_u32 s%d, 3" % sWV)
    A("s_cbranch_scc1 Lrole_b")
    if APRIO:
        A("s_setprio %d" % APRIO)
    A("s_mul_i32 s%d, s%d, %d" % (oWQ, sP, 144 * 8192))
    A("s_lshl_b32 s%d, s%d, 9" % (sT1, sHKV))
    A("s_add_u32 s%d, s%d, s%d" % (oWQ, oWQ, sT1))
    A("s_and_b32 s%d, s%d, 1" % (sT1, sS))
    A("s_lshl_b32 s%d, s%d, 8" % (sT1, sT1))
    A("s_add_u32 s%d, s%d, s%d" % (oWQ, oWQ, sT1))
    A("s_lshl_b32 s%d, s%d, 15" % (sT1, sWV))
    A("s_add_u32 s%d, s%d, s%d" % (oWQ, oWQ, sT1))
    A("v_lshlrev_b32 v249, 2, v25")
    A("v_xor_b32 v249, v249, v24")
    A("v_lshlrev_b32 v249, 4, v249")
    A("v_lshl_add_u32 %s, v25, 13, v249" % V(aW))
    A("v_mov_b32 v249, %d" % FLG)
    A("ds_write2_b32 v249, v248, v248 offset0:1 offset1:2")
    A("ds_write2_b32 v249, v248, v248 offset0:3 offset1:4")
    A("ds_write2_b32 v249, v248, v248 offset0:5 offset1:6")
    A("ds_write_b32 v249, v248 offset:28")
    A("v_lshlrev_b32 %s, 4, v1" % V(aD))
    A("v_add_u32 %s, %d, %s" % (V(aD), 32768 - 4096, V(aD)))
    A("v_add_u32 %s, 4096, %s" % (V(aD + 1), V(aD)))
    A("s_getreg_b32 s%d, hwreg(HW_REG_XCC_ID, 0, 4)" % sXCC)
    A("s_cmp_lg_u32 s%d, 2" % sWV)
    A("s_cbranch_scc1 Linit_a")
    for i in range(4):
        A("v_mov_b32 %s, -1" % V(244 + i))
    A("s_lshl_b32 s%d, s%d, 13" % (sT1, sGID))
    A("s_lshl_b32 s%d, s%d, 10" % (sT2, sS))
    A("s_add_u32 s%d, s%d, s%d" % (sT1, sT1, sT2))
    A("s_add_u32 s%d, s%d, %d" % (sT1, sT1, W_HO))
    A("v_lshl_add_u32 v251, v1, 4, s%d" % sT1)
    A("v_add_u32 v252, %d, v251" % L_HO)
    A("s_lshl_b32 s%d, s%d, 8" % (sT1, sS))
    A("s_lshl_b32 s%d, s%d, 11" % (sT2, sGID))
    A("s_add_u32 s%d, s%d, s%d" % (sT1, sT1, sT2))
    A("v_lshl_add_u32 v249, v1, 4, s%d" % sT1)

    def seg(first, sreg, const):
        A("v_cmp_le_u32 vcc, %d, v1" % first)
        A("s_add_u32 s%d, s%d, %d" % (sT0, sreg, const - 16 * first))
        A("v_lshl_add_u32 v250, v1, 4, s%d" % sT0)
        A("v_cndmask_b32 v249, v249, v250, vcc")

    seg(16, sT1, W_HQ + L_HQ)
    A("s_lshl_b32 s%d, s2, 5" % sT1)
    for r in range(TREP):
        seg(32 + 2 * r, sT1, W_HT + 8192 * r)
    per = (9 * (NREP + 1) + 7) // 8
    A("v_min_u32 v243, %d, v27" % (per - 1))
    A("s_mul_i32 s%d, s%d, %d" % (sT0, sS, per))
    A("v_add_u32 v243, s%d, v243" % sT0)
    A("v_min_u32 v243, %d, v243" % (9 * (NREP + 1) - 1))
    A("v_mul_u32_u24 v250, 7282, v243")
    A("v_lshrrev_b32 v250, 16, v250")
    A("v_mul_u32_u24 v250, %d, v250" % (L_HX - 1152))
    A("v_lshl_add_u32 v243, v243, 7, v250")
    A("v_lshl_add_u32 v243, v26, 4, v243")
    A("s_mul_i32 s%d, s%d, 1152" % (sT0, sGID))
    A("s_add_u32 s%d, s%d, %d" % (sT0, sT0, W_HX))
    A("v_add_u32 v243, s%d, v243" % sT0)
    A("s_waitcnt lgkmcnt(0)")
    A("global_store_dwordx4 v251, v[244:247], %s sc1" % sp(sWS))
    A("global_store_dwordx4 v252, v[244:247], %s sc1" % sp(sWS))
    A("global_store_dwordx4 v243, v[244:247], %s sc1" % sp(sWS))
    A("s_mov_b32 exec_hi, %d" % (4 ** TREP - 1))
    A("global_store_dwordx4 v249, v[244:247], %s sc1" % sp(sWS))
    A("s_mov_b32 exec_hi, -1")
    A.label("Linit_a")
    A("s_waitcnt lgkmcnt(0)")
    stamp("start")
    if DIAG:
        A("s_memtime s[100:101]")
        A("s_waitcnt lgkmcnt(0)")
    add64(sX, "s%d" % oX)
    add64(sWQ, "s%d" % oWQ)
    A("global_load_short_d16_hi %s, v248, %s" % (V(vB2), sp(sB2)))
    for i in range(4):
        A("global_load_dword %s, v28, %s offset:%d" % (V(vXR + i), sp(sX), 256 * i))
    A("global_load_ushort %s, v29, %s offset:1024" % (V(vXR + 4), sp(sX)))
    add64(sK, "s%d" % oKV)
    add64(sV, "s%d" % oKV)
    A("s_lshl_b32 s%d, s%d, 10" % (sT1, sWV))
    for i in range(9):
        if i == PREB:
            A("s_barrier")
        A("s_add_u32 m0, s%d, %d" % (sT1, WQS + 4096 * i))
        if i:
            A("v_add_u32 %s, 0x20000, %s" % (V(aW), V(aW)))
        A("global_load_lds_dwordx4 %s, %s%s" % (V(aW), sp(sWQ), NTW))
    A("s_cmp_lg_u32 s%d, 2" % sWV)
    A("s_cbranch_scc1 Lnoflag")
    A("s_or_b32 s%d, s%d, 0x80" % (sT0, sXCC))
    A("s_and_b32 s%d, s2, 3" % sT1)
    A("s_lshl_b32 s%d, s%d, 3" % (sT1, sT1))
    A("s_lshl_b32 s%d, s%d, s%d" % (sT0, sT0, sT1))
    A("s_and_b32 s%d, s2, 0xfc" % sT1)
    A("v_mov_b32 v249, s%d" % sT1)
    A("v_mov_b32 v250, s%d" % sT0)
    A("s_waitcnt vmcnt(15)")
    A("s_mov_b64 exec, 1")
    A("global_atomic_or v249, v250, %s sc1" % sp(sDBG))
    A("s_mov_b64 exec, -1")
    A.label("Lnoflag")
    dma8(sK, KB)
    kloads(aK, 0, KQ)
    bases()
    A("s_call_b64 %s, Laddr" % sp(sRET))
    A("v_bfe_u32 v248, v1, 2, 2")
    A("v_xor_b32 v249, s%d, v248" % sWV)
    A("v_and_b32 v250, 3, v1")
    A("v_lshl_add_u32 v249, v249, 2, v250")
    A("v_lshlrev_b32 v249, 4, v249")
    A("v_lshl_add_u32 v249, v248, 8, v249")
    A("v_add_u32 v249, %d, v249" % WQS)
    A("v_lshrrev_b32 v250, 4, v1")
    A("v_lshl_add_u32 v248, v250, 10, v249")
    A("v_lshl_add_u32 v249, v250, 11, v249")
    for i in range(4):
        A("v_mov_b32 %s, 0x3f803f80" % V(244 + i))
    A("v_mov_b32 %s, %s" % (V(aV2), V(aV)))
    A("v_mov_b32 %s, %s" % (V(aK2), V(aK)))
    aV = aV2
    A("s_waitcnt vmcnt(%d)" % (8 + KQ))
    arrive_wait(4, 4, "Lsync_a")
    stamp("wq")
    for u in range(2):
        for ks in range(4):
            for hh in range(2):
                A("ds_read_b64_tr_b16 %s, v249 offset:%d" % (V(vWQ + 18 * u + 4 * ks + 2 * hh, 2), (32 * ks + 4 * hh) * 256 + 8 * u))
        A("ds_read_b64_tr_b16 %s, v248 offset:%d" % (V(vWQ + 18 * u + 16, 2), 128 * 256 + 8 * u))
    A("s_waitcnt lgkmcnt(0)")
    for ks in range(4):
        for u in range(2):
            A("v_mfma_f32_16x16x32_bf16 %s, %s, v[244:247], %s" % (
                V(vSQ + 4 * u, 4), V(vWQ + 18 * u + 4 * ks, 4), V(vSQ + 4 * u, 4) if ks else "0"))
    A("s_nop 5")
    for u in range(2):
        A("v_mfma_f32_16x16x16_bf16 %s, %s, v[244:245], %s" % (V(vSQ + 4 * u, 4), V(vWQ + 18 * u + 16, 2), V(vSQ + 4 * u, 4)))
    A("s_mov_b32 s%d, -1" % sYW)
    for r, m in ((sQM, 0x00110011), (sBM, 0x00010001), (sOM, 0x01010101)):
        A("s_mov_b32 s%d, %s" % (r, hx(m)))
        A("s_mov_b32 s%d, %s" % (r + 1, hx(m)))
    A("s_call_b64 %s, Lqstage" % sp(sRET))
    A("s_mov_b32 s%d, 0" % sYW)
    arrive_wait(4, 0, None)
    stamp("q0")
    if not FEARLY:
        look()
    kloads(aK2, KQ, 8)
    dma8(sV, VB)
    A("s_waitcnt vmcnt(16)")
    arrive_wait(12, 0, None)
    A("s_call_b64 %s, Lsel" % sp(sRET))
    A("s_cmp_eq_u32 s%d, 0" % sWV)
    A("s_cbranch_scc1 Lwave0")
    for i in range(8):
        vload(i, aV)
    stamp("iss")
    A("s_cmp_lg_u32 s%d, 3" % sWV)
    A("s_cbranch_scc1 Lnox0")
    for i in range(4):
        A("ds_write_b64 %s, %s offset:%d" % (V(lXP), V(vXA + 2 * i, 2), 512 * i))
    A("ds_write_b32 %s, %s" % (V(lXS), V(vXA + 8)))
    A.label("Lnox0")
    def woaddr(half):
        A("s_mul_i32 s%d, s%d, %d" % (sT0, sHKV, 256 * 1152))
        A("s_mul_i32 s%d, s%d, 144" % (sT1, sS))
        A("s_add_u32 s%d, s%d, s%d" % (sT0, sT0, sT1))
        if half:
            A("s_add_u32 s%d, s%d, %d" % (sT0, sT0, 128 * 1152))
        add64(sWO, "s%d" % sT0)
        A("s_mul_i32 s%d, s%d, 48" % (sT0, sWV))
        A("s_sub_u32 s%d, s%d, %d" % (sT0, sT0, 48 * (1 + 4 * half)))
        A("v_min_u32 v248, 47, v1")
        A("v_add_u32 v248, s%d, v248" % sT0)
        A("v_mul_u32_u24 v250, 7282, v248")
        A("v_lshrrev_b32 v250, 16, v250")
        A("v_mul_u32_u24 v250, %d, v250" % (9216 - 144))
        A("v_lshl_add_u32 v232, v248, 4, v250")

    woaddr(0)
    A("s_waitcnt vmcnt(16)")
    A("s_call_b64 %s, Lkshuf" % sp(sRET))
    spin(4, 9, "Lsync_wo")

    def woloads(lo, hi, window, first=1):
        A("s_mul_i32 s%d, s%d, 768" % (sT1, sWV))
        A("s_mov_b32 exec_hi, 0xffff")
        for i in range(lo, hi):
            A("s_add_u32 m0, s%d, %d" % (sT1, WOS - 768 * first + 2304 * i))
            if i and not (first == 5 and i == lo):
                add64(sWO, "%d" % (1152 * (121 if i == 8 else 1)))
            if window(i) < 63:
                A("s_waitcnt vmcnt(%d)" % (window(i) - 1))
            A("global_load_lds_dwordx4 v232, %s%s" % (sp(sWO), NTW))
        A("s_mov_b32 exec_hi, -1")

    if VPRE:
        woloads(0, 4, lambda i: WIN1)
        A("s_waitcnt vmcnt(12)")
        mark_v()
        woloads(4, WO1, lambda i: WIN1)
    else:
        woloads(0, WO1, lambda i: WIN1)
        A("s_waitcnt vmcnt(%d)" % (8 + WO1))
    stamp("wo")
    A("s_branch Lmeet")
    A.label("Lwave0")
    A("s_lshr_b32 s%d, s2, 6" % sT0)
    A("s_lshl_b32 s%d, s%d, 4" % (sT0, sT0))
    A("s_bfe_u32 s%d, s2, 0x10002" % sT1)
    A("s_add_u32 s%d, s%d, s%d" % (sT0, sT0, sT1))
    A("s_mov_b64 %s, 0x5555" % sp(sMSK))
    A("s_lshl_b64 %s, %s, s%d" % (sp(sMSK), sp(sMSK), sT0))
    A("s_and_b32 s%d, s2, 3" % sT2)
    A("s_lshl_b32 s%d, s%d, 3" % (sT2, sT2))
    A("v_lshlrev_b32 v250, 2, v1")
    A("s_waitcnt vmcnt(%d)" % (12 if FEARLY else FLW if FLW else 16 - KQ))
    A("s_branch Lflagchk")
    A.label("Lflagpoll")
    A("global_load_dword %s, v250, %s sc1" % (V(vFL), sp(sDBG)))
    A("s_waitcnt vmcnt(0)")
    A.label("Lflagchk")
    A("v_bfe_u32 v251, %s, s%d, 8" % (V(vFL), sT2))
    A("v_cmp_gt_u32 vcc, 0x80, v251")
    A("s_and_b64 vcc, vcc, %s" % sp(sMSK))
    A("s_cbranch_scc0 Lflagok")
    A("s_sub_u32 s%d, s%d, 1" % (sCNT, sCNT))
    A("s_cbranch_scc0 Lflagpoll")
    A("s_mov_b32 s%d, 0" % sCNT)
    A.label("Lflagok")
    stamp("fl")
    for i in range(QPOS):
        vload(i, aV)
    for h in range(2):
        A("global_load_dwordx4 %s, %s, %s offset:%d sc1" % (V(vQ + 4 * h, 4), V(aHQG), sp(sHQ), 256 * h))
    A("global_load_dword %s, v250, %s sc1" % (V(vA), sp(sDBG)))
    A("v_and_b32 v251, 15, v251")
    A("v_cmp_ne_u32 vcc, s%d, v251" % sXCC)
    A("v_mov_b32 v251, %d" % FLG)
    A("s_and_b64 vcc, vcc, %s" % sp(sMSK))
    A("s_cselect_b32 s%d, 0, %d" % (sT0, 0 if FORCE_SLOW else 1))
    A("v_mov_b32 v253, s%d" % sT0)
    A("ds_write_b32 v251, v253")
    arrive_wait(4, 0, None)
    for i in range(QPOS, 8):
        vload(i, aV)
    stamp("iss")
    A("s_call_b64 %s, Lkshuf" % sp(sRET))
    if VPRE:
        A("s_waitcnt vmcnt(11)")
        mark_v()
    A("s_waitcnt vmcnt(%d)" % (8 - QPOS))
    A("s_branch Lq0chk")
    A.label("Lq0poll")
    for h in range(2):
        A("global_load_dwordx4 %s, %s, %s offset:%d sc1" % (V(vQ + 4 * h, 4), V(aHQG), sp(sHQ), 256 * h))
    A("global_load_dword %s, v250, %s sc1" % (V(vA), sp(sDBG)))
    A("s_waitcnt vmcnt(0)")
    A.label("Lq0chk")
    for h in range(2):
        A("v_mfma_f32_16x16x32_bf16 %s, %s, %s, 0" % (V(vS + 4 * h, 4), V(vSEL, 4), V(vQ + 4 * h, 4)))
    maxtree(vM, range(vQ, vQ + 8))
    A("v_and_b32 %s, 0x80808080, %s" % (V(vA), V(vA)))
    A("v_cmp_ne_u32 vcc, 0x80808080, %s" % V(vA))
    A("v_cndmask_b32 %s, %s, -1, vcc" % (V(vM), V(vM)))
    poll_tail("Lq0poll", vM)
    for i in range(4):
        A("v_cvt_pk_bf16_f32 %s, %s, %s" % (V(vQ + i), V(vS + 2 * i), V(vS + 2 * i + 1)))
    A("s_mov_b32 exec_hi, 0")
    for h in range(2):
        A("ds_write_b64 %s, %s offset:%d" % (V(lQW), V(vQ + 2 * h, 2), 256 * h))
    A("s_mov_b32 exec_hi, -1")
    A("s_branch Lmeet")
    aK, aV = vA, vA + 1
    A.label("Lrole_b")
    if BPRIO:
        A("s_setprio %d" % BPRIO)
    A("v_subrev_u32 v31, 0x100, v0")
    A("v_lshlrev_b32 v30, 4, v31")
    A("v_add_u32 v249, 0x1000, v30")
    A("v_lshlrev_b32 v31, 2, v31")
    A("v_add_u32 v31, 0x2000, v31")
    A("s_waitcnt lgkmcnt(0)")
    stamp("start")
    if DIAG:
        A("s_memtime s[100:101]")
        A("s_waitcnt lgkmcnt(0)")
    for i in range(3):
        r, p = vRW + 10 * i, sp((sW1, sB1, sW2)[i])
        A("global_load_dwordx4 %s, v30, %s" % (V(r, 4), p))
        A("global_load_dwordx4 %s, v249, %s" % (V(r + 4, 4), p))
        A("global_load_dword %s, v31, %s" % (V(r + 8), p))
    A("global_load_short_d16_hi %s, v248, %s" % (V(vB2), sp(sB2)))
    A("s_barrier")
    stamp("iss")
    bases()
    A("s_call_b64 %s, Laddr" % sp(sRET))
    A("s_and_b32 s%d, s2, 127" % sT0)
    A("s_lshl_b32 s%d, s%d, 4" % (sT0, sT0))
    A("s_add_u32 s%d, s%d, %d" % (sT0, sT0, E0))
    A("s_lshr_b32 s%d, s2, 7" % sT1)
    A("s_lshl_b32 s%d, s%d, 15" % (sT1, sT1))
    A("s_add_u32 s%d, s%d, s%d" % (sT0, sT0, sT1))
    A("v_add_u32 v249, s%d, v1" % sT0)
    A("v_lshlrev_b32 v249, 16, v249")
    A("v_mul_f32 v249, %s, v249" % fl(SC))
    A("v_mov_b32 %s, %s" % (V(vKAP), fl(KAP)))
    A("v_mov_b32 %s, %s" % (V(vONE), fl(2.0 ** -60) if TAB2 else "1.0"))
    A("v_mov_b32 %s, %s" % (V(vONE + 2), fl(-60.0)))
    A("v_mov_b32 %s, %s" % (V(vSCL), fl(SC)))
    for i in range(16):
        A("v_readlane_b32 s%d, v249, %d" % (sH + i, i))
        A("v_mov_b32 %s, 0" % V(vACC + i))
    A("s_mov_b32 s%d, 0" % sT3)
    A("s_waitcnt vmcnt(0)")
    stamp("wq")
    A.label("Ltabloop")
    A("s_set_gpr_idx_on s%d, gpr_idx(SRC1)" % sT3)
    for i, d in enumerate((vCA, vCC, vCW)):
        A("v_lshlrev_b32 %s, 16, %s" % (V(d[0]), V(vRW + 10 * i)))
        A("v_and_b32 %s, 0xffff0000, %s" % (V(d[1]), V(vRW + 10 * i)))
    A("s_set_gpr_idx_off")
    for f in range(2):
        A("v_mul_f32 %s, %s, %s" % (V(vCC[f]), V(vCC[f]), V(vSCL)))
    if TAB2:
        def regs(k):
            b = 200 + 10 * (k % 3)
            return [b + 2 * i for i in range(5)]

        def stA(k):
            U0, U1, E0, E1, D = regs(k)
            o = ["v_pk_fma_f32 %s, %s, %s, %s op_sel_hi:[0,1,0]" % (V(U, 2), bc(vCA[f]), sp(sH + 2 * k), bc(vCC[f])) for f, U in enumerate((U0, U1))]
            o += ["v_pk_fma_f32 %s, %s, %s, %s op_sel_hi:[1,1,0]" % (V(E, 2), V(U, 2), V(U, 2), bc(vKAP)) for U, E in ((U0, E0), (U1, E1))]
            o += ["v_pk_fma_f32 %s, %s, %s, %s op_sel_hi:[1,1,0] neg_lo:[1,0,0] neg_hi:[1,0,0]" % (V(E, 2), V(E, 2), V(U, 2), bc(vONE + 2)) for U, E in ((U0, E0), (U1, E1))]
            return o

        def stX(k):
            U0, U1, E0, E1, D = regs(k)
            return ["v_exp_f32_e64 %s, %s clamp" % (V(r), V(r)) for r in (E0, E0 + 1, E1, E1 + 1)]

        def stW(k):
            U0, U1, E0, E1, D = regs(k)
            return ["v_pk_mul_f32 %s, %s, %s op_sel_hi:[1,0]" % (V(U, 2), V(U, 2), bc(vCW[f])) for f, U in enumerate((U0, U1))]

        def stC(k):
            U0, U1, E0, E1, D = regs(k)
            return ["v_pk_add_f32 %s, %s, %s op_sel_hi:[1,0]" % (V(E0, 2), V(E0, 2), bc(vONE)),
                    "v_pk_add_f32 %s, %s, %s op_sel_hi:[1,0]" % (V(E1, 2), V(E1, 2), bc(vONE)),
                    "v_pk_mul_f32 %s, %s, %s" % (V(D, 2), V(E0, 2), V(E1, 2)),
                    "v_pk_mul_f32 %s, %s, %s" % (V(U0, 2), V(U0, 2), V(E1, 2)),
                    "v_pk_fma_f32 %s, %s, %s, %s" % (V(U0, 2), V(U1, 2), V(E0, 2), V(U0, 2))]

        def stR(k):
            D = regs(k)[4]
            return ["v_rcp_f32 %s, %s" % (V(D + i), V(D + i)) for i in range(2)]

        def stF(k):
            U0, U1, E0, E1, D = regs(k)
            return ["v_pk_fma_f32 %s, %s, %s, %s" % (V(vACC + 2 * k, 2), V(U0, 2), V(D, 2), V(vACC + 2 * k, 2))]

        def pick(f, k, n):
            return f(k) if 0 <= k < 8 else [None] * n

        for l in stA(0):
            A(l)
        for i in range(10):
            X, C, F, W, R, P = pick(stX, i, 4), pick(stC, i - 1, 5), pick(stF, i - 2, 1), pick(stW, i, 2), pick(stR, i - 1, 2), pick(stA, i + 1, 6)
            for l in (X[0], C[0], C[1], X[1], C[2], C[3], X[2], C[4], F[0], X[3], W[0], W[1], R[0], P[0], P[1], P[2], R[1], P[3], P[4], P[5]):
                if l:
                    A(l)
    for f in range(0 if TAB2 else 2):
        for k2 in range(0 if NOTAB else 4):
            seq = []
            for h in range(2):
                k = 2 * k2 + h
                u, t, e, uw = (V(vTT + 8 * h + 2 * i, 2) for i in range(4))
                e0, e1 = vTT + 8 * h + 4, vTT + 8 * h + 5
                t0, t1 = vTT + 8 * h + 2, vTT + 8 * h + 3
                seq.append([
                    "v_pk_fma_f32 %s, %s, %s, %s op_sel_hi:[0,1,0]" % (u, bc(vCA[f]), sp(sH + 2 * k), bc(vCC[f])),
                    "v_pk_fma_f32 %s, %s, %s, %s op_sel_hi:[1,1,0]" % (t, u, u, bc(vKAP)),
                    "v_pk_mul_f32 %s, %s, %s neg_lo:[1,0] neg_hi:[1,0]" % (t, t, u),
                    "v_exp_f32 %s, %s" % (V(e0), V(t0)),
                    "v_exp_f32 %s, %s" % (V(e1), V(t1)),
                    "v_pk_mul_f32 %s, %s, %s op_sel_hi:[1,0]" % (uw, u, bc(vCW[f])),
                    "v_pk_add_f32 %s, %s, %s op_sel_hi:[1,0]" % (e, e, bc(vONE)),
                    "v_rcp_f32 %s, %s" % (V(e0), V(e0)),
                    "v_rcp_f32 %s, %s" % (V(e1), V(e1)),
                    "v_pk_fma_f32 %s, %s, %s, %s" % (V(vACC + 2 * k, 2), uw, e, V(vACC + 2 * k, 2)),
                ])
            s0, s1 = seq
            for l in (s0[0], s1[0], s0[1], s1[1], s0[2], s1[2], s0[3], s0[4], s1[3], s1[4], s0[5], s0[6], s1[5], s1[6],
                      s0[7], s0[8], s1[7], s1[8], s0[9], s1[9]):
                A(l)
    A("s_add_u32 s%d, s%d, 1" % (sT3, sT3))
    A("s_cmp_lt_u32 s%d, 9" % sT3)
    A("s_cbranch_scc1 Ltabloop")
    stamp("q0")
    for k in range(8):
        A("v_permlane32_swap_b32 %s, %s" % (V(vACC + 2 * k), V(vACC + 2 * k + 1)))
    for k in range(8):
        A("v_add_f32 %s, %s, %s" % (V(vACC + 2 * k), V(vACC + 2 * k), V(vACC + 2 * k + 1)))
    for k in range(4):
        A("v_permlane16_swap_b32 %s, %s" % (V(vACC + 4 * k), V(vACC + 4 * k + 2)))
    for k in range(4):
        A("v_add_f32 %s, %s, %s" % (V(vACC + 4 * k), V(vACC + 4 * k), V(vACC + 4 * k + 2)))
    for ctl in ("quad_perm:[1,0,3,2]", "quad_perm:[2,3,0,1]", "row_half_mirror", "row_mirror"):
        for k in range(4):
            A("v_add_f32_dpp %s, %s, %s %s%s" % (V(vACC + 4 * k), V(vACC + 4 * k), V(vACC + 4 * k), ctl, DPP))
    A("v_lshrrev_b32 v251, 5, v1")
    A("v_bfe_u32 v250, v1, 4, 1")
    A("v_lshl_add_u32 v251, v250, 1, v251")
    A("s_lshl_b32 s%d, s%d, 6" % (sT0, sWV))
    A("s_add_u32 s%d, s%d, %d" % (sT0, sT0, TRED - 256))
    A("v_lshl_add_u32 v251, v251, 2, s%d" % sT0)
    A("s_mov_b32 exec_lo, 0x00010001")
    A("s_mov_b32 exec_hi, 0x00010001")
    A("ds_write2_b32 v251, %s, %s offset0:0 offset1:4" % (V(vACC), V(vACC + 4)))
    A("ds_write2_b32 v251, %s, %s offset0:8 offset1:12" % (V(vACC + 8), V(vACC + 12)))
    A("s_mov_b64 exec, -1")
    if BPRIO:
        A("s_setprio 0")
    arrive_wait(8, 0, None)
    spin(12, 4, "Lsync_kv")
    A("s_cmp_lg_u32 s%d, 7" % sWV)
    A("s_cbranch_scc1 Lnotab")
    spin(8, 4, "Lsync_b")
    A("v_and_b32 v250, 15, v1")
    A("v_lshlrev_b32 v250, 2, v250")
    A("v_add_u32 v251, %d, v250" % TRED)
    for i in range(2):
        A("ds_read2_b32 %s, v251 offset0:%d offset1:%d" % (V(vS + 2 * i, 2), 32 * i, 32 * i + 16))
    A("s_waitcnt lgkmcnt(0)")
    A("v_pk_add_f32 %s, %s, %s" % (V(vS, 2), V(vS, 2), V(vS + 2, 2)))
    A("v_add_f32 %s, %s, %s" % (V(vS), V(vS), V(vS + 1)))
    A("v_mul_f32 %s, %s, %s" % (V(vS), fl((2.0 ** -60 if TAB2 else 1.0) / SC), V(vS)))
    A("v_cvt_pk_bf16_f32 %s, %s, %s" % (V(vS), V(vS), V(vS)))
    A("v_lshlrev_b32 %s, 16, %s" % (V(vS), V(vS)))
    A("v_add_f32 %s, %s, %s" % (V(vS), V(vS), V(vB2)))
    A("v_mov_b32_dpp %s, %s quad_perm:[1,1,3,3]%s" % (V(vS + 1), V(vS), DPP))
    A("v_cvt_pk_bf16_f32 %s, %s, %s" % (V(vS), V(vS), V(vS + 1)))
    A("v_lshrrev_b32 v250, 1, v250")
    A("s_lshl_b32 s%d, s2, 5" % sT0)
    A("s_add_u32 s%d, s%d, %d" % (sT0, sT0, W_HT))
    A("v_add_u32 v250, s%d, v250" % sT0)
    if TREP > 1:
        A("v_lshrrev_b32 v251, 4, v1")
        A("v_lshl_add_u32 v250, v251, 13, v250")
        A("s_mov_b32 exec_lo, 0x55555555")
        A("s_mov_b32 exec_hi, %s" % ("0x55555555" if TREP == 4 else "0"))
    else:
        A("s_mov_b64 exec, 0x5555")
    A("global_store_dword v250, %s, %s sc1" % (V(vS), sp(sWS)))
    A("s_mov_b64 exec, -1")
    A.label("Lnotab")
    A("v_bfe_u32 v249, v1, 2, 2")
    A("v_mul_u32_u24 v249, 1088, v249")
    A("v_and_b32 v250, 3, v1")
    A("v_lshl_add_u32 v249, v250, 8, v249")
    A("v_lshrrev_b32 v250, 4, v1")
    A("v_lshl_add_u32 v249, v250, 4, v249")
    A("v_mul_u32_u24 v250, 1088, v250")
    A("v_and_b32 v251, 15, v1")
    A("v_lshl_add_u32 v250, v251, 4, v250")
    A("s_mul_i32 s%d, s%d, 8704" % (sT1, sWV))
    A("s_add_u32 s%d, s%d, %d" % (sT2, sT1, KB - 4 * 8704))
    A("v_add_u32 v249, s%d, v249" % sT2)
    A("s_add_u32 s%d, s%d, %d" % (sT2, sT1, VB - 4 * 8704))
    A("v_add_u32 %s, s%d, v250" % (V(vA + 1), sT2))
    stamp("fl")
    for T in range(2):
        for ks in range(4):
            A("ds_read_b128 %s, v249 offset:%d" % (V(vK + 16 * T + 4 * ks, 4), T * 4352 + ks * 64))
    A("s_call_b64 %s, Lsel" % sp(sRET))
    if VPRE:
        A("s_sub_u32 s%d, s%d, 4" % (sT1, sWV))
        A("v_mov_b32 v252, %d" % (FLG + 24))
        A.label("Lsync_v")
        A("ds_read_b32 v253, v252")
        A("s_waitcnt lgkmcnt(0)")
        A("v_readfirstlane_b32 s%d, v253" % sT0)
        A("s_bitcmp1_b32 s%d, s%d" % (sT0, sT1))
        A("s_cbranch_scc1 Lsync_v_ok")
        A("s_sub_u32 s%d, s%d, 1" % (sCNT, sCNT))
        A("s_cbranch_scc0 Lsync_v")
        A("s_mov_b32 s%d, 0" % sCNT)
        A.label("Lsync_v_ok")
        for i in range(8):
            A("ds_read_b128 %s, %s offset:%d" % (V(vVR + 4 * i, 4), V(vA + 1), (i >> 2) * 4352 + (i & 3) * 256))
        A("s_waitcnt lgkmcnt(0)")
        A("s_branch Lv_perm")
        A.label("Lv_back")
    if WOB:
        assert WO1 == 8
        A("s_cmp_eq_u32 s%d, 4" % sWV)
        A("s_cbranch_scc1 Lmeet")
        woaddr(1)
        spin(4, 9, "Lsync_wo2")
        woloads(8, 16, lambda i: 63, 5)
    A.label("Lmeet")
    if APRIO:
        A("s_setprio 0")
    A("s_mov_b32 s%d, s%d" % (sSM2, sSMC))
    for r, m in ((sQM, 0x00110011), (sBM, 0x00010001), (sOM, 0x01010101)):
        A("s_mov_b32 s%d, %s" % (r, hx(m)))
        A("s_mov_b32 s%d, %s" % (r + 1, hx(m)))
    if NREP > 1:
        A("s_mov_b64 %s, %s" % (sp(sHXS), sp(sHX)))
        A("s_and_b32 s%d, s2, 7" % sT0)
        A("s_mul_i32 s%d, s%d, %d" % (sT0, sT0, NREP))
        A("s_lshr_b32 s%d, s%d, 3" % (sT0, sT0))
        A("s_mul_i32 s%d, s%d, %d" % (sT0, sT0, L_HX))
        A("s_add_u32 s%d, s%d, s%d" % (sHX, sHXS, sT0))
        A("s_addc_u32 s%d, s%d, 0" % (sHX + 1, sHXS + 1))
        A("s_sub_u32 s%d, %d, s%d" % (sXD, NREP * L_HX, sT0))
        A("s_mov_b32 s%d, -1" % sXM)
        A("s_mov_b32 s%d, 0x3fffff" % (sXM + 1))
    for i, r in enumerate((sHX1, sHX2, sHX3)):
        A("s_add_u32 s%d, s%d, %d" % (r, sHX, 4608 * (i + 1)))
        A("s_addc_u32 s%d, s%d, 0" % (r + 1, sHX + 1))
    A("s_mul_i32 s%d, s%d, 1280" % (sT0, sGID))
    A("s_add_u32 s%d, s%d, %d" % (sT0, sT0, W_HY))
    A("s_add_u32 s%d, s%d, s%d" % (sHY, sWS, sT0))
    A("s_addc_u32 s%d, s%d, 0" % (sHY + 1, sWS + 1))
    A("v_mov_b32 v251, %d" % FLG)
    A("s_waitcnt lgkmcnt(0)")
    A("s_barrier")
    stamp("tab")
    A("ds_read_b32 %s, v251" % V(vA + 1))
    A.label("Latt")
    if LM & 1:
        A("s_mov_b64 exec, %s" % sp(sQM))
    for ks in range(4):
        A("ds_read_b128 %s, %s offset:%d" % (V(vQ + 4 * ks, 4), V(aHQL), 64 * ks))
    if LM & 1:
        A("s_mov_b64 exec, -1")
    for ks in range(4):
        A("s_waitcnt lgkmcnt(%d)" % (3 - ks))
        for T in range(2):
            A("v_mfma_f32_16x16x32_bf16 %s, %s, %s, %s" % (
                V(vS + 4 * T, 4), V(vK + 16 * T + 4 * ks, 4), V(vQ + 4 * ks, 4), V(vS + 4 * T, 4) if ks else "0"))
    if not VPRE:
        A("s_cmp_eq_u32 s%d, 0" % sL)
        A("s_cbranch_scc1 Lv_read")
    A.label("Lv_read_done")
    stampL("qV")
    A("v_max3_f32 %s, %s, %s, %s" % (V(vM), V(vS), V(vS + 1), V(vS + 2)))
    A("v_max3_f32 %s, %s, %s, %s" % (V(vP), V(vS + 3), V(vS + 4), V(vS + 5)))
    A("v_max3_f32 %s, %s, %s, %s" % (V(vM), V(vM), V(vS + 6), V(vS + 7)))
    A("v_max_f32 %s, %s, %s" % (V(vP + 1), V(vM), V(vP)))
    A("v_max_f32 %s, %s, %s" % (V(vM), V(vM), V(vP)))
    A("v_permlane16_swap_b32 %s, %s" % (V(vM), V(vP + 1)))
    A("v_max_f32 %s, %s, %s" % (V(vP), V(vM), V(vP + 1)))
    A("v_max_f32 %s, %s, %s" % (V(vM), V(vM), V(vP + 1)))
    A("v_permlane32_swap_b32 %s, %s" % (V(vM), V(vP)))
    A("v_max_f32 %s, %s, %s" % (V(vM), V(vM), V(vP)))
    if PKS:
        A("v_mul_f32 %s, s%d, %s" % (V(vP), sSMC, V(vM)))
        A("v_mul_f32 %s, s%d, %s" % (V(vM), sSMC, V(vM)))
        for r in range(4):
            A("v_pk_fma_f32 %s, %s, %s, %s op_sel_hi:[1,0,0] neg_lo:[0,0,1] neg_hi:[0,0,1]" % (
                V(vS + 2 * r, 2), V(vS + 2 * r, 2), sp(sSM2), bc(vP)))
            if r:
                for h in range(2):
                    A("v_exp_f32 %s, %s" % (V(vS + 2 * r - 2 + h), V(vS + 2 * r - 2 + h)))
        for h in range(2):
            A("v_exp_f32 %s, %s" % (V(vS + 6 + h), V(vS + 6 + h)))
    else:
        A("v_mul_f32 %s, s%d, %s" % (V(vM), sSMC, V(vM)))
        for r in range(8):
            A("v_fma_f32 %s, %s, s%d, -%s" % (V(vS + r), V(vS + r), sSMC, V(vM)))
            if r:
                A("v_exp_f32 %s, %s" % (V(vS + r - 1), V(vS + r - 1)))
        A("v_exp_f32 %s, %s" % (V(vS + 7), V(vS + 7)))
    for r in range(4):
        A("v_cvt_pk_bf16_f32 %s, %s, %s" % (V(vP + r), V(vS + 2 * r), V(vS + 2 * r + 1)))
    A("s_cmp_eq_u32 s%d, 0" % sL)
    A("s_cbranch_scc1 Lv_wait")
    A.label("Lv_ready")
    stampL("sm")
    for j in range(8):
        A("v_mfma_f32_16x16x32_bf16 %s, %s, %s, 0" % (V(vA + 4 * j, 4), V(vP, 4), V(vVT + 4 * j, 4)))
    A("v_mfma_f32_16x16x32_bf16 %s, %s, %s, 0" % (V(vS, 4), V(vP, 4), V(vONES, 4)))
    A("s_mov_b32 exec_hi, 0")
    for j in range(0, 8, 2):
        A("ds_write2_b32 %s, %s, %s offset0:%d offset1:%d" % (V(lPW), V(vA + 4 * j), V(vA + 4 * j + 4), 16 * j, 16 * j + 16))
    A("s_mov_b32 exec_lo, 0x100001")
    A("ds_write2_b32 %s, %s, %s offset0:0 offset1:1" % (V(lMW), V(vM), V(vS)))
    A("s_mov_b64 exec, -1")
    if WOPOST:
        A("s_cmp_eq_u32 s%d, 0" % sL)
        A("s_cbranch_scc1 Lwo_rest")
        A.label("Lwo_back")
    A("s_waitcnt lgkmcnt(0)")
    stampL("pv")
    A("s_barrier")
    A("ds_read_b64 %s, %s" % (V(vA + 4, 2), V(lMR)))
    A("ds_read_b128 %s, %s" % (V(vA, 4), V(lPR)))
    A("s_waitcnt lgkmcnt(1)")
    reduce8(vA, vA + 4, vA + 7, vA + 6, False, "s_waitcnt lgkmcnt(0)")
    A("v_cvt_pk_bf16_f32 %s, %s, %s" % (V(vA + 3), V(vA + 2), V(vA + 3)))
    A("v_cvt_pk_bf16_f32 %s, %s, %s" % (V(vA + 2), V(vA), V(vA + 1)))
    A("s_mov_b64 exec, %s" % sp(sOM))
    store2(["global_store_dwordx4 %s, %s, %s" % (V(aHOS), V(vA + 2, 4), sp(sHO))])
    A("s_mov_b64 exec, -1")
    stampL("ho")
    A("s_cmp_eq_u32 s%d, 0" % sL)
    A("s_cbranch_scc1 Lstash")
    if OACK:
        A("s_waitcnt vmcnt(0)")
    A.label("Lopoll")
    A("global_load_dwordx4 %s, %s, %s sc1" % (V(vA + 10, 4), V(aHOL), sp(sHO)))
    A.label("Lopoll_w")
    A("s_waitcnt vmcnt(0)")
    maxtree(vM, range(vA + 10, vA + 14))
    poll_tail("Lopoll", vM, far=True)
    if RESTORE:
        A("s_mov_b32 exec_lo, 0x01010101")
        A("s_mov_b32 exec_hi, 0x01010101")
        A("global_store_dwordx4 %s, %s, %s sc1" % (V(aHOS), V(vA + 2, 4), sp(sHO)))
        A("s_mov_b64 exec, -1")
    stampL("og")
    assert WOEARLY and VPRE and not TEARLY
    if TPOS == 0:
        A("s_cmp_lg_u32 s%d, 0" % sL)
        A("s_cbranch_scc1 Lnotg")
        A("global_load_dwordx4 %s, v248, %s sc1" % (V(vQ, 4), sp(sWS)))
        A.label("Lnotg")

    def woread():
        A("s_barrier")
        for t in range(5):
            for hh in range(2):
                A("ds_read_b64_tr_b16 %s, v233 offset:%d" % (V(vWO + 4 * t + 2 * hh, 2), 576 * hh + 32 * t))

    reduce8(vA + 16, vA + 12, vA + 15, vA + 14, True, fill=[
        "v_lshlrev_b32 %s, 16, %s" % (V(vA + 16), V(vA + 10)), "v_and_b32 %s, 0xffff0000, %s" % (V(vA + 17), V(vA + 10)),
        "v_lshlrev_b32 %s, 16, %s" % (V(vA + 18), V(vA + 11)), "v_and_b32 %s, 0xffff0000, %s" % (V(vA + 19), V(vA + 11))])
    A("v_cvt_pk_bf16_f32 %s, %s, %s" % (V(vA), V(vA + 16), V(vA + 17)))
    A("v_cvt_pk_bf16_f32 %s, %s, %s" % (V(vA + 1), V(vA + 18), V(vA + 19)))
    A("v_mov_b32_dpp %s, %s row_ror:8%s" % (V(vA + 2), V(vA), DPP))
    A("v_mov_b32_dpp %s, %s row_ror:8%s" % (V(vA + 3), V(vA + 1), DPP))
    A("s_waitcnt lgkmcnt(0)")
    for t in range(5):
        A("v_mfma_f32_16x16x32_bf16 %s, %s, %s, 0" % (V(vA + 4 + 4 * t, 4), V(vA, 4), V(vWO + 4 * t, 4)))
    if TPOS == 1:
        A("s_cmp_lg_u32 s%d, 0" % sL)
        A("s_cbranch_scc1 Lnotg")
        A("global_load_dwordx4 %s, v248, %s sc1" % (V(vQ, 4), sp(sWS)))
        A.label("Lnotg")
    A("s_mov_b64 exec, 0xffff")
    A("ds_write2_b32 %s, %s, %s offset0:0 offset1:16" % (V(lOW), V(vA + 4), V(vA + 8)))
    A("ds_write2_b32 %s, %s, %s offset0:32 offset1:48" % (V(lOW), V(vA + 12), V(vA + 16)))
    A("ds_write_b32 %s, %s offset:256" % (V(lOW), V(vA + 20)))
    A("s_mov_b64 exec, -1")
    A("s_waitcnt lgkmcnt(0)")
    A("s_barrier")
    stampL("ov")
    A("s_cmp_lg_u32 s%d, 0" % sWV)
    A("s_cbranch_scc1 Lwo_done")
    if LM & 2 and NREP > 1:
        A("s_mov_b64 exec, %s" % sp(sXM))
    for w in range(8):
        A("ds_read_b128 %s, %s offset:%d" % (V(vA + 4 * w, 4), V(lOR), RSTR * w))
    for w in range(1, 8, 2):
        A("s_waitcnt lgkmcnt(%d)" % (7 - w))
        for i in range(2):
            A("v_pk_add_f32 %s, %s, %s" % (V(vA + 4 * w - 4 + 2 * i, 2), V(vA + 4 * w - 4 + 2 * i, 2), V(vA + 4 * w + 2 * i, 2)))
        if w in (3, 7):
            for i in range(2):
                A("v_pk_add_f32 %s, %s, %s" % (V(vA + 4 * w - 12 + 2 * i, 2), V(vA + 4 * w - 12 + 2 * i, 2), V(vA + 4 * w - 4 + 2 * i, 2)))
    for i in range(2):
        A("v_pk_add_f32 %s, %s, %s" % (V(vA + 2 * i, 2), V(vA + 2 * i, 2), V(vA + 16 + 2 * i, 2)))
    A("v_cvt_pk_bf16_f32 %s, %s, %s" % (V(vA), V(vA), V(vA + 1)))
    A("v_cvt_pk_bf16_f32 %s, %s, %s" % (V(vA + 1), V(vA + 2), V(vA + 3)))
    if NREP > 1:
        if not LM & 2:
            A("s_mov_b64 exec, %s" % sp(sXM))
        A("global_store_dwordx2 %s, %s, %s sc1" % (V(aHXS), V(vA, 2), sp(sHXS)))
        if NREP > 3:
            A("s_cmp_lg_u32 s%d, 0" % sL)
            A("s_cbranch_scc1 Lonecopy")
            A("global_store_dwordx2 %s, %s, %s sc1" % (V(aHML), V(vA, 2), sp(sHXS)))
            A.label("Lonecopy")
    else:
        A("s_mov_b64 exec, 0x3ffff")
        A("global_store_dwordx2 %s, %s, %s sc1" % (V(aHXS), V(vA, 2), sp(sHX)))
    A("s_mov_b64 exec, -1")
    A.label("Lwo_done")
    stampL("hx")
    A("s_cmp_eq_u32 s%d, 0" % sL)
    A("s_cbranch_scc1 %s" % ("Lwho" if LEAD else "Ltabg"))
    A("s_or_b32 s%d, s%d, s%d" % (sT0, sHKV, sS))
    A("s_cbranch_scc1 %s" % ("Lwb" if WB else "Lexit"))
    A("s_branch Lxwait")
    A.label("Ltpoll")
    A("global_load_dwordx4 %s, v248, %s sc1" % (V(vQ, 4), sp(sWS)))
    A("s_waitcnt vmcnt(0)")
    A.label("Ltabg")
    A("s_cmp_gt_u32 s%d, 3" % sWV)
    A("s_cselect_b32 s%d, %d, %d" % (sT0, TABN - 4096, TABP))
    A("v_add_u32 v250, s%d, v249" % sT0)
    A("s_waitcnt vmcnt(%d)" % (2 if NREP > 3 else 1))
    A("s_cmp_eq_u32 s%d, 0" % sWV)
    A("s_cbranch_scc1 Ltabw")
    A("s_waitcnt vmcnt(0)")
    A.label("Ltabw")
    maxtree(vM, range(vQ, vQ + 4))
    poll_tail("Ltpoll", vM)
    A("ds_write_b128 v250, %s" % V(vQ, 4))
    if WARM & 1:
        A("s_cmp_lg_u32 s%d, 7" % sWV)
        A("s_cbranch_scc1 Lxwait")
        A("s_mov_b64 exec, 0")
        A("s_branch Lmlp")
        A.label("Lwarm1")
        A("s_mov_b64 exec, -1")
    A.label("Lxwait")
    A("ds_read_b128 %s, %s" % (V(vP, 4), V(lXC)))
    A("s_cmp_eq_u32 s%d, 4" % sWV)
    A("s_cselect_b32 s%d, 0x00ff00ff, -1" % sT2)
    A("s_mov_b32 exec_lo, s%d" % sT2)
    A("s_mov_b32 exec_hi, s%d" % sT2)
    if not DIAG:
        A("s_cmp_gt_u32 s%d, 4" % sWV)
    if XPACE == "ack":
        A("s_waitcnt vmcnt(0)")
    if XPACE != "none":
        A("s_barrier")
    stampL("xp")
    HXB = (sHX, sHX1, sHX2, sHX3)
    if DIAG:
        A("s_cmp_gt_u32 s%d, 4" % sWV)
    A("s_cbranch_scc1 Lxjoin")
    A.label("Lxpoll")
    for i in range(4):
        A("global_load_dwordx4 %s, %s, %s sc1" % (V(vA + 4 * i, 4), V(aHXL), sp(HXB[i])))
    A("s_mov_b64 exec, -1")
    if PSTAT:
        A("v_mov_b32 %s, 0" % V(vS + 6))
        A("v_mov_b32 %s, 0" % V(vS + 7))
        A("s_lshl_b32 s%d, s%d, 3" % (sT0, sWV))
        A("s_add_u32 s%d, s%d, %d" % (sT0, sT0, TRED))
        A("v_mov_b32 v249, s%d" % sT0)
    A.label("Lxsum")
    for i in range(4):
        A("s_waitcnt vmcnt(%d)" % (3 - i))
        A("v_mfma_f32_16x16x32_bf16 %s, %s, %s, %s" % (V(vS, 4), V(vSEL, 4), V(vA + 4 * i, 4), V(vS, 4) if i else "0"))
    A("s_mov_b32 exec_lo, s%d" % sT2)
    A("s_mov_b32 exec_hi, 0")
    A("s_waitcnt lgkmcnt(0)")
    A("v_cmp_u_f32 vcc, %s, %s" % (V(vS), V(vS)))
    A("v_cvt_pk_bf16_f32 %s, %s, %s" % (V(vS + 4), V(vS), V(vS + 1)))
    A("v_cvt_pk_bf16_f32 %s, %s, %s" % (V(vS + 5), V(vS + 2), V(vS + 3)))
    A("s_cbranch_vccnz Lxchk")
    A.label("Lxok")
    for rnd in range(2):
        for i in range(2):
            A("v_lshlrev_b32 %s, 16, %s" % (V(vS + 2 * i), V(vS + 4 + i)))
            A("v_and_b32 %s, 0xffff0000, %s" % (V(vS + 2 * i + 1), V(vS + 4 + i)))
        if rnd == 0:
            for i in range(2):
                A("v_pk_add_f32 %s, %s, %s" % (V(vS + 2 * i, 2), V(vS + 2 * i, 2), V(vP + 2 * i, 2)))
            for i in range(2):
                A("v_cvt_pk_bf16_f32 %s, %s, %s" % (V(vS + 4 + i), V(vS + 2 * i), V(vS + 2 * i + 1)))
    A("ds_write_b128 %s, %s" % (V(lXC), V(vS, 4)))
    if PSTAT:
        A("v_pk_mul_f32 %s, %s, %s" % (V(vP, 2), V(vS, 2), V(vS, 2)))
        A("v_pk_add_f32 %s, %s, %s" % (V(vS + 4, 2), V(vS, 2), V(vS + 2, 2)))
        A("v_pk_fma_f32 %s, %s, %s, %s" % (V(vP, 2), V(vS + 2, 2), V(vS + 2, 2), V(vP, 2)))
        A("v_add_f32 %s, %s, %s" % (V(vS + 6), V(vS + 4), V(vS + 5)))
        A("v_add_f32 %s, %s, %s" % (V(vS + 7), V(vP), V(vP + 1)))
        A("s_mov_b32 exec_lo, -1")
        for ctl in WAVE6[:5]:
            for r in (vS + 6, vS + 7):
                A("v_add_f32_dpp %s, %s, %s %s" % (V(r), V(r), V(r), ctl))
        A("s_mov_b32 exec_lo, 0x80000000")
        A("ds_write_b64 v249, %s" % V(vS + 6, 2))
    A("s_mov_b64 exec, -1")
    A.label("Lxjoin")
    if PSTAT:
        A("s_lshl_b32 s%d, s%d, 9" % (sT0, sWV))
        A("v_add_u32 v246, s%d, %s" % (sT0, V(lXP)))
        A("v_mov_b32 v247, %d" % TRED)
    A("s_waitcnt lgkmcnt(0)")
    A("s_barrier")
    stampL("xs")
    A("s_cmp_gt_u32 s%d, 3" % sWV)
    A("s_cbranch_scc1 Lmlp_skip")
    vH, vY, vHP, vHS, vAD, vST = vA, vA + 10, vXR, vA + 26, vA, vS
    if SPLIT:
        vXO, vFG = 244, 243
        sFIN = sH
        if PSTAT:
            A("ds_read_b128 %s, v247" % V(vXA, 4))
            A("ds_read_b128 %s, v247 offset:16" % V(vXA + 4, 4))
            A("ds_read_b64 %s, v247 offset:32" % V(vST + 6, 2))
            A("ds_read_b32 %s, %s" % (V(vXA + 8), V(lXS)))
        else:
            for i in range(4):
                A("ds_read_b64 %s, %s offset:%d" % (V(vXA + 2 * i, 2), V(lXP), 512 * i))
            A("ds_read_b32 %s, %s" % (V(vXA + 8), V(lXS)))
            A("s_lshl_b32 s%d, s%d, 9" % (sT0, sWV))
            A("v_add_u32 v246, s%d, %s" % (sT0, V(lXP)))
        A("ds_read_b64 %s, v246" % V(vXO, 2))
        for i in range(3):
            A("v_mov_b32 %s, 0" % V(vY + i))
        A("s_lshl_b32 s%d, s%d, 8" % (sT0, sWV))
        A("v_add_u32 v246, s%d, %s" % (sT0, V(lNW)))
        A("v_lshl_add_u32 v247, v1, 2, s%d" % sT0)
        A("v_lshlrev_b32 v248, 1, v1")
        A("v_mov_b32 v249, %d" % (FLG + 28))
        if PSTAT:
            t = vST
            A("s_waitcnt lgkmcnt(3)")
            A("v_pk_add_f32 %s, %s, %s" % (V(vXA, 2), V(vXA, 2), V(vXA + 2, 2)))
            A("v_pk_add_f32 %s, %s, %s" % (V(vXA + 4, 2), V(vXA + 4, 2), V(vXA + 6, 2)))
            A("s_waitcnt lgkmcnt(2)")
            A("v_pk_add_f32 %s, %s, %s" % (V(t + 6, 2), V(t + 6, 2), V(vXA, 2)))
            A("v_pk_add_f32 %s, %s, %s" % (V(t + 6, 2), V(t + 6, 2), V(vXA + 4, 2)))
            A("v_mul_f32 %s, %s, %s" % (V(t), V(t + 6), V(vINV)))
            A("v_mul_f32 %s, %s, %s" % (V(t + 2), V(t + 6), V(vC1)))
            A("v_fma_f32 %s, %s, %s, %s" % (V(t + 1), V(t + 7), V(vC1), V(vEPS2)))
            A("v_fma_f32 %s, -%s, %s, %s" % (V(t + 1), V(t + 2), V(t), V(t + 1)))
            A("v_max_f32 %s, %s, %s" % (V(t + 1), V(vEPS2), V(t + 1)))
            A("v_rsq_f32 %s, %s" % (V(t + 2), V(t + 1)))
        else:
            A("s_waitcnt lgkmcnt(1)")
            stats_lane(vST)
            for l in stats_wave(vST, True):
                A(l)
        A("s_mov_b32 s%d, %s" % (sT0, hx(E0 * 0x10001)))
        A("s_waitcnt lgkmcnt(0)")
        A("v_mul_f32 %s, %s, %s" % (V(vST + 4), V(vST), V(vST + 2)))
        A("v_pk_fma_f32 %s, %s, %s, %s op_sel_hi:[1,0,0] neg_lo:[0,0,1] neg_hi:[0,0,1]" % (V(vH, 2), V(vXO, 2), bc(vST + 2), bc(vST + 4)))
        A("v_fma_f32 %s, %s, %s, -%s" % (V(vH + 2), V(vXA + 8), V(vST + 2), V(vST + 4)))
        A("v_cvt_pk_bf16_f32 %s, %s, %s" % (V(vHS), V(vH), V(vH + 1)))
        A("v_cvt_pk_bf16_f32 %s, %s, %s" % (V(vHS + 1), V(vH + 2), V(vH + 2)))
        for i in range(2):
            A("v_pk_sub_u16 %s, %s, s%d" % (V(vHS + i), V(vHS + i), sT0))
        for i in range(3):
            A("v_lshlrev_b32_sdwa %s, 1, %s dst_sel:DWORD dst_unused:UNUSED_PAD src0_sel:DWORD src1_sel:WORD_%d" % (
                V(vAD + i), V(vHS + (i >> 1)), i & 1))
            A("ds_read_u16_d16_hi %s, %s offset:%d" % (V(vY + i), V(vAD + i), TABP))
        A("v_or_b32 %s, %s, %s" % (V(vM), V(vHS), V(vHS + 1)))
        A("v_and_b32 %s, 0x78007800, %s" % (V(vM), V(vM)))
        A("v_cmp_ne_u32 vcc, 0, %s" % V(vM))
        A("s_cmp_lg_u32 s%d, 0" % sL)
        A("s_waitcnt lgkmcnt(0)")
        A("v_pk_add_f32 %s, %s, %s" % (V(vXO, 2), V(vXO, 2), V(vY, 2)))
        A("v_add_f32 %s, %s, %s" % (V(vXA + 8), V(vXA + 8), V(vY + 2)))
        A("s_cbranch_vccnz Lmiss")
        A("v_cvt_pk_bf16_f32 %s, %s, %s" % (V(vHP), V(vXO), V(vXO + 1)))
        A("v_cvt_pk_bf16_f32 %s, %s, %s" % (V(vHP + 4), V(vXA + 8), V(vXA + 8)))
        A("s_cbranch_scc1 Lfin2")
        A("ds_write_b32 v246, %s" % V(vHP))
        A("ds_write_b16 %s, %s" % (V(lNH), V(vHP + 4)))
        A.label("Lshare")
        stampL("lk")
        A("s_waitcnt lgkmcnt(0)")
        A("s_barrier")
        A("ds_read_b32 %s, v249" % V(vFG))
        for i in range(4):
            A("ds_read_b32 %s, %s offset:%d" % (V(vXR + i), V(lNW), 256 * i))
        A("ds_read_u16 %s, %s" % (V(vXR + 4), V(lNH)))
        if LM & 4:
            A("s_mov_b64 exec, %s" % sp(sBM))
        for ks in range(4):
            A("ds_read_b128 %s, %s offset:%d" % (V(vA + 4 * ks, 4), V(lNR), 64 * ks))
        A("ds_read_b64 %s, %s" % (V(vA + 16, 2), V(lNR2)))
        if LM & 4:
            A("s_mov_b64 exec, -1")
        A("s_waitcnt lgkmcnt(10)")
        A("v_cmp_ne_u32 vcc, 0, %s" % V(vFG))
        A("s_cbranch_vccnz Lmlp")
        add64(sHQ, "%d" % L_HQ)
        A("s_waitcnt lgkmcnt(5)")
        A("s_call_b64 %s, Lq_unpack" % sp(sRET))
        A("s_branch Lq_done")
        A.label("Lmiss")
        A("v_lshlrev_b32 v250, s%d, 1" % sL)
        A("ds_or_b32 v249, v250")
        A("s_cbranch_scc0 Lshare")
        A("s_branch Lfin3")
        A.label("Lfin2")
        A("global_store_dword v247, %s, %s%s" % (V(vHP), sp(sOUT), OUTF))
        A("s_cmp_lg_u32 s%d, 0" % sWV)
        A("s_cbranch_scc1 Lfin3")
        A("global_store_short v248, %s, %s offset:1024%s" % (V(vHP + 4), sp(sOUT), OUTF))
        A.label("Lfin3")
        stamp("lk1")
        A("s_waitcnt lgkmcnt(0)")
        A("s_barrier")
        A("ds_read_b32 %s, v249" % V(vFG))
        A("s_waitcnt lgkmcnt(0)")
        A("v_cmp_lt_u32 vcc, 1, %s" % V(vFG))
        A("s_cbranch_vccz Lexit")
    else:
        A("s_mul_i32 s%d, s%d, s%d" % (sT0, sL, sWV))
        A("s_cmp_lg_u32 s%d, 0" % sT0)
        A("s_cbranch_scc1 Lhelper")
    A.label("Lmlp")
    if SPLIT:
        A("s_waitcnt lgkmcnt(0)")
    for i in range(4):
        A("ds_read_b64 %s, %s offset:%d" % (V(vXA + 2 * i, 2), V(lXP), 512 * i))
    A("ds_read_b32 %s, %s" % (V(vXA + 8), V(lXS)))
    for i in range(9):
        A("v_mov_b32 %s, 0" % V(vY + i))
    A("s_waitcnt lgkmcnt(0)")
    stats_lane(vST)
    for l in stats_wave(vST, True):
        A(l)
    normalize(vH, vST, vST + 2)
    A("s_mov_b32 s%d, %s" % (sT0, hx(E0 * 0x10001)))
    for i in range(5):
        A("v_cvt_pk_bf16_f32 %s, %s, %s" % (V(vHP + i), V(vH + 2 * i), V(vH + min(2 * i + 1, 8))))
    for i in range(5):
        A("v_pk_sub_u16 %s, %s, s%d" % (V(vHS + i), V(vHP + i), sT0))
    for i in range(9):
        A("v_lshlrev_b32_sdwa %s, 1, %s dst_sel:DWORD dst_unused:UNUSED_PAD src0_sel:DWORD src1_sel:WORD_%d" % (
            V(vAD + i), V(vHS + (i >> 1)), i & 1))
        A("ds_read_u16_d16_hi %s, %s offset:%d" % (V(vY + i), V(vAD + i), TABP))
    A("v_or3_b32 %s, %s, %s, %s" % (V(vM), V(vHS), V(vHS + 1), V(vHS + 2)))
    A("v_or3_b32 %s, %s, %s, %s" % (V(vM), V(vM), V(vHS + 3), V(vHS + 4)))
    A("v_and_b32 %s, 0x78007800, %s" % (V(vM), V(vM)))
    A("v_cmp_ne_u32 vcc, 0, %s" % V(vM))
    A("s_waitcnt lgkmcnt(0)")
    A("s_cbranch_vccnz Lfallback")
    A.label("Lfb_done")
    if not SPLIT:
        stampL("lk")
    for i in range(4):
        A("v_pk_add_f32 %s, %s, %s" % (V(vXA + 2 * i, 2), V(vXA + 2 * i, 2), V(vY + 2 * i, 2)))
    A("v_add_f32 %s, %s, %s" % (V(vXA + 8), V(vXA + 8), V(vY + 8)))
    for i in range(5):
        A("v_cvt_pk_bf16_f32 %s, %s, %s" % (V(vHP + i), V(vXA + 2 * i), V(vXA + min(2 * i + 1, 8))))
    A("s_cmp_lg_u32 s%d, 0" % sL)
    A("s_cbranch_scc1 Lfinal")
    if WARM & 1:
        A("s_cbranch_execz Lwarm1")
    if DUMP:
        A("s_lshl_b32 s%d, s2, 2" % sT0)
        A("s_add_u32 s%d, s%d, s%d" % (sT0, sT0, sWV))
        A("s_mul_i32 s%d, s%d, 8192" % (sT0, sT0))
        A("s_add_u32 s%d, s%d, %d" % (sT0, sT0, 2 << 20))
        A("v_lshl_add_u32 v252, v1, 2, s%d" % sT0)
        A("v_add_u32 v253, 4096, v252")
        for i, r in enumerate(list(range(vHS, vHS + 5)) + list(range(vY, vY + 9)) + list(range(vHP, vHP + 5)) + list(range(vAD, vAD + 9)) + [vS, vS + 2, vS + 6, vS + 7]):
            A("global_store_dword %s, %s, %s offset:%d" % ("v252" if i < 16 else "v253", V(r), sp(sWS), 256 * (i % 16)))
    if LEAD:
        A("s_cmp_lg_u32 s%d, 1" % sWV)
        A("s_cbranch_scc1 Lnoy")
        A("v_lshlrev_b32 v249, 2, v1")
        A("v_lshlrev_b32 v250, 1, v1")
        store2(["global_store_dword v249, %s, %s offset:%d" % (V(vHP + i), sp(sHY), 256 * i) for i in range(4)] +
               ["global_store_short v250, %s, %s offset:1024" % (V(vHP + 4), sp(sHY))])
        A.label("Lnoy")
    add64(sHQ, "%d" % L_HQ)
    A("s_call_b64 %s, Lqstage" % sp(sRET))
    A.label("Lq_done")
    if QBAR == 2:
        A("s_waitcnt vmcnt(0)")
    if QBAR:
        A("s_barrier")
    A("s_cmp_lg_u32 s%d, 0" % sWV)
    A("s_cbranch_scc1 Lnext")
    for i in range(4):
        A("ds_write_b64 %s, %s offset:%d" % (V(lXP), V(vXA + 2 * i, 2), 512 * i + XSB - XSA))
    A("ds_write_b32 %s, %s offset:%d" % (V(lXS), V(vXA + 8), XSB - XSA))
    A("s_branch Lnext")
    if LEAD:
        A.label("Lwho")
        A("s_cmp_eq_u32 s%d, 0" % sS)
        A("s_cbranch_scc1 Ltabg")
        A("s_cmp_gt_u32 s%d, 3" % sWV)
        A("s_cbranch_scc1 Lqwait")
        A("s_mul_i32 s%d, s%d, 1152" % (sT0, sWV))
        A("s_add_u32 s%d, s%d, %d" % (sT0, sT0, XN))
        A("v_subrev_u32 v248, s%d, %s" % (sT0, V(lNR)))
        A("v_subrev_u32 v249, s%d, %s" % (sT0, V(lNR2)))
        A("v_mov_b32 v243, 0")
        add64(sHQ, "%d" % L_HQ)
        A.label("Lypoll")
        for ks in range(4):
            A("global_load_dwordx4 %s, v248, %s offset:%d sc1" % (V(vA + 4 * ks, 4), sp(sHY), 64 * ks))
        A("global_load_dwordx2 %s, v249, %s sc1" % (V(vA + 16, 2), sp(sHY)))
        A("global_load_dwordx3 %s, v243, %s offset:1152 sc1" % (V(vS + 2, 3), sp(sHY)))
        A("s_waitcnt vmcnt(1)")
        maxtree(vM, range(vA, vA + 18))
        A("s_waitcnt vmcnt(0)")
        A("v_max3_u32 %s, %s, %s, %s" % (V(vM), V(vM), V(vS + 2), V(vS + 4)))
        poll_tail("Lypoll", vM)
        stamp("yy")
        A("s_call_b64 %s, Lq_mm" % sp(sRET))
        A("s_branch Lnext")
    A.label("Lmlp_skip")
    A("s_cmp_lg_u32 s%d, 0" % sL)
    A("s_cbranch_scc1 Lexit")
    if SPLIT:
        A("s_barrier")
    if QBAR:
        A("s_barrier")
    A.label("Lqwait")
    add64(sHQ, "%d" % L_HQ)
    A("s_lshr_b32 s%d, s%d, 1" % (sT0, sWV))
    A("s_cmp_lg_u32 s%d, %d" % (sT0, QW // 2))
    A("s_cbranch_scc1 Lnext")
    A.label("Lqpoll")
    A("global_load_dwordx4 %s, %s, %s sc1" % (V(vQ, 4), V(aHQG), sp(sHQ)))
    A("s_waitcnt vmcnt(0)")
    if QSPEC:
        A("v_mfma_f32_16x16x32_bf16 %s, %s, %s, 0" % (V(QD, 4), V(vSEL, 4), V(vQ, 4)))
    maxtree(vM, range(vQ, vQ + 4))
    poll_tail("Lqpoll", vM, far=True)
    if not QSPEC:
        A("v_mfma_f32_16x16x32_bf16 %s, %s, %s, 0" % (V(QD, 4), V(vSEL, 4), V(vQ, 4)))
    for i in range(2):
        A("v_cvt_pk_bf16_f32 %s, %s, %s" % (V(vQ + i), V(QD + 2 * i), V(QD + 2 * i + 1)))
    A("s_mov_b32 exec_hi, 0")
    A("ds_write_b64 %s, %s" % (V(lQW), V(vQ, 2)))
    A("s_mov_b32 exec_hi, -1")
    A.label("Lnext")
    add64(sHO, "%d" % L_HO)
    if NREP > 1:
        for r in HXB:
            add64(r, "s%d" % sXD)
        A("s_mov_b64 %s, %s" % (sp(sHXS), sp(sHX)))
        A("s_mov_b64 %s, 0x3ffff" % sp(sXM))
    else:
        for r in HXB:
            add64(r, "%d" % L_HX)
    for r in (lXC, lXP, lXS):
        A("v_add_u32 %s, %d, %s" % (V(r), XSB - XSA, V(r)))
    A("s_mov_b32 s%d, 1" % sL)
    stamp("qs")
    A("s_waitcnt lgkmcnt(0)")
    A("s_barrier")
    stamp("q1")
    A("s_branch Latt")
    for label in retries:
        A.label("%s_again" % label)
        A("s_sub_u32 s%d, s%d, 1" % (sCNT, sCNT))
        A("s_cbranch_scc0 %s" % label)
        A("s_mov_b32 s%d, 0" % sCNT)
        A("s_branch %s_ok" % label)
    A.label("Lv_wait")
    A("v_readfirstlane_b32 s%d, %s" % (sFAST, V(vA + 1)))
    A("v_lshlrev_b32 v249, 4, v0")
    A("s_and_b32 s%d, s2, %d" % (sT0, TREP - 1))
    A("s_lshl_b32 s%d, s%d, 13" % (sT0, sT0))
    A("s_add_u32 s%d, s%d, %d" % (sT0, sT0, W_HT))
    A("v_add_u32 v248, s%d, v249" % sT0)
    A("s_cmp_gt_u32 s%d, 3" % sWV)
    A("s_cbranch_scc1 Lv_tab")
    if WOB or WOPOST:
        A("s_waitcnt vmcnt(%d) lgkmcnt(0)" % WO1)
        A("s_cmp_lg_u32 s%d, 0" % sWV)
        A("s_cbranch_scc1 Lv_perm")
        A("s_waitcnt vmcnt(0)")
    else:
        A("s_sub_u32 s%d, s%d, 1" % (sT0, sWV))
        A("s_cmp_lt_u32 s%d, 3" % sT0)
        A("s_cbranch_scc1 Lv_wo")
        A("s_waitcnt vmcnt(0) lgkmcnt(0)")
        A("s_branch Lv_perm")
        A.label("Lv_wo")
        woloads(WO1, 16, WINO if callable(WINO) else lambda i: WINO)
        A("s_waitcnt vmcnt(16)")
    A.label("Lv_perm")
    stamp("kv")
    A("s_mov_b32 s%d, 0x05040100" % sT0)
    A("s_mov_b32 s%d, 0x07060302" % sT1)
    for j in range(8):
        for e in range(4):
            A("v_perm_b32 %s, %s, %s, s%d" % (
                V(vVT + 4 * j + e), V(vVR + 4 * (2 * e + 1) + (j >> 1)), V(vVR + 4 * (2 * e) + (j >> 1)), sT1 if j & 1 else sT0))
    for i in range(4):
        A("v_mov_b32 %s, 0x3f803f80" % V(vONES + i))
    if VPRE:
        A("s_cmp_gt_u32 s%d, 3" % sWV)
        A("s_cbranch_scc1 Lv_back")
    A.label("Lv_tab")
    if TEARLY:
        A("global_load_dwordx4 %s, v248, %s sc1" % (V(vQ, 4), sp(sWS)))
    A("s_branch Lv_ready")
    if WOPOST:
        A.label("Lwo_rest")
        A("s_sub_u32 s%d, s%d, 1" % (sT0, sWV))
        A("s_cmp_lt_u32 s%d, 3" % sT0)
        A("s_cbranch_scc0 Lwo_back")
        woloads(WO1, 16, lambda i: 63)
        A("s_branch Lwo_back")
    A.label("Lstash")
    A("s_cmp_lt_u32 s%d, 4" % sWV)
    A("s_cbranch_scc1 Lstashed")
    A("s_mul_i32 s%d, s%d, 8704" % (sT1, sWV))
    A("s_add_u32 s%d, s%d, %d" % (sT1, sT1, KB - 4 * 8704))
    A("v_lshl_add_u32 v250, v1, 4, s%d" % sT1)
    A("v_lshl_add_u32 v251, v1, 2, s%d" % sT1)
    for i in range(3):
        A("ds_write_b128 v250, %s offset:%d" % (V(vRW + 10 * i, 4), 2304 * i))
        A("ds_write_b128 v250, %s offset:%d" % (V(vRW + 10 * i + 4, 4), 2304 * i + 1024))
        A("ds_write_b32 v251, %s offset:%d" % (V(vRW + 10 * i + 8), 2304 * i + 2048))
    A.label("Lstashed")
    if OEARLY == 2:
        A("global_load_dwordx4 %s, %s, %s sc1" % (V(vA + 10, 4), V(aHOL), sp(sHO)))
    A("s_waitcnt vmcnt(%d)" % (2 if OEARLY == 2 else 0))
    if OEARLY == 1:
        A("global_load_dwordx4 %s, %s, %s sc1" % (V(vA + 10, 4), V(aHOL), sp(sHO)))
    woread()
    A("s_branch %s" % ("Lopoll_w" if OEARLY else "Lopoll"))
    assert SPLIT
    A.label("Lxchk")
    A("s_mov_b32 exec_hi, s%d" % sT2)
    if XMASK:
        for i in range(4):
            maxtree(vS + i, range(vA + 4 * i, vA + 4 * i + 4))
        for i in range(4):
            A("v_cmp_eq_u32 %s, -1, %s" % (sp(sH + 2 * i), V(vS + i)))
        A("s_mov_b32 exec_hi, 0")
        A("s_or_b64 vcc, %s, %s" % (sp(sH), sp(sH + 2)))
        A("s_or_b64 vcc, vcc, %s" % sp(sH + 4))
        A("s_or_b64 vcc, vcc, %s" % sp(sH + 6))
        A("s_cbranch_scc0 Lxok")
        A("s_sub_u32 s%d, s%d, 1" % (sCNT, sCNT))
        A("s_cbranch_scc1 Lxgiveup")
        if XSL:
            A("s_sleep %d" % XSL)
        for i in range(4):
            A("s_mov_b64 exec, %s" % sp(sH + 2 * i))
            A("global_load_dwordx4 %s, %s, %s sc1" % (V(vA + 4 * i, 4), V(aHXL), sp(HXB[i])))
        A("s_mov_b64 exec, -1")
        A("s_waitcnt vmcnt(0)")
        A("s_branch Lxsum")
        A.label("Lxgiveup")
    else:
        maxtree(vM, range(vA, vA + 16))
        A("v_cmp_eq_u32 vcc, -1, %s" % V(vM))
        A("s_sub_u32 s%d, s%d, 1" % (sCNT, sCNT))
        A("s_cbranch_vccz Lxdone")
        if XSL:
            A("s_sleep %d" % XSL)
        A("s_cbranch_scc0 Lxpoll")
        A.label("Lxdone")
        A("s_mov_b32 exec_hi, 0")
        A("s_cbranch_scc0 Lxok")
    A("s_mov_b32 s%d, 0" % sCNT)
    A("s_branch Lxok")
    A.label("Lfinal")
    A("s_cmp_lg_u32 s%d, 0" % sWV)
    A("s_cbranch_scc1 Lexit")
    A("v_lshlrev_b32 v249, 2, v1")
    A("v_lshlrev_b32 v250, 1, v1")
    for i in range(4):
        A("global_store_dword v249, %s, %s offset:%d%s" % (V(vHP + i), sp(sOUT), 256 * i, OUTF))
    A("global_store_short v250, %s, %s offset:1024%s" % (V(vHP + 4), sp(sOUT), OUTF))
    if ENDSTAMP:
        A("s_memrealtime s[70:71] ; ENDSTAMP")
        A("s_lshl_b32 s%d, s2, 2" % sT0)
        A("s_add_u32 s%d, s%d, %d" % (sT0, sT0, W_DIAG))
        A("v_mov_b32 v249, s%d" % sT0)
        A("s_waitcnt lgkmcnt(0)")
        A("v_mov_b32 v250, s70")
        A("global_store_dword v249, v250, %s" % sp(sWS))
    if WB:
        A("s_branch Lexit")
        A.label("Lwb")
        A("s_cmp_lg_u32 s%d, 0" % sWV)
        A("s_cbranch_scc1 Lexit")
        if WB == 2:
            A("s_cmp_lg_u32 s%d, 7" % sS)
            A("s_cbranch_scc1 Lexit")
        A("s_waitcnt vmcnt(0)")
        A("buffer_wbl2 sc1")
    A.label("Lexit")
    if DIAG:
        A("v_mov_b32 v251, s98")
        stamp("end")
        A("s_memtime %s" % sp(sMSK))
        A("s_waitcnt lgkmcnt(0)")
        A("s_sub_u32 s100, s%d, s100" % sMSK)
        A("s_lshl_b32 s%d, s2, 3" % sT0)
        A("s_add_u32 s%d, s%d, s%d" % (sT0, sT0, sWV))
        A("s_lshl_b32 s%d, s%d, 7" % (sT0, sT0))
        A("s_add_u32 s%d, s%d, %d" % (sT0, sT0, W_DIAG))
        A("v_mov_b32 v249, s%d" % sT0)
        A("s_mov_b64 exec, 1")
        for i in range(stamp_n[0]):
            A("v_mov_b32 v250, s%d" % (sSTAMP + 2 * i))
            A("global_store_dword v249, v250, %s offset:%d" % (sp(sWS), 4 * i))
        A("global_store_dword v249, v251, %s offset:112" % sp(sWS))
        A("v_mov_b32 v250, s100")
        A("global_store_dword v249, v250, %s offset:116" % sp(sWS))
        A("v_mov_b32 v250, s%d" % sCNT)
        A("global_store_dword v249, v250, %s offset:120" % sp(sWS))
        A("v_mov_b32 v250, s%d" % sFAST)
        A("global_store_dword v249, v250, %s offset:124" % sp(sWS))
        A("s_or_b32 s%d, s2, s%d" % (sT0, sWV))
        A("s_cbranch_scc1 Lend")
        A("v_mov_b32 v249, 0")
        for i in range(1, stamp_n[0]):
            A("s_sub_u32 s%d, s%d, s%d" % (sT0, sSTAMP + 2 * i, sSTAMP))
            A("v_mov_b32 v250, s%d" % sT0)
            A("global_store_dword v249, v250, %s offset:%d" % (sp(sDBG), 4 * i))
        A("v_mov_b32 v250, s100")
        A("global_store_dword v249, v250, %s offset:0" % sp(sDBG))
        A("v_mov_b32 v250, s%d" % sCNT)
        A("global_store_dword v249, v250, %s offset:60" % sp(sDBG))
    A.label("Lend")
    A("s_endpgm")

    A.label("Lqstage")
    for i in range(4):
        A("ds_write_b32 %s, %s offset:%d" % (V(lNW), V(vXR + i), 256 * i))
    A("ds_write_b16 %s, %s" % (V(lNH), V(vXR + 4)))
    for ks in range(4):
        A("ds_read_b128 %s, %s offset:%d" % (V(vA + 4 * ks, 4), V(lNR), 64 * ks))
    A("ds_read_b64 %s, %s" % (V(vA + 16, 2), V(lNR2)))
    A.label("Lq_unpack")
    for i in range(4):
        A("v_lshlrev_b32 %s, 16, %s" % (V(vXA + 2 * i), V(vXR + i)))
        A("v_and_b32 %s, 0xffff0000, %s" % (V(vXA + 2 * i + 1), V(vXR + i)))
    A("v_lshlrev_b32 %s, 16, %s" % (V(vXA + 8), V(vXR + 4)))
    stats_lane(vS)
    rest = stats_wave(vS, False)
    rest.append("v_mul_f32 %s, %s, %s" % (V(vS + 4), V(vS), V(vS + 2)))
    if LEAD:
        for l in rest:
            A(l)
        rest = []
        A("s_cmp_lg_u32 s%d, s%d" % (sWV, sYW))
        A("s_cbranch_scc1 Lq_mm")
        A("v_mov_b32 v243, 0")
        A("s_mov_b64 exec, 1")
        store2(["global_store_dwordx3 v243, %s, %s offset:1152" % (V(vS + 2, 3), sp(sHY))])
        A("s_mov_b64 exec, -1")
        A.label("Lq_mm")
    vQC = vA + 24
    for i in range(4):
        rest.append("v_pk_mul_f32 %s, %s, %s op_sel_hi:[1,0] neg_lo:[1,0] neg_hi:[1,0]" % (
            V(vQC + 2 * i, 2), V(vSQ + 2 * i, 2), bc(vS + 4)))
    acc = (vP, 244)
    per = [2, 2, 2, 2, 2, 2, 2, 2, 3, 100]
    if LEAD:
        per = [0, 0, 0, 0, 0, 0, 0, 5, 0, 0]
        rest.append("s_nop 1")
    for ks in range(5):
        A("s_waitcnt lgkmcnt(%d)" % (4 - ks))
        for u in range(2):
            if ks < 4:
                A("v_mfma_f32_16x16x32_bf16 %s, %s, %s, %s" % (
                    V(acc[u], 4), V(vWQ + 18 * u + 4 * ks, 4), V(vA + 4 * ks, 4), V(acc[u], 4) if ks else "0"))
            else:
                A("v_mfma_f32_16x16x16_bf16 %s, %s, %s, %s" % (V(acc[u], 4), V(vWQ + 18 * u + 16, 2), V(vA + 16, 2), V(acc[u], 4)))
            n = per[2 * ks + u]
            for l in rest[:n]:
                A(l)
            rest = rest[n:]
    for u in range(2):
        for i in range(2):
            A("v_pk_fma_f32 %s, %s, %s, %s op_sel_hi:[1,0,1]" % (
                V(acc[u] + 2 * i, 2), V(acc[u] + 2 * i, 2), bc(vS + 2), V(vQC + 4 * u + 2 * i, 2)))
        for i in range(2):
            A("v_cvt_pk_bf16_f32 %s, %s, %s" % (V(vA + 2 * u + i), V(acc[u] + 2 * i), V(acc[u] + 2 * i + 1)))
    A("s_mov_b64 exec, %s" % sp(sBM))
    store2(["global_store_dwordx4 %s, %s, %s" % (V(aHQS), V(vA, 4), sp(sHQ))])
    A("s_mov_b64 exec, -1")
    A("s_nop 0")
    A("s_setpc_b64 %s" % sp(sRET))

    A.label("Lkshuf")
    for pr in range(4):
        a, b = vK + 8 * pr, vK + 8 * pr + 4
        for d in range(4):
            A("v_mov_b32 %s, %s" % (V(vA + 16 + d), V(a + d)))
        for d in range(4):
            A("v_mov_b32_dpp %s, %s row_ror:8 row_mask:0xf bank_mask:0xc" % (V(a + d), V(b + d)))
        for d in range(4):
            A("v_mov_b32_dpp %s, %s row_ror:8 row_mask:0xf bank_mask:0x3" % (V(b + d), V(vA + 16 + d)))
    A("s_setpc_b64 %s" % sp(sRET))
    A.label("Lsel")
    A("v_mov_b32 %s, 0x3f803f80" % V(vS + 3))
    A("v_and_b32 %s, 1, v1" % V(vS))
    A("v_lshlrev_b32 %s, 4, %s" % (V(vS), V(vS)))
    A("v_lshlrev_b32 %s, %s, %s" % (V(vS), V(vS), V(vS + 3)))
    A("v_bfe_u32 %s, v1, 1, 3" % V(vS + 1))
    A("v_and_b32 %s, 1, v1" % V(vS + 2))
    A("v_cmp_eq_u32 vcc, 0, %s" % V(vS + 2))
    A("v_and_b32 %s, 0xffff, %s" % (V(vS + 2), V(vS)))
    A("v_cndmask_b32 %s, %s, %s, vcc" % (V(vS), V(vS), V(vS + 2)))
    for d in range(4):
        A("v_cmp_eq_u32 vcc, %d, %s" % (d, V(vS + 1)))
        A("v_cndmask_b32 %s, 0, %s, vcc" % (V(vSEL + d), V(vS)))
    A("s_setpc_b64 %s" % sp(sRET))
    A.label("Laddr")
    A("v_mov_b32 v232, 0")
    A("v_bfe_u32 v250, v24, 2, 1")
    A("v_lshlrev_b32 v249, 8, v250")
    A("v_lshl_add_u32 v249, v25, 4, v249")
    A("v_add_u32 %s, %d, v249" % (V(aHQL), QL))
    A("s_and_b32 s%d, s%d, 1" % (sT0, sWV))
    A("s_lshl_b32 s%d, s%d, 8" % (sT0, sT0))
    A("v_lshl_add_u32 v249, v24, 4, s%d" % sT0)
    A("v_lshl_add_u32 %s, v25, 9, v249" % V(aHQG))
    A("v_and_b32 v250, 1, v25")
    A("v_lshl_add_u32 v249, v250, 3, v249")
    A("v_add_u32 %s, %d, v249" % (V(lQW), QL))
    A("s_lshl_b32 s%d, s%d, 8" % (sT0, sS))
    A("s_lshl_b32 s%d, s%d, 6" % (sT1, sWV))
    A("s_add_u32 s%d, s%d, s%d" % (sT0, sT0, sT1))
    A("v_lshl_add_u32 %s, v25, 4, s%d" % (V(aHQS), sT0))
    A("s_lshl_b32 s%d, s%d, 7" % (sT0, sWV))
    A("v_lshl_add_u32 v249, v27, 4, s%d" % sT0)
    A("v_lshl_add_u32 %s, v26, 10, v249" % V(aHOL))
    A("s_lshl_b32 s%d, s%d, 10" % (sT1, sS))
    A("v_add_u32 %s, s%d, v249" % (V(aHOS), sT1))
    A("v_mul_u32_u24 v250, %d, v26" % PSTR)
    A("v_add_u32 v250, %d, v250" % PART)
    A("v_add_u32 %s, v249, v250" % V(lPR))
    A("s_mul_i32 s%d, s%d, %d" % (sT0, sWV, RSTR))
    A("s_add_u32 s%d, s%d, %d" % (sT0, sT0, RED))
    A("v_lshl_add_u32 %s, v24, 2, s%d" % (V(lOW), sT0))
    A("s_lshr_b32 s%d, s%d, 2" % (sT0, sWV))
    A("s_lshl_b32 s%d, s%d, 3" % (sT0, sT0))
    A("v_lshl_add_u32 %s, v26, 4, s%d" % (V(aHML), sT0))
    A("v_add_u32 %s, %d, %s" % (V(lMR), ML, V(aHML)))
    A("s_lshl_b32 s%d, s%d, 8" % (sT0, sWV))
    A("v_lshl_add_u32 v249, v24, 4, s%d" % sT0)
    A("v_mul_u32_u24 v250, 1152, v25")
    A("v_add_u32 %s, v249, v250" % V(aHXL))
    A("v_and_b32 v253, 1, v25")
    A("v_lshlrev_b32 v249, 1, v249")
    A("v_lshl_add_u32 v249, v253, 4, v249")
    A("v_add_u32 %s, %d, v249" % (V(lXC), XSA))
    A("s_mul_i32 s%d, s%d, 1152" % (sT0, sHKV))
    A("s_mul_i32 s%d, s%d, 144" % (sT1, sS))
    A("s_add_u32 s%d, s%d, s%d" % (sT0, sT0, sT1))
    A("v_mul_u32_u24 v250, 3641, v1")
    A("v_lshrrev_b32 v250, 16, v250")
    A("v_mul_u32_u24 v249, 18, v250")
    A("v_sub_u32 v249, v1, v249")
    A("v_lshlrev_b32 %s, 4, v249" % V(lOR))
    A("v_add_u32 %s, %d, %s" % (V(lOR), RED, V(lOR)))
    A("v_lshl_add_u32 %s, v249, 3, s%d" % (V(aHXS), sT0))
    A("v_mul_u32_u24 v250, %d, v250" % L_HX)
    A("v_add_u32 %s, v250, %s" % (V(aHXS), V(aHXS)))
    A("v_add_u32 %s, %d, %s" % (V(aHML), 3 * L_HX, V(aHXS)))
    A("s_mul_i32 s%d, s%d, %d" % (sT0, sWV, PSTR))
    A("s_add_u32 s%d, s%d, %d" % (sT0, sT0, PART))
    A("v_lshlrev_b32 v249, 9, v253")
    A("v_lshl_add_u32 v249, v24, 2, v249")
    A("v_add_u32 %s, s%d, v249" % (V(lPW), sT0))
    A("s_lshl_b32 s%d, s%d, 4" % (sT0, sWV))
    A("s_add_u32 s%d, s%d, %d" % (sT0, sT0, ML))
    A("v_lshl_add_u32 %s, v253, 3, s%d" % (V(lMW), sT0))
    A("v_lshlrev_b32 v249, 4, v25")
    A("v_lshlrev_b32 v250, 3, v1")
    A("v_add_u32 %s, %d, v250" % (V(lXP), XSA))
    A("v_add_u32 %s, %d, v28" % (V(lXS), XSA + 2048))
    A("s_mov_b32 s%d, %d" % (sT0, XN))
    A("v_add_u32 %s, s%d, v28" % (V(lNW), sT0))
    A("s_add_u32 s%d, s%d, 1024" % (sT1, sT0))
    A("v_add_u32 %s, s%d, v29" % (V(lNH), sT1))
    A("s_mul_i32 s%d, s%d, 288" % (sT1, sP))
    A("s_add_u32 s%d, s%d, s%d" % (sT0, sT0, sT1))
    A("v_add_u32 %s, s%d, v249" % (V(lNR), sT0))
    A("s_add_u32 s%d, s%d, 256" % (sT0, sT0))
    A("v_lshl_add_u32 %s, v25, 3, s%d" % (V(lNR2), sT0))
    A("v_bfe_u32 v250, v1, 2, 2")
    A("v_lshl_add_u32 v250, v25, 3, v250")
    A("v_mul_u32_u24 v233, 144, v250")
    A("v_and_b32 v250, 3, v1")
    A("v_lshl_add_u32 v233, v250, 3, v233")
    A("s_mul_i32 s%d, s%d, %d" % (sT0, sWV, 32 * 144))
    A("s_add_u32 s%d, s%d, %d" % (sT0, sT0, WOS))
    A("v_add_u32 v233, s%d, v233" % sT0)
    A("s_mov_b32 s%d, 0" % sFB)
    A("v_mov_b32 %s, %s" % (V(vINV), fl(1.0 / 576)))
    A("v_mov_b32 %s, %s" % (V(vC1), fl((1.0 + 1e-5) / 576)))
    A("v_mov_b32 %s, %s" % (V(vEPS), fl(1e-5)))
    A("v_mov_b32 %s, %s" % (V(vEPS2), fl(1e-10)))
    add64(sOUT, "s%d" % oX)
    A("s_mov_b32 s%d, 0" % sL)
    A("s_mov_b32 s%d, 0" % sFAST)
    A("s_mov_b32 s%d, %d" % (sCNT, POLL_LIMIT))
    A("s_mov_b32 s%d, %s" % (sSMC, fl(SMC)))
    A("s_setpc_b64 %s" % sp(sRET))

    A.label("Lfallback")
    fw, ft = vMA, 244
    A("s_mul_i32 s%d, s%d, 8704" % (sT1, sWV))
    A("s_add_u32 s%d, s%d, %d" % (sT1, sT1, KB))
    A("v_lshl_add_u32 v250, v1, 4, s%d" % sT1)
    A("v_lshl_add_u32 v251, v1, 2, s%d" % sT1)
    for i in range(3):
        A("ds_read_b128 %s, v250 offset:%d" % (V(fw + 10 * i, 4), 2304 * i))
        A("ds_read_b128 %s, v250 offset:%d" % (V(fw + 10 * i + 4, 4), 2304 * i + 1024))
        A("ds_read_b32 %s, v251 offset:%d" % (V(fw + 10 * i + 8), 2304 * i + 2048))
    for i in range(9):
        A("v_bfe_u32 %s, %s, %d, 4" % (V(vM), V(vHS + (i >> 1)), 11 + 16 * (i & 1)))
        A("v_cmp_ne_u32 %s, 0, %s" % (sp(sMSK), V(vM)))
        A("v_%s %s, %s, %s" % (("and_b32" if i & 1 else "lshlrev_b32"), V(vM), ("0xffff0000" if i & 1 else "16"), V(vHP + (i >> 1))))
        A.label("Lfb_l%d" % i)
        A("s_cmp_eq_u64 %s, 0" % sp(sMSK))
        A("s_cbranch_scc1 Lfb_n%d" % i)
        A("s_ff1_i32_b64 s%d, %s" % (sT3, sp(sMSK)))
        A("s_bitset0_b64 %s, s%d" % (sp(sMSK), sT3))
        A("v_readlane_b32 s%d, %s, s%d" % (sFH, V(vM), sT3))
        A("s_call_b64 %s, Lfb_eval" % sp(sRET))
        A("s_mov_b32 m0, s%d" % sT3)
        A("v_writelane_b32 %s, s%d, m0" % (V(vY + i), sT0))
        A("s_branch Lfb_l%d" % i)
        A.label("Lfb_n%d" % i)
    A("s_branch Lfb_done")
    A.label("Lfb_eval")
    A("v_mov_b32 %s, 0" % V(ft))
    A("v_mov_b32 %s, 0" % V(ft + 1))
    A("v_mov_b32 %s, %s" % (V(ft + 2), fl(-K1)))
    A("v_mov_b32 %s, %s" % (V(ft + 6), fl(-K0)))
    A("v_mov_b32 %s, 1.0" % V(ft + 4))
    A("s_waitcnt lgkmcnt(0)")
    seqs = []
    for j in range(9):
        b = vS if j & 1 else vA
        a, c, w, t = (V(b + 2 * i, 2) for i in range(4))
        q = []
        for i in range(3):
            q.append("v_lshlrev_b32 %s, 16, %s" % (V(b + 2 * i), V(fw + 10 * i + j)))
            q.append("v_and_b32 %s, 0xffff0000, %s" % (V(b + 2 * i + 1), V(fw + 10 * i + j)))
        q += ["v_pk_fma_f32 %s, %s, %s, %s op_sel_hi:[1,0,1]" % (a, a, sp(sFH), c),
              "v_pk_mul_f32 %s, %s, %s" % (t, a, a),
              "v_pk_mul_f32 %s, %s, %s" % (w, w, a),
              "v_pk_fma_f32 %s, %s, %s, %s op_sel_hi:[1,0,0]" % (t, t, bc(ft + 2), bc(ft + 6)),
              "v_pk_mul_f32 %s, %s, %s" % (t, t, a),
              "v_exp_f32 %s, %s" % (V(b + 6), V(b + 6)),
              "v_exp_f32 %s, %s" % (V(b + 7), V(b + 7)),
              "v_pk_add_f32 %s, %s, %s op_sel_hi:[1,0]" % (t, t, V(ft + 4, 2)),
              "v_rcp_f32 %s, %s" % (V(b + 6), V(b + 6)),
              "v_rcp_f32 %s, %s" % (V(b + 7), V(b + 7)),
              "v_pk_fma_f32 %s, %s, %s, %s" % (V(ft, 2), w, t, V(ft, 2))]
        seqs.append(q)
    for j in range(0, 8, 2):
        for l0, l1 in zip(seqs[j], seqs[j + 1]):
            A(l0)
            A(l1)
    for l in seqs[8]:
        A(l)
    A("v_add_f32 %s, %s, %s" % (V(ft), V(ft), V(ft + 1)))
    for ctl in WAVE6:
        A("v_add_f32_dpp %s, %s, %s %s" % (V(ft), V(ft), V(ft), ctl))
    A("s_and_b32 s%d, s%d, 4" % (sT0, sFB))
    A("s_lshl_b32 s%d, s%d, 2" % (sT0, sT0))
    A("s_add_u32 s%d, s%d, %d" % (sT0, sT0, FB))
    A("s_lshl_b32 s%d, s%d, 2" % (sT1, sWV))
    A("s_add_u32 s%d, s%d, s%d" % (sT1, sT1, sT0))
    A("v_mov_b32 %s, s%d" % (V(ft + 5), sT1))
    A("v_mov_b32 %s, s%d" % (V(ft + 6), sT0))
    A("s_add_u32 s%d, s%d, 4" % (sFB, sFB))
    A("s_mov_b32 exec_lo, 0")
    A("s_mov_b32 exec_hi, 0x80000000")
    A("ds_write_b32 %s, %s" % (V(ft + 5), V(ft)))
    A("s_mov_b64 exec, -1")
    arrive_wait(16, 0, None)
    A.label("Lfb_spin")
    A("ds_read_b32 v253, v252")
    A("s_waitcnt lgkmcnt(0)")
    A("v_readfirstlane_b32 s%d, v253" % sT0)
    spin_tail("Lfb_spin", "s%d" % sFB)
    A("ds_read_b128 %s, %s" % (V(ft, 4), V(ft + 6)))
    A("s_waitcnt lgkmcnt(0)")
    A("v_pk_add_f32 %s, %s, %s" % (V(ft, 2), V(ft, 2), V(ft + 2, 2)))
    A("v_add_f32 %s, %s, %s" % (V(ft), V(ft), V(ft + 1)))
    A("v_cvt_pk_bf16_f32 %s, %s, %s" % (V(ft), V(ft), V(ft)))
    A("v_lshlrev_b32 %s, 16, %s" % (V(ft), V(ft)))
    A("v_add_f32 %s, %s, %s" % (V(ft), V(ft), V(vB2)))
    A("v_cvt_pk_bf16_f32 %s, %s, %s" % (V(ft), V(ft), V(ft)))
    A("v_lshlrev_b32 %s, 16, %s" % (V(ft), V(ft)))
    A("v_readfirstlane_b32 s%d, %s" % (sT0, V(ft)))
    A("s_nop 3")
    A("s_setpc_b64 %s" % sp(sRET))

    A.label("Lcode_end")
    body = A.finish()
    head = open("interleave_layers__sliding_block_cached__mixer_token_mlp__decode.s.ref").read().split(
        "; Override launch geometry")[0]
    head += "; @launch grid=(256,1,1) block=(512,1,1) lds=%d\n" % LDS
    head += """;
;    directly from the weights with the same formula (Lfallback), so every input gets the exact entry.
;
"""
    if DIAG:
        head += "; STAMPS: " + " ".join(STAMPS) + "\n"
    head += '.amdgcn_target "amdgcn-amd-amdhsa--gfx950"\n.text\n.globl %s\n.p2align 8\n.type %s,@function\n' % (NAME, NAME)
    tail = """.section .rodata,"a"
.p2align 6
.amdhsa_kernel %s
  .amdhsa_next_free_vgpr 256
  .amdhsa_next_free_sgpr 102
  .amdhsa_accum_offset 256
  .amdhsa_group_segment_fixed_size 0
  .amdhsa_kernarg_size 104
  .amdhsa_user_sgpr_count 2
  .amdhsa_user_sgpr_kernarg_segment_ptr 1
  .amdhsa_system_sgpr_workgroup_id_x 1
.end_amdhsa_kernel
""" % NAME
    return head + body + tail


if __name__ == "__main__":
    out = sys.argv[1]
    kw = {}
    for a in sys.argv[2:]:
        k, v = a.split("=")
        kw[k] = eval(v)
    open(out, "w").write(gen(**kw))
```
